```python
import torch

def _softmax(x, axis=-1):
    return torch.softmax(x, dim=axis)
def _gelu(x):
    return torch.nn.functional.gelu(x, approximate="tanh")
def _silu(x):
    return torch.nn.functional.silu(x)
def _sigmoid(x):
    return torch.sigmoid(x)
def _layernorm(x, axis=-1, eps=1e-5):
    m = x.mean(dim=axis, keepdim=True)
    v = x.var(dim=axis, keepdim=True, unbiased=False)
    return (x - m) / torch.sqrt(v + eps)
def _scatter_add(tgt, idx, src, axis=0):
    return tgt.clone().index_add_(axis, idx, src)
def _segment_sum(src, seg, n):
    out = torch.zeros((n,) + src.shape[1:], dtype=src.dtype)
    return out.index_add_(0, seg, src)
def _pad(x, pw):
    flat = tuple(v for pair in reversed(pw) for v in pair)
    return torch.nn.functional.pad(x, flat)

kernel_name = 'gated_mix__grouped_kv_mqa__sliding_local_dilated__prompt'

def setup_inputs():

    _w = (lambda a: (lambda t: t.to(torch.bfloat16) if t.is_floating_point() else t)(torch.as_tensor(a)))
    def _A_setup():
        B, S, D, H = 1, 2048, 640, 32
        Dh = D // H
        return {
            "x": _w((lambda *s: torch.randn(*s, dtype=torch.bfloat16) * 0.05)(B, S, D)),
            "wq": _w((lambda *s: torch.randn(*s, dtype=torch.bfloat16) * 1.6)(D, H * Dh)),
            "wk": _w((lambda *s: torch.randn(*s, dtype=torch.bfloat16) * 1.6)(D, Dh)),
            "wv": _w((lambda *s: torch.randn(*s, dtype=torch.bfloat16) * 0.2)(D, Dh)),
            "wo": _w((lambda *s: torch.randn(*s, dtype=torch.bfloat16) * 0.2)(H * Dh, D)),
        }
    _A_in = _A_setup()

    def _B_setup():
        B, S, D = 1, 2048, 640
        return {
            "x": _w((lambda *s: torch.randn(*s, dtype=torch.bfloat16) * 0.05)(B, S, D)),
            "wqkv": _w((lambda *s: torch.randn(*s, dtype=torch.bfloat16) * 0.8)(D, 3 * D)),
            "wo": _w((lambda *s: torch.randn(*s, dtype=torch.bfloat16) * 0.05)(D, D)),
        }
    _B_in = _B_setup()

    return {
        "A_x": _A_in["x"],
        "A_wq": _A_in["wq"],
        "A_wk": _A_in["wk"],
        "A_wv": _A_in["wv"],
        "A_wo": _A_in["wo"],
        "B_x": _B_in["x"],
        "B_wqkv": _B_in["wqkv"],
        "B_wo": _B_in["wo"],
        "gate_w": _w((lambda *s: torch.randn(*s, dtype=torch.bfloat16) * 0.05)(640) * 16.0),
    }

def reference(A_x, A_wq, A_wk, A_wv, A_wo, B_x, B_wqkv, B_wo, gate_w):
    def _A_ref(x, wq, wk, wv, wo):
        B, S, D = x.shape
        H = 32
        Dh = D // H
        q = (lambda x, *d: x.permute(*d))((x @ wq).reshape(B, S, H, Dh), 0, 2, 1, 3)
        k = x @ wk
        v = x @ wv
        scores = torch.einsum("bhqd,bkd->bhqk", q, k) * (Dh ** -0.5)
        p = _softmax(scores, axis=-1)
        o = torch.einsum("bhqk,bkd->bhqd", p, v)
        return (lambda x, *d: x.permute(*d))(o, 0, 2, 1, 3).reshape(B, S, H * Dh) @ wo

    def _B_ref(x, wqkv, wo):
        B, S, D = x.shape
        H = 32; Dh = D // H
        W, dil = 8, 2
        qkv = (lambda x, *d: x.permute(*d))((x @ wqkv).reshape(B, S, 3, H, Dh), 2, 0, 3, 1, 4)
        q, k, v = qkv[0], qkv[1], qkv[2]
        scale = Dh ** -0.5
        pos = torch.arange(S)
        off = torch.arange(W) * dil
        idx = pos[:, None] - off[None, :]
        mask = idx >= 0
        idx_c = torch.where(mask, idx, 0).reshape(-1)
        kg = k[:, :, idx_c, :].reshape(B, H, S, W, Dh)
        vg = v[:, :, idx_c, :].reshape(B, H, S, W, Dh)
        logits = torch.einsum("bhsd,bhswd->bhsw", q, kg) * scale
        logits = torch.where(mask[None, None, :, :], logits, -1e9)
        attn = _softmax(logits, axis=-1)
        o = torch.einsum("bhsw,bhswd->bhsd", attn, vg)
        return (lambda x, *d: x.permute(*d))(o, 0, 2, 1, 3).reshape(B, S, D) @ wo

    x = A_x
    g = _sigmoid((x * gate_w).sum(-1, keepdims=True))
    a = _A_ref(x, A_wq, A_wk, A_wv, A_wo)
    b = _B_ref(x, B_wqkv, B_wo)
    return g * a + (1 - g) * b
```

```python
class Asm:
    def __init__(self):
        self.lines = []
        self.vm = []
        self.lg = []
        self.nlabel = 0
        self.stamps = False
    def I(self, s):
        for l in s.strip('\n').split('\n'):
            self.lines.append('  ' + l.strip())
    def L(self, name):
        self.lines.append(name + ':')
    def C(self, s):
        self.lines.append('  ; ' + s)
    def raw(self, s):
        self.lines.append(s)
    def VM(self, s, tag):
        self.I(s)
        self.vm.append(tag)
        assert len(self.vm) <= 63, 'too many vm outstanding'
    def LG(self, s, tag):
        self.I(s)
        self.lg.append(tag)
    def _cnt(self, q, pred):
        last = -1
        for i, t in enumerate(q):
            if pred(t):
                last = i
        return last
    def wait(self, vm=None, lg=None):
        parts = []
        if vm is not None:
            p = (lambda t: True) if vm == 'all' else vm
            last = self._cnt(self.vm, p)
            if last >= 0:
                n = len(self.vm) - 1 - last
                parts.append(f'vmcnt({n})')
                self.vm = self.vm[last + 1:]
        if lg is not None:
            p = (lambda t: True) if lg == 'all' else lg
            last = self._cnt(self.lg, p)
            if last >= 0:
                n = len(self.lg) - 1 - last
                if n > 15:
                    n = 15
                    last = len(self.lg) - 1 - 15
                parts.append(f'lgkmcnt({n})')
                self.lg = self.lg[last + 1:]
        if parts:
            self.I('s_waitcnt ' + ' '.join(parts))
    def stamp(self, i):
        if self.stamps:
            self.I(f's_memtime s[{64+2*i}:{65+2*i}]')
            if i == 0:
                self.I(f's_memrealtime s[92:93]')
    def dump_stamps(self, n, srd, wsoff, wave_sgpr, vt0, vt1):
        if not self.stamps: return
        self.I('s_mov_b64 exec, -1')
        self.I('s_memrealtime s[94:95]')
        self.I('s_waitcnt lgkmcnt(0)')
        self.I(f's_lshl_b32 s3, s2, 4')
        self.I(f's_add_u32 s3, s3, s{wave_sgpr}')
        self.I(f's_lshl_b32 s3, s3, 6')
        self.I(f's_add_u32 s3, s3, {wsoff}')
        self.I(f'v_mov_b32 v{vt0}, 0')
        for i in list(range(n))+[14,15]:
            self.I(f'v_mov_b32 v{vt1}, s{64+2*i}')
            self.I(f'buffer_store_dword v{vt1}, v{vt0}, s[{srd}:{srd+3}], s3 offen offset:{4*i}')
            self.I('s_nop 1')
    def text(self):
        return '\n'.join(self.lines) + '\n'

def vr(i, n=1, c='v'):
    return f'{c}{i}' if n == 1 else f'{c}[{i}:{i+n-1}]'
def ar(i, n=1):
    return vr(i, n, 'a')
def sr(i, n=1):
    return vr(i, n, 's')

def kernel_header(name):
    return f'''.globl {name}
.p2align 8
.type {name},@function
{name}:
'''
def kernel_desc(name, vgpr, agpr=0, sgpr=96):
    acc = (vgpr + 3) // 4 * 4
    nfv = acc + agpr if agpr else vgpr
    return f'''.p2align 6
.amdhsa_kernel {name}
  .amdhsa_next_free_vgpr {nfv}
  .amdhsa_next_free_sgpr {sgpr}
  .amdhsa_accum_offset {acc}
  .amdhsa_group_segment_fixed_size 0
  .amdhsa_kernarg_size 96
  .amdhsa_user_sgpr_count 2
  .amdhsa_user_sgpr_kernarg_segment_ptr 1
  .amdhsa_system_sgpr_workgroup_id_x 1
.end_amdhsa_kernel
'''
import struct
def f32hex(x):
    return '0x%08x' % struct.unpack('<I', struct.pack('<f', x))[0]
```

```python
import math, sys
from asmlib import *

WS_QQK = 0
QQK_PT = 480 * 256
WS_VBT = 64 * QQK_PT
VBT_NT = 512 * 256
WS_KVF = WS_VBT + 20 * VBT_NT
WS_G   = WS_KVF + 163840
WS_OAB = WS_G + 8192
OAB_PT = 81920
WS_STAMP = WS_OAB + 64 * OAB_PT
WS_END = WS_STAMP + 3 * 262144
STAMPS = False
CSCALE = math.log2(math.e) / math.sqrt(20.0)

def load_ptrs(a):
    a.I('s_load_dwordx16 s[16:31], s[0:1], 0')
    a.I('s_load_dwordx8 s[32:39], s[0:1], 64')

def srd(a, d, base, size):
    a.I(f's_mov_b32 s{d}, s{base}')
    a.I(f's_mov_b32 s{d+1}, s{base+1}')
    a.I(f's_mov_b32 s{d+2}, {size}')
    a.I(f's_mov_b32 s{d+3}, 0x20000')

MF16 = 'v_mfma_f32_16x16x32_bf16'
MF32 = 'v_mfma_f32_32x32x16_bf16'
MF32h = 'v_mfma_f32_32x32x8_bf16'

def finish(a, name, kidx, srdws, wave_sgpr, t0, t1, nst):
    a.L(f'{name}_fin')
    if STAMPS:
        a.stamp(nst - 2)
        a.I('s_waitcnt vmcnt(0)')
        a.stamp(nst - 1)
        a.dump_stamps(nst, srdws, WS_STAMP + kidx * 262144, wave_sgpr, t0, t1)
    a.L(f'{name}_end')
    a.I('s_endpgm')

def gen_k1():
    a = Asm()
    name = 'k1_proj_kernel'
    a.stamps = STAMPS
    R = 4
    XO, WO, EO = 0, 16384, 16384 + 20480
    STG = EO + 2560
    LDS = R * STG + 256
    vL, vH, vP = 1, 2, 3
    vT0, vT1, vT2, vT3 = 4, 5, 6, 7
    vXa = 8
    vWa = 12
    vEa = 17
    vRX = 8
    vRW = 12
    vRE = 13
    vST = 14
    vCX = 16
    vCW = 20
    vCE = 21
    ACC = 24
    EACC = 104
    FW = 120
    NF = 6
    FX = FW + NF * 4
    PK = FX + 16
    NV = PK + 8
    a.raw(kernel_header(name))
    a.I('s_cmp_ge_u32 s2, 256')
    a.I(f's_cbranch_scc1 {name}_end')
    a.stamp(0)
    load_ptrs(a)
    a.I(f'''
    v_and_b32 v{vL}, 63, v0
    v_lshrrev_b32 v{vT0}, 6, v0
    v_lshrrev_b32 v{vH}, 5, v{vL}
    v_readfirstlane_b32 s9, v{vT0}
    v_and_b32 v{vP}, 31, v{vL}
    s_and_b32 s3, s2, 7
    s_lshr_b32 s4, s2, 3
    s_and_b32 s5, s3, 1
    s_lshl_b32 s5, s5, 3
    s_and_b32 s6, s4, 7
    s_add_u32 s7, s5, s6
    s_lshr_b32 s5, s3, 1
    s_lshl_b32 s5, s5, 2
    s_lshr_b32 s4, s4, 3
    s_add_u32 s8, s5, s4
    s_cmp_ge_u32 s9, 4
    s_cbranch_scc0 {name}_compute
    ''')
    a.I(f'''
    s_sub_u32 s10, s9, 4
    s_mul_i32 s5, s4, 3
    s_add_u32 s5, s5, s6
    s_cmp_ge_u32 s5, 10
    s_cselect_b32 s3, 10, 0
    s_sub_u32 s60, s5, s3
    s_cmp_lt_u32 s8, 4
    s_mov_b32 s11, 3840
    s_cselect_b32 s11, 1280, s11
    s_cselect_b32 s5, 0, 4
    s_sub_u32 s5, s8, s5
    s_mul_i32 s12, s5, 320
    s_lshl_b32 s13, s11, 6
    ''')
    a.I(f'''
    s_lshl_b32 s3, s7, 7
    s_lshl_b32 s5, s10, 5
    s_add_u32 s3, s3, s5
    v_lshrrev_b32 v{vT0}, 3, v{vL}
    v_and_b32 v{vT1}, 7, v{vL}
    ''')
    for n in range(4):
        a.I(f'''
        v_add_u32 v{vT2}, {n*8}, v{vT0}
        v_lshrrev_b32 v{vT3}, 1, v{vT2}
        v_and_b32 v{vT3}, 7, v{vT3}
        v_xor_b32 v{vT3}, v{vT3}, v{vT1}
        v_add_u32 v{vT2}, s3, v{vT2}
        v_mul_u32_u24 v{vT2}, 1280, v{vT2}
        v_lshl_add_u32 v{vXa+n}, v{vT3}, 4, v{vT2}
        ''')
    a.I(f's_mul_i32 s3, s10, 320')
    for n in range(5):
        a.I(f'''
        v_add_u32 v{vT0}, s3, v{vL}
        v_add_u32 v{vT0}, {n*64}, v{vT0}
        v_mul_u32_u24 v{vT1}, 3277, v{vT0}
        v_lshrrev_b32 v{vT1}, 16, v{vT1}
        v_mul_u32_u24 v{vT2}, 20, v{vT1}
        v_sub_u32 v{vT2}, v{vT0}, v{vT2}
        v_mul_u32_u24 v{vT1}, s11, v{vT1}
        v_lshl_add_u32 v{vT1}, v{vT2}, 4, v{vT1}
        v_add_u32 v{vWa+n}, s12, v{vT1}
        ''')
    a.I(f'''
    s_mul_i32 s3, s10, 640
    v_lshlrev_b32 v{vEa}, 4, v{vL}
    v_add_u32 v{vEa}, s3, v{vEa}
    s_lshl_b32 s61, s10, 12
    s_mul_i32 s62, s10, 5120
    s_add_u32 s62, s62, {WO}
    s_add_u32 s63, s3, {EO}
    s_waitcnt lgkmcnt(0)
    ''')
    srd(a, 40, 16, 2048 * 1280)
    a.I('''
    s_cmp_lt_u32 s8, 4
    s_cselect_b32 s44, s18, s28
    s_cselect_b32 s45, s19, s29
    s_mov_b32 s46, 2457600
    s_cselect_b32 s46, 819200, s46
    s_mov_b32 s47, 0x20000
    s_cmp_eq_u32 s8, 0
    s_cselect_b32 s52, s20, s22
    s_cselect_b32 s53, s21, s23
    s_mov_b32 s59, 2560
    s_cmp_eq_u32 s8, 2
    s_cselect_b32 s52, s32, s52
    s_cselect_b32 s53, s33, s53
    s_mov_b32 s54, 25600
    s_cselect_b32 s54, 1280, s54
    s_cselect_b32 s59, 128, s59
    s_cmp_lt_u32 s8, 3
    s_cselect_b32 s54, s54, 0
    s_mov_b32 s55, 0x20000
    s_mov_b32 s56, 0
    s_mov_b32 s57, 0
    ''')
    srd(a, 48, 38, WS_END)
    def issue_stage():
        a.I(f'''
        s_lshl_b32 s14, s60, 7
        s_mul_i32 s15, s60, s13
        s_mul_i32 s58, s60, s59
        s_add_u32 s3, s56, s61
        ''')
        for n in range(4):
            a.I(f's_add_u32 m0, s3, {n*1024}')
            a.I('s_add_u32 s4, s56, s62' if n == 0 else 's_nop 0')
            a.I(f'buffer_load_dwordx4 v{vXa+n}, s[40:43], s14 offen lds')
        for n in range(5):
            a.I(f's_add_u32 m0, s4, {n*1024}')
            a.I('s_nop 0')
            a.I(f'buffer_load_dwordx4 v{vWa+n}, s[44:47], s15 offen lds')
        a.I(f'''
        s_add_u32 m0, s56, s63
        s_mov_b32 exec_hi, 0xff
        buffer_load_dwordx4 v{vEa}, s[52:55], s58 offen lds
        s_mov_b32 exec_hi, -1
        s_add_u32 s60, s60, 1
        s_cmp_ge_u32 s60, 10
        s_cselect_b32 s60, 0, s60
        s_add_u32 s56, s56, {STG}
        s_cmp_ge_u32 s56, {R*STG}
        s_cselect_b32 s56, 0, s56
        s_add_u32 s57, s57, 1
        ''')
    a.L(f'{name}_lpro')
    issue_stage()
    a.I('s_cmp_lt_u32 s57, 2')
    a.I(f's_cbranch_scc1 {name}_lpro')
    a.stamp(1)
    a.L(f'{name}_lloop')
    a.I('s_waitcnt vmcnt(10)')
    a.I('s_barrier')
    issue_stage()
    a.I('s_cmp_lt_u32 s57, 10')
    a.I(f's_cbranch_scc1 {name}_lloop')
    a.I('s_waitcnt vmcnt(10)')
    a.I('s_barrier')
    a.I('s_waitcnt vmcnt(0)')
    a.I('s_barrier')
    a.I(f's_branch {name}_fin')
    a.L(f'{name}_compute')
    a.I(f'''
    s_lshl_b32 s10, s7, 2
    s_add_u32 s10, s10, s9
    s_lshl_b32 s3, s9, 12
    v_lshrrev_b32 v{vT0}, 1, v{vP}
    v_and_b32 v{vT0}, 7, v{vT0}
    v_xor_b32 v{vT0}, v{vT0}, v{vH}
    v_lshlrev_b32 v{vT1}, 7, v{vP}
    v_add_u32 v{vT1}, s3, v{vT1}
    ''')
    for ks in range(4):
        a.I(f'''
        v_xor_b32 v{vT2}, {2*ks}, v{vT0}
        v_lshl_add_u32 v{vCX+ks}, v{vT2}, 4, v{vT1}
        ''')
    a.I(f'''
    v_bfe_u32 v{vT0}, v{vL}, 2, 2
    v_lshl_add_u32 v{vT0}, v{vH}, 3, v{vT0}
    v_and_b32 v{vT1}, 3, v{vL}
    v_lshlrev_b32 v{vT1}, 3, v{vT1}
    v_bfe_u32 v{vT2}, v{vL}, 4, 1
    v_lshl_add_u32 v{vT1}, v{vT2}, 5, v{vT1}
    v_mul_u32_u24 v{vT2}, 320, v{vT0}
    v_add3_u32 v{vCW}, v{vT2}, v{vT1}, 0
    v_add_u32 v{vCW}, {WO}, v{vCW}
    v_mul_u32_u24 v{vT2}, 40, v{vT0}
    v_add_u32 v{vCE}, v{vT2}, v{vT1}
    v_add_u32 v{vCE}, {EO}, v{vCE}
    v_lshlrev_b32 v{vST}, 3, v{vL}
    ''')
    for r in range(96):
        a.I(f'v_mov_b32 v{ACC+r}, 0')
    a.I('s_waitcnt lgkmcnt(0)')
    srd(a, 48, 38, WS_END)
    a.I(f'''
    s_mov_b32 s57, 0
    s_mov_b32 s56, 0
    s_cmp_ge_u32 s8, 12
    s_cbranch_scc1 {name}_mN
    s_cmp_eq_u32 s8, 0
    s_cbranch_scc1 {name}_mK
    s_cmp_eq_u32 s8, 1
    s_cbranch_scc1 {name}_mV
    s_cmp_eq_u32 s8, 2
    s_cbranch_scc1 {name}_mG
    ''')
    def main(lab, orient, ex):
        nt = 6 if ex else 5
        NU = 4 * nt
        D = 4
        assert NU % 2 == 0
        nf = NF if NU % NF == 0 else 5
        assert NU % nf == 0 and nf > D
        a.lg = []
        def reads(u):
            ks, t = divmod(u, nt)
            f = FW + (u % nf) * 4
            if t == 0:
                a.LG(f'ds_read_b128 {vr(FX+ks*4,4)}, v{vCX+ks}', u)
            if t < 5:
                for h in range(2):
                    a.LG(f'ds_read_b64_tr_b16 {vr(f+2*h,2)}, v{vCW} offset:{ks*5120 + h*1280 + t*64}', u)
            elif ex == 'G':
                a.LG(f'ds_read_b128 {vr(f,4)}, v{vCE} offset:{ks*32}', u)
            else:
                for h in range(2):
                    a.LG(f'ds_read_b64_tr_b16 {vr(f+2*h,2)}, v{vCE} offset:{ks*640 + h*160}', u)
        def mfma(u):
            ks, t = divmod(u, nt)
            f = FW + (u % nf) * 4
            d = vr(ACC + t * 16, 16)
            o = orient if t < 5 else ('N' if ex == 'V' else 'T')
            if o == 'T':
                a.I(f'{MF32} {d}, {vr(f,4)}, {vr(FX+ks*4,4)}, {d}')
            else:
                a.I(f'{MF32} {d}, {vr(FX+ks*4,4)}, {vr(f,4)}, {d}')
        def advance():
            a.I(f'''
            s_add_u32 s56, s56, 1
            s_and_b32 s56, s56, 3
            s_cmp_eq_u32 s56, 0
            s_mov_b32 s3, {STG}
            s_cselect_b32 s3, {(-(R-1)*STG) & 0xffffffff}, s3
            ''')
            for r in list(range(vCX, vCX + 4)) + [vCW] + ([vCE] if ex else []):
                a.I(f'v_add_u32 v{r}, s3, v{r}')
        a.L(lab)
        if ex == 'G':
            a.I(f'v_lshlrev_b32 v{vCE}, 4, v{vH}')
            a.I(f'v_add_u32 v{vCE}, {EO}, v{vCE}')
        a.I('s_barrier')
        a.stamp(2)
        for u in range(D):
            reads(u)
        a.L(lab + '_loop')
        start_lg = list(a.lg)
        for u in range(0, NU - D):
            reads(u + D)
            a.wait(lg=lambda t: t <= u)
            mfma(u)
        advance()
        a.I('s_add_u32 s57, s57, 1')
        a.I('s_cmp_ge_u32 s57, 10')
        a.I(f's_cbranch_scc1 {lab}_tail')
        tail_lg = list(a.lg)
        a.I('s_barrier')
        for u in range(NU - D, NU):
            un = u + D - NU
            n0 = len(a.lg)
            reads(un)
            for q in range(n0, len(a.lg)):
                a.lg[q] = a.lg[q] + NU
            a.wait(lg=lambda t: t <= u)
            mfma(u)
        a.lg = [t - NU for t in a.lg]
        assert a.lg == start_lg, (a.lg, start_lg)
        a.I(f's_branch {lab}_loop')
        a.L(lab + '_tail')
        a.lg = tail_lg
        for u in range(NU - D, NU):
            a.wait(lg=lambda t: t <= u)
            mfma(u)
        a.stamp(3)
    def epi_T():
        a.I(f'''
        s_cmp_lt_u32 s8, 8
        s_cselect_b32 s3, {f32hex(CSCALE)}, 1.0
        v_mov_b32 v{vT2}, s3
        s_mul_i32 s58, s10, {QQK_PT}
        s_mul_i32 s3, s8, {40*256}
        s_add_u32 s58, s58, s3
        s_nop 7
        s_nop 3
        ''')
        for t in range(5):
            for q in range(4):
                r = ACC + t * 16 + q * 4
                p = PK + (q % 4) * 2
                for e in range(4):
                    a.I(f'v_mul_f32 v{r+e}, v{vT2}, v{r+e}')
                a.I(f'v_cvt_pk_bf16_f32 v{r}, v{r}, v{r+1}')
                a.I(f'v_cvt_pk_bf16_f32 v{r+1}, v{r+2}, v{r+3}')
                a.I(f'buffer_store_dwordx2 {vr(r,2)}, v{vST}, s[48:51], s58 offen offset:{(t%2)*2048 + q*512}')
            if t % 2 == 1:
                a.I('s_add_u32 s58, s58, 4096')
    main(f'{name}_mT', 'T', None)
    a.L(f'{name}_epiT')
    epi_T()
    a.I(f's_branch {name}_fin')
    main(f'{name}_mN', 'N', None)
    a.I(f'''
    s_sub_u32 s3, s8, 12
    s_mul_i32 s58, s3, {5*VBT_NT}
    s_lshl_b32 s3, s10, 11
    s_add_u32 s58, s58, s3
    s_add_u32 s58, s58, {WS_VBT}
    s_nop 7
    s_nop 3
    ''')
    for t in range(5):
        for q in range(4):
            r = ACC + t * 16 + q * 4
            a.I(f'v_cvt_pk_bf16_f32 v{r}, v{r}, v{r+1}')
            a.I(f'v_cvt_pk_bf16_f32 v{r+1}, v{r+2}, v{r+3}')
            a.I(f'buffer_store_dwordx2 {vr(r,2)}, v{vST}, s[48:51], s58 offen offset:{q*512}')
        a.I(f's_add_u32 s58, s58, {VBT_NT}')
    a.I(f's_branch {name}_fin')
    main(f'{name}_mK', 'T', 'K')
    a.I(f'''
    s_mul_i32 s59, s10, 2560
    s_add_u32 s59, s59, {WS_KVF}
    v_lshlrev_b32 v{vT0}, 4, v{vL}
    s_nop 7
    s_nop 3
    ''')
    for k in range(6):
        a.I(f'v_cvt_pk_bf16_f32 v{PK+k}, v{EACC+2*k}, v{EACC+2*k+1}')
    a.I(f'''
    buffer_store_dwordx4 {vr(PK,4)}, v{vT0}, s[48:51], s59 offen
    s_mov_b32 exec_hi, 0
    buffer_store_dwordx2 {vr(PK+4,2)}, v{vST}, s[48:51], s59 offen offset:1024
    s_mov_b64 exec, -1
    s_branch {name}_epiT
    ''')
    main(f'{name}_mV', 'T', 'V')
    a.I(f'''
    s_mul_i32 s59, s10, 2560
    s_add_u32 s59, s59, {WS_KVF}
    v_mul_u32_u24 v{vT0}, 320, v{vH}
    v_lshl_add_u32 v{vT0}, v{vP}, 4, v{vT0}
    s_nop 7
    s_nop 3
    ''')
    for k in range(8):
        a.I(f'v_cvt_pk_bf16_f32 v{PK+k}, v{EACC+2*k}, v{EACC+2*k+1}')
    a.I(f'''
    s_mov_b32 s4, 0xfffff
    s_mov_b32 s5, 0xfffff
    s_mov_b64 exec, s[4:5]
    buffer_store_dwordx4 {vr(PK,4)}, v{vT0}, s[48:51], s59 offen offset:1280
    buffer_store_dwordx4 {vr(PK+4,4)}, v{vT0}, s[48:51], s59 offen offset:1920
    s_mov_b64 exec, -1
    s_branch {name}_epiT
    ''')
    main(f'{name}_mG', 'T', 'G')
    r = EACC
    a.I(f'''
    s_lshl_b32 s59, s10, 7
    s_add_u32 s59, s59, {WS_G}
    v_lshlrev_b32 v{vT0}, 2, v{vL}
    s_nop 7
    s_nop 3
    v_mul_f32 v{r}, {f32hex(-math.log2(math.e))}, v{r}
    v_exp_f32 v{r}, v{r}
    s_nop 0
    v_add_f32 v{r}, 1.0, v{r}
    v_rcp_f32 v{r}, v{r}
    s_mov_b32 exec_hi, 0
    buffer_store_dword v{r}, v{vT0}, s[48:51], s59 offen
    s_mov_b64 exec, -1
    s_branch {name}_epiT
    ''')
    finish(a, name, 0, 48, 9, vT0, vT1, 6)
    return name, a.text(), kernel_desc(name, NV, 0, 100), f'grid=(256,1,1) block=(512,1,1) lds={LDS}'

def build(kernels, path):
    hdr = open('gated_mix__grouped_kv_mqa__sliding_local_dilated__prompt.s.ref').read().split('\n')
    head = [l for l in hdr if l.startswith(';') and '@launch' not in l and 'Override launch' not in l and 'grid=ceil' not in l]
    s = '\n'.join(head) + '\n'
    for n, t, d, l in kernels:
        s += f'; @launch kernel={n} {l}\n'
    s += '.amdgcn_target "amdgcn-amd-amdhsa--gfx950"\n.text\n'
    for n, t, d, l in kernels:
        s += t
    s += '.section .rodata,"a"\n'
    for n, t, d, l in kernels:
        s += d
    open(path, 'w').write(s)

if __name__ == '__main__':
    if 'stamps' in sys.argv: STAMPS = True
    ks = [gen_k1()]
    build(ks, sys.argv[1] if len(sys.argv) > 1 else 'k.s')
```

```python
from gen import *
import gen

def gen_k2():
    a = Asm()
    name = 'k2_attn_kernel'
    a.stamps = gen.STAMPS
    LDS = 8 * 3 * 3072
    vL, vH, vP = 1, 2, 3
    T0, T1, T2, T3 = 4, 5, 6, 7
    vK1a, vK2a, vVa, vG = 8, 9, 10, 11
    vC, vG4 = 12, 13
    T4, T5 = 14, 15
    Q1 = 16; Q2 = 32
    def K1(b): return 40 + 16 * b
    def V1(b): return 44 + 16 * b
    def V2(b): return 48 + 16 * b
    def K2(b): return 52 + 16 * b
    P = 72
    S = [80, 96]
    O = 112
    LQ, LK, LV, LB, LG, ONES = 176, 184, 196, 208, 220, 224
    LA = 228
    NV = 236
    a.raw(kernel_header(name))
    a.I('s_cmp_ge_u32 s2, 256')
    a.I(f's_cbranch_scc1 {name}_end')
    a.stamp(0)
    a.I('s_load_dwordx2 s[38:39], s[0:1], 88')
    a.I(f'''
    v_and_b32 v{vL}, 63, v0
    v_lshrrev_b32 v{T0}, 6, v0
    v_lshrrev_b32 v{vH}, 5, v{vL}
    v_readfirstlane_b32 s9, v{T0}
    v_and_b32 v{vP}, 31, v{vL}
    v_lshlrev_b32 v{vK1a}, 4, v{vL}
    v_lshlrev_b32 v{vK2a}, 3, v{vL}
    v_mul_u32_u24 v{vVa}, 320, v{vH}
    v_lshl_add_u32 v{vVa}, v{vP}, 4, v{vVa}
    v_and_b32 v{vC}, 15, v{vL}
    v_lshrrev_b32 v{vG4}, 4, v{vL}
    s_and_b32 s3, s2, 7
    s_lshr_b32 s4, s2, 3
    s_lshl_b32 s3, s3, 3
    s_lshr_b32 s5, s4, 2
    s_add_u32 s7, s3, s5
    s_and_b32 s8, s4, 3
    s_and_b32 s10, s9, 1
    s_lshr_b32 s11, s9, 1
    s_lshl_b32 s12, s8, 3
    s_lshl_b32 s3, s10, 2
    s_add_u32 s12, s12, s3
    s_mul_i32 s13, s7, {QQK_PT}
    s_mul_i32 s14, s11, {16*2560}
    s_add_u32 s14, s14, {WS_KVF}
    s_mov_b32 s15, {WS_KVF}
    s_mov_b32 s16, 0xfffff
    s_mov_b32 s17, 0xfffff
    ''')
    for t in range(4):
        a.I(f'''
        s_add_u32 s3, s11, {t}
        s_and_b32 s3, s3, 3
        s_add_u32 s{24+t}, s3, s12
        s_mul_i32 s3, s{24+t}, {5*256}
        s_add_u32 s{20+t}, s3, s13
        ''')
    for b in range(2):
        a.I(f'v_mov_b32 v{K2(b)}, 0x3f803f80')
        a.I(f'v_mov_b32 v{K2(b)+1}, 0x3f80')
    a.I(f'''
    v_mov_b32 v{T1}, 0x3f803f80
    v_cmp_eq_u32 vcc, 20, v{vP}
    s_nop 1
    v_cndmask_b32 v{T0}, 0, v{T1}, vcc
    ''')
    for b in range(2):
        for r in range(8):
            a.I(f'v_mov_b32 v{V1(b)+r}, v{T0}')
    for t in range(4):
        a.I(f'v_mov_b32 v{Q2+2*t}, 0')
        a.I(f'v_mov_b32 v{Q2+2*t+1}, 0')
    a.I('s_waitcnt lgkmcnt(0)')
    srd(a, 48, 38, WS_END)
    W = 's[48:51]'
    def loadK(b, so, tag):
        a.VM(f'buffer_load_dwordx4 {vr(K1(b),4)}, v{vK1a}, {W}, {so} offen', tag)
        a.I('s_mov_b32 exec_hi, 0')
        a.VM(f'buffer_load_dwordx2 {vr(K2(b),2)}, v{vK2a}, {W}, {so} offen offset:1024', tag)
        a.I('s_mov_b32 exec_hi, -1')
    def loadV(b, so, tag):
        a.I('s_mov_b64 exec, s[16:17]')
        a.VM(f'buffer_load_dwordx4 {vr(V1(b),4)}, v{vVa}, {W}, {so} offen offset:1280', tag)
        a.VM(f'buffer_load_dwordx4 {vr(V2(b),4)}, v{vVa}, {W}, {so} offen offset:1920', tag)
        a.I('s_mov_b64 exec, -1')
    loadK(1, 's15', 'k0')
    for t in range(4):
        a.VM(f'buffer_load_dwordx2 {vr(Q1+4*t,2)}, v{vK2a}, {W}, s{20+t} offen', 'q')
        a.VM(f'buffer_load_dwordx2 {vr(Q1+4*t+2,2)}, v{vK2a}, {W}, s{20+t} offen offset:512', 'q')
    a.I('s_mov_b32 exec_hi, 0')
    for t in range(4):
        a.VM(f'buffer_load_dwordx2 {vr(Q2+2*t,2)}, v{vK2a}, {W}, s{20+t} offen offset:1024', 'q')
    a.I('s_mov_b32 exec_hi, -1')
    loadK(0, 's14', 'kA')
    loadV(0, 's14', 'vA')
    a.I(f'''
    s_lshl_b32 s18, s7, 7
    s_add_u32 s18, s18, {WS_G}
    v_lshlrev_b32 v{T0}, 2, v{vP}
    ''')
    a.VM(f'buffer_load_dword v{vG}, v{T0}, {W}, s18 offen', 'loc')
    a.I(f'''
    s_lshl_b32 s28, s8, 3
    s_add_u32 s28, s28, s9
    s_mul_i32 s3, s28, {5*256}
    s_add_u32 s29, s13, s3
    s_add_u32 s29, s29, {160*256}
    s_add_u32 s30, s29, {160*256}
    s_sub_u32 s31, s30, {QQK_PT}
    s_cmp_eq_u32 s7, 0
    s_cselect_b32 s31, s30, s31
    v_lshlrev_b32 v{LA}, 3, v{vC}
    v_lshl_add_u32 v{LA+1}, v{vG4}, 8, v{LA}
    v_lshlrev_b32 v{T0}, 2, v{vC}
    ''')
    for u in range(2):
        a.I(f'v_mov_b32 v{LQ+4*u+2}, 0')
        a.I(f'v_mov_b32 v{LQ+4*u+3}, 0')
    for u in range(2):
        a.VM(f'buffer_load_dwordx2 {vr(LQ+4*u,2)}, v{LA+1}, {W}, s29 offen offset:{128*u}', 'loc')
        a.VM(f'buffer_load_dword v{LG+u}, v{T0}, {W}, s18 offen offset:{64*u}', 'loc')
    a.I('s_mov_b64 exec, 0xffff')
    for u in range(2):
        a.VM(f'buffer_load_dwordx2 {vr(LQ+4*u+2,2)}, v{LA}, {W}, s29 offen offset:{1024+128*u}', 'loc')
    a.I('s_mov_b64 exec, -1')
    for kt, (so, off) in enumerate([('s31', 128), ('s30', 0), ('s30', 128)]):
        a.VM(f'buffer_load_dwordx2 {vr(LK+4*kt,2)}, v{LA+1}, {W}, {so} offen offset:{off}', 'loc')
        a.VM(f'buffer_load_dwordx2 {vr(LK+4*kt+2,2)}, v{LA}, {W}, {so} offen offset:{1024+off}', 'loc')
    a.I(f'''
    s_mul_i32 s3, s28, 20
    s_lshl_b32 s32, s7, 11
    s_add_u32 s32, s32, {WS_VBT}
    s_sub_u32 s33, s32, 1024
    s_cmp_eq_u32 s7, 0
    s_cselect_b32 s33, s32, s33
    ''')
    for d in range(2):
        a.I(f'''
        v_add_u32 v{T1}, s3, v{vC}
        v_add_u32 v{T1}, {16*d}, v{T1}
        v_min_u32 v{T1}, 639, v{T1}
        v_lshrrev_b32 v{T2}, 5, v{T1}
        v_lshlrev_b32 v{T2}, 17, v{T2}
        v_and_b32 v{T1}, 31, v{T1}
        v_lshl_add_u32 v{T2}, v{T1}, 3, v{T2}
        v_lshl_add_u32 v{LA+2+d}, v{vG4}, 8, v{T2}
        ''')
        for kt, (so, off) in enumerate([('s33', 0), ('s32', 0), ('s32', 1024)]):
            a.VM(f'buffer_load_dwordx2 {vr(LV+6*d+2*kt,2)}, v{LA+2+d}, {W}, {so} offen offset:{off}', 'loc')
    a.I(f'''
    v_lshlrev_b32 v{T1}, 2, v{vG4}
    v_sub_u32 v{T1}, v{vC}, v{T1}
    v_mov_b32 v{T3}, 0xff800000
    s_cmp_eq_u32 s7, 0
    s_cselect_b64 s[34:35], 0, -1
    ''')
    for k in range(8):
        r, pv = k % 4, k // 4
        a.I(f'''
        v_add_u32 v{T2}, {16*pv - r}, v{T1}
        v_and_b32 v{T2}, 0xfffffff1, v{T2}
        v_cmp_eq_u32 vcc, 0, v{T2}
        s_nop 1
        v_cndmask_b32 v{LB+k}, v{T3}, 0, vcc
        ''')
        if pv:
            a.I(f'v_cndmask_b32 v{LB+4+k}, v{T3}, v{LB+k}, s[34:35]')
    for r in range(4):
        a.I(f'v_mov_b32 v{ONES+r}, 0x3f803f80')
    for r in range(4, 8):
        a.I(f'v_mov_b32 v{P+r}, 0')
    a.stamp(1)
    a.wait(vm=lambda t: t in ('k0', 'q'))
    a.stamp(2)
    for t in range(4):
        a.I(f'{MF32} {vr(O+16*t,16)}, {vr(K1(1),4)}, {vr(Q1+4*t,4)}, 0')
    for t in range(4):
        a.I(f'{MF32h} {vr(O+16*t,16)}, {vr(K2(1),2)}, {vr(Q2+2*t,2)}, {vr(O+16*t,16)}')
    a.I('s_nop 7\ns_nop 1')
    for t in range(4):
        o = O + 16 * t
        a.I(f'v_max3_f32 v{T0}, v{o}, v{o+1}, v{o+2}')
        for k in range(3, 15, 2):
            a.I(f'v_max3_f32 v{T0}, v{T0}, v{o+k}, v{o+k+1}')
        a.I(f'v_max_f32 v{T0}, v{T0}, v{o+15}')
        a.I('s_mov_b32 exec_lo, 0')
        a.I(f'v_cvt_pk_bf16_f32 v{Q2+2*t}, -v{T0}, 0')
        a.I('s_mov_b32 exec_lo, -1')
        for r in range(16):
            a.I(f'v_mov_b32 v{o+r}, 0')
    a.wait(vm=lambda t: t == 'kA')
    a.I(f'{MF32} {vr(S[0],16)}, {vr(K1(0),4)}, {vr(Q1,4)}, 0')
    a.I(f'{MF32h} {vr(S[0],16)}, {vr(K2(0),2)}, {vr(Q2,2)}, {vr(S[0],16)}')
    a.wait(vm='all')
    a.I('s_mov_b32 s19, 0')
    a.I('s_nop 7\ns_nop 3')
    a.stamp(3)
    def ex(r): a.I(f'v_exp_f32 v{r}, v{r}')
    def cv(d, s): a.I(f'v_cvt_pk_bf16_f32 v{d}, v{s}, v{s+1}')
    a.raw('.p2align 6')
    a.L(f'{name}_loop')
    for b in range(2):
        nb = 1 - b
        for t in range(4):
            Sc, Sn = S[t & 1], S[1 - (t & 1)]
            tn = (t + 1) & 3
            kb = b if t < 3 else nb
            tp = (t - 1) & 3
            vpb = b if t > 0 else nb
            if t == 0:
                a.I('s_add_u32 s14, s14, 2560')
                loadK(nb, 's14', 'k')
                a.vm = []
            if t == 1:
                loadV(nb, 's14', 'v')
                a.vm = []
            if t == 3:
                a.I('s_waitcnt vmcnt(2)')
            a.I(f'{MF32} {vr(Sn,16)}, {vr(K1(kb),4)}, {vr(Q1+4*tn,4)}, 0')
            for k in range(4): ex(Sc + k)
            a.I(f'{MF32} {vr(O+16*tp,16)}, {vr(V2(vpb),4)}, {vr(P+4,4)}, {vr(O+16*tp,16)}')
            for k in range(4, 8): ex(Sc + k)
            a.I(f'{MF32h} {vr(Sn,16)}, {vr(K2(kb),2)}, {vr(Q2+2*tn,2)}, {vr(Sn,16)}')
            for k in range(4): cv(P + k, Sc + 2 * k)
            for k in range(8, 12): ex(Sc + k)
            if t == 0:
                a.I('s_waitcnt vmcnt(2)')
            a.I(f'{MF32} {vr(O+16*t,16)}, {vr(V1(b),4)}, {vr(P,4)}, {vr(O+16*t,16)}')
            for k in range(12, 16): ex(Sc + k)
            for k in range(4, 8): cv(P + k, Sc + 2 * k)
    a.I(f'''
    s_add_u32 s19, s19, 1
    s_cmp_lt_u32 s19, 8
    s_cbranch_scc1 {name}_loop
    s_nop 0
    {MF32} {vr(O+48,16)}, {vr(V2(1),4)}, {vr(P+4,4)}, {vr(O+48,16)}
    ''')
    a.stamp(4)
    for t in (1, 2, 3):
        a.I(f'''
        s_add_u32 s3, s11, {t}
        s_and_b32 s3, s3, 3
        s_lshl_b32 s3, s3, 1
        s_add_u32 s3, s3, s10
        s_mul_i32 s3, s3, 9216
        s_add_u32 s3, s3, {(t-1)*3072}
        v_add_u32 v{T0+t}, s3, v{vK1a}
        ''')
    a.I('s_nop 3')
    for t in (1, 2, 3):
        for i in range(3):
            a.I(f'ds_write_b128 v{T0+t}, {vr(O+16*t+4*i,4)} offset:{i*1024}')
    LS = S[0]
    LP = P
    LO = S[1]
    LL = K1(0)
    for u in range(2):
        bp = LB + 8 if u == 0 else LB + 4
        a.I(f'{MF16} {vr(LS+8*u,4)}, {vr(LK+4*u,4)}, {vr(LQ+4*u,4)}, {vr(bp,4)}')
        a.I(f'{MF16} {vr(LS+8*u+4,4)}, {vr(LK+4*u+4,4)}, {vr(LQ+4*u,4)}, {vr(LB,4)}')
    a.I('s_nop 7')
    for u in range(2):
        s = LS + 8 * u
        m, m2 = (T4, T5) if u == 0 else (LA + 4, LA + 5)
        a.I(f'''
        v_max3_f32 v{m}, v{s}, v{s+1}, v{s+2}
        v_max3_f32 v{m}, v{m}, v{s+3}, v{s+4}
        v_max3_f32 v{m}, v{m}, v{s+5}, v{s+6}
        v_max_f32 v{m}, v{m}, v{s+7}
        v_mov_b32 v{m2}, v{m}
        s_nop 1
        v_permlane16_swap_b32 v{m}, v{m2}
        s_nop 1
        v_max_f32 v{m}, v{m}, v{m2}
        v_mov_b32 v{m2}, v{m}
        s_nop 1
        v_permlane32_swap_b32 v{m}, v{m2}
        s_nop 1
        v_max_f32 v{m}, v{m}, v{m2}
        ''')
        for k in range(8):
            a.I(f'v_sub_f32 v{s+k}, v{s+k}, v{m}')
        for k in range(8):
            ex(s + k)
        a.I('s_nop 0')
        for k in range(4):
            cv(LP + 4 * u + k, s + 2 * k)
    a.I('s_waitcnt vmcnt(0)')
    a.I('s_nop 1')
    for u in range(2):
        a.I(f'{MF16} {vr(LL+4*u,4)}, {vr(ONES,4)}, {vr(LP+4*u,4)}, 0')
        a.I(f'{MF16} {vr(LO+8*u,4)}, {vr(LV+2*u,4)}, {vr(LP+4*u,4)}, 0')
        a.I(f'{MF16} {vr(LO+8*u+4,4)}, {vr(LV+6+2*u,4)}, {vr(LP+4*u,4)}, 0')
    a.I(f'''
    s_mul_i32 s36, s7, {OAB_PT}
    s_add_u32 s36, s36, {WS_OAB}
    s_lshr_b32 s3, s28, 2
    s_mul_i32 s3, s3, 5120
    s_add_u32 s3, s3, s36
    s_add_u32 s3, s3, 40960
    s_and_b32 s4, s28, 3
    s_lshl_b32 s5, s4, 10
    s_add_u32 s37, s3, s5
    s_lshr_b32 s5, s4, 1
    s_lshl_b32 s5, s5, 9
    s_and_b32 s4, s4, 1
    s_lshl_b32 s4, s4, 3
    s_add_u32 s3, s3, s5
    s_add_u32 s3, s3, s4
    s_add_u32 s40, s3, 4096
    v_lshlrev_b32 v{T0}, 4, v{vC}
    v_and_b32 v{T1}, 1, v{vG4}
    v_lshl_add_u32 v{T1}, v{T1}, 9, v{T0}
    v_lshrrev_b32 v{T2}, 1, v{vG4}
    v_lshl_add_u32 v{T1}, v{T2}, 3, v{T1}
    ''')
    for u in range(2):
        o = LO + 8 * u
        a.I(f'''
        v_rcp_f32 v{T2}, v{LL+4*u}
        v_sub_f32 v{T3}, 1.0, v{LG+u}
        v_mul_f32 v{T2}, v{T2}, v{T3}
        ''')
        for k in range(8):
            a.I(f'v_mul_f32 v{o+k}, v{T2}, v{o+k}')
        for k in range(4):
            cv(o + k, o + 2 * k)
        a.I(f'buffer_store_dwordx2 {vr(o,2)}, v{T1}, {W}, s37 offen offset:{256*u}')
        a.I('s_mov_b64 exec, 0xffff')
        a.I(f'buffer_store_dwordx2 {vr(o+2,2)}, v{T0}, {W}, s40 offen offset:{256*u}')
        a.I('s_mov_b64 exec, -1')
    a.stamp(5)
    a.I(f'''
    s_mul_i32 s3, s9, 9216
    v_add_u32 v{T0}, s3, v{vK1a}
    s_waitcnt lgkmcnt(0)
    s_barrier
    ''')
    for k in range(9):
        a.I(f'ds_read_b128 {vr(O+16+4*k,4)}, v{T0} offset:{k*1024}')
    for sl in range(3):
        a.I(f's_waitcnt lgkmcnt({6-3*sl})')
        for r in range(12):
            a.I(f'v_add_f32 v{O+r}, v{O+r}, v{O+16+12*sl+r}')
    a.I('s_mov_b32 s41, 0')
    a.L(f'{name}_final')
    a.I(f'''
    v_mov_b32 v{T0}, v{O+8}
    v_mov_b32 v{T1}, v{O+8}
    v_mov_b32 v{T2}, 0
    v_mov_b32 v{T3}, 0
    v_permlane32_swap_b32 v{T0}, v{T1}
    ''')
    for r in range(12):
        a.I(f'v_fma_f32 v{T2}, v{O+r}, v{T3}, v{T2}')
    a.I(f'''
    v_add_f32 v{T2}, v{T2}, v{T1}
    v_cmp_nlt_f32 vcc, {f32hex(2.0**-60)}, v{T2}
    v_cmp_ngt_f32 s[4:5], s42, v{T2}
    '''.replace('s42', 's42'))
    a.lines.insert(len(a.lines) - 3, f'  s_mov_b32 s42, {f32hex(2.0**100)}')
    a.I(f'''
    s_or_b64 s[4:5], s[4:5], vcc
    s_cmp_eq_u64 s[4:5], 0
    s_cbranch_scc1 {name}_store
    s_cmp_lg_u32 s41, 0
    s_cbranch_scc1 {name}_store
    ''')
    a.I(f'''
    s_mov_b32 s41, 1
    s_mov_b32 exec_lo, 0
    v_mov_b32 v{Q2}, 0
    v_mov_b32 v{Q2+1}, 0
    s_mov_b32 exec_lo, -1
    v_mov_b32 v{T4}, 0xff800000
    s_mov_b32 s14, {WS_KVF}
    ''')
    a.L(f'{name}_sl1')
    loadK(1, 's14', 'x')
    a.I(f'''
    s_waitcnt vmcnt(0)
    {MF32} {vr(S[0],16)}, {vr(K1(1),4)}, {vr(Q1,4)}, 0
    {MF32h} {vr(S[0],16)}, {vr(K2(1),2)}, {vr(Q2,2)}, {vr(S[0],16)}
    s_nop 7
    s_nop 7
    ''')
    for k in range(0, 16, 2):
        a.I(f'v_max3_f32 v{T4}, v{T4}, v{S[0]+k}, v{S[0]+k+1}')
    a.I(f'''
    s_add_u32 s14, s14, 2560
    s_cmp_lt_u32 s14, {WS_KVF+64*2560}
    s_cbranch_scc1 {name}_sl1
    v_mov_b32 v{T5}, v{T4}
    s_nop 1
    v_permlane32_swap_b32 v{T4}, v{T5}
    s_nop 1
    v_max_f32 v{T4}, v{T4}, v{T5}
    v_sub_f32 v{T4}, 0, v{T4}
    v_and_b32 v{T0}, 0xffff0000, v{T4}
    v_sub_f32 v{T4}, v{T4}, v{T0}
    v_and_b32 v{T1}, 0xffff0000, v{T4}
    v_sub_f32 v{T4}, v{T4}, v{T1}
    s_mov_b32 exec_lo, 0
    v_lshrrev_b32 v{T0}, 16, v{T0}
    v_or_b32 v{Q2}, v{T0}, v{T1}
    v_lshrrev_b32 v{Q2+1}, 16, v{T4}
    s_mov_b32 exec_lo, -1
    s_mov_b32 s14, {WS_KVF}
    ''')
    for r in range(16):
        a.I(f'v_mov_b32 v{O+r}, 0')
    a.L(f'{name}_sl2')
    loadK(1, 's14', 'x')
    loadV(1, 's14', 'x')
    a.I(f'''
    s_waitcnt vmcnt(0)
    {MF32} {vr(S[0],16)}, {vr(K1(1),4)}, {vr(Q1,4)}, 0
    {MF32h} {vr(S[0],16)}, {vr(K2(1),2)}, {vr(Q2,2)}, {vr(S[0],16)}
    s_nop 7
    s_nop 7
    ''')
    for k in range(16): ex(S[0] + k)
    a.I('s_nop 0')
    for k in range(8): cv(P + k, S[0] + 2 * k)
    a.I(f'''
    s_nop 1
    {MF32} {vr(O,16)}, {vr(V1(1),4)}, {vr(P,4)}, {vr(O,16)}
    {MF32} {vr(O,16)}, {vr(V2(1),4)}, {vr(P+4,4)}, {vr(O,16)}
    s_add_u32 s14, s14, 2560
    s_cmp_lt_u32 s14, {WS_KVF+64*2560}
    s_cbranch_scc1 {name}_sl2
    s_nop 7
    s_nop 7
    s_branch {name}_final
    ''')
    a.vm = []
    a.L(f'{name}_store')
    a.I(f'''
    v_rcp_f32 v{T1}, v{T1}
    s_lshr_b32 s3, s24, 2
    s_mul_i32 s3, s3, 5120
    s_add_u32 s3, s3, s36
    s_and_b32 s4, s24, 3
    s_lshl_b32 s5, s4, 10
    s_add_u32 s37, s3, s5
    s_lshr_b32 s5, s4, 1
    s_lshl_b32 s5, s5, 9
    s_and_b32 s4, s4, 1
    s_lshl_b32 s4, s4, 3
    s_add_u32 s3, s3, s5
    s_add_u32 s3, s3, s4
    s_add_u32 s40, s3, 4096
    v_mul_f32 v{T1}, v{T1}, v{vG}
    ''')
    for r in range(12):
        a.I(f'v_mul_f32 v{O+r}, v{T1}, v{O+r}')
    for k in range(6):
        cv(O + k, O + 2 * k)
    a.I(f'''
    buffer_store_dwordx4 {vr(O,4)}, v{vK1a}, {W}, s37 offen
    s_mov_b32 exec_hi, 0
    buffer_store_dwordx2 {vr(O+4,2)}, v{vK1a}, {W}, s40 offen
    s_mov_b32 exec_hi, -1
    ''')
    finish(a, name, 1, 48, 9, T0, T1, 8)
    return name, a.text(), kernel_desc(name, NV, 0, 100), f'grid=(256,1,1) block=(512,1,1) lds={LDS}'
```

```python
from gen import *
import gen

def gen_k3():
    a = Asm()
    name = 'k3_out_kernel'
    a.stamps = gen.STAMPS
    R = 3
    BR = 25600
    STG = 2 * BR
    LDS = R * STG
    vL, vC, vG4 = 1, 2, 3
    T0, T1, T2, T3 = 4, 5, 6, 7
    vWa = 8
    vA = 8
    vR = 10
    ACC = 20
    FW = 60
    NF = 5
    NV = 84
    def acc(rt, t): return ACC + (rt * 5 + t) * 4
    def af(rt, s): return (s * 2 + rt) * 4
    a.raw(kernel_header(name))
    a.I('s_cmp_ge_u32 s2, 256')
    a.I(f's_cbranch_scc1 {name}_end')
    a.stamp(0)
    load_ptrs(a)
    a.I(f'''
    v_and_b32 v{vL}, 63, v0
    v_lshrrev_b32 v{T0}, 6, v0
    v_and_b32 v{vC}, 15, v{vL}
    v_readfirstlane_b32 s9, v{T0}
    v_lshrrev_b32 v{vG4}, 4, v{vL}
    s_and_b32 s3, s2, 7
    s_lshr_b32 s4, s2, 3
    s_lshl_b32 s3, s3, 2
    s_lshr_b32 s5, s4, 3
    s_add_u32 s7, s3, s5
    s_and_b32 s8, s4, 7
    s_cmp_ge_u32 s9, 4
    s_cbranch_scc0 {name}_compute
    ''')
    a.I(f's_mul_i32 s12, s8, 160')
    for n in range(5):
        a.I(f'''
        v_add_u32 v{T0}, {n*64}, v{vL}
        v_mul_u32_u24 v{T1}, 6554, v{T0}
        v_lshrrev_b32 v{T1}, 16, v{T1}
        v_mul_u32_u24 v{T2}, 10, v{T1}
        v_sub_u32 v{T2}, v{T0}, v{T2}
        v_mul_u32_u24 v{T1}, 1280, v{T1}
        v_lshl_add_u32 v{T1}, v{T2}, 4, v{T1}
        v_add_u32 v{vWa+n}, s12, v{T1}
        ''')
    a.I(f'''
    s_sub_u32 s10, s9, 4
    s_mul_i32 s13, s10, {BR}
    s_waitcnt lgkmcnt(0)
    s_cmp_eq_u32 s10, 0
    s_cselect_b32 s44, s24, s30
    s_cselect_b32 s45, s25, s31
    s_mov_b32 s46, 819200
    s_mov_b32 s47, 0x20000
    s_mov_b32 s15, 0
    ''')
    srd(a, 48, 38, WS_END)
    def issue(slot):
        a.nlabel += 1
        lab = f'{name}_iss{a.nlabel}'
        a.I(f's_add_u32 s14, s13, {slot*STG}')
        a.I('s_mov_b32 s11, 0')
        a.L(lab)
        for n in range(5):
            a.I(f's_add_u32 m0, s14, {n*1024}')
            a.I('s_nop 0')
            a.I(f'buffer_load_dwordx4 v{vWa+n}, s[44:47], s15 offen lds')
        a.I(f'''
        s_add_u32 s14, s14, 5120
        s_add_u32 s15, s15, {32*1280}
        s_add_u32 s11, s11, 1
        s_cmp_lt_u32 s11, 5
        s_cbranch_scc1 {lab}
        ''')
    issue(0)
    a.I('s_waitcnt vmcnt(0)\ns_barrier')
    issue(1)
    a.I('s_waitcnt vmcnt(0)\ns_barrier')
    issue(2)
    a.I('s_waitcnt vmcnt(0)\ns_barrier')
    issue(0)
    a.I('s_waitcnt vmcnt(0)\ns_barrier')
    a.I('s_barrier')
    a.I('s_barrier')
    a.I(f's_branch {name}_fin')
    a.L(f'{name}_compute')
    a.I(f'''
    s_and_b32 s10, s9, 1
    s_lshr_b32 s11, s9, 1
    s_lshl_b32 s3, s7, 1
    s_add_u32 s3, s3, s10
    s_mul_i32 s12, s3, {OAB_PT}
    s_mul_i32 s4, s11, 40960
    s_add_u32 s12, s12, s4
    s_add_u32 s12, s12, {WS_OAB}
    v_lshlrev_b32 v{vA}, 4, v{vC}
    v_lshl_add_u32 v{vA}, v{vG4}, 9, v{vA}
    s_waitcnt lgkmcnt(0)
    ''')
    srd(a, 48, 38, WS_END)
    for s in range(20):
        for rt in range(2):
            a.VM(f'buffer_load_dwordx4 {ar(af(rt,s),4)}, v{vA}, s[48:51], s12 offen offset:{(s%2)*2048 + rt*256}', s)
        if s % 2 == 1:
            a.I('s_add_u32 s12, s12, 4096')
    srd(a, 52, 34, 2048 * 1280)
    a.I(f'''
    v_and_b32 v{T0}, 1, v{vG4}
    v_lshrrev_b32 v{T1}, 1, v{vG4}
    v_lshrrev_b32 v{T2}, 2, v{vC}
    v_mul_u32_u24 v{T2}, 160, v{T2}
    v_and_b32 v{T3}, 3, v{vC}
    v_lshl_add_u32 v{T2}, v{T3}, 3, v{T2}
    s_mul_i32 s3, s11, {BR}
    v_add_u32 v{T2}, s3, v{T2}
    v_cmp_eq_u32 vcc, 1, v{T1}
    v_cmp_eq_u32 s[4:5], 1, v{T0}
    ''')
    def row(B, hl, h):
        m, i = divmod(B, 5)
        return 80 * m + (20 * i + 4 * hl + 8 * h if i < 4 else 40 * hl + 16 + 20 * h)
    for k5 in range(5):
        for h in range(2):
            r00, r01 = row(2*k5, 0, h), row(2*k5, 1, h)
            r10, r11 = row(2*k5+1, 0, h), row(2*k5+1, 1, h)
            d = vR + k5 * 2 + h
            a.I(f'''
            v_mov_b32 v{T0}, {r00*160}
            v_mov_b32 v{T1}, {r01*160}
            v_cndmask_b32 v{T3}, v{T0}, v{T1}, s[4:5]
            v_mov_b32 v{T0}, {r10*160}
            v_mov_b32 v{T1}, {r11*160}
            v_cndmask_b32 v{T0}, v{T0}, v{T1}, s[4:5]
            v_cndmask_b32 v{T3}, v{T3}, v{T0}, vcc
            v_add_u32 v{d}, v{T3}, v{T2}
            ''')
    for r in range(40):
        a.I(f'v_mov_b32 v{ACC+r}, 0')
    D = 4
    NU = 100
    def reads(u):
        s, t = divmod(u, 5)
        st, k5 = divmod(s, 5)
        f = FW + (u % NF) * 4
        for h in range(2):
            a.LG(f'ds_read_b64_tr_b16 {vr(f+2*h,2)}, v{vR+k5*2+h} offset:{t*32}', u)
    for u in range(-D, NU):
        un = u + D
        if un < NU:
            if un % 25 == 0:
                st = un // 25
                if st > 0:
                    delta = STG if st % R else -(R-1)*STG
                    a.I(f's_mov_b32 s3, {delta & 0xffffffff}')
                    for k in range(10):
                        a.I(f'v_add_u32 v{vR+k}, s3, v{vR+k}')
                a.I('s_barrier')
                a.stamp(1 + st)
            reads(un)
        if u >= 0:
            s, t = divmod(u, 5)
            a.wait(vm=(lambda tg: tg <= s) if t == 0 else None, lg=lambda tg: tg <= u)
            f = FW + (u % NF) * 4
            for rt in range(2):
                d = vr(acc(rt, t), 4)
                a.I(f'{MF16} {d}, {vr(f,4)}, {ar(af(rt,s),4)}, {d}')
    a.stamp(5)
    a.I('s_barrier')
    a.I(f'''
    s_mul_i32 s3, s11, 21504
    s_mul_i32 s4, s10, {32*336}
    s_add_u32 s3, s3, s4
    v_mul_u32_u24 v{T0}, 336, v{vC}
    v_lshl_add_u32 v{T0}, v{vG4}, 4, v{T0}
    v_add_u32 v{T0}, s3, v{T0}
    s_nop 3
    ''')
    for rt in range(2):
        for t in range(5):
            a.I(f'ds_write_b128 v{T0}, {vr(acc(rt,t),4)} offset:{rt*16*336 + t*64}')
    a.I(f'''
    s_lshl_b32 s3, s7, 6
    s_lshl_b32 s4, s9, 4
    s_add_u32 s3, s3, s4
    s_mul_i32 s13, s3, 1280
    s_mul_i32 s5, s8, 160
    s_add_u32 s13, s13, s5
    s_mul_i32 s14, s4, 336
    ''')
    for p in range(3):
        a.I(f'''
        v_add_u32 v{T0}, {p*64}, v{vL}
        v_mul_u32_u24 v{T1}, 6554, v{T0}
        v_lshrrev_b32 v{T1}, 16, v{T1}
        v_mul_u32_u24 v{T2}, 10, v{T1}
        v_sub_u32 v{T2}, v{T0}, v{T2}
        v_mul_u32_u24 v{T3}, 336, v{T1}
        v_lshl_add_u32 v{T3}, v{T2}, 5, v{T3}
        v_add_u32 v{vR+p}, s14, v{T3}
        v_mul_u32_u24 v{T3}, 1280, v{T1}
        v_lshl_add_u32 v{vR+3+p}, v{T2}, 4, v{T3}
        ''')
    a.I('s_waitcnt lgkmcnt(0)\ns_barrier')
    for p in range(3):
        b = ACC + p * 16
        if p == 2:
            a.I('s_mov_b32 exec_hi, 0')
        a.I(f'''
        ds_read_b128 {vr(b,4)}, v{vR+p}
        ds_read_b128 {vr(b+4,4)}, v{vR+p} offset:16
        ds_read_b128 {vr(b+8,4)}, v{vR+p} offset:21504
        ds_read_b128 {vr(b+12,4)}, v{vR+p} offset:21520
        ''')
    a.I('s_mov_b32 exec_hi, -1')
    for p in range(3):
        b = ACC + p * 16
        a.I(f's_waitcnt lgkmcnt({8-4*p})')
        for k in range(8):
            a.I(f'v_add_f32 v{b+k}, v{b+k}, v{b+8+k}')
        for k in range(4):
            a.I(f'v_cvt_pk_bf16_f32 v{b+k}, v{b+2*k}, v{b+2*k+1}')
        if p == 2:
            a.I('s_mov_b32 exec_hi, 0')
        a.I(f'buffer_store_dwordx4 {vr(b,4)}, v{vR+3+p}, s[52:55], s13 offen')
    a.I('s_mov_b32 exec_hi, -1')
    finish(a, name, 2, 48, 9, T0, T1, 8)
    return name, a.text(), kernel_desc(name, NV, 160, 100), f'grid=(256,1,1) block=(384,1,1) lds={LDS}'
```

```python
import sys, gen
if 'stamps' in sys.argv: gen.STAMPS = True
from gen_k2 import gen_k2
ks = [gen.gen_k1(), gen_k2()]
try:
    from gen_k3 import gen_k3
    ks.append(gen_k3())
except ImportError:
    pass
gen.build(ks, sys.argv[1])
```

```python
import math, sys
from asmlib import *

WS_QKB = 0
QKB_PT = 81920
WS_VBT = 64 * QKB_PT
VBT_NT = 131072
WS_KVF = WS_VBT + 20 * VBT_NT
KVT = 2816
KV_K2, KV_C, KV_V1, KV_V2 = 1024, 1280, 1408, 2080
WS_G = WS_KVF + 64 * KVT
WS_FLG = WS_G + 8192
WS_FG = WS_FLG + 8192
FG = 48 * 128
WS_OAB = WS_FG + 32 * FG
OAB_PT = 81920
WS_STAMP = WS_OAB + 64 * OAB_PT
WS_END = WS_STAMP + 524288
STAMPS = False
CSCALE = math.log2(math.e) / math.sqrt(20.0)
QBSCALE = 1.0
MF16 = 'v_mfma_f32_16x16x32_bf16'
MF32 = 'v_mfma_f32_32x32x16_bf16'
MF32h = 'v_mfma_f32_32x32x8_bf16'
KNAME = 'gated_mix__grouped_kv_mqa__sliding_local_dilated__prompt_kernel'

XT = 0
SLOT = [81920, 102400, 122880]
EXB = 122880
QX = 81920
SYNC = 161792
C_X, C_W, C_Q, C_H, C_N, C_2, C_3, C_F, C_R, C_S2, C_S3 = 0, 8, 16, 36, 40, 48, 52, 56, 60, 64, 68
GV = 162048
GL = 163328
LDS = 163840
HR = 122880
RA = 0
RB = 102400
EXA = 51200
PART = 51200
SPIN = 200000

OPT = dict(st2=5, AW=12, w0early=0, cpf=0, npre=4, hstart=2, wsub=3, psleep=2, PD=1, aprio=2, hprio=0, p1start=2, wstart=5, NB=8, nosc1=0, noatt=0, map2=1, pf=8, mprio=3, p1sleep=2, kvtest=0, vprio=3)

def srd(a, d, base, size):
    a.I(f's_mov_b32 s{d}, s{base}')
    a.I(f's_mov_b32 s{d+1}, s{base+1}')
    a.I(f's_mov_b32 s{d+2}, {size}')
    a.I(f's_mov_b32 s{d+3}, 0x20000')

def gen():
    a = Asm()
    a.stamps = STAMPS
    N = 'F'
    W = 's[48:51]'
    vL, vH, vP = 1, 2, 3
    T0, T1, T2, T3, T4, T5 = 4, 5, 6, 7, 8, 9
    vC, vG4 = 10, 11
    RET = 's[98:99]'
    ex = lambda r: a.I(f'v_exp_f32 v{r}, v{r}')
    cv = lambda d, s: a.I(f'v_cvt_pk_bf16_f32 v{d}, v{s}, v{s+1}')
    def lab():
        a.nlabel += 1
        return f'{N}_l{a.nlabel}'
    def ldswait(word, target, vt, va, sleep=1):
        l = lab()
        a.I(f'v_mov_b32 v{va}, {SYNC}')
        a.I('s_mov_b32 s4, 0')
        a.L(l)
        a.I(f'''
        ds_read_b32 v{vt}, v{va} offset:{word}
        s_add_u32 s4, s4, 1
        s_waitcnt lgkmcnt(0)
        v_readfirstlane_b32 s3, v{vt}
        s_cmp_ge_u32 s3, {target}
        s_cbranch_scc1 {l}_ok
        ''')
        if sleep: a.I(f's_sleep {sleep}')
        a.I(f'''
        s_cmp_lt_u32 s4, {SPIN*8}
        s_cbranch_scc1 {l}
        ''')
        a.L(l + '_ok')
    def arrive(word, va=T0, vd=T1):
        a.I(f'''
        v_mov_b32 v{va}, {SYNC}
        v_mov_b32 v{vd}, 1
        s_mov_b64 exec, 1
        ds_add_u32 v{va}, v{vd} offset:{word}
        s_mov_b64 exec, -1
        ''')

    def zero(r0, r1):
        assert r0 % 2 == 0 and r1 % 2 == 0
        for r in range(r0, r1, 2):
            a.I(f'v_mov_b64 {vr(r,2)}, 0')
    def vstamp(lane):
        if STAMPS:
            a.I(f's_memtime s[100:101]\ns_waitcnt lgkmcnt(0)\nv_writelane_b32 v0, s100, {lane}')
    def getnonce(vt, va):
        l = lab()
        a.I(f'v_mov_b32 v{va}, {SYNC}')
        a.I('s_mov_b32 s4, 0')
        a.L(l)
        a.I(f'''
        ds_read_b64 {vr(vt,2)}, v{va} offset:{C_N}
        s_add_u32 s4, s4, 1
        s_waitcnt lgkmcnt(0)
        v_readfirstlane_b32 s62, v{vt}
        v_readfirstlane_b32 s63, v{vt+1}
        s_cmp_lg_u32 s62, 0
        s_cbranch_scc1 {l}_ok
        s_cmp_lt_u32 s4, {SPIN*8}
        s_cbranch_scc1 {l}
        ''')
        a.L(l + '_ok')
    a.raw(kernel_header(KNAME))
    a.I('s_cmp_ge_u32 s2, 256')
    a.I(f's_cbranch_scc1 {N}_end')
    a.stamp(0)
    a.I('s_load_dwordx16 s[16:31], s[0:1], 0')
    a.I('s_load_dwordx8 s[32:39], s[0:1], 64')
    a.I(f'''
    v_and_b32 v{vL}, 63, v0
    v_lshrrev_b32 v{T0}, 6, v0
    v_lshrrev_b32 v{vH}, 5, v{vL}
    v_readfirstlane_b32 s9, v{T0}
    v_and_b32 v{vP}, 31, v{vL}
    v_and_b32 v{vC}, 15, v{vL}
    v_lshrrev_b32 v{vG4}, 4, v{vL}
    s_and_b32 s3, s2, 7
    s_lshr_b32 s6, s2, 3
    ''')
    if not OPT['map2']:
        a.I(f'''
        s_lshl_b32 s3, s3, 2
        s_lshr_b32 s5, s6, 3
        s_add_u32 s7, s3, s5
        s_and_b32 s8, s6, 7
        s_cmp_ge_u32 s8, 5
        s_cselect_b32 s3, 5, 0
        s_sub_u32 s60, s8, s3
        s_and_b32 s61, s7, 3
        s_lshl_b32 s3, s61, 1
        s_sub_u32 s96, s8, s3
        s_and_b32 s96, s96, 7
        ''')
    else:
        a.I(f'''
        s_lshr_b32 s4, s3, 1
        s_lshl_b32 s4, s4, 3
        s_lshr_b32 s5, s6, 2
        s_add_u32 s7, s4, s5
        s_and_b32 s3, s3, 1
        s_lshl_b32 s3, s3, 2
        s_and_b32 s60, s6, 3
        s_add_u32 s8, s3, s60
        s_cmp_ge_u32 s5, 5
        s_cselect_b32 s3, 5, 0
        s_sub_u32 s61, s5, s3
        s_sub_u32 s96, s8, s5
        s_and_b32 s96, s96, 7
        ''')
    vSY, vOne = 22, 23
    vXa, vWa, vEa = 16, 24, 18
    a.I(f"""
    s_and_b32 s10, s9, 1
    s_cmp_ge_u32 s9, 4
    s_cbranch_scc1 {N}_hi
    s_cmp_lt_u32 s9, 2
    s_cbranch_scc1 {N}_lo
    """)
    a.I(f"""
    s_lshl_b32 s3, s7, 6
    s_lshl_b32 s4, s10, 4
    s_add_u32 s3, s3, s4
    v_lshrrev_b32 v{T0}, 3, v{vL}
    v_and_b32 v{T1}, 7, v{vL}
    v_xor_b32 v{T3}, v{vG4}, v{T1}
    v_add_u32 v{T2}, s3, v{T0}
    v_mul_u32_u24 v{T2}, 1280, v{T2}
    v_lshl_add_u32 v{vXa}, v{T3}, 4, v{T2}
    v_xor_b32 v{T3}, 4, v{T3}
    v_lshl_add_u32 v{vXa+1}, v{T3}, 4, v{T2}
    v_add_u32 v{vXa+1}, {8*1280}, v{vXa+1}
    s_lshl_b32 s11, s10, 10
    v_lshlrev_b32 v{vEa}, 4, v{vL}
    s_and_b32 s3, s96, 1
    s_mul_i32 s13, s3, 40960
    s_lshl_b32 s12, s3, 12
    s_lshl_b32 s4, s10, 11
    s_add_u32 s12, s12, s4
    s_lshl_b32 s3, s10, 2
    s_add_u32 s3, s3, {SYNC + C_X}
    v_mov_b32 v{vSY}, s3
    s_waitcnt lgkmcnt(0)
    """)
    srd(a, 40, 16, 2048 * 1280)
    q = []
    def issue(kind, slot=None):
        if kind == 'X':
            a.I(f's_call_b64 {RET}, {N}_xissue'); q.append(4)
        elif kind == 'E':
            a.I(f's_call_b64 {RET}, {N}_eissue'); q.append(7)
        else:
            a.I(f's_mov_b32 s15, {SLOT[slot]}')
            a.I(f's_call_b64 {RET}, {N}_wissue'); q.append(10)
    npub = [0]
    def pub(val=None, nowait=False):
        if val is None:
            q.pop(0)
            npub[0] += 1
            val = npub[0]
        else:
            q.clear()
        a.I(f'v_mov_b32 v{vOne}, {val}')
        if not nowait: a.I(f's_waitcnt vmcnt({sum(q)})')
        a.I(f'ds_write_b32 v{vSY}, v{vOne}')
        vstamp(16 + min(val, 6))
    flip = f"""
    s_xor_b32 s13, s13, 40960
    s_xor_b32 s12, s12, 4096
    """
    a.I(f"""
    s_barrier
    s_cmp_ge_u32 s96, 4
    s_cbranch_scc1 {N}_noex
    s_cmp_lt_u32 s96, 2
    s_cselect_b32 s52, s20, s22
    s_cselect_b32 s53, s21, s23
    s_mov_b32 s54, 25600
    s_mov_b32 s55, 0x20000
    """)
    issue('E'); issue('E'); issue('E'); issue('E'); pub(); issue('E'); a.I(flip)
    for _ in range(4):
        pub(); issue('X')
    issue('X')
    a.I(f's_branch {N}_xdone')
    a.L(f'{N}_noex')
    a.I(f"""
    s_cmp_lg_u32 s96, 4
    s_cbranch_scc1 {N}_nog
    """)
    srd(a, 52, 32, 1280)
    a.I(f"""
    s_add_u32 m0, s11, {GV}
    s_cmp_eq_u32 s10, 0
    s_cselect_b32 exec_lo, -1, 0xffff
    s_cselect_b32 exec_hi, -1, 0
    buffer_load_dwordx4 v{vEa}, s[52:55], s11 offen lds
    s_mov_b64 exec, -1
    """)
    a.L(f'{N}_nog')
    for _ in range(5): issue('X')
    a.I(flip)
    for _ in range(5): issue('X')
    pub(5, nowait=True)
    a.L(f'{N}_xdone')
    pub(10)
    a.I(f's_branch {N}_work')
    a.L(f'{N}_hi')
    a.I(f"""
    s_barrier
    s_waitcnt lgkmcnt(0)
    {'' if OPT['w0early'] else f's_call_b64 {RET}, {N}_hsetup'}
    s_cmp_ge_u32 s9, 6
    s_cbranch_scc1 {N}_wload
    {f's_call_b64 {RET}, {N}_hsetup' if OPT['w0early'] else ''}
    s_cmp_eq_u32 s96, 4
    s_cbranch_scc1 {N}_extra
    s_cmp_gt_u32 s96, 4
    s_cbranch_scc1 {N}_hpre2
    s_cmp_eq_u32 s9, 5
    s_cbranch_scc1 {N}_hpre2
    s_branch {N}_extra
    """)
    a.L(f'{N}_wload')
    a.I(f's_mul_i32 s3, s8, 160')
    for n in range(5):
        a.I(f"""
        v_add_u32 v{T0}, {n*64}, v{vL}
        v_mul_u32_u24 v{T1}, 6554, v{T0}
        v_lshrrev_b32 v{T1}, 16, v{T1}
        v_mul_u32_u24 v{T2}, 160, v{T1}
        v_lshlrev_b32 v{T0}, 4, v{T0}
        v_sub_u32 v{T0}, v{T0}, v{T2}
        v_bfe_u32 v{T2}, v{T1}, 1, 2
        v_and_b32 v{T3}, 1, v{T1}
        v_lshl_add_u32 v{T2}, v{T3}, 2, v{T2}
        v_and_b32 v{T1}, 24, v{T1}
        v_add_u32 v{T1}, v{T1}, v{T2}
        v_mul_u32_u24 v{T1}, 1280, v{T1}
        v_add3_u32 v{vWa+n}, v{T1}, v{T0}, s3
        """)
    srd(a, 44, 18, 819200)
    a.I(f"""
    s_lshl_b32 s3, s10, 2
    s_add_u32 s3, s3, {SYNC + C_W}
    v_mov_b32 v{vSY}, s3
    s_mul_i32 s11, s10, {64*1280}
    s_mul_i32 s13, s10, 10240
    """)
    if OPT['w0early']:
        a.I(f's_cmp_lt_u32 s96, 4')
        a.I(f's_cbranch_scc1 {N}_w0a')
        issue('W', 0); q.clear()
        a.L(f'{N}_w0a')
        a.I(f's_call_b64 {RET}, {N}_hsetup')
    a.I(f's_call_b64 {RET}, {N}_hsetup2')
    vstamp(16)
    npub[0] = 0
    ldswait(C_X, OPT['wstart'], T0, T1, sleep=1)
    if OPT['w0early']:
        a.I(f's_cmp_ge_u32 s96, 4')
        a.I(f's_cbranch_scc1 {N}_w0b')
    issue('W', 0)
    a.L(f'{N}_w0b')
    issue('W', 1)
    pub()
    a.I(f's_cmp_ge_u32 s96, 4')
    a.I(f's_cbranch_scc1 {N}_nof')
    ldswait(C_F, 1, T0, T1, sleep=1)
    a.L(f'{N}_nof')
    issue('W', 2); pub()
    a.I(f"""
    v_add_u32 v{vOne}, 3, s10
    s_add_u32 s61, s61, s10
    s_cmp_eq_u32 s61, 5
    s_cselect_b32 s61, 0, s61
    s_mov_b32 s12, s61
    s_lshl_b32 s3, s10, 2
    s_add_u32 s3, s3, {SYNC + C_Q}
    v_mov_b32 v{T1}, s3
    s_mov_b32 s4, 0
    s_waitcnt vmcnt(0)
    ds_write_b32 v{vSY}, v{vOne}
    """.replace('v_add_u32 v23, 3, s10', 's_add_u32 s3, s10, 3\nv_mov_b32 v23, s3'))
    vstamp(19)
    a.L(f'{N}_wq')
    a.I(f"""
    ds_read_b32 v{T0}, v{T1}
    s_add_u32 s4, s4, 1
    s_waitcnt lgkmcnt(0)
    v_readfirstlane_b32 s3, v{T0}
    s_cmp_ge_u32 s3, 4
    s_cbranch_scc1 {N}_wq_ok
    s_cmp_lt_u32 s4, {SPIN*8}
    s_cbranch_scc1 {N}_wq
    """)
    a.L(f'{N}_wq_ok')
    for hf in range(2):
        a.I(f"""
        s_mov_b32 s11, {hf*64*1280}
        s_mov_b32 s13, {hf*10240}
        s_mov_b32 s61, s12
        s_mul_i32 s15, s10, 20480
        s_add_u32 s15, s15, {SLOT[0]}
        s_call_b64 {RET}, {N}_wissue
        """)
    vstamp(20)
    a.I(f"""
    v_mov_b32 v{vOne}, 5
    s_waitcnt vmcnt(0)
    ds_write_b32 v{vSY}, v{vOne}
    """)
    vstamp(21)
    a.stamp(1)
    a.I(f's_branch {N}_hpre')
    a.L(f'{N}_eissue')
    a.I(f"""
    s_mul_i32 s14, s60, 5120
    s_add_u32 s4, s14, s11
    s_add_u32 m0, s4, {EXB}
    s_add_u32 s14, s14, 4096
    buffer_load_dwordx4 v{vEa}, s[52:55], s4 offen lds
    buffer_load_dwordx4 v{vEa}, s[52:55], s4 offen offset:2048 lds
    s_add_u32 m0, s14, {EXB}
    s_nop 0
    buffer_load_dwordx4 v{vEa}, s[52:55], s14 offen lds
    """)
    a.L(f'{N}_xissue')
    a.I(f"""
    s_lshl_b32 s14, s60, 8
    s_add_u32 s14, s14, s13
    s_lshl_b32 s15, s60, 14
    s_add_u32 s15, s15, s12
    """)
    for c in range(2):
        for n in range(2):
            a.I(f's_add_u32 m0, s15, {c*8192 + n*1024}')
            a.I(f's_add_u32 s4, s14, {c*128}')
            a.I(f'buffer_load_dwordx4 v{vXa+n}, s[40:43], s4 offen lds')
    a.I(f"""
    s_add_u32 s60, s60, 1
    s_cmp_eq_u32 s60, 5
    s_cselect_b32 s60, 0, s60
    s_setpc_b64 {RET}
    """)
    a.L(f'{N}_wissue')
    a.I(f"""
    s_mul_i32 s14, s61, {128*1280}
    s_add_u32 s14, s14, s11
    s_add_u32 s15, s15, s13
    """)
    for g in range(2):
        for n in range(5):
            a.I(f's_add_u32 m0, s15, {g*5120 + n*1024}')
            a.I('s_nop 0' if (g, n) != (1, 0) else f's_add_u32 s14, s14, {32*1280}')
            a.I(f'buffer_load_dwordx4 v{vWa+n}, s[44:47], s14 offen lds')
    a.I(f"""
    s_add_u32 s61, s61, 1
    s_cmp_eq_u32 s61, 5
    s_cselect_b32 s61, 0, s61
    s_setpc_b64 {RET}
    """)

    a.L(f'{N}_lo')
    vXB = 12
    def xbases(vXB=12):
        a.I(f"""
        v_lshrrev_b32 v{T0}, 1, v{vP}
        v_and_b32 v{T0}, 7, v{T0}
        v_xor_b32 v{T0}, v{T0}, v{vH}
        v_lshlrev_b32 v{T1}, 7, v{vP}
        """)
        for ks in range(4):
            a.I(f'v_xor_b32 v{T2}, {2*ks}, v{T0}')
            a.I(f'v_lshl_add_u32 v{vXB+ks}, v{T2}, 4, v{T1}')
    a.I(f"""
    s_cmp_lg_u32 s9, 0
    s_cbranch_scc1 {N}_notpoll
    v_lshlrev_b32 v{T0}, 2, v{vL}
    v_add_u32 v{T0}, {SYNC}, v{T0}
    v_mov_b32 v{T1}, 0
    ds_write_b32 v{T0}, v{T1}
    s_waitcnt lgkmcnt(0)
    """)
    srd(a, 56, 36, 256)
    a.I(f"""
    s_cmp_lg_u32 s2, 0
    s_cbranch_scc1 {N}_n1
    s_memrealtime s[62:63]
    s_waitcnt lgkmcnt(0)
    s_or_b32 s62, s62, 1
    v_mov_b32 v{T2}, s62
    v_mov_b32 v{T3}, s63
    s_mov_b64 exec, 1
    buffer_store_dwordx2 {vr(T2,2)}, v{T1}, s[56:59], 0 offen sc1
    s_mov_b64 exec, -1
    s_barrier
    s_branch {N}_n2
    """)
    a.L(f'{N}_n1')
    a.I('s_barrier')
    a.I('s_mov_b32 s4, 0')
    a.I('s_sleep 8')
    a.L(f'{N}_n3')
    a.I(f"""
    s_sleep 4
    buffer_load_dwordx2 {vr(T2,2)}, v{T1}, s[56:59], 0 offen sc1
    s_add_u32 s4, s4, 1
    s_waitcnt vmcnt(0)
    v_readfirstlane_b32 s3, v{T2}
    s_cmp_lg_u32 s3, 0
    s_cbranch_scc1 {N}_n2
    s_cmp_lt_u32 s4, {SPIN}
    s_cbranch_scc1 {N}_n3
    """)
    a.L(f'{N}_n2')
    a.I(f"""
    v_mov_b32 v{T0}, {SYNC}
    ds_write_b64 v{T0}, {vr(T2,2)} offset:{C_N}
    """)
    vstamp(22)
    a.I(f's_branch {N}_work')
    a.L(f'{N}_notpoll')
    if OPT['cpf']:
        a.I(f"""
        s_getpc_b64 s[40:41]
        {N}_pc:
        s_sub_u32 s40, s40, {N}_pc-{KNAME}
        s_subb_u32 s41, s41, 0
        s_mov_b32 s42, {N}_end-{KNAME}
        s_mov_b32 s43, 0x20000
        s_lshl_b32 s3, s6, 11
        v_lshlrev_b32 v{T0}, 4, v{vL}
        buffer_load_dwordx4 v[144:147], v{T0}, s[40:43], s3 offen
        buffer_load_dwordx4 v[148:151], v{T0}, s[40:43], s3 offen offset:1024
        """)
    a.I(f"""
    s_barrier
    """)
    a.L(f'{N}_work')
    vXQ = 108
    xbases(vXQ)
    vW0, vW1 = 106, 107
    vCX = 16
    vWB_, vCW = 20, 21
    FACC = 24
    FX = 56
    FWf = 88
    CNT = 104
    def worksetup():
        a.I(f"""
        v_bfe_u32 v{T0}, v{vL}, 2, 2
        v_lshl_add_u32 v{vW0}, v{vH}, 3, v{T0}
        v_and_b32 v{T1}, 3, v{vL}
        v_bfe_u32 v{T2}, v{vL}, 4, 1
        v_lshl_add_u32 v{T1}, v{T2}, 2, v{T1}
        v_min_u32 v{T1}, 4, v{T1}
        v_lshlrev_b32 v{vW1}, 3, v{T1}
        v_mov_b32 v{vSY}, {SYNC}
        v_mov_b32 v{vOne}, 1
        """)
        zero(FACC, FACC+16)
        a.I('s_waitcnt lgkmcnt(0)')
        srd(a, 48, 38, WS_END)
        a.I(f"""
        s_mov_b32 s5, 0
        s_mov_b32 s10, 0
        """)
    worksetup()
    def cntwait(top, need, first='s_waitcnt lgkmcnt(0)', off=C_X):
        if first: a.I(first)
        a.L(top)
        a.I(f"""
        v_readfirstlane_b32 s3, v{CNT}
        v_readfirstlane_b32 s4, v{CNT+1}
        s_min_u32 s3, s3, s4
        s_cmp_ge_u32 s3, {need}
        s_cbranch_scc1 {top}_go
        ds_read_b64 {vr(CNT,2)}, v{vSY} offset:{off}
        s_add_u32 s5, s5, 1
        s_cmp_lt_u32 s5, {SPIN*8}
        s_waitcnt lgkmcnt(0)
        s_cbranch_scc1 {top}
        """)
        a.L(top + '_go')
    vK1a, vK2a, vVa, vG = 12, 13, 14, 15
    Q1, Q2 = 16, 32
    P = 40
    S = [48, 64]
    O = 80
    NB = OPT['NB']
    KVB = 144
    def K1(b): return KVB + 14 * b
    def V1(b): return KVB + 14 * b + 4
    def V2(b): return KVB + 14 * b + 8
    def K2(b): return KVB + 14 * b + 12
    KZ = K1(NB-1); KZ2 = K2(NB-1)
    SC = '' if OPT['nosc1'] else ' sc1'
    getnonce(T2, T1)
    srd(a, 44, 38, WS_END)
    a.I(f"""
    ds_read_b64 {vr(CNT,2)}, v{vSY}
    v_bfe_u32 v{T0}, v{vL}, 2, 2
    v_add_u32 v{T0}, v{T0}, v{vW0}
    v_mul_u32_u24 v{T0}, 160, v{T0}
    s_setprio 2
    s_mul_i32 s3, s9, 40
    v_add3_u32 v{vWB_}, v{T0}, v{vW1}, s3
    v_mov_b32 v{T5}, {SYNC + C_Q}
    s_mov_b32 s18, 1
    s_mov_b32 s19, {SLOT[0]}
    s_and_b32 s10, s9, 1
    s_lshr_b32 s11, s9, 1
    v_lshlrev_b32 v{vK1a}, 4, v{vL}
    v_lshlrev_b32 v{vK2a}, 3, v{vL}
    v_min_u32 v{vK2a}, 256, v{vK2a}
    v_mul_u32_u24 v{vVa}, 336, v{vH}
    v_lshl_add_u32 v{vVa}, v{vP}, 4, v{vVa}
    v_mov_b32 v{T3}, 0x7fffff00
    v_cmp_gt_u32 vcc, 21, v{vP}
    s_mul_i32 s12, s11, {32*KVT}
    s_add_u32 s12, s12, {WS_KVF}
    v_cndmask_b32 v{vVa}, v{T3}, v{vVa}, vcc
    s_add_u32 s13, s12, {32*KVT}
    s_mul_i32 s14, s6, {KVT}
    s_add_u32 s14, s14, s12
    s_mov_b32 s15, {WS_KVF}
    s_lshl_b32 s3, s9, 11
    s_add_u32 s3, s3, {QX}
    v_add_u32 v{T0}, s3, v{vK1a}
    s_lshl_b32 s3, s10, 13
    s_lshl_b32 s4, s11, 12
    s_add_u32 s3, s3, s4
    s_add_u32 s3, s3, {QX}
    v_add_u32 v{T1}, s3, v{vK1a}
    s_xor_b32 s3, s3, 4096
    v_add_u32 v{T2}, s3, v{vK1a}
    v_mov_b32 v{T3}, {f32hex(CSCALE)}
    """)
    assert QX % 8192 == 0
    zero(FACC+16, FACC+32)
    zero(112, 144)
    zero(V2(NB-1), V2(NB-1)+4)
    def qaddr():
        a.I('s_lshl_b32 s3, s61, 14')
        for k in range(4):
            a.I(f'v_add_u32 v{vCX+k}, s3, v{vXQ+k}')
        a.I(f'v_add_u32 v{vCW}, s19, v{vWB_}')
    def qreads(ks, tag):
        b = ks % 4
        for pt in range(2):
            a.LG(f'ds_read_b128 {vr(FX+b*8+pt*4,4)}, v{vCX+(ks&3)} offset:{(ks>>2)*8192 + pt*4096}', tag)
        for h in range(2):
            a.LG(f'ds_read_b64_tr_b16 {vr(FWf+b*4+2*h,2)}, v{vCW} offset:{(ks*16+h)*160}', tag)
    qaddr()
    cntwait(f'{N}_qwx', 10)
    a.I(f'ds_read_b64 {vr(CNT,2)}, v{vSY} offset:{C_W}')
    cntwait(f'{N}_qw0', 's18', off=C_W)
    vstamp(16)
    a.lg = []
    for ks in range(3): qreads(ks, ks)
    a.LG(f'ds_read_b64 {vr(CNT,2)}, v{vSY} offset:{C_W}', 2.5)
    a.L(f'{N}_qloop')
    for u in range(8):
        if u == 5:
            a.wait(lg=lambda t: t == 'c')
            cntwait(f'{N}_qw', 's18', first=None, off=C_W)
        qreads((u + 3) % 8, u + 3)
        if u == 2:
            a.LG(f'ds_read_b64 {vr(CNT,2)}, v{vSY} offset:{C_W}', 'c')
            a.I(f"""
            s_add_u32 s61, s61, 1
            s_cmp_eq_u32 s61, 5
            s_cselect_b32 s61, 0, s61
            s_add_u32 s19, s19, 20480
            s_cmp_eq_u32 s19, {SLOT[0]+3*20480}
            s_cselect_b32 s19, {SLOT[0]}, s19
            s_add_u32 s18, s18, 1
            s_cmp_eq_u32 s18, 6
            s_cselect_b32 s18, 0, s18
            """)
        a.wait(lg=lambda t: t != 'c' and t <= u)
        if u == 7:
            a.I('s_mov_b64 exec, 1')
            a.LG(f'ds_add_u32 v{T5}, v{vOne}', 10.5)
            a.I('s_mov_b64 exec, -1')
        b = u % 4
        for pt in range(2):
            d = vr(FACC + pt * 16, 16)
            a.I(f'{MF32} {d}, {vr(FWf + b * 4, 4)}, {vr(FX + b * 8 + pt * 4, 4)}, {d}')
        if u == 4: qaddr()
        if STAMPS and u == 6: a.I('s_memtime s[100:101]')
        if STAMPS and u == 1: a.I('s_add_u32 m0, s18, 24\nv_writelane_b32 v0, s100, m0')
    assert a.lg == [8]*4 + [9]*4 + [10]*4 + [10.5], a.lg
    a.I(f"""
    v_add_u32 v{T5}, 4, v{T5}
    s_cmp_lg_u32 s18, 0
    s_cbranch_scc1 {N}_qloop
    """)
    a.stamp(2)
    ldswait(C_Q + 12, 68, T4, T5, sleep=0)
    a.stamp(1)
    def loadK(r1, r2, so):
        a.I(f'buffer_load_dwordx4 {vr(r1,4)}, v{vK1a}, {W}, {so} offen{SC}')
        a.I(f'buffer_load_dwordx2 {vr(r2,2)}, v{vK2a}, {W}, {so} offen offset:{KV_K2}{SC}')
    def loadV(b, so):
        a.I(f'buffer_load_dwordx4 {vr(V1(b),4)}, v{vVa}, {W}, {so} offen offset:{KV_V1}{SC}')
        a.I(f'buffer_load_dwordx4 {vr(V2(b),4)}, v{vVa}, {W}, {so} offen offset:{KV_V2}{SC}')
    adv = [f's_add_u32 s14, s14, {KVT}', 's_cmp_eq_u32 s14, s13', 's_cselect_b32 s14, s12, s14']
    loadK(KZ, KZ2, 's15')
    loadK(K1(0), K2(0), 's14'); loadV(0, 's14')
    for i in adv: a.I(i)
    for pt in range(2):
        r = FACC + 16 * pt
        for e in range(12):
            a.I(f'v_mul_f32 v{r+e}, v{T3}, v{r+e}')
        for k in range(6):
            cv(r + k, r + 2 * k)
        a.I('s_mov_b32 exec_lo, 0')
        a.I(f'v_mov_b64 {vr(r+4,2)}, 0')
        a.I('s_mov_b32 exec_lo, -1')
        a.I(f'ds_write_b128 v{T0}, {vr(r,4)} offset:{pt*8192}')
        a.I(f'ds_write_b64 v{T0}, {vr(r+4,2)} offset:{pt*8192+1024}')
    loadK(K1(1), K2(1), 's14'); loadV(1, 's14')
    for i in adv: a.I(i)
    a.I('s_waitcnt lgkmcnt(0)')
    arrive(C_R, T4, T5)
    zero(80, 112)
    zero(P+4, P+8)
    ldswait(C_R, 4, T4, T5, sleep=0)
    a.stamp(3)
    for t in range(4):
        a.I(f'ds_read_b128 {vr(Q1+4*t,4)}, v{T1+(t>>1)} offset:{(t&1)*2048}')
        a.I(f'ds_read_b64 {vr(Q2+2*t,2)}, v{T1+(t>>1)} offset:{(t&1)*2048+1024}')
    NPRE = OPT['npre']
    for b in range(2, NPRE):
        loadK(K1(b), K2(b), 's14'); loadV(b, 's14')
        for i in adv: a.I(i)
    a.I('s_waitcnt lgkmcnt(0)')
    arrive(C_H)
    a.I(f's_waitcnt vmcnt({4*NPRE})')
    def zmax(t, s):
        a.I(f'v_max3_f32 v{T0}, v{s}, v{s+1}, v{s+2}')
        for k in range(3, 15, 2):
            a.I(f'v_max3_f32 v{T0}, v{T0}, v{s+k}, v{s+k+1}')
        a.I(f'v_max_f32 v{T0}, v{T0}, v{s+15}')
        a.I('s_mov_b32 exec_lo, 0')
        a.I(f'v_cvt_pk_bf16_f32 v{Q2+2*t}, -v{T0}, 0')
        a.I('s_mov_b32 exec_lo, -1')
    def zqk(t, s):
        a.I(f'{MF32} {vr(s,16)}, {vr(KZ,4)}, {vr(Q1+4*t,4)}, 0')
        a.I(f'{MF32h} {vr(s,16)}, {vr(KZ2,2)}, {vr(Q2+2*t,2)}, {vr(s,16)}')
    zqk(0, S[0]); zqk(1, S[1])
    a.I('s_nop 7\ns_nop 1')
    zmax(0, S[0]); zqk(2, S[0])
    zmax(1, S[1]); zqk(3, S[1])
    a.I('s_nop 3')
    zmax(2, S[0])
    a.I(f's_waitcnt vmcnt({4*(NPRE-1)})')
    a.I(f'{MF32} {vr(S[0],16)}, {vr(K1(0),4)}, {vr(Q1,4)}, 0')
    a.I(f'{MF32h} {vr(S[0],16)}, {vr(K2(0),2)}, {vr(Q2,2)}, {vr(S[0],16)}')
    zmax(3, S[1])
    for b in range(NPRE, NB - 1):
        loadK(K1(b), K2(b), 's14'); loadV(b, 's14')
        for i in adv: a.I(i)
    a.I('s_nop 3')
    a.I(f's_setprio {OPT["aprio"]}')
    a.I('s_mov_b32 s19, 0')
    a.stamp(4)
    if STAMPS:
        a.I('s_mov_b32 m0, 0')
    a.raw('.p2align 6')
    a.L(f'{N}_aloop')
    for b in range(NB):
        nb = (b + 1) % NB
        pb = (b - 1) % NB
        W2 = 's[44:47]'
        fill = {(0, 0): f'buffer_load_dwordx4 {vr(K1(pb),4)}, v{vK1a}, {W2}, s14 offen{SC}',
                (0, 2): f'buffer_load_dwordx2 {vr(K2(pb),2)}, v{vK2a}, {W2}, s14 offen offset:{KV_K2}{SC}',
                (1, 0): f'buffer_load_dwordx4 {vr(V1(pb),4)}, v{vVa}, {W2}, s14 offen offset:{KV_V1}{SC}',
                (1, 1): f'buffer_load_dwordx4 {vr(V2(pb),4)}, v{vVa}, {W2}, s14 offen offset:{KV_V2}{SC}',
                (1, 2): adv[0], (2, 0): adv[1], (2, 1): adv[2],
                (2, 2): f's_waitcnt vmcnt({4*(NB-2)})'}
        if OPT['kvtest'] == 1:
            del fill[(0,2)], fill[(1,0)], fill[(1,1)]
            fill[(2,2)] = f's_waitcnt vmcnt({NB-2})'
        if OPT['kvtest'] == 2:
            del fill[(0,0)], fill[(0,2)], fill[(1,0)], fill[(1,1)]
        if b == NB - 1:
            fill[(3, 0)] = 's_add_u32 s19, s19, 1'
            fill[(3, 1)] = f's_cmp_lt_u32 s19, {1 if OPT["noatt"] else 32//NB}'
        if b == 0:
            fill[(3, 0)] = f's_cmp_eq_u32 s19, {32//NB - 1}'
            fill[(3, 1)] = 's_cselect_b32 s46, 0, s46'
        if STAMPS and b % 4 == 0:
            fill[(0, 1)] = 's_memtime s[96:97]'
        if STAMPS and b % 4 == 1:
            fill[(0, 1)] = 's_waitcnt lgkmcnt(0)\nv_writelane_b32 v0, s96, m0\ns_add_u32 m0, m0, 1'
        for t in range(4):
            Sc, Sn = S[t & 1], S[1 - (t & 1)]
            tn, tp = (t + 1) & 3, (t - 1) & 3
            kb = b if t < 3 else nb
            vpb = b if t > 0 else pb
            def F(i):
                if (t, i) in fill: a.I(fill[(t, i)])
            a.I(f'{MF32} {vr(Sn,16)}, {vr(K1(kb),4)}, {vr(Q1+4*tn,4)}, 0'); F(0)
            for k in range(4): ex(Sc + k)
            a.I(f'{MF32} {vr(O+16*tp,16)}, {vr(V2(vpb),4)}, {vr(P+4,4)}, {vr(O+16*tp,16)}'); F(1)
            for k in range(4, 8): ex(Sc + k)
            a.I(f'{MF32h} {vr(Sn,16)}, {vr(K2(kb),2)}, {vr(Q2+2*tn,2)}, {vr(Sn,16)}')
            for k in range(4): cv(P + k, Sc + 2 * k)
            for k in range(8, 12): ex(Sc + k)
            a.I(f'{MF32} {vr(O+16*t,16)}, {vr(V1(b),4)}, {vr(P,4)}, {vr(O+16*t,16)}'); F(2)
            for k in range(12, 16): ex(Sc + k)
            for k in range(4, 8): cv(P + k, Sc + 2 * k)
    a.I(f'''
    s_cbranch_scc1 {N}_aloop
    s_nop 0
    {MF32} {vr(O+48,16)}, {vr(V2(NB-1),4)}, {vr(P+4,4)}, {vr(O+48,16)}
    s_setprio 3
    ''')
    a.stamp(5)
    HDONE = 16
    ldswait(C_H, HDONE, T0, T1)
    a.stamp(6)
    a.I(f'''
    s_lshl_b32 s3, s7, 1
    s_add_u32 s20, s3, s10
    s_xor_b32 s3, s9, 2
    s_mul_i32 s3, s3, 6144
    s_add_u32 s3, s3, {EXA}
    v_add_u32 v{T1}, s3, v{vK1a}
    s_mul_i32 s3, s9, 6144
    s_add_u32 s3, s3, {EXA}
    v_add_u32 v{T2}, s3, v{vK1a}
    s_lshl_b32 s3, s10, 7
    s_add_u32 s3, s3, {GL}
    v_lshlrev_b32 v{T0}, 2, v{vP}
    v_add_u32 v{T0}, s3, v{T0}
    ''')
    for t in (2, 3):
        for i in range(3):
            a.I(f'ds_write_b128 v{T1}, {vr(O+16*t+4*i,4)} offset:{(t-2)*3072+i*1024}')
    a.I(f'ds_read_b32 v{vG}, v{T0}')
    a.I(f'''
    s_mul_i32 s36, s20, {OAB_PT}
    s_mul_i32 s3, s8, 5120
    s_add_u32 s36, s36, s3
    s_add_u32 s36, s36, {WS_OAB}
    s_lshl_b32 s3, s11, 11
    s_add_u32 s37, s36, s3
    s_lshl_b32 s3, s11, 9
    s_add_u32 s40, s36, s3
    s_add_u32 s40, s40, 4096
    s_mov_b32 s42, {f32hex(2.0**100)}
    ''')
    a.I('s_waitcnt lgkmcnt(0)\ns_barrier')
    for k in range(6):
        a.I(f'ds_read_b128 {vr(O+32+4*k,4)}, v{T2} offset:{k*1024}')
    for t in range(2):
        a.I(f's_waitcnt lgkmcnt({3-3*t})')
        for r in range(12):
            a.I(f'v_add_f32 v{O+16*t+r}, v{O+16*t+r}, v{O+32+12*t+r}')
    PKO = O + 32
    a.I('s_mov_b32 s41, 0')
    a.L(f'{N}_fin0')
    a.I('s_mov_b32 s43, 0')
    a.L(f'{N}_final')
    a.I(f'''
    v_mov_b32 v{T0}, v{O+8}
    v_mov_b32 v{T1}, v{O+8}
    v_mov_b32 v{T2}, 0
    v_mov_b32 v{T3}, 0
    v_permlane32_swap_b32 v{T0}, v{T1}
    ''')
    for r in range(12):
        a.I(f'v_fma_f32 v{T2}, v{O+r}, v{T3}, v{T2}')
    a.I(f'''
    v_add_f32 v{T2}, v{T2}, v{T1}
    v_cmp_nlt_f32 vcc, {f32hex(2.0**-60)}, v{T2}
    v_cmp_ngt_f32 s[4:5], s42, v{T2}
    s_or_b64 s[4:5], s[4:5], vcc
    s_cmp_eq_u64 s[4:5], 0
    s_cbranch_scc1 {N}_norm
    s_cmp_lg_u32 s43, 0
    s_cbranch_scc0 {N}_slow
    ''')
    a.L(f'{N}_norm')
    a.I(f'''
    v_rcp_f32 v{T1}, v{T1}
    s_nop 0
    v_mul_f32 v{T1}, v{T1}, v{vG}
    ''')
    for r in range(12):
        a.I(f'v_mul_f32 v{O+r}, v{T1}, v{O+r}')
    a.I(f's_cmp_lg_u32 s41, 0')
    a.I(f's_cbranch_scc1 {N}_fin1')
    for k in range(4):
        cv(PKO + k, O + 2 * k)
    cv(PKO + 8, O + 8); cv(PKO + 9, O + 10)
    a.I(f'buffer_store_dwordx4 {vr(PKO,4)}, v{vK1a}, {W}, s37 offen sc1')
    for r in range(12):
        a.I(f'v_mov_b32 v{O+r}, v{O+16+r}')
    for r in range(4):
        a.I(f'v_mov_b32 v{Q1+r}, v{Q1+4+r}')
    for r in range(2):
        a.I(f'v_mov_b32 v{Q2+r}, v{Q2+2+r}')
    a.I('s_mov_b32 s41, 1')
    a.I(f's_branch {N}_fin0')
    a.L(f'{N}_fin1')
    for k in range(4):
        cv(PKO + 4 + k, O + 2 * k)
    cv(PKO + 10, O + 8); cv(PKO + 11, O + 10)
    a.I(f'''
    buffer_store_dwordx4 {vr(PKO+4,4)}, v{vK1a}, {W}, s37 offen offset:1024 sc1
    s_mov_b32 exec_hi, 0
    buffer_store_dwordx4 {vr(PKO+8,4)}, v{vK1a}, {W}, s40 offen sc1
    s_mov_b32 exec_hi, -1
    ''')
    a.stamp(7)
    vR = 249
    vA = 254
    CACC = 24
    AF = 44
    WF = 84
    a.I(f'''
    s_lshl_b32 s3, s10, 4
    s_lshl_b32 s4, s8, 1
    s_add_u32 s3, s3, s4
    s_add_u32 s3, s3, s11
    s_lshl_b32 s3, s3, 7
    s_mul_i32 s4, s7, {FG}
    s_add_u32 s3, s3, s4
    s_add_u32 s23, s3, {WS_FG + 16*128}
    s_mov_b32 s100, {RB}
    s_call_b64 {RET}, {N}_gsetup
    s_mov_b32 s22, s21
    ''')
    zero(CACC, CACC+20)
    a.I(f'''
    v_mov_b32 v{T0}, 0
    v_mov_b32 v{T2}, s62
    v_mov_b32 v{T3}, s63
    s_waitcnt vmcnt(0)
    s_mov_b64 exec, 1
    buffer_store_dwordx2 {vr(T2,2)}, v{T0}, {W}, s23 offen sc1
    s_mov_b64 exec, -1
    ''')
    a.stamp(8)
    a.I(f'''
    s_call_b64 {RET}, {N}_wpre
    s_branch {N}_phaseC
    ''')

    a.L(f'{N}_slow')
    a.I(f'''
    s_mov_b32 s43, 1
    s_mov_b32 exec_lo, 0
    v_mov_b32 v{Q2}, 0
    v_mov_b32 v{Q2+1}, 0
    s_mov_b32 exec_lo, -1
    v_mov_b32 v{T4}, 0xff800000
    s_mov_b32 s14, {WS_KVF}
    ''')
    a.L(f'{N}_sl1')
    loadK(K1(0), K2(0), 's14')
    a.I(f'''
    s_waitcnt vmcnt(0)
    {MF32} {vr(S[0],16)}, {vr(K1(0),4)}, {vr(Q1,4)}, 0
    {MF32h} {vr(S[0],16)}, {vr(K2(0),2)}, {vr(Q2,2)}, {vr(S[0],16)}
    s_nop 7
    s_nop 7
    ''')
    for k in range(0, 16, 2):
        a.I(f'v_max3_f32 v{T4}, v{T4}, v{S[0]+k}, v{S[0]+k+1}')
    a.I(f'''
    s_add_u32 s14, s14, {KVT}
    s_cmp_lt_u32 s14, {WS_KVF+64*KVT}
    s_cbranch_scc1 {N}_sl1
    v_mov_b32 v{T5}, v{T4}
    s_nop 1
    v_permlane32_swap_b32 v{T4}, v{T5}
    s_nop 1
    v_max_f32 v{T4}, v{T4}, v{T5}
    v_sub_f32 v{T4}, 0, v{T4}
    v_and_b32 v{T0}, 0xffff0000, v{T4}
    v_sub_f32 v{T4}, v{T4}, v{T0}
    v_and_b32 v{T1}, 0xffff0000, v{T4}
    v_sub_f32 v{T4}, v{T4}, v{T1}
    s_mov_b32 exec_lo, 0
    v_lshrrev_b32 v{T0}, 16, v{T0}
    v_or_b32 v{Q2}, v{T0}, v{T1}
    v_lshrrev_b32 v{Q2+1}, 16, v{T4}
    s_mov_b32 exec_lo, -1
    s_mov_b32 s14, {WS_KVF}
    ''')
    for r in range(16):
        a.I(f'v_mov_b32 v{O+r}, 0')
    a.L(f'{N}_sl2')
    loadK(K1(0), K2(0), 's14'); loadV(0, 's14')
    a.I(f'''
    s_waitcnt vmcnt(0)
    {MF32} {vr(S[0],16)}, {vr(K1(0),4)}, {vr(Q1,4)}, 0
    {MF32h} {vr(S[0],16)}, {vr(K2(0),2)}, {vr(Q2,2)}, {vr(S[0],16)}
    s_nop 7
    s_nop 7
    ''')
    for k in range(16): ex(S[0] + k)
    a.I('s_nop 0')
    for k in range(8): cv(P + k, S[0] + 2 * k)
    a.I(f'''
    s_nop 1
    {MF32} {vr(O,16)}, {vr(V1(0),4)}, {vr(P,4)}, {vr(O,16)}
    {MF32} {vr(O,16)}, {vr(V2(0),4)}, {vr(P+4,4)}, {vr(O,16)}
    s_add_u32 s14, s14, {KVT}
    s_cmp_lt_u32 s14, {WS_KVF+64*KVT}
    s_cbranch_scc1 {N}_sl2
    s_nop 7
    s_nop 7
    s_branch {N}_final
    ''')

    HACC = 172
    vHW = 236
    vHR = 240
    vF2, vF3 = 242, 243
    VWO = 244
    LA, LB, ONES, vOB = 148, 156, 168, 153
    a.L(f'{N}_hsetup')
    xbases()
    a.I(f"""
    s_sub_u32 s5, s9, 4
    s_lshl_b32 s3, s8, 9
    s_lshl_b32 s4, s5, 7
    s_add_u32 s3, s3, s4
    v_lshrrev_b32 v{T0}, 3, v{vL}
    v_and_b32 v{T1}, 7, v{vL}
    v_lshlrev_b32 v{vF3}, 7, v{T1}
    v_lshlrev_b32 v{T2}, 1, v{T0}
    v_and_b32 v{T2}, 4, v{T2}
    v_xor_b32 v{T1}, v{T1}, v{T2}
    v_mul_u32_u24 v{T0}, 3840, v{T0}
    v_lshl_add_u32 v{T0}, v{T1}, 4, v{T0}
    v_add_u32 v{vHW}, s3, v{T0}
    v_add_u32 v{vHW+1}, {8*3840}, v{vHW}
    v_add_u32 v{vHW+2}, {16*3840}, v{vHW}
    v_add_u32 v{vHW+3}, {24*3840}, v{vHW}
    s_lshl_b32 s3, s5, 13
    s_add_u32 s3, s3, {HR}
    v_bfe_u32 v{T0}, v{vL}, 2, 2
    v_lshl_add_u32 v{T1}, v{vH}, 3, v{T0}
    v_lshlrev_b32 v{T1}, 7, v{T1}
    v_and_b32 v{T2}, 3, v{vL}
    v_lshl_add_u32 v{T1}, v{T2}, 3, v{T1}
    v_bfe_u32 v{T2}, v{vL}, 4, 1
    v_lshl_add_u32 v{T1}, v{T2}, 5, v{T1}
    v_add_u32 v{T1}, s3, v{T1}
    v_lshrrev_b32 v{T0}, 1, v{T0}
    v_lshlrev_b32 v{T0}, 6, v{T0}
    v_add_u32 v{vHR}, v{T1}, v{T0}
    v_xor_b32 v{T0}, 64, v{T0}
    v_add_u32 v{vHR+1}, v{T1}, v{T0}
    v_lshlrev_b32 v{vOB}, 4, v{vC}
    v_lshl_add_u32 v{vOB+1}, v{T2}, 9, v{vOB}
    v_lshl_add_u32 v{vOB+1}, v{vH}, 8, v{vOB+1}
    s_cmp_eq_u32 s7, 0
    s_cselect_b32 s3, 0, {FG}
    v_mul_u32_u24 v{T1}, s3, v{vH}
    v_add_u32 v{vF2}, v{vF3}, v{T1}
    """)
    zero(HACC, HACC+64)
    a.I(f's_setpc_b64 {RET}')
    a.L(f'{N}_hsetup2')
    a.I(f"""
    s_sub_u32 s5, s9, 4
    s_mul_i32 s3, s8, 160
    s_lshl_b32 s4, s5, 6
    """)
    for j in range(5):
        a.I(f"""
        v_add_u32 v{T0}, s4, v{vL}
        v_add_u32 v{T0}, {j*256}, v{T0}
        v_mul_u32_u24 v{T1}, 6554, v{T0}
        v_lshrrev_b32 v{T1}, 16, v{T1}
        v_mul_u32_u24 v{T1}, {1280-160}, v{T1}
        v_lshl_add_u32 v{T1}, v{T0}, 4, v{T1}
        v_add_u32 v{VWO+j}, s3, v{T1}
        """)
    a.I(f"""
    s_lshl_b32 s100, s8, 2
    s_add_u32 s100, s100, s5
    s_mul_i32 s3, s100, 5
    v_add_u32 v{T0}, s3, v{vG4}
    v_lshrrev_b32 v{T1}, 2, v{T0}
    v_lshlrev_b32 v{T1}, 10, v{T1}
    v_and_b32 v{T2}, 1, v{T0}
    v_lshl_add_u32 v{T1}, v{T2}, 9, v{T1}
    v_bfe_u32 v{T2}, v{T0}, 1, 1
    v_lshl_add_u32 v{T1}, v{T2}, 3, v{T1}
    v_lshl_add_u32 v{LA}, v{vC}, 4, v{T1}
    s_add_u32 s3, s3, 4
    s_lshr_b32 s4, s3, 2
    s_lshl_b32 s4, s4, 10
    s_and_b32 s5, s3, 1
    s_lshl_b32 s5, s5, 9
    s_add_u32 s4, s4, s5
    s_bfe_u32 s5, s3, 0x10001
    s_lshl_b32 s5, s5, 3
    s_add_u32 s4, s4, s5
    v_add_u32 v{LA+1}, s4, v{vOB}
    s_mul_i32 s3, s100, 20
    v_and_b32 v{T4}, 1, v{vG4}
    v_lshlrev_b32 v{T4}, 9, v{T4}
    v_lshl_add_u32 v{T4}, v{vH}, 3, v{T4}
    """)
    for d in range(2):
        a.I(f"""
        v_add_u32 v{T1}, s3, v{vC}
        v_add_u32 v{T1}, {16*d}, v{T1}
        v_min_u32 v{T1}, 639, v{T1}
        v_lshrrev_b32 v{T2}, 5, v{T1}
        v_lshlrev_b32 v{T2}, 17, v{T2}
        v_and_b32 v{T1}, 31, v{T1}
        v_lshl_add_u32 v{T2}, v{T1}, 4, v{T2}
        v_add_u32 v{LA+2+d}, v{T2}, v{T4}
        """)
    a.I(f"""
    v_lshlrev_b32 v{LA+4}, 2, v{vC}
    v_lshlrev_b32 v{T1}, 2, v{vG4}
    v_sub_u32 v{T1}, v{vC}, v{T1}
    v_mov_b32 v{T3}, 0xff800000
    s_cmp_eq_u32 s7, 0
    s_cselect_b64 s[4:5], 0, -1
    """)
    for k in range(8):
        r, pv = k % 4, k // 4
        a.I(f"""
        v_add_u32 v{T2}, {16*pv - r}, v{T1}
        v_and_b32 v{T2}, 0xfffffff1, v{T2}
        v_cmp_eq_u32 vcc, 0, v{T2}
        v_mov_b32 v{ONES+r}, 0x3f803f80
        s_nop 0
        v_cndmask_b32 v{LB+k}, v{T3}, 0, vcc
        """)
        if pv:
            a.I(f'v_cndmask_b32 v{LB+4+k}, v{T3}, v{LB+k}, s[4:5]')
    a.I(f's_mov_b32 s100, {RA}')
    a.L(f'{N}_gsetup')
    a.I(f"""
    v_and_b32 v{T0}, 1, v{vG4}
    v_lshrrev_b32 v{T2}, 2, v{vC}
    v_mul_u32_u24 v{T2}, 160, v{T2}
    v_and_b32 v{T3}, 3, v{vC}
    v_lshl_add_u32 v{T2}, v{T3}, 3, v{T2}
    v_add_u32 v{T2}, s100, v{T2}
    v_mul_u32_u24 v{T3}, {4*160}, v{T0}
    v_add_u32 v{T3}, v{T3}, v{T2}
    v_mul_u32_u24 v{T0}, {40*160}, v{T0}
    v_add_u32 v{T0}, v{T0}, v{T2}
    v_mul_u32_u24 v{T1}, {20*160}, v{vH}
    v_add_u32 v{vR}, v{T1}, v{T3}
    v_cmp_eq_u32 vcc, 1, v{vH}
    """)
    for h in range(2):
        a.I(f"""
        v_add_u32 v{T1}, {(16+20*h)*160}, v{T0}
        v_add_u32 v{T2}, {(80+8*h)*160}, v{T3}
        v_cndmask_b32 v{vR+1+h}, v{T1}, v{T2}, vcc
        v_add_u32 v{T1}, {(140+8*h)*160}, v{T3}
        v_add_u32 v{T2}, {(96+20*h)*160}, v{T0}
        v_cndmask_b32 v{vR+3+h}, v{T1}, v{T2}, vcc
        """)
    a.I(f"""
    s_and_b32 s3, s9, 1
    s_lshl_b32 s3, s3, 8
    v_lshlrev_b32 v{vA}, 4, v{vC}
    v_lshl_add_u32 v{vA}, v{vG4}, 9, v{vA}
    v_add_u32 v{vA}, s3, v{vA}
    s_bfe_u32 s3, s9, 0x10001
    s_lshl_b32 s4, s7, 1
    s_add_u32 s3, s3, s4
    s_mul_i32 s21, s3, {OAB_PT}
    s_add_u32 s21, s21, {WS_OAB}
    s_setpc_b64 {RET}
    """)
    def waddr(k5, h):
        if k5 == 2: return vR + 1 + h, 0
        if k5 == 4: return vR + 3 + h, 0
        return vR, ({0: 0, 1: 40, 3: 100}[k5] + 8 * h) * 160
    def wread(s, base):
        st, k5 = divmod(s, 5)
        for t in range(5):
            for h in range(2):
                r, o = waddr(k5, h)
                yield f'ds_read_b64_tr_b16 {vr(base+t*4+2*h,2)}, v{r} offset:{(st&1)*25600 + o + t*32}'
    a.L(f'{N}_wpre')
    for s in range(8):
        for i in wread(s, WF + s*20): a.I(i)
    a.I(f's_setpc_b64 {RET}')


    a.L(f'{N}_wpf')
    a.I(f"""
    v_lshlrev_b32 v92, 4, v{vL}
    s_mov_b32 exec_hi, 0xff
    """)
    for r in range(10):
        a.I(f'buffer_load_dwordx4 v[96:99], v92, s[52:55], s15 offen offset:{(r%3)*1280}')
        if r % 3 == 2: a.I('s_add_u32 s15, s15, 3840')
    a.I(f"""
    s_mov_b32 exec_hi, -1
    s_setpc_b64 {RET}
    """)
    a.L(f'{N}_wob')
    a.I(f"""
    s_cmp_ge_u32 s15, s14
    s_cbranch_scc1 {N}_wob9
    s_setprio {OPT['hprio']}
    s_cmp_ge_u32 s15, 5
    s_cbranch_scc1 {N}_wobA
    s_add_u32 s3, s15, s13
    s_cmp_ge_u32 s3, 5
    s_cselect_b32 s4, 5, 0
    s_sub_u32 s3, s3, s4
    s_mul_i32 s4, s3, {128*1280}
    s_mul_i32 s5, s3, 20480
    s_add_u32 s5, s5, {RA}
    s_mov_b32 s3, 0
    s_branch {N}_wob1
    """)
    a.L(f'{N}_wobA')
    a.I(f"""
    s_mov_b32 s44, s24
    s_mov_b32 s45, s25
    s_add_u32 s3, s15, s13
    s_mul_i32 s4, s3, 86
    s_lshr_b32 s4, s4, 8
    s_mul_i32 s4, s4, 3
    s_sub_u32 s3, s3, s4
    s_mul_i32 s4, s3, {128*1280}
    s_mul_i32 s5, s3, 20480
    s_cmp_ge_u32 s15, 8
    s_cselect_b32 s20, {320*1280}, 0
    s_add_u32 s4, s4, s20
    s_cmp_ge_u32 s15, 8
    s_cselect_b32 s20, 0, {RB-RA}
    s_add_u32 s5, s5, s20
    s_lshr_b32 s3, s3, 1
    s_lshr_b32 s20, s10, 1
    s_mul_i32 s20, s20, s3
    s_add_u32 s3, s3, s20
    """)
    a.L(f'{N}_wob1')
    a.I('s_add_u32 s5, s5, s12')
    a.I('s_add_u32 s15, s15, 1')
    for j in range(5):
        if j == 2:
            a.I('s_cmp_eq_u32 s3, 2')
            a.I(f's_cbranch_scc1 {N}_wob8')
        if j == 3:
            a.I('s_cmp_eq_u32 s3, 1')
            a.I(f's_cbranch_scc1 {N}_wob8')
        a.I(f's_add_u32 m0, s5, {j*4096}')
        a.I('s_nop 0' if OPT['wsub'] < 0 else f's_waitcnt vmcnt({OPT["wsub"]})')
        a.I(f'buffer_load_dwordx4 v{VWO+j}, s[44:47], s4 offen lds')
    a.L(f'{N}_wob8')
    a.I(f's_setprio {OPT["vprio"]}')
    a.L(f'{N}_wob9')
    a.I(f's_setpc_b64 {RET}')

    a.L(f'{N}_extra')
    worksetup()
    EXX, EXW = 40, 72
    a.I(f'''
    ds_read_b64 {vr(CNT,2)}, v{vSY}
    v_mul_u32_u24 v{T0}, 40, v{vW0}
    v_add_u32 v{vWB_}, v{T0}, v{vW1}
    v_add_u32 v{vWB_}, {EXB}, v{vWB_}
    s_mov_b32 s12, 5120
    s_setprio 3
    s_sub_u32 s11, s9, 4
    s_and_b32 s3, s96, 1
    s_add_u32 s11, s11, s3
    s_lshl_b32 s15, s11, 12
    s_lshl_b32 s3, s7, 1
    s_add_u32 s3, s3, s11
    s_mul_i32 s3, s3, {KVT}
    s_add_u32 s13, s3, {WS_KVF}
    s_cmp_eq_u32 s96, 4
    s_cbranch_scc1 {N}_exG
    s_cmp_ge_u32 s96, 2
    s_cbranch_scc1 {N}_exV
    ''')
    def exloop(orient, gate=False):
        l = lab()
        def addr():
            a.I(f"""
            s_lshl_b32 s3, s60, 14
            s_add_u32 s3, s3, s15
            s_mul_i32 s4, s60, s12
            s_add_u32 s60, s60, 1
            s_cmp_eq_u32 s60, 5
            s_cselect_b32 s60, 0, s60
            s_add_u32 s10, s10, 1
            s_cmp_eq_u32 s10, 6
            s_cselect_b32 s10, 0, s10
            """)
            for k in range(4):
                a.I(f'v_add_u32 v{vCX+k}, s3, v{vXB+k}')
            a.I(f'v_add_u32 v{vCW}, s4, v{vWB_}')
        def reads(ks, tag):
            a.LG(f'ds_read_b128 {vr(EXX+ks*4,4)}, v{vCX+(ks&3)} offset:{(ks>>2)*8192}', tag)
            if gate:
                a.LG(f'ds_read_b128 {vr(EXW+ks*4,4)}, v{vCW} offset:{ks*32}', tag)
            else:
                for h in range(2):
                    a.LG(f'ds_read_b64_tr_b16 {vr(EXW+ks*4+2*h,2)}, v{vCW} offset:{(ks*16+4*h)*40}', tag)
        addr()
        vstamp(16)
        cntwait(l + 'w0', 10 if gate else 's10')
        vstamp(17)
        a.lg = []
        for ks in range(4): reads(ks, ks)
        q0 = list(a.lg)
        a.L(l)
        for u in range(8):
            if u == 4:
                addr()
                a.wait(lg=lambda t: t == 'c')
                cntwait(l + 'w', 's10', first=None)
            reads((u + 4) % 8, u + 4)
            if STAMPS and u == 5: a.I('s_memtime s[100:101]')
            if STAMPS and u == 3: a.I('s_add_u32 m0, s10, 24\nv_writelane_b32 v0, s100, m0')
            if u == 1:
                a.LG(f'ds_read_b64 {vr(CNT,2)}, v{vSY}', 'c')
            a.wait(lg=lambda t: t != 'c' and t <= u)
            d = vr(FACC, 16)
            x, w = vr(EXX + u * 4, 4), vr(EXW + u * 4, 4)
            if orient == 'T':
                a.I(f'{MF32} {d}, {w}, {x}, {d}')
            else:
                a.I(f'{MF32} {d}, {x}, {w}, {d}')
        assert a.lg == [t + 8 for t in q0], a.lg
        a.I(f"""
        s_cmp_lg_u32 s10, 0
        s_cbranch_scc1 {l}
        s_waitcnt lgkmcnt(0)
        s_mov_b64 exec, 1
        ds_add_u32 v{vSY}, v{vOne} offset:{C_F}
        s_mov_b64 exec, -1
        s_nop 7
        s_nop 3
        """)
        vstamp(18)
    exloop('T')
    r = FACC
    a.I(f'''
    v_lshlrev_b32 v{T0}, 4, v{vL}
    v_lshlrev_b32 v{T1}, 3, v{vL}
    ''')
    for k in range(6):
        cv(r + k, r + 2 * k)
    a.I(f'''
    s_mov_b32 exec_lo, 0
    v_mov_b32 v{r+4}, 0x3f803f80
    v_mov_b32 v{r+5}, 0x3f80
    s_mov_b32 exec_lo, -1
    buffer_store_dwordx4 {vr(r,4)}, v{T0}, {W}, s13 offen sc1
    s_mov_b32 exec_hi, 1
    buffer_store_dwordx2 {vr(r+4,2)}, v{T1}, {W}, s13 offen offset:{KV_K2} sc1
    s_mov_b32 exec_hi, -1
    ''')
    a.L(f'{N}_exflag')
    a.stamp(1)
    getnonce(T2, T4)
    a.I(f'''
    s_lshl_b32 s3, s7, 1
    s_lshr_b32 s4, s96, 1
    s_add_u32 s3, s3, s4
    s_lshl_b32 s3, s3, 7
    s_lshl_b32 s4, s11, 3
    s_add_u32 s3, s3, s4
    s_add_u32 s3, s3, {WS_FLG}
    v_mov_b32 v{T0}, 0
    s_waitcnt vmcnt(0)
    s_mov_b64 exec, 1
    buffer_store_dwordx2 {vr(T2,2)}, v{T0}, {W}, s3 offen sc1
    s_mov_b64 exec, -1
    ''')
    a.stamp(2)
    a.I(f's_branch {N}_hpre2')
    a.L(f'{N}_exV')
    exloop('N')
    a.I(f'''
    v_mul_u32_u24 v{T0}, 336, v{vH}
    v_lshl_add_u32 v{T0}, v{vP}, 4, v{T0}
    v_mov_b32 v{T1}, 0x3f803f80
    v_cmp_eq_u32 vcc, 20, v{vP}
    s_mov_b32 s4, 0x1fffff
    s_mov_b32 s5, 0x1fffff
    ''')
    for k in range(8):
        cv(r + k, r + 2 * k)
    for k in range(8):
        a.I(f'v_cndmask_b32 v{r+k}, v{r+k}, v{T1}, vcc')
    a.I(f'''
    s_mov_b64 exec, s[4:5]
    buffer_store_dwordx4 {vr(r,4)}, v{T0}, {W}, s13 offen offset:{KV_V1} sc1
    buffer_store_dwordx4 {vr(r+4,4)}, v{T0}, {W}, s13 offen offset:{KV_V2} sc1
    s_mov_b64 exec, -1
    ''')
    a.I(f's_branch {N}_exflag')
    a.L(f'{N}_exG')
    a.I(f'''
    v_lshlrev_b32 v{vWB_}, 4, v{vH}
    v_add_u32 v{vWB_}, {GV}, v{vWB_}
    s_setprio 0
    s_mov_b32 s12, 256
    ''')
    exloop('T', True)
    a.I(f'''
    s_lshl_b32 s3, s7, 8
    s_lshl_b32 s4, s11, 7
    s_add_u32 s3, s3, s4
    s_add_u32 s3, s3, {WS_G}
    v_mul_f32 v{T0}, {f32hex(-math.log2(math.e))}, v{FACC}
    v_exp_f32 v{T0}, v{T0}
    v_lshlrev_b32 v{T1}, 2, v{vP}
    v_add_f32 v{T0}, 1.0, v{T0}
    v_rcp_f32 v{T0}, v{T0}
    s_mov_b32 exec_hi, 0
    buffer_store_dword v{T0}, v{T1}, {W}, s3 offen sc1
    s_mov_b32 exec_hi, -1
    ''')
    a.L(f'{N}_hpre2')
    a.I('s_setprio 0')
    a.I(f's_call_b64 {RET}, {N}_hsetup2')
    a.L(f'{N}_hpre')
    PD = OPT['PD']
    HX = 28
    HWf = 60
    srd(a, 48, 38, WS_END)
    srd(a, 44, 28, 2457600)
    a.I(f'''
    s_sub_u32 s10, s9, 4
    s_lshl_b32 s3, s8, 9
    s_lshl_b32 s4, s10, 7
    s_add_u32 s11, s3, s4
    s_lshl_b32 s12, s10, 13
    s_add_u32 s12, s12, {HR}
    ''')
    if not OPT['map2']:
        a.I('s_and_b32 s3, s7, 3\ns_mul_i32 s3, s3, 5\ns_lshr_b32 s13, s3, 1')
    else:
        a.I('s_and_b32 s3, s7, 7\ns_mul_i32 s3, s3, 5\ns_lshr_b32 s13, s3, 2')
    a.I(f'''
    s_mul_i32 s14, s13, {64*3840}
    s_lshl_b32 s13, s13, 13
    s_mov_b32 s19, 0
    s_cmp_ge_u32 s11, 3840
    s_cselect_b32 s46, 0, s46
    ''')
    for k in range(4):
        a.I(f'v_add_u32 v{vCX+k}, s13, v{vXB+k}')
    getnonce(T2, T1)
    a.I(f'''
    s_cmp_lg_u32 s9, 5
    s_cbranch_scc1 {N}_p1ok
    ''')
    ldswait(C_Q + 4*OPT['p1start'], 4, T0, T1, sleep=1)
    a.I(f'''
    v_lshlrev_b32 v{T4}, 7, v{vL}
    s_mov_b32 s3, {WS_FLG}
    s_mov_b32 s4, 0
    ''')
    vstamp(22)
    a.L(f'{N}_p1')
    a.I(f'''
    buffer_load_dwordx4 v[92:95], v{T4}, {W}, s3 offen sc1
    s_add_u32 s4, s4, 1
    s_waitcnt vmcnt(0)
    v_cmp_eq_u64 vcc, s[62:63], v[92:93]
    v_cmp_eq_u64 s[56:57], s[62:63], v[94:95]
    s_and_b64 vcc, vcc, s[56:57]
    s_cmp_eq_u64 vcc, -1
    s_cbranch_scc1 {N}_p1g
    s_cmp_lt_u32 s4, {SPIN}
    s_cbranch_scc1 {N}_p1
    ''')
    a.L(f'{N}_p1g')
    a.I(f'''
    v_mov_b32 v{T0}, {SYNC}
    v_mov_b32 v{T1}, 64
    s_mov_b64 exec, 1
    ds_add_u32 v{T0}, v{T1} offset:{C_Q+12}
    s_mov_b64 exec, -1
    ''')
    if STAMPS: a.I(f'v_writelane_b32 v0, s4, 25')
    vstamp(23)
    a.L(f'{N}_p1ok')
    ldswait(C_Q + 8, 4, T0, T1, sleep=1)
    a.stamp(3)
    a.I(f's_setprio {OPT["hprio"]}')
    hadv = [f's_add_u32 s14, s14, {32*3840}', f's_cmp_eq_u32 s14, {640*3840}', 's_cselect_b32 s14, 0, s14',
            's_add_u32 s19, s19, 1', 's_cmp_ge_u32 s19, 20', 's_cselect_b32 s46, 0, s46']
    def hm0(q, e): return f's_add_u32 m0, s12, {q*2048 + e*1024}'
    def hld(q, e): return f'buffer_load_dwordx4 v{vHW+(q&1)*2+e}, s[44:47], s14 offen lds'
    def hxr(q): return [f'ds_read_b128 {vr(HX+(q&1)*8+pt*4,4)}, v{vCX+q} offset:{pt*4096}' for pt in range(2)]
    def hwr(q): return [f'ds_read_b64_tr_b16 {vr(HWf+(q&1)*8+j*4+2*h,2)}, v{vHR+j} offset:{q*2048 + h*512}' for j in range(2) for h in range(2)]
    for q_ in range(4):
        for e in range(2):
            a.I(hm0(q_, e)); a.I('s_nop 0'); a.I(hld(q_, e))
        if q_ & 1:
            for i in hadv: a.I(i)
    a.I('s_waitcnt vmcnt(6)')
    for i in hxr(0) + hwr(0): a.I(i)
    a.I(f"""
    s_cmp_ge_u32 s6, 16
    s_cselect_b32 s52, s24, s30
    s_cselect_b32 s53, s25, s31
    s_mov_b32 s54, 819200
    s_mov_b32 s55, 0x20000
    s_and_b32 s3, s6, 15
    s_lshl_b32 s3, s3, 2
    s_add_u32 s3, s3, s10
    s_mul_i32 s15, s3, 12800
    s_lshr_b32 s3, s8, 2
    s_mul_i32 s3, s3, 640
    s_add_u32 s15, s15, s3
    s_mov_b32 s20, 0
    s_cmp_ge_u32 s8, 5
    s_cbranch_scc1 {N}_h1N
    """)
    def h1loop(orient):
        l = lab()
        a.L(l)
        if STAMPS:
            a.I('s_memtime s[96:97]\ns_mov_b32 m0, s20\ns_waitcnt lgkmcnt(0)\nv_writelane_b32 v0, s96, m0')
        if OPT['pf']:
            a.I(f's_cmp_lg_u32 s20, {OPT["pf"]-1}')
            a.I(f's_cbranch_scc1 {l}npf')
            a.I(f's_call_b64 {RET}, {N}_wpf')
            a.L(l + 'npf')
        for q in range(4):
            qn = (q + 1) & 3
            a.I('s_waitcnt vmcnt(4) lgkmcnt(0)')
            fl = [hwr(qn), [hm0(q, 0)] + hxr(qn), [hld(q, 0), hm0(q, 1)], [hld(q, 1)]]
            if q & 1: fl[3] += hadv
            if q == 0:
                fl[3] += ['s_add_u32 s13, s13, 8192', 's_cmp_eq_u32 s13, 81920', 's_cselect_b32 s13, 0, s13', 's_add_u32 s20, s20, 1']
            if q == 2:
                fl[3] += [f'v_add_u32 v{vCX+k}, s13, v{vXB+k}' for k in range(4)]
            if q == 3:
                fl[3] += ['s_cmp_lt_u32 s20, 10']
            m = 0
            for pt in range(2):
                for j in range(2):
                    d = vr(HACC + (pt * 2 + j) * 16, 16)
                    x, w = vr(HX + (q&1)*8 + pt*4, 4), vr(HWf + (q&1)*8 + j*4, 4)
                    if OPT['mprio'] != OPT['hprio']: a.I(f's_setprio {OPT["mprio"]}')
                    if orient == 'T':
                        a.I(f'{MF32} {d}, {w}, {x}, {d}')
                    else:
                        a.I(f'{MF32} {d}, {x}, {w}, {d}')
                    if m == 3 and q == 2:
                        for i in fl[m][1:]: a.I(i)
                        fl[m] = fl[m][:1]
                    if OPT['mprio'] != OPT['hprio']: a.I(f's_setprio {OPT["hprio"]}')
                    for i in fl[m]: a.I(i)
                    m += 1
        a.I(f"""
        s_cbranch_scc1 {l}
        s_waitcnt vmcnt(0) lgkmcnt(0)
        s_setprio {OPT['vprio']}
        """)
        arrive(C_H)
        a.I(f"""
        v_lshlrev_b32 v{T0}, 4, v{vL}
        s_nop 7
        """)
        if STAMPS:
            a.I('s_memtime s[96:97]\ns_mov_b32 m0, s20\ns_waitcnt lgkmcnt(0)\nv_writelane_b32 v0, s96, m0')
    h1loop('T')
    a.I(f'''
    s_lshl_b32 s3, s7, 1
    s_mul_i32 s3, s3, {QKB_PT}
    s_lshl_b32 s4, s11, 5
    s_add_u32 s3, s3, s4
    s_add_u32 s4, s3, {QKB_PT}
    ''')
    for pt in range(2):
        for j in range(2):
            r = HACC + (pt * 2 + j) * 16
            for k in range(8):
                cv(r + k, r + 2 * k)
            for b in range(2):
                a.I(f'buffer_store_dwordx4 {vr(r+4*b,4)}, v{T0}, {W}, s{3+pt} offen offset:{(2*j+b)*1024} sc1')
    a.I(f's_branch {N}_h1done')
    a.L(f'{N}_h1N')
    h1loop('N')
    a.I(f'''
    s_cmp_ge_u32 s11, 3840
    s_cbranch_scc1 {N}_h1done
    s_sub_u32 s3, s11, 2560
    s_lshl_b32 s3, s3, 11
    s_lshl_b32 s4, s7, 12
    s_add_u32 s3, s3, s4
    s_add_u32 s3, s3, {WS_VBT}
    s_add_u32 s4, s3, {VBT_NT}
    ''')
    for pt in range(2):
        for j in range(2):
            r = HACC + (pt * 2 + j) * 16
            for k in range(8):
                cv(r + k, r + 2 * k)
            for b in range(2):
                a.I(f'buffer_store_dwordx4 {vr(r+4*b,4)}, v{T0}, {W}, s{3+j} offen offset:{(2*pt+b)*1024} sc1')
    a.L(f'{N}_h1done')
    a.stamp(4)
    def setflag(word, cw):
        l = lab()
        a.I(f'''
        v_mov_b32 v{T0}, {SYNC}
        v_mov_b32 v{T1}, 1
        s_mov_b64 exec, 1
        ds_add_rtn_u32 v{T1}, v{T0}, v{T1} offset:{cw}
        v_mov_b32 v{T0}, 0
        v_mov_b32 v{T2}, s62
        v_mov_b32 v{T3}, s63
        s_waitcnt lgkmcnt(0)
        v_cmp_eq_u32 vcc, 3, v{T1}
        s_cbranch_vccz {l}
        buffer_store_dwordx2 {vr(T2,2)}, v{T0}, {W}, s23 offen offset:{word*1024} sc1
        ''')
        a.L(l)
        a.I('s_mov_b64 exec, -1')
    def pollflag(soff, va, minb=None, sleep=OPT['psleep']):
        l = lab()
        a.I('s_mov_b32 s19, 0')
        a.L(l)
        if minb is not None:
            a.I(f's_call_b64 {RET}, {N}_wob')
        a.I(f'''
        buffer_load_dwordx2 {vr(T2,2)}, v{va}, {W}, {soff} offen sc1
        s_add_u32 s19, s19, 1
        s_waitcnt vmcnt(0)
        v_cmp_ne_u64 vcc, s[62:63], {vr(T2,2)}
        ''')
        if minb:
            a.I(f's_cmp_lt_u32 s15, {minb}')
            a.I(f's_cbranch_scc1 {l}')
        a.I(f's_cbranch_vccz {l}_ok')
        if sleep: a.I(f's_sleep {sleep}')
        a.I(f'''
        s_cmp_lt_u32 s19, {SPIN}
        s_cbranch_scc1 {l}
        ''')
        a.L(l + '_ok')
    def stream(lim):
        l = lab()
        a.L(l)
        a.I(f'''
        s_call_b64 {RET}, {N}_wob
        s_cmp_lt_u32 s15, {lim}
        s_cbranch_scc1 {l}
        ''')
    def pollshare(soff, va, pw, cw):
        l = lab()
        a.I(f's_cmp_lg_u32 s9, {pw}')
        a.I(f's_cbranch_scc1 {l}')
        pollflag(soff, va)
        arrive(cw)
        a.I(f's_branch {l}_ok')
        a.L(l)
        a.I(f'v_mov_b32 v{T3}, {SYNC}')
        a.I('s_mov_b32 s19, 0')
        a.L(l + '_w')
        a.I(f'''
        ds_read_b32 v{T2}, v{T3} offset:{cw}
        s_add_u32 s19, s19, 1
        s_waitcnt lgkmcnt(0)
        v_readfirstlane_b32 s3, v{T2}
        s_cmp_lg_u32 s3, 0
        s_cbranch_scc1 {l}_ok
        s_call_b64 {RET}, {N}_wob
        s_sleep 1
        s_cmp_lt_u32 s19, {SPIN*8}
        s_cbranch_scc1 {l}_w
        ''')
        a.L(l + '_ok')
    srd(a, 44, 30, 819200)
    LQ, LK, LV, LG = 28, 44, 64, 84
    LS, LP, M, LO, LL = 88, 120, 136, 172, 204
    a.I(f'''
    s_lshl_b32 s12, s10, 10
    s_mul_i32 s22, s7, {FG}
    s_add_u32 s22, s22, {WS_FG}
    s_lshl_b32 s3, s8, 7
    s_add_u32 s23, s22, s3
    s_and_b32 s13, s7, {7 if OPT['map2'] else 3}
    s_cmp_ge_u32 s13, 5
    s_cselect_b32 s3, 5, 0
    s_sub_u32 s13, s13, s3
    s_mov_b32 s14, 8
    s_mov_b32 s15, 0
    s_lshl_b32 s3, s7, 1
    s_mul_i32 s29, s3, {QKB_PT}
    s_add_u32 s30, s29, {QKB_PT}
    s_add_u32 s31, s29, 40960
    s_add_u32 s32, s30, 40960
    s_sub_u32 s33, s31, {QKB_PT}
    s_lshl_b32 s26, s7, 12
    s_add_u32 s26, s26, {WS_VBT}
    s_sub_u32 s27, s26, 1024
    s_sub_u32 s28, s22, {FG}
    s_cmp_eq_u32 s7, 0
    s_cselect_b32 s33, s31, s33
    s_cselect_b32 s27, s26, s27
    s_cselect_b32 s28, s22, s28
    s_lshl_b32 s18, s7, 8
    s_add_u32 s18, s18, {WS_G}
    ''')
    for u in range(4):
        a.I(f'v_mov_b32 v{LQ+4*u+2}, 0')
        a.I(f'v_mov_b32 v{LQ+4*u+3}, 0')
    a.I('s_waitcnt vmcnt(0)')
    setflag(0, C_2)
    ldswait(C_H, 8, T2, T3)
    stream(OPT['st2'])
    pollshare('s28', vF2, 4, C_S2)
    a.stamp(5)
    if STAMPS: a.I('v_writelane_b32 v0, s15, 31')
    a.I(f's_setprio {OPT["hprio"]}')
    for u in range(4):
        a.I(f'buffer_load_dwordx2 {vr(LQ+4*u,2)}, v{LA}, {W}, s{29+(u>>1)} offen offset:{256*(u&1)} sc1')
    a.I('s_mov_b64 exec, 0xffff')
    for u in range(4):
        a.I(f'buffer_load_dwordx2 {vr(LQ+4*u+2,2)}, v{LA+1}, {W}, s{29+(u>>1)} offen offset:{256*(u&1)} sc1')
    a.I('s_mov_b64 exec, -1')
    for kt, (so, off) in enumerate([('s33', 256), ('s31', 0), ('s31', 256), ('s32', 0), ('s32', 256)]):
        a.I(f'buffer_load_dwordx2 {vr(LK+4*kt,2)}, v{LA}, {W}, {so} offen offset:{off} sc1')
        a.I(f'buffer_load_dwordx2 {vr(LK+4*kt+2,2)}, v{LA+1}, {W}, {so} offen offset:{off} sc1')
    for d in range(2):
        for kt in range(5):
            so, off = ('s27', 0) if kt == 0 else ('s26', (kt - 1) * 1024)
            a.I(f'buffer_load_dwordx2 {vr(LV+10*d+2*kt,2)}, v{LA+2+d}, {W}, {so} offen offset:{off} sc1')
    for u in range(4):
        a.I(f'buffer_load_dword v{LG+u}, v{LA+4}, {W}, s18 offen offset:{64*u} sc1')
    a.I(f's_setprio {OPT["vprio"]}')
    a.I(f'''
    s_lshl_b32 s3, s7, 1
    s_mul_i32 s36, s3, {OAB_PT}
    s_mul_i32 s3, s8, 5120
    s_add_u32 s36, s36, s3
    s_add_u32 s36, s36, {WS_OAB + 40960}
    s_lshl_b32 s3, s10, 10
    s_add_u32 s37, s36, s3
    s_add_u32 s38, s37, {OAB_PT}
    s_lshr_b32 s3, s10, 1
    s_lshl_b32 s3, s3, 9
    s_and_b32 s4, s10, 1
    s_lshl_b32 s4, s4, 3
    s_add_u32 s3, s3, s4
    s_add_u32 s40, s36, s3
    s_add_u32 s40, s40, 4096
    s_add_u32 s41, s40, {OAB_PT}
    v_mov_b32 v{T4}, {f32hex(CSCALE)}
    v_mov_b32 v{T5}, {f32hex(-CSCALE)}
    ''')
    a.I('s_waitcnt vmcnt(14)')
    for u in range(4):
        bp = LB + 8 if u == 0 else LB + 4
        a.I(f'{MF16} {vr(LS+8*u,4)}, {vr(LK+4*u,4)}, {vr(LQ+4*u,4)}, {vr(bp,4)}')
        a.I(f'{MF16} {vr(LS+8*u+4,4)}, {vr(LK+4*u+4,4)}, {vr(LQ+4*u,4)}, {vr(LB,4)}')
    a.I('s_nop 3')
    for u in range(4):
        s = LS + 8 * u
        m = M + 2 * u
        a.I(f'''
        v_max3_f32 v{m}, v{s}, v{s+1}, v{s+2}
        v_max3_f32 v{m}, v{m}, v{s+3}, v{s+4}
        v_max3_f32 v{m}, v{m}, v{s+5}, v{s+6}
        v_max_f32 v{m}, v{m}, v{s+7}
        v_mov_b32 v{m+1}, v{m}
        ''')
    a.I('s_nop 1')
    for u in range(4):
        a.I(f'v_permlane16_swap_b32 v{M+2*u}, v{M+2*u+1}')
    for u in range(4):
        a.I(f'v_max_f32 v{M+2*u}, v{M+2*u}, v{M+2*u+1}')
    for u in range(4):
        a.I(f'v_mov_b32 v{M+2*u+1}, v{M+2*u}')
    a.I('s_nop 1')
    for u in range(4):
        a.I(f'v_permlane32_swap_b32 v{M+2*u}, v{M+2*u+1}')
    for u in range(4):
        a.I(f'v_max_f32 v{M+2*u}, v{M+2*u}, v{M+2*u+1}')
    for u in range(4):
        a.I(f'v_mul_f32 v{M+2*u}, v{T5}, v{M+2*u}')
    for u in range(4):
        s = LS + 8 * u
        for k in range(8):
            a.I(f'v_fma_f32 v{s+k}, v{s+k}, v{T4}, v{M+2*u}')
        for k in range(8):
            ex(s + k)
    a.I('s_nop 0')
    for u in range(4):
        for k in range(4):
            cv(LP + 4 * u + k, LS + 8 * u + 2 * k)
    a.I('s_waitcnt vmcnt(0)')
    a.I(f'v_add_u32 v{T2}, {GL}, v{LA+4}')
    for u in range(4):
        a.I(f'{MF16} {vr(LL+4*u,4)}, {vr(ONES,4)}, {vr(LP+4*u,4)}, 0')
        a.I(f'{MF16} {vr(LO+8*u,4)}, {vr(LV+2*u,4)}, {vr(LP+4*u,4)}, 0')
        a.I(f'{MF16} {vr(LO+8*u+4,4)}, {vr(LV+10+2*u,4)}, {vr(LP+4*u,4)}, 0')
        a.I(f'ds_write_b32 v{T2}, v{LG+u} offset:{64*u}')
    a.I('s_nop 3')
    for u in range(4):
        o = LO + 8 * u
        a.I(f'''
        v_rcp_f32 v{T2}, v{LL+4*u}
        v_sub_f32 v{T3}, 1.0, v{LG+u}
        v_mul_f32 v{T2}, v{T2}, v{T3}
        ''')
        for k in range(8):
            a.I(f'v_mul_f32 v{o+k}, v{T2}, v{o+k}')
        p = LS + 4 * (u >> 1) + 2 * (u & 1)
        cv(p, o); cv(p + 1, o + 2)
        cv(o, o + 4); cv(o + 1, o + 6)
    a.I('s_nop 1')
    for pp in range(2):
        p = LS + 4 * pp
        a.I(f'v_permlane32_swap_b32 v{p}, v{p+2}')
        a.I(f'v_permlane32_swap_b32 v{p+1}, v{p+3}')
        a.I(f'buffer_store_dwordx4 {vr(p,4)}, v{vOB+1}, {W}, s{37+pp} offen sc1')
    a.I('s_mov_b64 exec, 0xffff')
    for u in range(4):
        a.I(f'buffer_store_dwordx2 {vr(LO+8*u,2)}, v{vOB}, {W}, s{40+(u>>1)} offen offset:{256*(u&1)} sc1')
    a.I('s_mov_b64 exec, -1')
    a.I('s_add_u32 s28, s22, 1024')
    a.I('s_waitcnt vmcnt(0)')
    a.stamp(6)
    setflag(1, C_3)
    stream(5)
    a.I('s_waitcnt vmcnt(0)')
    arrive(C_H)
    pollshare('s28', vF3, 5, C_S3)
    a.stamp(7)
    HWR = 124
    NR = 6
    AW = OPT['AW']
    a.vm = []; a.lg = []
    def w3(s):
        for n, i in enumerate(wread(s, HWR + (s % NR) * 20)):
            a.LG(i, (s, n))
    def a3(s):
        a.VM(f'buffer_load_dwordx4 {vr(AF+4*s,4)}, v{vA}, {W}, s19 offen offset:{(s%2)*2048} sc1', s)
        if s % 2 == 1:
            a.I('s_add_u32 s19, s19, 4096')
    a.I('s_add_u32 s19, s21, 40960')
    a.I(f's_setprio {OPT["hprio"]}')
    for s in range(AW): a3(s)
    a.I(f's_setprio {OPT["vprio"]}')
    ldswait(C_H, 12, T2, T3)
    vstamp(11)
    if STAMPS: a.I('v_writelane_b32 v0, s15, 30')
    for s in range(NR - 1): w3(s)
    for s in range(20):
        sn = s + NR - 1
        if sn == 10:
            for k in range(5):
                a.I(f'v_add_u32 v{vR+k}, 51200, v{vR+k}')
        if sn < 20: w3(sn)
        a.wait(vm=lambda tg: tg <= s, lg=lambda tg: tg[0] <= s)
        for t in range(5):
            d = vr(CACC + 4 * t, 4)
            a.I(f'{MF16} {d}, {vr(HWR+(s%NR)*20+t*4,4)}, {vr(AF+4*s,4)}, {d if s else 0}')
            if t == 0 and s + AW < 20: a3(s + AW)
    def drain():
        l = lab()
        a.L(l)
        a.I(f'''
        s_call_b64 {RET}, {N}_wob
        s_cmp_lt_u32 s15, s14
        s_cbranch_scc1 {l}
        s_waitcnt vmcnt(0)
        ''')
    vstamp(12)
    drain()
    arrive(C_H)
    a.stamp(8)
    ldswait(C_H, HDONE, T2, T3)
    vstamp(13)
    a.I('s_mov_b32 s14, 11')
    for k in range(5):
        a.I(f'v_subrev_u32 v{vR+k}, 51200, v{vR+k}')
    a.I('s_add_u32 s22, s21, 20480')
    drain()
    vstamp(14)
    arrive(C_H)
    ldswait(C_H, 20, T2, T3)
    a.I(f's_call_b64 {RET}, {N}_wpre')
    vstamp(24)
    a.I('s_setprio 0')
    a.I('s_barrier')

    a.L(f'{N}_phaseC')
    a.stamp(9)
    a.I(f'''
    s_mul_i32 s3, s7, {FG}
    s_bfe_u32 s4, s9, 0x10001
    s_lshl_b32 s4, s4, 11
    s_add_u32 s3, s3, s4
    s_lshr_b32 s4, s9, 2
    s_lshl_b32 s4, s4, 10
    s_add_u32 s3, s3, s4
    s_add_u32 s28, s3, {WS_FG + 16*128}
    v_and_b32 v{T0}, 7, v{vL}
    v_lshlrev_b32 v{T0}, 7, v{T0}
    ''')
    pollflag('s28', T0, sleep=1)
    a.stamp(10)
    a.vm = []; a.lg = []
    for s in range(10):
        a.VM(f'buffer_load_dwordx4 {vr(AF+4*s,4)}, v{vA}, {W}, s22 offen offset:{(s%2)*2048} sc1', s)
        if s % 2 == 1:
            a.I('s_add_u32 s22, s22, 4096')
    srd(a, 52, 34, 2048 * 1280)
    vPa = 12
    a.I(f'''
    s_mul_i32 s3, s9, 6144
    s_add_u32 s3, s3, {EXA}
    v_mul_u32_u24 v{T0}, 336, v{vC}
    v_lshl_add_u32 v{T0}, v{vG4}, 4, v{T0}
    v_add_u32 v{vPa+4}, s3, v{T0}
    s_lshl_b32 s3, s7, 6
    s_lshl_b32 s4, s9, 3
    s_add_u32 s3, s3, s4
    s_mul_i32 s13, s3, 1280
    s_mul_i32 s5, s8, 160
    s_add_u32 s13, s13, s5
    s_lshr_b32 s3, s9, 1
    s_mul_i32 s14, s3, 6144
    s_and_b32 s3, s9, 1
    s_mul_i32 s3, s3, {8*336}
    s_add_u32 s14, s14, s3
    s_add_u32 s14, s14, {EXA}
    ''')
    for p in range(2):
        a.I(f'''
        v_add_u32 v{T0}, {p*64}, v{vL}
        v_mul_u32_u24 v{T1}, 6554, v{T0}
        v_lshrrev_b32 v{T1}, 16, v{T1}
        v_mul_u32_u24 v{T2}, 10, v{T1}
        v_sub_u32 v{T2}, v{T0}, v{T2}
        v_mul_u32_u24 v{T3}, 336, v{T1}
        v_lshl_add_u32 v{T3}, v{T2}, 5, v{T3}
        v_add_u32 v{vPa+p}, s14, v{T3}
        v_mul_u32_u24 v{T3}, 1280, v{T1}
        v_lshl_add_u32 v{vPa+2+p}, v{T2}, 4, v{T3}
        ''')
    a.I('s_waitcnt lgkmcnt(0)')
    for s in range(10):
        if s == 8: a.I('s_waitcnt lgkmcnt(10)')
        if s == 9: a.I('s_waitcnt lgkmcnt(0)')
        a.wait(vm=lambda tg: tg <= s)
        for t in range(5):
            d = vr(CACC + 4 * t, 4)
            a.I(f'{MF16} {d}, {vr(WF+(s%8)*20+t*4,4)}, {vr(AF+4*s,4)}, {d}')
        if s in (1, 2):
            for i in wread(7 + s, WF + (s - 1)*20): a.I(i)
    a.stamp(11)
    a.I('s_nop 3')
    for t in range(5):
        a.I(f'ds_write_b128 v{vPa+4}, {vr(CACC+4*t,4)} offset:{t*64}')
    a.I('s_waitcnt lgkmcnt(0)\ns_barrier')
    for p in range(2):
        b = AF + p * 16
        if p == 1:
            a.I('s_mov_b64 exec, 0xffff')
        a.I(f'''
        ds_read_b128 {vr(b,4)}, v{vPa+p}
        ds_read_b128 {vr(b+4,4)}, v{vPa+p} offset:16
        ds_read_b128 {vr(b+8,4)}, v{vPa+p} offset:24576
        ds_read_b128 {vr(b+12,4)}, v{vPa+p} offset:24592
        ''')
    a.I('s_mov_b64 exec, -1')
    for p in range(2):
        b = AF + p * 16
        a.I(f's_waitcnt lgkmcnt({4-4*p})')
        for k in range(8):
            a.I(f'v_add_f32 v{b+k}, v{b+k}, v{b+8+k}')
        for k in range(4):
            cv(b + k, b + 2 * k)
        if p == 1:
            a.I('s_mov_b64 exec, 0xffff')
        a.I(f'buffer_store_dwordx4 {vr(b,4)}, v{vPa+2+p}, s[52:55], s13 offen')
    if STAMPS:
        a.stamp(12)
        a.I('s_waitcnt vmcnt(0)')
        a.stamp(13)
        a.dump_stamps(14, 48, WS_STAMP, 9, T0, T1)
        a.I(f'''
        v_lshlrev_b32 v{T0}, 2, v{vL}
        s_getreg_b32 s4, hwreg(HW_REG_HW_ID)
        v_writelane_b32 v0, s4, 15
        s_lshl_b32 s3, s2, 3
        s_add_u32 s3, s3, s9
        s_lshl_b32 s3, s3, 7
        s_add_u32 s3, s3, {WS_STAMP + 262144}
        s_mov_b32 exec_hi, 0
        buffer_store_dword v0, v{T0}, {W}, s3 offen
        ''')
    a.L(f'{N}_end')
    a.I('s_endpgm')
    return a.text()

def build(path):
    hdr = open('gated_mix__grouped_kv_mqa__sliding_local_dilated__prompt.s.ref').read().split('\n')
    head = [l for l in hdr if l.startswith(';') and '@launch' not in l]
    s = '\n'.join(head) + '\n'
    s += f'; @launch grid=(256,1,1) block=(512,1,1) lds={LDS}\n'
    s += '.amdgcn_target "amdgcn-amd-amdhsa--gfx950"\n.text\n'
    s += gen()
    s += '.section .rodata,"a"\n'
    s += kernel_desc(KNAME, 256, 0, 102)
    open(path, 'w').write(s)

if __name__ == '__main__':
    for arg in sys.argv[2:]:
        if arg == 'stamps': STAMPS = True
        elif '=' in arg:
            k, v = arg.split('='); OPT[k] = int(v)
    build(sys.argv[1])
```

```python
import math, sys
from asmlib import *

WS_QKB = 0
QKB_PT = 81920
WS_VBT = 64 * QKB_PT
VBT_NT = 131072
WS_KVF = WS_VBT + 20 * VBT_NT
KVT = 2816
KV_K2, KV_C, KV_V1, KV_V2 = 1024, 1280, 1408, 2080
WS_G = WS_KVF + 64 * KVT
WS_FLG = WS_G + 8192
WS_FG = WS_FLG + 8192
FG = 48 * 128
WS_OAB = WS_FG + 32 * FG
OAB_PT = 81920
WS_STAMP = WS_OAB + 64 * OAB_PT
WS_END = WS_STAMP + 524288
STAMPS = False
CSCALE = math.log2(math.e) / math.sqrt(20.0)
QBSCALE = 1.0
MF16 = 'v_mfma_f32_16x16x32_bf16'
MF32 = 'v_mfma_f32_32x32x16_bf16'
MF32h = 'v_mfma_f32_32x32x8_bf16'
KNAME = 'gated_mix__grouped_kv_mqa__sliding_local_dilated__prompt_kernel'

XT = 0
SLOT = [81920, 102400, 122880]
EXB = 122880
QX = 81920
SYNC = 161792
C_X, C_W, C_Q, C_H, C_N, C_2, C_3, C_F, C_R, C_S2, C_S3 = 0, 8, 16, 36, 40, 48, 52, 56, 60, 64, 68
C_T, C_M = 72, 76
GV = 162048
GL = 163328
LDS = 163840
HR = 122880
RA = 0
RB = 102400
EXA = 51200
PART = 51200
SPIN = 200000

OPT = dict(s3b=8, dstart=12, att2=1, gp=4, par=0, par3=0, ffin=1, ct=0, wqpf=0, tlb=0, dbg=0, st2=3, d1=4, h3prio=3, h2prio=3, h2d=1, AW=12, w0early=0, cpf=1, npre=4, hstart=2, wsub=3, psleep=2, PD=1, aprio=2, hprio=0, p1start=2, wstart=5, NB=8, nosc1=0, noatt=0, map2=1, pf=8, mprio=0, p1sleep=2, kvtest=0, vprio=3)

def srd(a, d, base, size):
    a.I(f's_mov_b32 s{d}, s{base}')
    a.I(f's_mov_b32 s{d+1}, s{base+1}')
    a.I(f's_mov_b32 s{d+2}, {size}')
    a.I(f's_mov_b32 s{d+3}, 0x20000')

def gen():
    a = Asm()
    a.stamps = STAMPS
    N = 'F'
    W = 's[48:51]'
    vL, vH, vP = 1, 2, 3
    T0, T1, T2, T3, T4, T5 = 4, 5, 6, 7, 8, 9
    vC, vG4 = 10, 11
    RET = 's[98:99]'
    ex = lambda r: a.I(f'v_exp_f32 v{r}, v{r}')
    cv = lambda d, s: a.I(f'v_cvt_pk_bf16_f32 v{d}, v{s}, v{s+1}')
    def lab():
        a.nlabel += 1
        return f'{N}_l{a.nlabel}'
    def ldswait(word, target, vt, va, sleep=1):
        l = lab()
        a.I(f'v_mov_b32 v{va}, {SYNC}')
        a.I('s_mov_b32 s4, 0')
        a.L(l)
        a.I(f'''
        ds_read_b32 v{vt}, v{va} offset:{word}
        s_add_u32 s4, s4, 1
        s_waitcnt lgkmcnt(0)
        v_readfirstlane_b32 s3, v{vt}
        s_cmp_ge_u32 s3, {target}
        s_cbranch_scc1 {l}_ok
        ''')
        if sleep: a.I(f's_sleep {sleep}')
        a.I(f'''
        s_cmp_lt_u32 s4, {SPIN*8}
        s_cbranch_scc1 {l}
        ''')
        a.L(l + '_ok')
    def arrive(word, va=T0, vd=T1):
        a.I(f'''
        v_mov_b32 v{va}, {SYNC}
        v_mov_b32 v{vd}, 1
        s_mov_b64 exec, 1
        ds_add_u32 v{va}, v{vd} offset:{word}
        s_mov_b64 exec, -1
        ''')

    def zero(r0, r1):
        assert r0 % 2 == 0 and r1 % 2 == 0
        for r in range(r0, r1, 2):
            a.I(f'v_mov_b64 {vr(r,2)}, 0')
    def vstamp(lane):
        if STAMPS:
            a.I(f's_memtime s[100:101]\ns_waitcnt lgkmcnt(0)\nv_writelane_b32 v0, s100, {lane}')
    def getnonce(vt, va):
        l = lab()
        a.I(f'v_mov_b32 v{va}, {SYNC}')
        a.I('s_mov_b32 s4, 0')
        a.L(l)
        a.I(f'''
        ds_read_b64 {vr(vt,2)}, v{va} offset:{C_N}
        s_add_u32 s4, s4, 1
        s_waitcnt lgkmcnt(0)
        v_readfirstlane_b32 s62, v{vt}
        v_readfirstlane_b32 s63, v{vt+1}
        s_cmp_lg_u32 s62, 0
        s_cbranch_scc1 {l}_ok
        s_cmp_lt_u32 s4, {SPIN*8}
        s_cbranch_scc1 {l}
        ''')
        a.L(l + '_ok')
    a.raw(kernel_header(KNAME))
    a.I('s_cmp_ge_u32 s2, 256')
    a.I(f's_cbranch_scc1 {N}_end')
    a.stamp(0)
    a.I('s_load_dwordx16 s[16:31], s[0:1], 0')
    a.I('s_load_dwordx8 s[32:39], s[0:1], 64')
    a.I(f'''
    v_and_b32 v{vL}, 63, v0
    v_lshrrev_b32 v{T0}, 6, v0
    v_lshrrev_b32 v{vH}, 5, v{vL}
    v_readfirstlane_b32 s9, v{T0}
    v_and_b32 v{vP}, 31, v{vL}
    v_and_b32 v{vC}, 15, v{vL}
    v_lshrrev_b32 v{vG4}, 4, v{vL}
    s_and_b32 s3, s2, 7
    s_lshr_b32 s6, s2, 3
    ''')
    if not OPT['map2']:
        a.I(f'''
        s_lshl_b32 s3, s3, 2
        s_lshr_b32 s5, s6, 3
        s_add_u32 s7, s3, s5
        s_and_b32 s8, s6, 7
        s_cmp_ge_u32 s8, 5
        s_cselect_b32 s3, 5, 0
        s_sub_u32 s60, s8, s3
        s_and_b32 s61, s7, 3
        s_lshl_b32 s3, s61, 1
        s_sub_u32 s96, s8, s3
        s_and_b32 s96, s96, 7
        ''')
    else:
        a.I(f'''
        s_lshr_b32 s4, s3, 1
        s_lshl_b32 s4, s4, 3
        s_lshr_b32 s5, s6, 2
        s_add_u32 s7, s4, s5
        s_and_b32 s3, s3, 1
        s_lshl_b32 s3, s3, 2
        s_and_b32 s60, s6, 3
        s_add_u32 s8, s3, s60
        s_cmp_ge_u32 s5, 5
        s_cselect_b32 s3, 5, 0
        s_sub_u32 s61, s5, s3
        s_sub_u32 s96, s8, s5
        s_and_b32 s96, s96, 7
        ''')
    vSY, vOne = 22, 23
    vXa, vWa, vEa = 16, 24, 18
    a.I(f"""
    s_and_b32 s10, s9, 1
    s_cmp_ge_u32 s9, 4
    s_cbranch_scc1 {N}_hi
    s_cmp_lt_u32 s9, 2
    s_cbranch_scc1 {N}_lo
    """)
    a.I(f"""
    s_lshl_b32 s3, s7, 6
    s_lshl_b32 s4, s10, 4
    s_add_u32 s3, s3, s4
    v_lshrrev_b32 v{T0}, 3, v{vL}
    v_and_b32 v{T1}, 7, v{vL}
    v_xor_b32 v{T3}, v{vG4}, v{T1}
    v_add_u32 v{T2}, s3, v{T0}
    v_mul_u32_u24 v{T2}, 1280, v{T2}
    v_lshl_add_u32 v{vXa}, v{T3}, 4, v{T2}
    v_xor_b32 v{T3}, 4, v{T3}
    v_lshl_add_u32 v{vXa+1}, v{T3}, 4, v{T2}
    v_add_u32 v{vXa+1}, {8*1280}, v{vXa+1}
    s_lshl_b32 s11, s10, 10
    v_lshlrev_b32 v{vEa}, 4, v{vL}
    s_and_b32 s3, s96, 1
    s_mul_i32 s13, s3, 40960
    s_lshl_b32 s12, s3, 12
    s_lshl_b32 s4, s10, 11
    s_add_u32 s12, s12, s4
    s_lshl_b32 s3, s10, 2
    s_add_u32 s3, s3, {SYNC + C_X}
    v_mov_b32 v{vSY}, s3
    s_waitcnt lgkmcnt(0)
    """)
    srd(a, 40, 16, 2048 * 1280)
    q = []
    def issue(kind, slot=None):
        if kind == 'X':
            a.I(f's_call_b64 {RET}, {N}_xissue'); q.append(4)
        elif kind == 'E':
            a.I(f's_call_b64 {RET}, {N}_eissue'); q.append(7)
        else:
            a.I(f's_mov_b32 s15, {SLOT[slot]}')
            a.I(f's_call_b64 {RET}, {N}_wissue'); q.append(10)
    npub = [0]
    def pub(val=None, nowait=False):
        if val is None:
            q.pop(0)
            npub[0] += 1
            val = npub[0]
        else:
            q.clear()
        a.I(f'v_mov_b32 v{vOne}, {val}')
        if not nowait: a.I(f's_waitcnt vmcnt({sum(q)})')
        a.I(f'ds_write_b32 v{vSY}, v{vOne}')
        vstamp(16 + min(val, 6))
    flip = f"""
    s_xor_b32 s13, s13, 40960
    s_xor_b32 s12, s12, 4096
    """
    vstamp(23)
    a.I('s_barrier')
    vstamp(24)
    a.I(f"""
    s_cmp_ge_u32 s96, 4
    s_cbranch_scc1 {N}_noex
    s_cmp_lt_u32 s96, 2
    s_cselect_b32 s52, s20, s22
    s_cselect_b32 s53, s21, s23
    s_mov_b32 s54, 25600
    s_mov_b32 s55, 0x20000
    """)
    issue('E'); issue('E'); issue('E'); issue('E'); pub(); issue('E'); a.I(flip)
    for _ in range(4):
        pub(); issue('X')
    issue('X')
    a.I(f's_branch {N}_xdone')
    a.L(f'{N}_noex')
    a.I(f"""
    s_cmp_lg_u32 s96, 4
    s_cbranch_scc1 {N}_nog
    """)
    srd(a, 52, 32, 1280)
    a.I(f"""
    s_add_u32 m0, s11, {GV}
    s_cmp_eq_u32 s10, 0
    s_cselect_b32 exec_lo, -1, 0xffff
    s_cselect_b32 exec_hi, -1, 0
    buffer_load_dwordx4 v{vEa}, s[52:55], s11 offen lds
    s_mov_b64 exec, -1
    """)
    a.L(f'{N}_nog')
    for _ in range(5): issue('X')
    a.I(flip)
    for _ in range(5): issue('X')
    pub(5, nowait=True)
    a.L(f'{N}_xdone')
    pub(10)
    a.I(f's_branch {N}_work')
    a.L(f'{N}_hi')
    a.I(f"""
    s_barrier
    s_waitcnt lgkmcnt(0)
    """)
    def wqpf():
        srd(a, 52, 18, 819200)
        a.I(f"""
        s_lshl_b32 s3, s6, 1
        s_add_u32 s3, s3, s10
        s_mul_i32 s15, s3, 12800
        s_lshr_b32 s3, s8, 2
        s_mul_i32 s3, s3, 640
        s_add_u32 s15, s15, s3
        s_call_b64 {RET}, {N}_wpf
        """)
    if OPT['wqpf'] == 1:
        a.I(f's_cmp_lt_u32 s9, 6\ns_cbranch_scc1 {N}_nopf')
        wqpf()
        a.L(f'{N}_nopf')
    a.I(f"""
    {'' if OPT['w0early'] else f's_call_b64 {RET}, {N}_hsetup'}
    s_cmp_ge_u32 s9, 6
    s_cbranch_scc1 {N}_wload
    {f's_call_b64 {RET}, {N}_hsetup' if OPT['w0early'] else ''}
    s_cmp_eq_u32 s96, 4
    s_cbranch_scc1 {N}_extra
    s_cmp_gt_u32 s96, 4
    s_cbranch_scc1 {N}_hpre2
    s_cmp_eq_u32 s9, 5
    s_cbranch_scc1 {N}_hpre2
    s_branch {N}_extra
    """)
    a.L(f'{N}_wload')
    if OPT['wqpf'] == 2: wqpf()
    a.I(f's_mul_i32 s3, s8, 160')
    for n in range(5):
        a.I(f"""
        v_add_u32 v{T0}, {n*64}, v{vL}
        v_mul_u32_u24 v{T1}, 6554, v{T0}
        v_lshrrev_b32 v{T1}, 16, v{T1}
        v_mul_u32_u24 v{T2}, 160, v{T1}
        v_lshlrev_b32 v{T0}, 4, v{T0}
        v_sub_u32 v{T0}, v{T0}, v{T2}
        v_bfe_u32 v{T2}, v{T1}, 1, 2
        v_and_b32 v{T3}, 1, v{T1}
        v_lshl_add_u32 v{T2}, v{T3}, 2, v{T2}
        v_and_b32 v{T1}, 24, v{T1}
        v_add_u32 v{T1}, v{T1}, v{T2}
        v_mul_u32_u24 v{T1}, 1280, v{T1}
        v_add3_u32 v{vWa+n}, v{T1}, v{T0}, s3
        """)
    srd(a, 44, 18, 819200)
    a.I(f"""
    s_lshl_b32 s3, s10, 2
    s_add_u32 s3, s3, {SYNC + C_W}
    v_mov_b32 v{vSY}, s3
    s_mul_i32 s11, s10, {64*1280}
    s_mul_i32 s13, s10, 10240
    """)
    if OPT['w0early']:
        a.I(f's_cmp_lt_u32 s96, 4')
        a.I(f's_cbranch_scc1 {N}_w0a')
        issue('W', 0); q.clear()
        a.L(f'{N}_w0a')
        a.I(f's_call_b64 {RET}, {N}_hsetup')
    a.I(f's_call_b64 {RET}, {N}_hsetup2')
    if OPT['wqpf'] == 3: wqpf()
    vstamp(16)
    npub[0] = 0
    ldswait(C_X, OPT['wstart'], T0, T1, sleep=1)
    if OPT['w0early']:
        a.I(f's_cmp_ge_u32 s96, 4')
        a.I(f's_cbranch_scc1 {N}_w0b')
    issue('W', 0)
    a.L(f'{N}_w0b')
    issue('W', 1)
    pub()
    a.I(f's_cmp_ge_u32 s96, 4')
    a.I(f's_cbranch_scc1 {N}_nof')
    ldswait(C_F, 1, T0, T1, sleep=1)
    a.L(f'{N}_nof')
    issue('W', 2); pub()
    a.I(f"""
    v_add_u32 v{vOne}, 3, s10
    s_add_u32 s61, s61, s10
    s_cmp_eq_u32 s61, 5
    s_cselect_b32 s61, 0, s61
    s_mov_b32 s12, s61
    s_lshl_b32 s3, s10, 2
    s_add_u32 s3, s3, {SYNC + C_Q}
    v_mov_b32 v{T1}, s3
    s_mov_b32 s4, 0
    s_waitcnt vmcnt(0)
    ds_write_b32 v{vSY}, v{vOne}
    """.replace('v_add_u32 v23, 3, s10', 's_add_u32 s3, s10, 3\nv_mov_b32 v23, s3'))
    vstamp(19)
    a.L(f'{N}_wq')
    a.I(f"""
    ds_read_b32 v{T0}, v{T1}
    s_add_u32 s4, s4, 1
    s_waitcnt lgkmcnt(0)
    v_readfirstlane_b32 s3, v{T0}
    s_cmp_ge_u32 s3, 4
    s_cbranch_scc1 {N}_wq_ok
    s_cmp_lt_u32 s4, {SPIN*8}
    s_cbranch_scc1 {N}_wq
    """)
    a.L(f'{N}_wq_ok')
    for hf in range(2):
        a.I(f"""
        s_mov_b32 s11, {hf*64*1280}
        s_mov_b32 s13, {hf*10240}
        s_mov_b32 s61, s12
        s_mul_i32 s15, s10, 20480
        s_add_u32 s15, s15, {SLOT[0]}
        s_call_b64 {RET}, {N}_wissue
        """)
    vstamp(20)
    a.I(f"""
    v_mov_b32 v{vOne}, 5
    s_waitcnt vmcnt(0)
    ds_write_b32 v{vSY}, v{vOne}
    """)
    vstamp(21)
    a.stamp(1)
    a.I(f's_branch {N}_hpre')
    a.L(f'{N}_eissue')
    a.I(f"""
    s_mul_i32 s14, s60, 5120
    s_add_u32 s4, s14, s11
    s_add_u32 m0, s4, {EXB}
    s_add_u32 s14, s14, 4096
    buffer_load_dwordx4 v{vEa}, s[52:55], s4 offen lds
    buffer_load_dwordx4 v{vEa}, s[52:55], s4 offen offset:2048 lds
    s_add_u32 m0, s14, {EXB}
    s_nop 0
    buffer_load_dwordx4 v{vEa}, s[52:55], s14 offen lds
    """)
    a.L(f'{N}_xissue')
    a.I(f"""
    s_lshl_b32 s14, s60, 8
    s_add_u32 s14, s14, s13
    s_lshl_b32 s15, s60, 14
    s_add_u32 s15, s15, s12
    """)
    for c in range(2):
        for n in range(2):
            a.I(f's_add_u32 m0, s15, {c*8192 + n*1024}')
            a.I(f's_add_u32 s4, s14, {c*128}')
            a.I(f'buffer_load_dwordx4 v{vXa+n}, s[40:43], s4 offen lds')
    a.I(f"""
    s_add_u32 s60, s60, 1
    s_cmp_eq_u32 s60, 5
    s_cselect_b32 s60, 0, s60
    s_setpc_b64 {RET}
    """)
    a.L(f'{N}_wissue')
    a.I(f"""
    s_mul_i32 s14, s61, {128*1280}
    s_add_u32 s14, s14, s11
    s_add_u32 s15, s15, s13
    """)
    for g in range(2):
        for n in range(5):
            a.I(f's_add_u32 m0, s15, {g*5120 + n*1024}')
            a.I('s_nop 0' if (g, n) != (1, 0) else f's_add_u32 s14, s14, {32*1280}')
            a.I(f'buffer_load_dwordx4 v{vWa+n}, s[44:47], s14 offen lds')
    a.I(f"""
    s_add_u32 s61, s61, 1
    s_cmp_eq_u32 s61, 5
    s_cselect_b32 s61, 0, s61
    s_setpc_b64 {RET}
    """)

    a.L(f'{N}_lo')
    vXB = 12
    def xbases(vXB=12):
        a.I(f"""
        v_lshrrev_b32 v{T0}, 1, v{vP}
        v_and_b32 v{T0}, 7, v{T0}
        v_xor_b32 v{T0}, v{T0}, v{vH}
        v_lshlrev_b32 v{T1}, 7, v{vP}
        """)
        for ks in range(4):
            a.I(f'v_xor_b32 v{T2}, {2*ks}, v{T0}')
            a.I(f'v_lshl_add_u32 v{vXB+ks}, v{T2}, 4, v{T1}')
    a.I(f"""
    s_cmp_lg_u32 s9, 0
    s_cbranch_scc1 {N}_notpoll
    v_lshlrev_b32 v{T0}, 2, v{vL}
    v_add_u32 v{T0}, {SYNC}, v{T0}
    v_mov_b32 v{T1}, 0
    ds_write_b32 v{T0}, v{T1}
    s_waitcnt lgkmcnt(0)
    """)
    srd(a, 56, 36, 256)
    a.I(f"""
    s_cmp_lg_u32 s2, 0
    s_cbranch_scc1 {N}_n1
    s_memrealtime s[62:63]
    s_waitcnt lgkmcnt(0)
    s_or_b32 s62, s62, 1
    v_mov_b32 v{T2}, s62
    v_mov_b32 v{T3}, s63
    s_mov_b64 exec, 1
    buffer_store_dwordx2 {vr(T2,2)}, v{T1}, s[56:59], 0 offen sc1
    s_mov_b64 exec, -1
    s_barrier
    s_branch {N}_n2
    """)
    a.L(f'{N}_n1')
    a.I('s_barrier')
    a.I('s_mov_b32 s4, 0')
    a.I('s_sleep 8')
    a.L(f'{N}_n3')
    a.I(f"""
    s_sleep 4
    buffer_load_dwordx2 {vr(T2,2)}, v{T1}, s[56:59], 0 offen sc1
    s_add_u32 s4, s4, 1
    s_waitcnt vmcnt(0)
    v_readfirstlane_b32 s3, v{T2}
    s_cmp_lg_u32 s3, 0
    s_cbranch_scc1 {N}_n2
    s_cmp_lt_u32 s4, {SPIN}
    s_cbranch_scc1 {N}_n3
    """)
    a.L(f'{N}_n2')
    a.I(f"""
    v_mov_b32 v{T0}, {SYNC}
    ds_write_b64 v{T0}, {vr(T2,2)} offset:{C_N}
    """)
    vstamp(22)
    a.I(f's_branch {N}_work')
    a.L(f'{N}_notpoll')
    if OPT['cpf']:
        a.I(f"""
        s_getpc_b64 s[40:41]
        {N}_pc:
        s_sub_u32 s40, s40, {N}_pc-{KNAME}
        s_subb_u32 s41, s41, 0
        s_mov_b32 s42, {N}_last-{KNAME}
        s_mov_b32 s43, 0x20000
        s_lshl_b32 s3, s6, 11
        v_lshlrev_b32 v{T0}, 4, v{vL}
        buffer_load_dwordx4 v[144:147], v{T0}, s[40:43], s3 offen
        buffer_load_dwordx4 v[148:151], v{T0}, s[40:43], s3 offen offset:1024
        """)
    if OPT['tlb']:
        a.I(f"""
        s_mul_i32 s3, s7, {2*QKB_PT}
        s_add_u32 s4, s3, {WS_OAB}
        s_mul_i32 s5, s7, 81920
        s_mul_i32 s10, s8, {VBT_NT*5//2}
        s_add_u32 s10, s10, {WS_VBT}
        s_mov_b32 s11, {WS_KVF}
        s_mov_b32 s12, 0x12c000
        s_mov_b32 s13, 0x250000
        s_waitcnt lgkmcnt(0)
        s_load_dword s97, s[18:19], 0
        s_load_dword s97, s[38:39], s11
        s_load_dword s97, s[18:19], 0xc0000
        s_load_dword s97, s[28:29], 0
        s_load_dword s97, s[28:29], s12
        s_load_dword s97, s[28:29], s13
        s_load_dword s97, s[38:39], s3
        s_load_dword s97, s[38:39], s10
        s_load_dword s97, s[38:39], s4
        s_load_dword s97, s[24:25], 0
        s_load_dword s97, s[24:25], 0xc0000
        s_load_dword s97, s[30:31], 0
        s_load_dword s97, s[30:31], 0xc0000
        s_load_dword s97, s[34:35], s5
        """)
    a.I(f"""
    s_barrier
    """)
    a.L(f'{N}_work')
    vXQ = 108
    xbases(vXQ)
    vW0, vW1 = 106, 107
    vCX = 16
    vWB_, vCW = 20, 21
    FACC = 24
    FX = 56
    FWf = 88
    CNT = 104
    def worksetup():
        a.I(f"""
        v_bfe_u32 v{T0}, v{vL}, 2, 2
        v_lshl_add_u32 v{vW0}, v{vH}, 3, v{T0}
        v_and_b32 v{T1}, 3, v{vL}
        v_bfe_u32 v{T2}, v{vL}, 4, 1
        v_lshl_add_u32 v{T1}, v{T2}, 2, v{T1}
        v_min_u32 v{T1}, 4, v{T1}
        v_lshlrev_b32 v{vW1}, 3, v{T1}
        v_mov_b32 v{vSY}, {SYNC}
        v_mov_b32 v{vOne}, 1
        """)
        zero(FACC, FACC+16)
        a.I('s_waitcnt lgkmcnt(0)')
        srd(a, 48, 38, WS_END)
        a.I(f"""
        s_mov_b32 s5, 0
        s_mov_b32 s10, 0
        """)
    worksetup()
    def cntwait(top, need, first='s_waitcnt lgkmcnt(0)', off=C_X):
        if first: a.I(first)
        a.L(top)
        a.I(f"""
        v_readfirstlane_b32 s3, v{CNT}
        v_readfirstlane_b32 s4, v{CNT+1}
        s_min_u32 s3, s3, s4
        s_cmp_ge_u32 s3, {need}
        s_cbranch_scc1 {top}_go
        ds_read_b64 {vr(CNT,2)}, v{vSY} offset:{off}
        s_add_u32 s5, s5, 1
        s_cmp_lt_u32 s5, {SPIN*8}
        s_waitcnt lgkmcnt(0)
        s_cbranch_scc1 {top}
        """)
        a.L(top + '_go')
    vK1a, vK2a, vVa, vG = 12, 13, 14, 15
    Q1, Q2 = 16, 32
    P = 40
    S = [48, 64]
    O = 80
    NB = OPT['NB']
    KVB = 144
    def K1(b): return KVB + 14 * b
    def V1(b): return KVB + 14 * b + 4
    def V2(b): return KVB + 14 * b + 8
    def K2(b): return KVB + 14 * b + 12
    KZ = K1(NB-1); KZ2 = K2(NB-1)
    SC = '' if OPT['nosc1'] else ' sc1'
    srd(a, 44, 38, WS_END)
    a.I(f"""
    ds_read_b64 {vr(CNT,2)}, v{vSY}
    v_bfe_u32 v{T0}, v{vL}, 2, 2
    v_add_u32 v{T0}, v{T0}, v{vW0}
    v_mul_u32_u24 v{T0}, 160, v{T0}
    s_setprio 2
    s_mul_i32 s3, s9, 40
    v_add3_u32 v{vWB_}, v{T0}, v{vW1}, s3
    v_mov_b32 v{T5}, {SYNC + C_Q}
    s_mov_b32 s18, 1
    s_mov_b32 s19, {SLOT[0]}
    s_and_b32 s10, s9, 1
    s_lshr_b32 s11, s9, 1
    v_lshlrev_b32 v{vK1a}, 4, v{vL}
    v_lshlrev_b32 v{vK2a}, 3, v{vL}
    v_min_u32 v{vK2a}, 256, v{vK2a}
    v_mul_u32_u24 v{vVa}, 336, v{vH}
    v_lshl_add_u32 v{vVa}, v{vP}, 4, v{vVa}
    v_mov_b32 v{T3}, 0x7fffff00
    v_cmp_gt_u32 vcc, 21, v{vP}
    s_mul_i32 s12, s11, {32*KVT}
    s_add_u32 s12, s12, {WS_KVF}
    v_cndmask_b32 v{vVa}, v{T3}, v{vVa}, vcc
    s_add_u32 s13, s12, {32*KVT}
    s_mul_i32 s14, s6, {KVT}
    s_add_u32 s14, s14, s12
    s_mov_b32 s15, {WS_KVF}
    s_lshl_b32 s3, s9, 11
    s_add_u32 s3, s3, {QX}
    v_add_u32 v{T0}, s3, v{vK1a}
    s_lshl_b32 s3, s10, 13
    s_lshl_b32 s4, s11, 12
    s_add_u32 s3, s3, s4
    s_add_u32 s3, s3, {QX}
    v_add_u32 v{T1}, s3, v{vK1a}
    s_xor_b32 s3, s3, 4096
    v_add_u32 v{T2}, s3, v{vK1a}
    v_mov_b32 v{T3}, {f32hex(CSCALE)}
    """)
    assert QX % 8192 == 0
    zero(FACC+16, FACC+32)
    zero(112, 144)
    zero(V1(NB-1), V2(NB-1)+4)
    def qaddr():
        a.I('s_lshl_b32 s3, s61, 14')
        for k in range(4):
            a.I(f'v_add_u32 v{vCX+k}, s3, v{vXQ+k}')
        a.I(f'v_add_u32 v{vCW}, s19, v{vWB_}')
    def qreads(ks, tag):
        b = ks % 4
        for pt in range(2):
            a.LG(f'ds_read_b128 {vr(FX+b*8+pt*4,4)}, v{vCX+(ks&3)} offset:{(ks>>2)*8192 + pt*4096}', tag)
        for h in range(2):
            a.LG(f'ds_read_b64_tr_b16 {vr(FWf+b*4+2*h,2)}, v{vCW} offset:{(ks*16+h)*160}', tag)
    qaddr()
    cntwait(f'{N}_qwx', 10)
    a.I(f'ds_read_b64 {vr(CNT,2)}, v{vSY} offset:{C_W}')
    cntwait(f'{N}_qw0', 's18', off=C_W)
    vstamp(16)
    a.lg = []
    for ks in range(3): qreads(ks, ks)
    a.LG(f'ds_read_b64 {vr(CNT,2)}, v{vSY} offset:{C_W}', 2.5)
    a.L(f'{N}_qloop')
    for u in range(8):
        if u == 5:
            a.wait(lg=lambda t: t == 'c')
            cntwait(f'{N}_qw', 's18', first=None, off=C_W)
        qreads((u + 3) % 8, u + 3)
        if u == 2:
            a.LG(f'ds_read_b64 {vr(CNT,2)}, v{vSY} offset:{C_W}', 'c')
            a.I(f"""
            s_add_u32 s61, s61, 1
            s_cmp_eq_u32 s61, 5
            s_cselect_b32 s61, 0, s61
            s_add_u32 s19, s19, 20480
            s_cmp_eq_u32 s19, {SLOT[0]+3*20480}
            s_cselect_b32 s19, {SLOT[0]}, s19
            s_add_u32 s18, s18, 1
            s_cmp_eq_u32 s18, 6
            s_cselect_b32 s18, 0, s18
            """)
        a.wait(lg=lambda t: t != 'c' and t <= u)
        if u == 7:
            a.I('s_mov_b64 exec, 1')
            a.LG(f'ds_add_u32 v{T5}, v{vOne}', 10.5)
            a.I('s_mov_b64 exec, -1')
        b = u % 4
        for pt in range(2):
            d = vr(FACC + pt * 16, 16)
            a.I(f'{MF32} {d}, {vr(FWf + b * 4, 4)}, {vr(FX + b * 8 + pt * 4, 4)}, {d}')
        if u == 4: qaddr()
        if STAMPS and u == 6: a.I('s_memtime s[100:101]')
        if STAMPS and u == 1: a.I('s_add_u32 m0, s18, 24\nv_writelane_b32 v0, s100, m0')
    assert a.lg == [8]*4 + [9]*4 + [10]*4 + [10.5], a.lg
    a.I(f"""
    v_add_u32 v{T5}, 4, v{T5}
    s_cmp_lg_u32 s18, 0
    s_cbranch_scc1 {N}_qloop
    """)
    a.stamp(2)
    ldswait(C_Q + 12, 68, T4, T5, sleep=0)
    a.stamp(1)
    def loadK(r1, r2, so):
        a.I(f'buffer_load_dwordx4 {vr(r1,4)}, v{vK1a}, {W}, {so} offen{SC}')
        a.I(f'buffer_load_dwordx2 {vr(r2,2)}, v{vK2a}, {W}, {so} offen offset:{KV_K2}{SC}')
    def loadV(b, so):
        a.I(f'buffer_load_dwordx4 {vr(V1(b),4)}, v{vVa}, {W}, {so} offen offset:{KV_V1}{SC}')
        a.I(f'buffer_load_dwordx4 {vr(V2(b),4)}, v{vVa}, {W}, {so} offen offset:{KV_V2}{SC}')
    adv = [f's_add_u32 s14, s14, {KVT}', 's_cmp_eq_u32 s14, s13', 's_cselect_b32 s14, s12, s14']
    loadK(KZ, KZ2, 's15')
    loadK(K1(0), K2(0), 's14'); loadV(0, 's14')
    for i in adv: a.I(i)
    for pt in range(2):
        r = FACC + 16 * pt
        for e in range(12):
            a.I(f'v_mul_f32 v{r+e}, v{T3}, v{r+e}')
        for k in range(6):
            cv(r + k, r + 2 * k)
        a.I('s_mov_b32 exec_lo, 0')
        a.I(f'v_mov_b64 {vr(r+4,2)}, 0')
        a.I('s_mov_b32 exec_lo, -1')
        a.I(f'ds_write_b128 v{T0}, {vr(r,4)} offset:{pt*8192}')
        a.I(f'ds_write_b64 v{T0}, {vr(r+4,2)} offset:{pt*8192+1024}')
    loadK(K1(1), K2(1), 's14'); loadV(1, 's14')
    for i in adv: a.I(i)
    a.I('s_waitcnt lgkmcnt(0)')
    arrive(C_R, T4, T5)
    zero(80, 112)
    zero(P, P+8)
    ldswait(C_R, 4, T4, T5, sleep=0)
    a.stamp(3)
    for t in range(4):
        a.I(f'ds_read_b128 {vr(Q1+4*t,4)}, v{T1+(t>>1)} offset:{(t&1)*2048}')
        a.I(f'ds_read_b64 {vr(Q2+2*t,2)}, v{T1+(t>>1)} offset:{(t&1)*2048+1024}')
    NPRE = OPT['npre']
    for b in range(2, NPRE):
        loadK(K1(b), K2(b), 's14'); loadV(b, 's14')
        for i in adv: a.I(i)
    a.I('s_waitcnt lgkmcnt(0)')
    arrive(C_H)
    a.I(f's_waitcnt vmcnt({4*NPRE})')
    def zmax(t, s):
        a.I(f'v_max3_f32 v{T0}, v{s}, v{s+1}, v{s+2}')
        for k in range(3, 15, 2):
            a.I(f'v_max3_f32 v{T0}, v{T0}, v{s+k}, v{s+k+1}')
        a.I(f'v_max_f32 v{T0}, v{T0}, v{s+15}')
        a.I('s_mov_b32 exec_lo, 0')
        a.I(f'v_cvt_pk_bf16_f32 v{Q2+2*t}, -v{T0}, 0')
        a.I('s_mov_b32 exec_lo, -1')
    def zqk(t, s):
        a.I(f'{MF32} {vr(s,16)}, {vr(KZ,4)}, {vr(Q1+4*t,4)}, 0')
        a.I(f'{MF32h} {vr(s,16)}, {vr(KZ2,2)}, {vr(Q2+2*t,2)}, {vr(s,16)}')
    zqk(0, S[0]); zqk(1, S[1])
    a.I('s_nop 7\ns_nop 1')
    zmax(0, S[0]); zqk(2, S[0])
    zmax(1, S[1]); zqk(3, S[1])
    a.I('s_nop 3')
    zmax(2, S[0])
    a.I(f's_waitcnt vmcnt({4*(NPRE-1)})')
    a.I(f'{MF32} {vr(S[0],16)}, {vr(K1(0),4)}, {vr(Q1,4)}, 0')
    a.I(f'{MF32h} {vr(S[0],16)}, {vr(K2(0),2)}, {vr(Q2,2)}, {vr(S[0],16)}')
    zmax(3, S[1])
    for b in range(NPRE, NB - 1):
        loadK(K1(b), K2(b), 's14'); loadV(b, 's14')
        for i in adv: a.I(i)
    a.I('s_nop 3')
    a.I(f's_setprio {OPT["aprio"]}')
    a.I('s_mov_b32 s19, 0')
    a.stamp(4)
    if STAMPS:
        a.I('s_mov_b32 m0, 0')
    a.raw('.p2align 6')
    a.L(f'{N}_aloop')
    for b in range(NB):
        nb = (b + 1) % NB
        pb = (b - 1) % NB
        W2 = 's[44:47]'
        fill = {(0, 0): f'buffer_load_dwordx4 {vr(K1(pb),4)}, v{vK1a}, {W2}, s14 offen{SC}',
                (0, 2): f'buffer_load_dwordx2 {vr(K2(pb),2)}, v{vK2a}, {W2}, s14 offen offset:{KV_K2}{SC}',
                (1, 0): f'buffer_load_dwordx4 {vr(V1(pb),4)}, v{vVa}, {W2}, s14 offen offset:{KV_V1}{SC}',
                (1, 1): f'buffer_load_dwordx4 {vr(V2(pb),4)}, v{vVa}, {W2}, s14 offen offset:{KV_V2}{SC}',
                (1, 2): adv[0], (2, 0): adv[1], (2, 1): adv[2],
                (2, 2): f's_waitcnt vmcnt({4*(NB-2)})'}
        if OPT['kvtest'] == 1:
            del fill[(0,2)], fill[(1,0)], fill[(1,1)]
            fill[(2,2)] = f's_waitcnt vmcnt({NB-2})'
        if OPT['kvtest'] == 2:
            del fill[(0,0)], fill[(0,2)], fill[(1,0)], fill[(1,1)]
        if b == NB - 1:
            fill[(3, 0)] = 's_add_u32 s19, s19, 1'
            fill[(3, 1)] = f's_cmp_lt_u32 s19, {1 if OPT["noatt"] else 32//NB}'
        if b == 0:
            fill[(3, 0)] = f's_cmp_eq_u32 s19, {32//NB - 1}'
            fill[(3, 1)] = 's_cselect_b32 s46, 0, s46'
        if STAMPS and b % 4 == 0:
            fill[(0, 1)] = 's_memtime s[96:97]'
        if STAMPS and b % 4 == 1:
            fill[(0, 1)] = 's_waitcnt lgkmcnt(0)\nv_writelane_b32 v0, s96, m0\ns_add_u32 m0, m0, 1'
        for t in range(4):
            Sc, Sn = S[t & 1], S[1 - (t & 1)]
            tn, tp = (t + 1) & 3, (t - 1) & 3
            kb = b if t < 3 else nb
            vpb = b if t > 0 else pb
            def F(i):
                if (t, i) in fill: a.I(fill[(t, i)])
            if OPT['att2']:
                Pc, Pp = (4, P) if t % 2 == 0 else (P, 4)
                M = [f'{MF32} {vr(Sn,16)}, {vr(K1(kb),4)}, {vr(Q1+4*tn,4)}, 0',
                     f'{MF32} {vr(O+16*tp,16)}, {vr(V1(vpb),4)}, {vr(Pp,4)}, {vr(O+16*tp,16)}',
                     f'{MF32h} {vr(Sn,16)}, {vr(K2(kb),2)}, {vr(Q2+2*tn,2)}, {vr(Sn,16)}',
                     f'{MF32} {vr(O+16*tp,16)}, {vr(V2(vpb),4)}, {vr(Pp+4,4)}, {vr(O+16*tp,16)}']
                pat = {0: 'MeeeMeeeMeeeMe0ce1ce2cececeeccc',
                       1: 'M0eeeM1eeeMeeeM2eeeeeeecccccccc',
                       2: 'M0eeeeM1eeeeMeeeeM2eeeecccccccc',
                       3: 'M0eeeeM1eeeeMcccceeeeM2eeeecccc',
                       4: 'M0eeeM1eeeM2eeeMecececececeeccc',
                       5: 'M0eeeM1eeeMeeeM2cccceeeeeeecccc',
                       6: 'M0eeeM1eeeMccceeM2eeeeeeeeccccc'}[OPT['gp']]
                ne = nc = nm = 0
                for ch in pat:
                    if ch == 'M': a.I(M[nm]); nm += 1
                    elif ch == 'e': ex(Sc + ne); ne += 1
                    elif ch == 'c':
                        assert 2 * nc + 1 < ne
                        cv(Pc + nc, Sc + 2 * nc); nc += 1
                    else: F(int(ch))
                assert (ne, nc, nm) == (16, 8, 4), (ne, nc, nm)
                continue
            a.I(f'{MF32} {vr(Sn,16)}, {vr(K1(kb),4)}, {vr(Q1+4*tn,4)}, 0'); F(0)
            for k in range(4): ex(Sc + k)
            a.I(f'{MF32} {vr(O+16*tp,16)}, {vr(V2(vpb),4)}, {vr(P+4,4)}, {vr(O+16*tp,16)}'); F(1)
            for k in range(4, 8): ex(Sc + k)
            a.I(f'{MF32h} {vr(Sn,16)}, {vr(K2(kb),2)}, {vr(Q2+2*tn,2)}, {vr(Sn,16)}')
            for k in range(4): cv(P + k, Sc + 2 * k)
            for k in range(8, 12): ex(Sc + k)
            a.I(f'{MF32} {vr(O+16*t,16)}, {vr(V1(b),4)}, {vr(P,4)}, {vr(O+16*t,16)}'); F(2)
            for k in range(12, 16): ex(Sc + k)
            for k in range(4, 8): cv(P + k, Sc + 2 * k)
    a.I(f'''
    s_cbranch_scc1 {N}_aloop
    v_and_b32 v{vC}, 15, v{vL}
    v_lshrrev_b32 v{vG4}, 4, v{vL}
    {f'{MF32} {vr(O+48,16)}, {vr(V1(NB-1),4)}, {vr(P,4)}, {vr(O+48,16)}' if OPT['att2'] else ''}
    {MF32} {vr(O+48,16)}, {vr(V2(NB-1),4)}, {vr(P+4,4)}, {vr(O+48,16)}
    s_setprio 3
    ''')
    a.stamp(5)
    HDONE = 16
    ldswait(C_H, HDONE, T0, T1)
    a.stamp(6)
    a.I(f'''
    s_lshl_b32 s3, s7, 1
    s_add_u32 s20, s3, s10
    s_xor_b32 s3, s9, 2
    s_mul_i32 s3, s3, 6144
    s_add_u32 s3, s3, {EXA}
    v_add_u32 v{T1}, s3, v{vK1a}
    s_mul_i32 s3, s9, 6144
    s_add_u32 s3, s3, {EXA}
    v_add_u32 v{T2}, s3, v{vK1a}
    s_lshl_b32 s3, s10, 7
    s_add_u32 s3, s3, {GL}
    v_lshlrev_b32 v{T0}, 2, v{vP}
    v_add_u32 v{T0}, s3, v{T0}
    ''')
    for t in (2, 3):
        for i in range(3):
            a.I(f'ds_write_b128 v{T1}, {vr(O+16*t+4*i,4)} offset:{(t-2)*3072+i*1024}')
    a.I(f'ds_read_b32 v{vG}, v{T0}')
    a.I(f'''
    s_mul_i32 s36, s20, {OAB_PT}
    s_mul_i32 s3, s8, 5120
    s_add_u32 s36, s36, s3
    s_add_u32 s36, s36, {WS_OAB}
    s_lshl_b32 s3, s11, 11
    s_add_u32 s37, s36, s3
    s_lshl_b32 s3, s11, 9
    s_add_u32 s40, s36, s3
    s_add_u32 s40, s40, 4096
    s_mov_b32 s42, {f32hex(2.0**100)}
    ''')
    a.I('s_waitcnt lgkmcnt(0)\ns_barrier')
    for k in range(6):
        a.I(f'ds_read_b128 {vr(O+32+4*k,4)}, v{T2} offset:{k*1024}')
    PKO = O + 32
    a.I(f'v_mov_b64 {vr(T2,2)}, 0')
    for t in range(2):
        a.I(f's_waitcnt lgkmcnt({3-3*t})')
        for r in (8, 0, 2, 4, 6, 10):
            a.I(f'v_pk_add_f32 {vr(O+16*t+r,2)}, {vr(O+16*t+r,2)}, {vr(O+32+12*t+r,2)}')
        if OPT['ffin']:
            a.I(f'v_mov_b32 v{T0+4*t}, v{O+16*t+8}')
            a.I(f'v_mov_b32 v{T1+4*t}, v{O+16*t+8}')
            for r in range(0, 12, 2):
                a.I(f'v_pk_fma_f32 {vr(T2,2)}, {vr(O+16*t+r,2)}, 0, {vr(T2,2)}')
                if r == 2: a.I(f'v_permlane32_swap_b32 v{T0+4*t}, v{T1+4*t}')
                if r == 6: a.I(f'v_rcp_f32 v{T0+4*t}, v{T1+4*t}')
    a.I('s_mov_b32 s41, 0')
    if OPT['ffin']:
        a.I(f'''
        v_add_f32 v{T2}, v{T2}, v{T3}
        v_mul_f32 v{T0}, v{T0}, v{vG}
        v_add_f32 v{T1}, v{T2}, v{T1}
        v_add_f32 v{T5}, v{T2}, v{T5}
        v_mul_f32 v{T4}, v{T4}, v{vG}
        v_cmp_nlt_f32 vcc, {f32hex(2.0**-60)}, v{T1}
        v_cmp_ngt_f32 s[4:5], s42, v{T1}
        s_or_b64 s[4:5], s[4:5], vcc
        v_cmp_nlt_f32 vcc, {f32hex(2.0**-60)}, v{T5}
        v_cmp_ngt_f32 s[18:19], s42, v{T5}
        s_or_b64 s[4:5], s[4:5], vcc
        s_or_b64 s[4:5], s[4:5], s[18:19]
        s_cbranch_scc1 {N}_fin0
        ''')
        for t in range(2):
            for r in range(0, 12, 2):
                a.I(f'v_pk_mul_f32 {vr(O+16*t+r,2)}, {vr(O+16*t+r,2)}, {vr(T0+4*t,2)} op_sel_hi:[1,0]')
            for k in range(4):
                cv(PKO + 4*t + k, O + 16*t + 2 * k)
            for k in range(4):
                a.I(f'v_min_u32 v{PKO+4*t+k}, -2, v{PKO+4*t+k}')
            a.I(f'buffer_store_dwordx4 {vr(PKO+4*t,4)}, v{vK1a}, {W}, s37 offen offset:{1024*t} sc1')
            cv(PKO + 8 + 2*t, O + 16*t + 8); cv(PKO + 9 + 2*t, O + 16*t + 10)
        for k in range(8, 12):
            a.I(f'v_min_u32 v{PKO+k}, -2, v{PKO+k}')
        a.I(f's_branch {N}_fin2')
    a.L(f'{N}_fin0')
    a.I('s_mov_b32 s43, 0')
    a.L(f'{N}_final')
    a.I(f'''
    v_mov_b32 v{T0}, v{O+8}
    v_mov_b32 v{T1}, v{O+8}
    v_mov_b32 v{T2}, 0
    v_mov_b32 v{T3}, 0
    v_permlane32_swap_b32 v{T0}, v{T1}
    ''')
    for r in range(12):
        a.I(f'v_fma_f32 v{T2}, v{O+r}, v{T3}, v{T2}')
    a.I(f'''
    v_add_f32 v{T2}, v{T2}, v{T1}
    v_cmp_nlt_f32 vcc, {f32hex(2.0**-60)}, v{T2}
    v_cmp_ngt_f32 s[4:5], s42, v{T2}
    s_or_b64 s[4:5], s[4:5], vcc
    s_cmp_eq_u64 s[4:5], 0
    s_cbranch_scc1 {N}_norm
    s_cmp_lg_u32 s43, 0
    s_cbranch_scc0 {N}_slow
    ''')
    a.L(f'{N}_norm')
    a.I(f'''
    v_rcp_f32 v{T1}, v{T1}
    s_nop 0
    v_mul_f32 v{T1}, v{T1}, v{vG}
    ''')
    for r in range(12):
        a.I(f'v_mul_f32 v{O+r}, v{T1}, v{O+r}')
    a.I(f's_cmp_lg_u32 s41, 0')
    a.I(f's_cbranch_scc1 {N}_fin1')
    for k in range(4):
        cv(PKO + k, O + 2 * k)
    cv(PKO + 8, O + 8); cv(PKO + 9, O + 10)
    for k in (0, 1, 2, 3, 8, 9): a.I(f'v_min_u32 v{PKO+k}, -2, v{PKO+k}')
    a.I(f'buffer_store_dwordx4 {vr(PKO,4)}, v{vK1a}, {W}, s37 offen sc1')
    for r in range(12):
        a.I(f'v_mov_b32 v{O+r}, v{O+16+r}')
    for r in range(4):
        a.I(f'v_mov_b32 v{Q1+r}, v{Q1+4+r}')
    for r in range(2):
        a.I(f'v_mov_b32 v{Q2+r}, v{Q2+2+r}')
    a.I('s_mov_b32 s41, 1')
    a.I(f's_branch {N}_fin0')
    a.L(f'{N}_fin1')
    for k in range(4):
        cv(PKO + 4 + k, O + 2 * k)
    cv(PKO + 10, O + 8); cv(PKO + 11, O + 10)
    for k in (4, 5, 6, 7, 10, 11): a.I(f'v_min_u32 v{PKO+k}, -2, v{PKO+k}')
    a.I(f'buffer_store_dwordx4 {vr(PKO+4,4)}, v{vK1a}, {W}, s37 offen offset:1024 sc1')
    a.L(f'{N}_fin2')
    a.I(f'''
    s_mov_b32 exec_hi, 0
    buffer_store_dwordx4 {vr(PKO+8,4)}, v{vK1a}, {W}, s40 offen sc1
    s_mov_b32 exec_hi, -1
    ''')
    a.stamp(7)
    vR = 249
    vA = 254
    CACC = 24
    AF = 44
    WF = 84
    if OPT['ct'] == 1: arrive(C_T, T4, T5)
    a.I(f'''
    s_mov_b32 s100, {RB}
    s_call_b64 {RET}, {N}_gsetup
    s_and_b32 s3, s8, {OPT['par']}
    s_mul_i32 s3, s3, 20480
    s_add_u32 s22, s21, s3
    ''')
    zero(CACC, CACC+20)
    a.stamp(8)
    a.I(f's_call_b64 {RET}, {N}_wpre')
    if OPT['ct'] == 0: arrive(C_T, T4, T5)
    a.I(f's_branch {N}_phaseC')

    a.L(f'{N}_slow')
    a.I(f'''
    s_mov_b32 s43, 1
    s_mov_b32 exec_lo, 0
    v_mov_b32 v{Q2}, 0
    v_mov_b32 v{Q2+1}, 0
    s_mov_b32 exec_lo, -1
    v_mov_b32 v{T4}, 0xff800000
    s_mov_b32 s14, {WS_KVF}
    ''')
    a.L(f'{N}_sl1')
    loadK(K1(0), K2(0), 's14')
    a.I(f'''
    s_waitcnt vmcnt(0)
    {MF32} {vr(S[0],16)}, {vr(K1(0),4)}, {vr(Q1,4)}, 0
    {MF32h} {vr(S[0],16)}, {vr(K2(0),2)}, {vr(Q2,2)}, {vr(S[0],16)}
    s_nop 7
    s_nop 7
    ''')
    for k in range(0, 16, 2):
        a.I(f'v_max3_f32 v{T4}, v{T4}, v{S[0]+k}, v{S[0]+k+1}')
    a.I(f'''
    s_add_u32 s14, s14, {KVT}
    s_cmp_lt_u32 s14, {WS_KVF+64*KVT}
    s_cbranch_scc1 {N}_sl1
    v_mov_b32 v{T5}, v{T4}
    s_nop 1
    v_permlane32_swap_b32 v{T4}, v{T5}
    s_nop 1
    v_max_f32 v{T4}, v{T4}, v{T5}
    v_sub_f32 v{T4}, 0, v{T4}
    v_and_b32 v{T0}, 0xffff0000, v{T4}
    v_sub_f32 v{T4}, v{T4}, v{T0}
    v_and_b32 v{T1}, 0xffff0000, v{T4}
    v_sub_f32 v{T4}, v{T4}, v{T1}
    s_mov_b32 exec_lo, 0
    v_lshrrev_b32 v{T0}, 16, v{T0}
    v_or_b32 v{Q2}, v{T0}, v{T1}
    v_lshrrev_b32 v{Q2+1}, 16, v{T4}
    s_mov_b32 exec_lo, -1
    s_mov_b32 s14, {WS_KVF}
    ''')
    for r in range(16):
        a.I(f'v_mov_b32 v{O+r}, 0')
    a.L(f'{N}_sl2')
    loadK(K1(0), K2(0), 's14'); loadV(0, 's14')
    a.I(f'''
    s_waitcnt vmcnt(0)
    {MF32} {vr(S[0],16)}, {vr(K1(0),4)}, {vr(Q1,4)}, 0
    {MF32h} {vr(S[0],16)}, {vr(K2(0),2)}, {vr(Q2,2)}, {vr(S[0],16)}
    s_nop 7
    s_nop 7
    ''')
    for k in range(16): ex(S[0] + k)
    a.I('s_nop 0')
    for k in range(8): cv(P + k, S[0] + 2 * k)
    a.I(f'''
    s_nop 1
    {MF32} {vr(O,16)}, {vr(V1(0),4)}, {vr(P,4)}, {vr(O,16)}
    {MF32} {vr(O,16)}, {vr(V2(0),4)}, {vr(P+4,4)}, {vr(O,16)}
    s_add_u32 s14, s14, {KVT}
    s_cmp_lt_u32 s14, {WS_KVF+64*KVT}
    s_cbranch_scc1 {N}_sl2
    s_nop 7
    s_nop 7
    s_branch {N}_final
    ''')

    HACC = 172
    vHW = 236
    vHR = 240
    vF2, vF3 = 242, 243
    VWO = 244
    LA, LB, ONES, vOB = 148, 156, 168, 153
    a.L(f'{N}_hsetup')
    xbases()
    a.I(f"""
    s_sub_u32 s5, s9, 4
    s_lshl_b32 s3, s8, 9
    s_lshl_b32 s4, s5, 7
    s_add_u32 s3, s3, s4
    v_lshrrev_b32 v{T0}, 3, v{vL}
    v_and_b32 v{T1}, 7, v{vL}
    v_lshlrev_b32 v{vF3}, 7, v{T1}
    v_lshlrev_b32 v{T2}, 1, v{T0}
    v_and_b32 v{T2}, 4, v{T2}
    v_xor_b32 v{T1}, v{T1}, v{T2}
    v_mul_u32_u24 v{T0}, 3840, v{T0}
    v_lshl_add_u32 v{T0}, v{T1}, 4, v{T0}
    v_add_u32 v{vHW}, s3, v{T0}
    v_add_u32 v{vHW+1}, {8*3840}, v{vHW}
    v_add_u32 v{vHW+2}, {16*3840}, v{vHW}
    v_add_u32 v{vHW+3}, {24*3840}, v{vHW}
    s_lshl_b32 s3, s5, 13
    s_add_u32 s3, s3, {HR}
    v_bfe_u32 v{T0}, v{vL}, 2, 2
    v_lshl_add_u32 v{T1}, v{vH}, 3, v{T0}
    v_lshlrev_b32 v{T1}, 7, v{T1}
    v_and_b32 v{T2}, 3, v{vL}
    v_lshl_add_u32 v{T1}, v{T2}, 3, v{T1}
    v_bfe_u32 v{T2}, v{vL}, 4, 1
    v_lshl_add_u32 v{T1}, v{T2}, 5, v{T1}
    v_add_u32 v{T1}, s3, v{T1}
    v_lshrrev_b32 v{T0}, 1, v{T0}
    v_lshlrev_b32 v{T0}, 6, v{T0}
    v_add_u32 v{vHR}, v{T1}, v{T0}
    v_xor_b32 v{T0}, 64, v{T0}
    v_add_u32 v{vHR+1}, v{T1}, v{T0}
    v_lshlrev_b32 v{vOB}, 4, v{vC}
    v_lshl_add_u32 v{vOB+1}, v{T2}, 9, v{vOB}
    v_lshl_add_u32 v{vOB+1}, v{vH}, 8, v{vOB+1}
    s_cmp_eq_u32 s7, 0
    s_cselect_b32 s3, 0, {FG}
    v_mul_u32_u24 v{T1}, s3, v{vH}
    v_add_u32 v{vF2}, v{vF3}, v{T1}
    """)
    zero(HACC, HACC+64)
    a.I(f's_setpc_b64 {RET}')
    a.L(f'{N}_hsetup2')
    a.I(f"""
    s_sub_u32 s5, s9, 4
    s_mul_i32 s3, s8, 160
    s_lshl_b32 s4, s5, 6
    """)
    for j in range(5):
        a.I(f"""
        v_add_u32 v{T0}, s4, v{vL}
        v_add_u32 v{T0}, {j*256}, v{T0}
        v_mul_u32_u24 v{T1}, 6554, v{T0}
        v_lshrrev_b32 v{T1}, 16, v{T1}
        v_mul_u32_u24 v{T1}, {1280-160}, v{T1}
        v_lshl_add_u32 v{T1}, v{T0}, 4, v{T1}
        v_add_u32 v{VWO+j}, s3, v{T1}
        """)
    a.I(f"""
    s_lshl_b32 s100, s8, 2
    s_add_u32 s100, s100, s5
    s_mul_i32 s3, s100, 5
    v_add_u32 v{T0}, s3, v{vG4}
    v_lshrrev_b32 v{T1}, 2, v{T0}
    v_lshlrev_b32 v{T1}, 10, v{T1}
    v_and_b32 v{T2}, 1, v{T0}
    v_lshl_add_u32 v{T1}, v{T2}, 9, v{T1}
    v_bfe_u32 v{T2}, v{T0}, 1, 1
    v_lshl_add_u32 v{T1}, v{T2}, 3, v{T1}
    v_lshl_add_u32 v{LA}, v{vC}, 4, v{T1}
    s_add_u32 s3, s3, 4
    s_lshr_b32 s4, s3, 2
    s_lshl_b32 s4, s4, 10
    s_and_b32 s5, s3, 1
    s_lshl_b32 s5, s5, 9
    s_add_u32 s4, s4, s5
    s_bfe_u32 s5, s3, 0x10001
    s_lshl_b32 s5, s5, 3
    s_add_u32 s4, s4, s5
    v_add_u32 v{LA+1}, s4, v{vOB}
    s_mul_i32 s3, s100, 20
    v_and_b32 v{T4}, 1, v{vG4}
    v_lshlrev_b32 v{T4}, 9, v{T4}
    v_lshl_add_u32 v{T4}, v{vH}, 3, v{T4}
    """)
    for d in range(2):
        a.I(f"""
        v_add_u32 v{T1}, s3, v{vC}
        v_add_u32 v{T1}, {16*d}, v{T1}
        v_min_u32 v{T1}, 639, v{T1}
        v_lshrrev_b32 v{T2}, 5, v{T1}
        v_lshlrev_b32 v{T2}, 17, v{T2}
        v_and_b32 v{T1}, 31, v{T1}
        v_lshl_add_u32 v{T2}, v{T1}, 4, v{T2}
        v_add_u32 v{LA+2+d}, v{T2}, v{T4}
        """)
    a.I(f"""
    v_lshlrev_b32 v{LA+4}, 2, v{vC}
    v_lshlrev_b32 v{T1}, 2, v{vG4}
    v_sub_u32 v{T1}, v{vC}, v{T1}
    v_mov_b32 v{T3}, 0xff800000
    s_cmp_eq_u32 s7, 0
    s_cselect_b64 s[4:5], 0, -1
    """)
    for k in range(8):
        r, pv = k % 4, k // 4
        a.I(f"""
        v_add_u32 v{T2}, {16*pv - r}, v{T1}
        v_and_b32 v{T2}, 0xfffffff1, v{T2}
        v_cmp_eq_u32 vcc, 0, v{T2}
        v_mov_b32 v{ONES+r}, 0x3f803f80
        s_nop 0
        v_cndmask_b32 v{LB+k}, v{T3}, 0, vcc
        """)
        if pv:
            a.I(f'v_cndmask_b32 v{LB+4+k}, v{T3}, v{LB+k}, s[4:5]')
    a.I(f's_mov_b32 s100, {RA}')
    a.L(f'{N}_gsetup')
    a.I(f"""
    v_and_b32 v{T0}, 1, v{vG4}
    v_lshrrev_b32 v{T2}, 2, v{vC}
    v_mul_u32_u24 v{T2}, 160, v{T2}
    v_and_b32 v{T3}, 3, v{vC}
    v_lshl_add_u32 v{T2}, v{T3}, 3, v{T2}
    v_add_u32 v{T2}, s100, v{T2}
    v_mul_u32_u24 v{T3}, {4*160}, v{T0}
    v_add_u32 v{T3}, v{T3}, v{T2}
    v_mul_u32_u24 v{T0}, {40*160}, v{T0}
    v_add_u32 v{T0}, v{T0}, v{T2}
    v_mul_u32_u24 v{T1}, {20*160}, v{vH}
    v_add_u32 v{vR}, v{T1}, v{T3}
    v_cmp_eq_u32 vcc, 1, v{vH}
    """)
    for h in range(2):
        a.I(f"""
        v_add_u32 v{T1}, {(16+20*h)*160}, v{T0}
        v_add_u32 v{T2}, {(80+8*h)*160}, v{T3}
        v_cndmask_b32 v{vR+1+h}, v{T1}, v{T2}, vcc
        v_add_u32 v{T1}, {(140+8*h)*160}, v{T3}
        v_add_u32 v{T2}, {(96+20*h)*160}, v{T0}
        v_cndmask_b32 v{vR+3+h}, v{T1}, v{T2}, vcc
        """)
    a.I(f"""
    s_and_b32 s3, s9, 1
    s_lshl_b32 s3, s3, 8
    v_lshlrev_b32 v{vA}, 4, v{vC}
    v_lshl_add_u32 v{vA}, v{vG4}, 9, v{vA}
    v_add_u32 v{vA}, s3, v{vA}
    s_bfe_u32 s3, s9, 0x10001
    s_lshl_b32 s4, s7, 1
    s_add_u32 s3, s3, s4
    s_mul_i32 s21, s3, {OAB_PT}
    s_add_u32 s21, s21, {WS_OAB}
    s_setpc_b64 {RET}
    """)
    def waddr(k5, h):
        if k5 == 2: return vR + 1 + h, 0
        if k5 == 4: return vR + 3 + h, 0
        return vR, ({0: 0, 1: 40, 3: 100}[k5] + 8 * h) * 160
    def wread(s, base):
        st, k5 = divmod(s, 5)
        for t in range(5):
            for h in range(2):
                r, o = waddr(k5, h)
                yield f'ds_read_b64_tr_b16 {vr(base+t*4+2*h,2)}, v{r} offset:{(st&1)*25600 + o + t*32}'
    a.L(f'{N}_wpre')
    for s in range(8):
        for i in wread(s, WF + s*20): a.I(i)
    a.I(f's_setpc_b64 {RET}')


    a.L(f'{N}_wpf')
    a.I(f"""
    v_lshlrev_b32 v92, 4, v{vL}
    s_mov_b32 exec_hi, 0xff
    """)
    for r in range(10):
        a.I(f'buffer_load_dwordx4 v[96:99], v92, s[52:55], s15 offen offset:{(r%3)*1280}')
        if r % 3 == 2: a.I('s_add_u32 s15, s15, 3840')
    a.I(f"""
    s_mov_b32 exec_hi, -1
    s_setpc_b64 {RET}
    """)
    a.L(f'{N}_wob')
    a.I(f"""
    s_cmp_ge_u32 s15, s14
    s_cbranch_scc1 {N}_wob9
    s_setprio {OPT['hprio']}
    s_cmp_ge_u32 s15, 5
    s_cbranch_scc1 {N}_wobA
    s_add_u32 s3, s15, s13
    s_cmp_ge_u32 s3, 5
    s_cselect_b32 s4, 5, 0
    s_sub_u32 s3, s3, s4
    s_mul_i32 s4, s3, {128*1280}
    s_mul_i32 s5, s3, 20480
    s_add_u32 s5, s5, {RA}
    s_mov_b32 s3, 0
    s_branch {N}_wob1
    """)
    a.L(f'{N}_wobA')
    a.I(f"""
    s_mov_b32 s44, s24
    s_mov_b32 s45, s25
    s_add_u32 s3, s15, s13
    s_mul_i32 s4, s3, 86
    s_lshr_b32 s4, s4, 8
    s_mul_i32 s4, s4, 3
    s_sub_u32 s3, s3, s4
    s_mul_i32 s4, s3, {128*1280}
    s_mul_i32 s5, s3, 20480
    s_cmp_ge_u32 s15, 8
    s_cselect_b32 s20, 1, 0
    {'s_xor_b32 s20, s20, s8' if OPT['par'] else ''}
    s_and_b32 s20, s20, 1
    s_mul_i32 s20, s20, {320*1280}
    s_add_u32 s4, s4, s20
    s_cmp_ge_u32 s15, 8
    s_cselect_b32 s20, 0, {RB-RA}
    s_add_u32 s5, s5, s20
    s_lshr_b32 s3, s3, 1
    s_lshr_b32 s20, s10, 1
    s_mul_i32 s20, s20, s3
    s_add_u32 s3, s3, s20
    """)
    a.L(f'{N}_wob1')
    a.I('s_add_u32 s5, s5, s12')
    a.I('s_add_u32 s15, s15, 1')
    for j in range(5):
        if j == 2:
            a.I('s_cmp_eq_u32 s3, 2')
            a.I(f's_cbranch_scc1 {N}_wob8')
        if j == 3:
            a.I('s_cmp_eq_u32 s3, 1')
            a.I(f's_cbranch_scc1 {N}_wob8')
        a.I(f's_add_u32 m0, s5, {j*4096}')
        a.I('s_nop 0' if OPT['wsub'] < 0 else f's_waitcnt vmcnt({OPT["wsub"]})')
        a.I(f'buffer_load_dwordx4 v{VWO+j}, s[44:47], s4 offen lds')
    a.L(f'{N}_wob8')
    a.I(f's_setprio {OPT["vprio"]}')
    a.L(f'{N}_wob9')
    a.I(f's_setpc_b64 {RET}')

    a.L(f'{N}_extra')
    worksetup()
    EXX, EXW = 40, 72
    a.I(f'''
    ds_read_b64 {vr(CNT,2)}, v{vSY}
    v_mul_u32_u24 v{T0}, 40, v{vW0}
    v_add_u32 v{vWB_}, v{T0}, v{vW1}
    v_add_u32 v{vWB_}, {EXB}, v{vWB_}
    s_mov_b32 s12, 5120
    s_setprio 3
    s_sub_u32 s11, s9, 4
    s_and_b32 s3, s96, 1
    s_add_u32 s11, s11, s3
    s_lshl_b32 s15, s11, 12
    s_lshl_b32 s3, s7, 1
    s_add_u32 s3, s3, s11
    s_mul_i32 s3, s3, {KVT}
    s_add_u32 s13, s3, {WS_KVF}
    s_cmp_eq_u32 s96, 4
    s_cbranch_scc1 {N}_exG
    s_cmp_ge_u32 s96, 2
    s_cbranch_scc1 {N}_exV
    ''')
    def exloop(orient, gate=False):
        l = lab()
        def addr():
            a.I(f"""
            s_lshl_b32 s3, s60, 14
            s_add_u32 s3, s3, s15
            s_mul_i32 s4, s60, s12
            s_add_u32 s60, s60, 1
            s_cmp_eq_u32 s60, 5
            s_cselect_b32 s60, 0, s60
            s_add_u32 s10, s10, 1
            s_cmp_eq_u32 s10, 6
            s_cselect_b32 s10, 0, s10
            """)
            for k in range(4):
                a.I(f'v_add_u32 v{vCX+k}, s3, v{vXB+k}')
            a.I(f'v_add_u32 v{vCW}, s4, v{vWB_}')
        def reads(ks, tag):
            a.LG(f'ds_read_b128 {vr(EXX+ks*4,4)}, v{vCX+(ks&3)} offset:{(ks>>2)*8192}', tag)
            if gate:
                a.LG(f'ds_read_b128 {vr(EXW+ks*4,4)}, v{vCW} offset:{ks*32}', tag)
            else:
                for h in range(2):
                    a.LG(f'ds_read_b64_tr_b16 {vr(EXW+ks*4+2*h,2)}, v{vCW} offset:{(ks*16+4*h)*40}', tag)
        addr()
        vstamp(16)
        cntwait(l + 'w0', 10 if gate else 's10')
        vstamp(17)
        a.lg = []
        for ks in range(4): reads(ks, ks)
        q0 = list(a.lg)
        a.L(l)
        for u in range(8):
            if u == 4:
                addr()
                a.wait(lg=lambda t: t == 'c')
                cntwait(l + 'w', 's10', first=None)
            reads((u + 4) % 8, u + 4)
            if STAMPS and u == 5: a.I('s_memtime s[100:101]')
            if STAMPS and u == 3: a.I('s_add_u32 m0, s10, 24\nv_writelane_b32 v0, s100, m0')
            if u == 1:
                a.LG(f'ds_read_b64 {vr(CNT,2)}, v{vSY}', 'c')
            a.wait(lg=lambda t: t != 'c' and t <= u)
            d = vr(FACC, 16)
            x, w = vr(EXX + u * 4, 4), vr(EXW + u * 4, 4)
            if orient == 'T':
                a.I(f'{MF32} {d}, {w}, {x}, {d}')
            else:
                a.I(f'{MF32} {d}, {x}, {w}, {d}')
        assert a.lg == [t + 8 for t in q0], a.lg
        a.I(f"""
        s_cmp_lg_u32 s10, 0
        s_cbranch_scc1 {l}
        s_waitcnt lgkmcnt(0)
        s_mov_b64 exec, 1
        ds_add_u32 v{vSY}, v{vOne} offset:{C_F}
        s_mov_b64 exec, -1
        s_nop 7
        s_nop 3
        """)
        vstamp(18)
    exloop('T')
    r = FACC
    a.I(f'''
    v_lshlrev_b32 v{T0}, 4, v{vL}
    v_lshlrev_b32 v{T1}, 3, v{vL}
    ''')
    for k in range(6):
        cv(r + k, r + 2 * k)
    a.I(f'''
    s_mov_b32 exec_lo, 0
    v_mov_b32 v{r+4}, 0x3f803f80
    v_mov_b32 v{r+5}, 0x3f80
    s_mov_b32 exec_lo, -1
    buffer_store_dwordx4 {vr(r,4)}, v{T0}, {W}, s13 offen sc1
    s_mov_b32 exec_hi, 1
    buffer_store_dwordx2 {vr(r+4,2)}, v{T1}, {W}, s13 offen offset:{KV_K2} sc1
    s_mov_b32 exec_hi, -1
    ''')
    a.L(f'{N}_exflag')
    a.stamp(1)
    getnonce(T2, T4)
    a.I(f'''
    s_lshl_b32 s3, s7, 1
    s_lshr_b32 s4, s96, 1
    s_add_u32 s3, s3, s4
    s_lshl_b32 s3, s3, 7
    s_lshl_b32 s4, s11, 3
    s_add_u32 s3, s3, s4
    s_add_u32 s3, s3, {WS_FLG}
    v_mov_b32 v{T0}, 0
    s_waitcnt vmcnt(0)
    s_mov_b64 exec, 1
    buffer_store_dwordx2 {vr(T2,2)}, v{T0}, {W}, s3 offen sc1
    s_mov_b64 exec, -1
    ''')
    a.stamp(2)
    a.I(f's_branch {N}_hpre2')
    a.L(f'{N}_exV')
    exloop('N')
    a.I(f'''
    v_mul_u32_u24 v{T0}, 336, v{vH}
    v_lshl_add_u32 v{T0}, v{vP}, 4, v{T0}
    v_mov_b32 v{T1}, 0x3f803f80
    v_cmp_eq_u32 vcc, 20, v{vP}
    s_mov_b32 s4, 0x1fffff
    s_mov_b32 s5, 0x1fffff
    ''')
    for k in range(8):
        cv(r + k, r + 2 * k)
    for k in range(8):
        a.I(f'v_cndmask_b32 v{r+k}, v{r+k}, v{T1}, vcc')
    a.I(f'''
    s_mov_b64 exec, s[4:5]
    buffer_store_dwordx4 {vr(r,4)}, v{T0}, {W}, s13 offen offset:{KV_V1} sc1
    buffer_store_dwordx4 {vr(r+4,4)}, v{T0}, {W}, s13 offen offset:{KV_V2} sc1
    s_mov_b64 exec, -1
    ''')
    a.I(f's_branch {N}_exflag')
    a.L(f'{N}_exG')
    a.I(f'''
    v_lshlrev_b32 v{vWB_}, 4, v{vH}
    v_add_u32 v{vWB_}, {GV}, v{vWB_}
    s_setprio 0
    s_mov_b32 s12, 256
    ''')
    exloop('T', True)
    a.I(f'''
    s_lshl_b32 s3, s7, 8
    s_lshl_b32 s4, s11, 7
    s_add_u32 s3, s3, s4
    s_add_u32 s3, s3, {WS_G}
    v_mul_f32 v{T0}, {f32hex(-math.log2(math.e))}, v{FACC}
    v_exp_f32 v{T0}, v{T0}
    v_lshlrev_b32 v{T1}, 2, v{vP}
    v_add_f32 v{T0}, 1.0, v{T0}
    v_rcp_f32 v{T0}, v{T0}
    s_mov_b32 exec_hi, 0
    buffer_store_dword v{T0}, v{T1}, {W}, s3 offen sc1
    s_mov_b32 exec_hi, -1
    ''')
    a.L(f'{N}_hpre2')
    a.I('s_setprio 0')
    a.I(f's_call_b64 {RET}, {N}_hsetup2')
    a.L(f'{N}_hpre')
    PD = OPT['PD']
    HX = 28
    HWf = 60
    srd(a, 48, 38, WS_END)
    srd(a, 44, 28, 2457600)
    a.I(f'''
    s_sub_u32 s10, s9, 4
    s_lshl_b32 s3, s8, 9
    s_lshl_b32 s4, s10, 7
    s_add_u32 s11, s3, s4
    s_lshl_b32 s12, s10, 13
    s_add_u32 s12, s12, {HR}
    ''')
    if not OPT['map2']:
        a.I('s_and_b32 s3, s7, 3\ns_mul_i32 s3, s3, 5\ns_lshr_b32 s13, s3, 1')
    else:
        a.I('s_and_b32 s3, s7, 7\ns_mul_i32 s3, s3, 5\ns_lshr_b32 s13, s3, 2')
    a.I(f'''
    s_mul_i32 s14, s13, {64*3840}
    s_lshl_b32 s13, s13, 13
    s_mov_b32 s19, 0
    s_cmp_ge_u32 s11, 3840
    s_cselect_b32 s46, 0, s46
    ''')
    for k in range(4):
        a.I(f'v_add_u32 v{vCX+k}, s13, v{vXB+k}')
    getnonce(T2, T1)
    a.I(f'''
    s_cmp_lg_u32 s9, 5
    s_cbranch_scc1 {N}_p1ok
    ''')
    ldswait(C_Q + 4*OPT['p1start'], 4, T0, T1, sleep=1)
    a.I(f'''
    v_lshlrev_b32 v{T4}, 7, v{vL}
    s_mov_b32 s3, {WS_FLG}
    s_mov_b32 s4, 0
    ''')
    vstamp(22)
    a.L(f'{N}_p1')
    a.I(f'''
    buffer_load_dwordx4 v[92:95], v{T4}, {W}, s3 offen sc1
    s_add_u32 s4, s4, 1
    s_waitcnt vmcnt(0)
    v_cmp_eq_u64 vcc, s[62:63], v[92:93]
    v_cmp_eq_u64 s[56:57], s[62:63], v[94:95]
    s_and_b64 vcc, vcc, s[56:57]
    s_cmp_eq_u64 vcc, -1
    s_cbranch_scc1 {N}_p1g
    s_cmp_lt_u32 s4, {SPIN}
    s_cbranch_scc1 {N}_p1
    ''')
    a.L(f'{N}_p1g')
    a.I(f'''
    v_mov_b32 v{T0}, {SYNC}
    v_mov_b32 v{T1}, 64
    s_mov_b64 exec, 1
    ds_add_u32 v{T0}, v{T1} offset:{C_Q+12}
    s_mov_b64 exec, -1
    ''')
    if STAMPS: a.I(f'v_writelane_b32 v0, s4, 25')
    vstamp(23)
    a.L(f'{N}_p1ok')
    ldswait(C_Q + 8, 4, T0, T1, sleep=1)
    a.stamp(3)
    a.I(f's_setprio {OPT["hprio"]}')
    hadv = [f's_add_u32 s14, s14, {32*3840}', f's_cmp_eq_u32 s14, {640*3840}', 's_cselect_b32 s14, 0, s14',
            's_add_u32 s19, s19, 1', 's_cmp_ge_u32 s19, 20', 's_cselect_b32 s46, 0, s46']
    def hm0(q, e): return f's_add_u32 m0, s12, {q*2048 + e*1024}'
    def hld(q, e): return f'buffer_load_dwordx4 v{vHW+(q&1)*2+e}, s[44:47], s14 offen lds'
    def hxr(q): return [f'ds_read_b128 {vr(HX+(q&1)*8+pt*4,4)}, v{vCX+q} offset:{pt*4096}' for pt in range(2)]
    def hwr(q): return [f'ds_read_b64_tr_b16 {vr(HWf+(q&1)*8+j*4+2*h,2)}, v{vHR+j} offset:{q*2048 + h*512}' for j in range(2) for h in range(2)]
    for q_ in range(4):
        for e in range(2):
            a.I(hm0(q_, e)); a.I('s_nop 0'); a.I(hld(q_, e))
        if q_ & 1:
            for i in hadv: a.I(i)
    a.I('s_waitcnt vmcnt(6)')
    for i in hxr(0) + hwr(0): a.I(i)
    a.I(f"""
    s_cmp_ge_u32 s6, 16
    s_cselect_b32 s52, s24, s30
    s_cselect_b32 s53, s25, s31
    s_mov_b32 s54, 819200
    s_mov_b32 s55, 0x20000
    s_and_b32 s3, s6, 15
    s_lshl_b32 s3, s3, 2
    s_add_u32 s3, s3, s10
    s_mul_i32 s15, s3, 12800
    s_lshr_b32 s3, s8, 2
    s_mul_i32 s3, s3, 640
    s_add_u32 s15, s15, s3
    s_mov_b32 s20, 0
    s_cmp_ge_u32 s8, 5
    s_cbranch_scc1 {N}_h1N
    """)
    def h1loop(orient):
        l = lab()
        a.L(l)
        if STAMPS:
            a.I('s_memtime s[96:97]\ns_mov_b32 m0, s20\ns_waitcnt lgkmcnt(0)\nv_writelane_b32 v0, s96, m0')
        if OPT['pf'] and OPT['pf'] <= 10:
            a.I(f's_cmp_lg_u32 s20, {OPT["pf"]-1}')
            a.I(f's_cbranch_scc1 {l}npf')
            a.I(f's_call_b64 {RET}, {N}_wpf')
            a.L(l + 'npf')
        for q in range(4):
            qn = (q + 1) & 3
            a.I('s_waitcnt vmcnt(4) lgkmcnt(0)')
            fl = [hwr(qn), [hm0(q, 0)] + hxr(qn), [hld(q, 0), hm0(q, 1)], [hld(q, 1)]]
            if q & 1: fl[3] += hadv
            if q == 0:
                fl[3] += ['s_add_u32 s13, s13, 8192', 's_cmp_eq_u32 s13, 81920', 's_cselect_b32 s13, 0, s13', 's_add_u32 s20, s20, 1']
            if q == 2:
                fl[3] += [f'v_add_u32 v{vCX+k}, s13, v{vXB+k}' for k in range(4)]
            if q == 3:
                fl[3] += ['s_cmp_lt_u32 s20, 10']
            m = 0
            for pt in range(2):
                for j in range(2):
                    d = vr(HACC + (pt * 2 + j) * 16, 16)
                    x, w = vr(HX + (q&1)*8 + pt*4, 4), vr(HWf + (q&1)*8 + j*4, 4)
                    if OPT['mprio'] != OPT['hprio']: a.I(f's_setprio {OPT["mprio"]}')
                    if orient == 'T':
                        a.I(f'{MF32} {d}, {w}, {x}, {d}')
                    else:
                        a.I(f'{MF32} {d}, {x}, {w}, {d}')
                    if m == 3 and q == 2:
                        for i in fl[m][1:]: a.I(i)
                        fl[m] = fl[m][:1]
                    if OPT['mprio'] != OPT['hprio']: a.I(f's_setprio {OPT["hprio"]}')
                    for i in fl[m]: a.I(i)
                    m += 1
        a.I(f"""
        s_cbranch_scc1 {l}
        s_waitcnt vmcnt(0) lgkmcnt(0)
        s_setprio {OPT['vprio']}
        """)
        arrive(C_H)
        if OPT['pf'] == 11:
            a.I(f's_setprio {OPT["hprio"]}')
            a.I(f's_call_b64 {RET}, {N}_wpf')
            a.I(f's_setprio {OPT["vprio"]}')
        a.I(f"""
        v_lshlrev_b32 v{T0}, 4, v{vL}
        s_mul_i32 s3, s7, {2*OAB_PT}
        s_mul_i32 s4, s8, 5120
        s_add_u32 s3, s3, s4
        v_mov_b64 v[100:101], -1
        v_mov_b64 v[102:103], -1
        s_and_b32 s4, s10, 1
        s_mul_i32 s4, s4, {OAB_PT}
        s_add_u32 s3, s3, s4
        s_lshr_b32 s4, s10, 1
        s_lshl_b32 s4, s4, 11
        s_add_u32 s3, s3, {WS_OAB}
        s_add_u32 s4, s4, s3
        buffer_store_dwordx4 v[100:103], v{T0}, {W}, s4 offen sc1
        buffer_store_dwordx4 v[100:103], v{T0}, {W}, s4 offen offset:1024 sc1
        buffer_store_dwordx4 v[100:103], v{T0}, {W}, s4 offen offset:2048 sc1
        s_add_u32 s4, s4, 40960
        buffer_store_dwordx4 v[100:103], v{T0}, {W}, s4 offen sc1
        buffer_store_dwordx4 v[100:103], v{T0}, {W}, s4 offen offset:1024 sc1
        buffer_store_dwordx4 v[100:103], v{T0}, {W}, s4 offen offset:2048 sc1
        """)
        if STAMPS:
            a.I('s_memtime s[96:97]\ns_mov_b32 m0, s20\ns_waitcnt lgkmcnt(0)\nv_writelane_b32 v0, s96, m0')
    h1loop('T')
    a.I(f'''
    s_lshl_b32 s3, s7, 1
    s_mul_i32 s3, s3, {QKB_PT}
    s_lshl_b32 s4, s11, 5
    s_add_u32 s3, s3, s4
    s_add_u32 s4, s3, {QKB_PT}
    ''')
    for pt in range(2):
        for j in range(2):
            r = HACC + (pt * 2 + j) * 16
            for k in range(8):
                cv(r + k, r + 2 * k)
            for b in range(2):
                a.I(f'buffer_store_dwordx4 {vr(r+4*b,4)}, v{T0}, {W}, s{3+pt} offen offset:{(2*j+b)*1024} sc1')
    a.I(f's_branch {N}_h1done')
    a.L(f'{N}_h1N')
    h1loop('N')
    a.I(f'''
    s_cmp_ge_u32 s11, 3840
    s_cbranch_scc1 {N}_h1done
    s_sub_u32 s3, s11, 2560
    s_lshl_b32 s3, s3, 11
    s_lshl_b32 s4, s7, 12
    s_add_u32 s3, s3, s4
    s_add_u32 s3, s3, {WS_VBT}
    s_add_u32 s4, s3, {VBT_NT}
    ''')
    for pt in range(2):
        for j in range(2):
            r = HACC + (pt * 2 + j) * 16
            for k in range(8):
                cv(r + k, r + 2 * k)
            for b in range(2):
                a.I(f'buffer_store_dwordx4 {vr(r+4*b,4)}, v{T0}, {W}, s{3+j} offen offset:{(2*pt+b)*1024} sc1')
    a.L(f'{N}_h1done')
    a.stamp(4)
    def setflag(word, cw):
        l = lab()
        a.I(f'''
        v_mov_b32 v{T0}, {SYNC}
        v_mov_b32 v{T1}, 1
        s_mov_b64 exec, 1
        ds_add_rtn_u32 v{T1}, v{T0}, v{T1} offset:{cw}
        v_mov_b32 v{T0}, 0
        v_mov_b32 v{T2}, s62
        v_mov_b32 v{T3}, s63
        s_waitcnt lgkmcnt(0)
        v_cmp_eq_u32 vcc, 3, v{T1}
        s_cbranch_vccz {l}
        buffer_store_dwordx2 {vr(T2,2)}, v{T0}, {W}, s23 offen offset:{word*1024} sc1
        ''')
        a.L(l)
        a.I('s_mov_b64 exec, -1')
    def pollflag(soff, va, minb=None, sleep=OPT['psleep']):
        l = lab()
        a.I('s_mov_b32 s19, 0')
        a.L(l)
        if minb is not None:
            a.I(f's_call_b64 {RET}, {N}_wob')
        a.I(f'''
        buffer_load_dwordx2 {vr(T2,2)}, v{va}, {W}, {soff} offen sc1
        s_add_u32 s19, s19, 1
        s_waitcnt vmcnt(0)
        v_cmp_ne_u64 vcc, s[62:63], {vr(T2,2)}
        ''')
        if minb:
            a.I(f's_cmp_lt_u32 s15, {minb}')
            a.I(f's_cbranch_scc1 {l}')
        a.I(f's_cbranch_vccz {l}_ok')
        if sleep: a.I(f's_sleep {sleep}')
        a.I(f'''
        s_cmp_lt_u32 s19, {SPIN}
        s_cbranch_scc1 {l}
        ''')
        a.L(l + '_ok')
    def stream(lim):
        l = lab()
        a.L(l)
        a.I(f'''
        s_call_b64 {RET}, {N}_wob
        s_cmp_lt_u32 s15, {lim}
        s_cbranch_scc1 {l}
        ''')
    def pollshare(soff, va, pw, cw):
        l = lab()
        a.I(f's_cmp_lg_u32 s9, {pw}')
        a.I(f's_cbranch_scc1 {l}')
        pollflag(soff, va)
        arrive(cw)
        a.I(f's_branch {l}_ok')
        a.L(l)
        a.I(f'v_mov_b32 v{T3}, {SYNC}')
        a.I('s_mov_b32 s19, 0')
        a.L(l + '_w')
        a.I(f'''
        ds_read_b32 v{T2}, v{T3} offset:{cw}
        s_add_u32 s19, s19, 1
        s_waitcnt lgkmcnt(0)
        v_readfirstlane_b32 s3, v{T2}
        s_cmp_lg_u32 s3, 0
        s_cbranch_scc1 {l}_ok
        s_call_b64 {RET}, {N}_wob
        s_sleep 1
        s_cmp_lt_u32 s19, {SPIN*8}
        s_cbranch_scc1 {l}_w
        ''')
        a.L(l + '_ok')
    srd(a, 44, 30, 819200)
    LQ, LK, LV, LG = 28, 44, 64, 84
    LS, LP, M, LO, LL = 88, 120, 136, 172, 204
    a.I(f'''
    s_lshl_b32 s12, s10, 10
    s_mul_i32 s22, s7, {FG}
    s_add_u32 s22, s22, {WS_FG}
    s_lshl_b32 s3, s8, 7
    s_add_u32 s23, s22, s3
    s_and_b32 s13, s7, {7 if OPT['map2'] else 3}
    s_cmp_ge_u32 s13, 5
    s_cselect_b32 s3, 5, 0
    s_sub_u32 s13, s13, s3
    s_mov_b32 s14, {OPT['st2']}
    s_mov_b32 s15, 0
    s_lshl_b32 s3, s7, 1
    s_mul_i32 s29, s3, {QKB_PT}
    s_add_u32 s30, s29, {QKB_PT}
    s_add_u32 s31, s29, 40960
    s_add_u32 s32, s30, 40960
    s_sub_u32 s33, s31, {QKB_PT}
    s_lshl_b32 s26, s7, 12
    s_add_u32 s26, s26, {WS_VBT}
    s_sub_u32 s27, s26, 1024
    s_sub_u32 s28, s22, {FG}
    s_cmp_eq_u32 s7, 0
    s_cselect_b32 s33, s31, s33
    s_cselect_b32 s27, s26, s27
    s_cselect_b32 s28, s22, s28
    s_lshl_b32 s18, s7, 8
    s_add_u32 s18, s18, {WS_G}
    ''')
    for u in range(4):
        a.I(f'v_mov_b32 v{LQ+4*u+2}, 0')
        a.I(f'v_mov_b32 v{LQ+4*u+3}, 0')
    a.I('s_waitcnt vmcnt(0)')
    setflag(0, C_2)
    ldswait(C_H, 8, T2, T3)
    stream(OPT['st2'])
    pollshare('s28', vF2, 4, C_S2)
    a.stamp(5)
    if STAMPS: a.I('v_writelane_b32 v0, s15, 31')
    a.I(f's_setprio {OPT["hprio"]}')
    for u in range(4):
        a.I(f'buffer_load_dwordx2 {vr(LQ+4*u,2)}, v{LA}, {W}, s{29+(u>>1)} offen offset:{256*(u&1)} sc1')
    a.I('s_mov_b64 exec, 0xffff')
    for u in range(4):
        a.I(f'buffer_load_dwordx2 {vr(LQ+4*u+2,2)}, v{LA+1}, {W}, s{29+(u>>1)} offen offset:{256*(u&1)} sc1')
    a.I('s_mov_b64 exec, -1')
    for kt, (so, off) in enumerate([('s33', 256), ('s31', 0), ('s31', 256), ('s32', 0), ('s32', 256)]):
        a.I(f'buffer_load_dwordx2 {vr(LK+4*kt,2)}, v{LA}, {W}, {so} offen offset:{off} sc1')
        a.I(f'buffer_load_dwordx2 {vr(LK+4*kt+2,2)}, v{LA+1}, {W}, {so} offen offset:{off} sc1')
    for d in range(2):
        for kt in range(5):
            so, off = ('s27', 0) if kt == 0 else ('s26', (kt - 1) * 1024)
            a.I(f'buffer_load_dwordx2 {vr(LV+10*d+2*kt,2)}, v{LA+2+d}, {W}, {so} offen offset:{off} sc1')
    for u in range(4):
        a.I(f'buffer_load_dword v{LG+u}, v{LA+4}, {W}, s18 offen offset:{64*u} sc1')
    a.I(f's_setprio {OPT["h2prio"]}')
    a.I(f'''
    s_lshl_b32 s3, s7, 1
    s_mul_i32 s36, s3, {OAB_PT}
    s_mul_i32 s3, s8, 5120
    s_add_u32 s36, s36, s3
    s_add_u32 s36, s36, {WS_OAB + 40960}
    s_lshl_b32 s3, s10, 10
    s_add_u32 s37, s36, s3
    s_add_u32 s38, s37, {OAB_PT}
    s_lshr_b32 s3, s10, 1
    s_lshl_b32 s3, s3, 9
    s_and_b32 s4, s10, 1
    s_lshl_b32 s4, s4, 3
    s_add_u32 s3, s3, s4
    s_add_u32 s40, s36, s3
    s_add_u32 s40, s40, 4096
    s_add_u32 s41, s40, {OAB_PT}
    v_mov_b32 v{T4}, {f32hex(CSCALE)}
    v_mov_b32 v{T5}, {f32hex(-CSCALE)}
    ''')
    a.I(f'''
    s_add_u32 s3, s15, s13
    s_cmp_ge_u32 s3, 5
    s_cselect_b32 s4, 5, 0
    s_sub_u32 s3, s3, s4
    s_mul_i32 s42, s3, {128*1280}
    s_mul_i32 s43, s3, 20480
    s_add_u32 s43, s43, s12
    s_add_u32 s15, s15, {OPT['h2d']}
    s_mov_b32 s14, 5
    ''')
    nd = [0]
    def hd():
        if not OPT['h2d']: return
        j = nd[0]; nd[0] += 1
        a.I(f's_add_u32 m0, s43, {RA + j*4096}')
        a.I(f's_setprio {OPT["hprio"]}')
        a.I(f'buffer_load_dwordx4 v{VWO+j}, s[44:47], s42 offen lds')
        a.I(f's_setprio {OPT["h2prio"]}')
    a.I('s_waitcnt vmcnt(14)')
    for u in range(4):
        bp = LB + 8 if u == 0 else LB + 4
        a.I(f'{MF16} {vr(LS+8*u,4)}, {vr(LK+4*u,4)}, {vr(LQ+4*u,4)}, {vr(bp,4)}')
        a.I(f'{MF16} {vr(LS+8*u+4,4)}, {vr(LK+4*u+4,4)}, {vr(LQ+4*u,4)}, {vr(LB,4)}')
    hd()
    a.I('s_nop 3')
    for u in range(4):
        s = LS + 8 * u
        m = M + 2 * u
        a.I(f'''
        v_max3_f32 v{m}, v{s}, v{s+1}, v{s+2}
        v_max3_f32 v{m}, v{m}, v{s+3}, v{s+4}
        v_max3_f32 v{m}, v{m}, v{s+5}, v{s+6}
        v_max_f32 v{m}, v{m}, v{s+7}
        v_mov_b32 v{m+1}, v{m}
        ''')
    a.I('s_nop 1')
    for u in range(4):
        a.I(f'v_permlane16_swap_b32 v{M+2*u}, v{M+2*u+1}')
    for u in range(4):
        a.I(f'v_max_f32 v{M+2*u}, v{M+2*u}, v{M+2*u+1}')
    for u in range(4):
        a.I(f'v_mov_b32 v{M+2*u+1}, v{M+2*u}')
    a.I('s_nop 1')
    for u in range(4):
        a.I(f'v_permlane32_swap_b32 v{M+2*u}, v{M+2*u+1}')
    for u in range(4):
        a.I(f'v_max_f32 v{M+2*u}, v{M+2*u}, v{M+2*u+1}')
    for u in range(4):
        a.I(f'v_mul_f32 v{M+2*u}, v{T5}, v{M+2*u}')
    for u in range(4):
        s = LS + 8 * u
        for k in range(8):
            a.I(f'v_fma_f32 v{s+k}, v{s+k}, v{T4}, v{M+2*u}')
        for k in range(8):
            ex(s + k)
        if u % 2 == 0: hd()
    a.I('s_nop 0')
    for u in range(4):
        for k in range(4):
            cv(LP + 4 * u + k, LS + 8 * u + 2 * k)
    a.I(f's_waitcnt vmcnt({nd[0]})')
    a.I(f'v_add_u32 v{T2}, {GL}, v{LA+4}')
    for u in range(4):
        a.I(f'{MF16} {vr(LL+4*u,4)}, {vr(ONES,4)}, {vr(LP+4*u,4)}, 0')
        a.I(f'{MF16} {vr(LO+8*u,4)}, {vr(LV+2*u,4)}, {vr(LP+4*u,4)}, 0')
        a.I(f'{MF16} {vr(LO+8*u+4,4)}, {vr(LV+10+2*u,4)}, {vr(LP+4*u,4)}, 0')
        a.I(f'ds_write_b32 v{T2}, v{LG+u} offset:{64*u}')
    a.I('s_nop 3')
    for u in range(4):
        o = LO + 8 * u
        a.I(f'''
        v_rcp_f32 v{T2}, v{LL+4*u}
        v_sub_f32 v{T3}, 1.0, v{LG+u}
        v_mul_f32 v{T2}, v{T2}, v{T3}
        ''')
        for k in range(8):
            a.I(f'v_mul_f32 v{o+k}, v{T2}, v{o+k}')
        p = LS + 4 * (u >> 1) + 2 * (u & 1)
        cv(p, o); cv(p + 1, o + 2)
        cv(o, o + 4); cv(o + 1, o + 6)
        for r in (p, p + 1, o, o + 1): a.I(f'v_min_u32 v{r}, -2, v{r}')
        if u % 2 == 0: hd()
    a.I('s_nop 1')
    for pp in range(2):
        p = LS + 4 * pp
        a.I(f'v_permlane32_swap_b32 v{p}, v{p+2}')
        a.I(f'v_permlane32_swap_b32 v{p+1}, v{p+3}')
        a.I(f'buffer_store_dwordx4 {vr(p,4)}, v{vOB+1}, {W}, s{37+pp} offen sc1')
    a.I('s_mov_b64 exec, 0xffff')
    for u in range(4):
        a.I(f'buffer_store_dwordx2 {vr(LO+8*u,2)}, v{vOB}, {W}, s{40+(u>>1)} offen offset:{256*(u&1)} sc1')
    a.I('s_mov_b64 exec, -1')
    a.stamp(6)
    stream(5)
    a.I('s_waitcnt vmcnt(0)')
    arrive(C_H)
    a.stamp(7)
    HWR = 124
    NR = 6
    AW = OPT['AW']
    a.vm = []; a.lg = []
    def w3(s):
        for n, i in enumerate(wread(s, HWR + (s % NR) * 20)):
            a.LG(i, (s, n))
    def a3(s):
        a.VM(f'buffer_load_dwordx4 {vr(AF+4*s,4)}, v{vA}, {W}, s19 offen offset:{(s%2)*2048} sc1', s)
        if s % 2 == 1:
            a.I('s_add_u32 s19, s19, 4096')
    def check(s, nm):
        r = AF + 4 * s
        a.L(f'{N}_{nm}ck{s}')
        a.I(f"""
        v_max3_u32 v{T0}, v{r}, v{r+1}, v{r+2}
        v_max3_u32 v{T1}, v{r+3}, v{r+4}, v{r+5}
        v_max3_u32 v{T0}, v{T0}, v{r+6}, v{r+7}
        v_max_u32 v{T0}, v{T0}, v{T1}
        v_cmp_eq_u32 vcc, -1, v{T0}
        s_cbranch_vccnz {N}_{nm}rt{s}
        """)
        a.L(f'{N}_{nm}go{s}')
    a.I('s_add_u32 s19, s21, 40960')
    a.I('s_mov_b32 s18, 0')
    a.I('s_mov_b32 s44, s24\ns_mov_b32 s45, s25')
    a.I(f's_setprio {OPT["hprio"]}')
    for s in range(AW): a3(s)
    a.I(f's_setprio {OPT["h3prio"]}')
    ldswait(C_H, 12, T2, T3)
    vstamp(11)
    if STAMPS: a.I('v_writelane_b32 v0, s15, 30')
    a.I(f'v_mov_b32 v{T4}, {SYNC}\nv_mov_b32 v{T5}, 1')
    for s in range(NR - 1): w3(s)
    DS = OPT['dstart']
    dma = [(bi, j) for bi in range(3) for j in range(5 if bi < 2 else 3)]
    dma1 = list(dma)
    for s in range(20):
        sn = s + NR - 1
        if sn == 10:
            for k in range(5):
                a.I(f'v_add_u32 v{vR+k}, 51200, v{vR+k}')
        if s == DS:
            a.wait(vm=lambda tg: tg < 100)
            for u in range(s + (s & 1), 20, 2): check(u, 'h')
            ldswait(C_M, 4, T2, T3, sleep=0)
            a.lg = []
        if sn < 20: w3(sn)
        if s == 10:
            a.I('s_mov_b64 exec, 1')
            a.LG(f'ds_add_u32 v{T4}, v{T5} offset:{C_M}', (s + 3, 99))
            a.I('s_mov_b64 exec, -1')
        a.wait(vm=lambda tg: tg <= s + 1 - (s & 1), lg=lambda tg: tg[0] <= s)
        if s % 2 == 0 and s < DS: check(s, 'h')
        for t in range(5):
            d = vr(CACC + 4 * t, 4)
            a.I(f'{MF16} {d}, {vr(HWR+(s%NR)*20+t*4,4)}, {vr(AF+4*s,4)}, {d if s else 0}')
            if t == 0 and s + AW < 20: a3(s + AW)
            if s >= OPT['d1'] and t in (1, 3) and dma1:
                bi, j = dma1.pop(0)
                a.I(f's_add_u32 m0, s12, {RB + bi*20480 + j*4096}')
                a.I(f's_mov_b32 s4, {128*bi*1280}')
                a.I(f's_setprio {OPT["hprio"]}')
                a.VM(f'buffer_load_dwordx4 v{VWO+j}, s[44:47], s4 offen lds', 1000)
                a.I(f's_setprio {OPT["h3prio"]}')
            elif s >= DS and t in (1, 3) and dma:
                bi, j = dma.pop(0)
                a.I(f's_add_u32 m0, s12, {RA + bi*20480 + j*4096}')
                a.I(f's_mov_b32 s4, {(320 + 128*bi)*1280}')
                if (bi, j) == (2, 2):
                    a.I(f's_cmp_ge_u32 s10, 2\ns_cbranch_scc1 {N}_nodma')
                a.I(f's_setprio {OPT["hprio"]}')
                a.I(f'buffer_load_dwordx4 v{VWO+j}, s[44:47], s4 offen lds')
                a.I(f's_setprio {OPT["h3prio"]}')
                if (bi, j) == (2, 2): a.L(f'{N}_nodma')
    assert not dma and DS + AW >= 20 and DS > 10
    vstamp(12)
    if STAMPS: a.I('v_writelane_b32 v0, s18, 28')
    for k in range(5):
        a.I(f'v_subrev_u32 v{vR+k}, 51200, v{vR+k}')
    a.I('s_add_u32 s22, s21, 20480')
    a.I('s_waitcnt vmcnt(0)')
    arrive(C_H)
    a.stamp(8)
    a.I('s_setprio 0')
    a.I('s_waitcnt lgkmcnt(0)')
    a.I('s_barrier')
    vstamp(13)
    a.I(f's_call_b64 {RET}, {N}_wpre')
    vstamp(14)
    ldswait(C_T, 4, T2, T3)

    a.L(f'{N}_phaseC')
    a.stamp(9)
    CS = [22, 23, 26, 27, 28]
    a.I(f"""
    s_add_u32 s23, s22, 4096
    s_add_u32 s26, s22, 8192
    s_add_u32 s27, s22, 12288
    s_add_u32 s28, s22, 16384
    s_mov_b32 s19, 0
    s_call_b64 {RET}, {N}_cl0
    """)
    a.stamp(10)
    a.vm = []; a.lg = []
    srd(a, 52, 34, 2048 * 1280)
    vPa = 12
    a.I(f'''
    s_mul_i32 s3, s9, 6144
    s_add_u32 s3, s3, {EXA}
    v_mul_u32_u24 v{T0}, 336, v{vC}
    v_lshl_add_u32 v{T0}, v{vG4}, 4, v{T0}
    v_add_u32 v{vPa+4}, s3, v{T0}
    s_lshl_b32 s3, s7, 6
    s_lshl_b32 s4, s9, 3
    s_add_u32 s3, s3, s4
    s_mul_i32 s13, s3, 1280
    s_mul_i32 s5, s8, 160
    s_add_u32 s13, s13, s5
    s_lshr_b32 s3, s9, 1
    s_mul_i32 s14, s3, 6144
    s_and_b32 s3, s9, 1
    s_mul_i32 s3, s3, {8*336}
    s_add_u32 s14, s14, s3
    s_add_u32 s14, s14, {EXA}
    ''')
    for p in range(2):
        a.I(f'''
        v_add_u32 v{T0}, {p*64}, v{vL}
        v_mul_u32_u24 v{T1}, 6554, v{T0}
        v_lshrrev_b32 v{T1}, 16, v{T1}
        v_mul_u32_u24 v{T2}, 10, v{T1}
        v_sub_u32 v{T2}, v{T0}, v{T2}
        v_mul_u32_u24 v{T3}, 336, v{T1}
        v_lshl_add_u32 v{T3}, v{T2}, 5, v{T3}
        v_add_u32 v{vPa+p}, s14, v{T3}
        v_mul_u32_u24 v{T3}, 1280, v{T1}
        v_lshl_add_u32 v{vPa+2+p}, v{T2}, 4, v{T3}
        ''')
    a.I('s_waitcnt lgkmcnt(0)')
    for s in range(10):
        if s == 8: a.I('s_waitcnt lgkmcnt(10)')
        if s == 9: a.I('s_waitcnt lgkmcnt(0)')
        if s % 2 == 0:
            r = AF + 4 * s
            a.L(f'{N}_ck{s}')
            a.I(f"""
            s_waitcnt vmcnt({8-s})
            v_max3_u32 v{T0}, v{r}, v{r+1}, v{r+2}
            v_max3_u32 v{T1}, v{r+3}, v{r+4}, v{r+5}
            v_max3_u32 v{T0}, v{T0}, v{r+6}, v{r+7}
            v_max_u32 v{T0}, v{T0}, v{T1}
            v_cmp_eq_u32 vcc, -1, v{T0}
            s_cbranch_vccnz {N}_rt{s}
            """)
            a.L(f'{N}_go{s}')
        for t in range(5):
            d = vr(CACC + 4 * t, 4)
            a.I(f'{MF16} {d}, {vr(WF+(s%8)*20+t*4,4)}, {vr(AF+4*s,4)}, {d}')
        if s in (1, 2):
            for i in wread(7 + s, WF + (s - 1)*20): a.I(i)
    if STAMPS: a.I('v_writelane_b32 v0, s19, 29')
    a.stamp(11)
    a.I('s_nop 3')
    for t in range(5):
        a.I(f'ds_write_b128 v{vPa+4}, {vr(CACC+4*t,4)} offset:{t*64}')
    a.I('s_waitcnt lgkmcnt(0)\ns_barrier')
    for p in range(2):
        b = AF + p * 16
        if p == 1:
            a.I('s_mov_b64 exec, 0xffff')
        a.I(f'''
        ds_read_b128 {vr(b,4)}, v{vPa+p}
        ds_read_b128 {vr(b+4,4)}, v{vPa+p} offset:16
        ds_read_b128 {vr(b+8,4)}, v{vPa+p} offset:24576
        ds_read_b128 {vr(b+12,4)}, v{vPa+p} offset:24592
        ''')
    a.I('s_mov_b64 exec, -1')
    for p in range(2):
        b = AF + p * 16
        a.I(f's_waitcnt lgkmcnt({4-4*p})')
        for k in range(8):
            a.I(f'v_add_f32 v{b+k}, v{b+k}, v{b+8+k}')
        for k in range(4):
            cv(b + k, b + 2 * k)
        if p == 1:
            a.I('s_mov_b64 exec, 0xffff')
        a.I(f'buffer_store_dwordx4 {vr(b,4)}, v{vPa+2+p}, s[52:55], s13 offen')
    if STAMPS:
        a.stamp(12)
        a.I('s_waitcnt vmcnt(0)')
        a.stamp(13)
        if OPT['dbg']:
            a.I('s_memrealtime s[94:95]')
            a.I('s_load_dwordx2 s[36:37], s[0:1], 80')
            a.I('s_waitcnt lgkmcnt(0)')
            srd(a, 56, 36, 256)
            a.I(f's_cmp_lg_u32 s2, {OPT["dbg"]-1}')
            a.I(f's_cbranch_scc1 {N}_end')
            a.I(f's_and_b32 s3, s9, 3')
            a.I(f's_cmp_lg_u32 s3, 0')
            a.I(f's_cbranch_scc1 {N}_end')
            a.I('s_mov_b64 exec, 1')
            a.I(f'v_mov_b32 v{T0}, 0')
            a.I('s_lshr_b32 s5, s9, 2')
            a.I('s_mul_i32 s5, s5, 28')
            sel = [2,4,5,8,10,13,15]
            selh = [3,4,5,7,8,10,13]
            a.I('s_sub_u32 s94, s94, s92')
            a.I('s_add_u32 s94, s94, s64')
            for k in range(7):
                a.I(f's_cmp_eq_u32 s9, 0')
                a.I(f's_cselect_b32 s3, s{64+2*sel[k]}, s{64+2*selh[k]}')
                a.I(f's_sub_u32 s3, s3, s64')
                a.I(f'v_mov_b32 v{T1}, s3')
                a.I(f'buffer_store_dword v{T1}, v{T0}, s[56:59], s5 offen offset:{8+4*k}')
            a.I(f's_branch {N}_end')
        a.dump_stamps(14, 48, WS_STAMP, 9, T0, T1)
        a.I(f'''
        v_lshlrev_b32 v{T0}, 2, v{vL}
        s_getreg_b32 s4, hwreg(HW_REG_HW_ID)
        v_writelane_b32 v0, s4, 15
        s_lshl_b32 s3, s2, 3
        s_add_u32 s3, s3, s9
        s_lshl_b32 s3, s3, 7
        s_add_u32 s3, s3, {WS_STAMP + 262144}
        s_mov_b32 exec_hi, 0
        buffer_store_dword v0, v{T0}, {W}, s3 offen
        ''')
    a.L(f'{N}_end')
    a.I('s_endpgm')
    for s in range(0, 10, 2):
        a.L(f'{N}_rt{s}')
        a.I(f"""
        s_add_u32 s19, s19, 1
        s_cmp_gt_u32 s19, {SPIN}
        s_cbranch_scc1 {N}_go{s}
        s_call_b64 {RET}, {N}_cl{s}
        s_branch {N}_ck{s}
        """)
    for s in range(0, 20, 2):
        a.L(f'{N}_hrt{s}')
        a.I(f"""
        s_add_u32 s18, s18, 1
        s_cmp_gt_u32 s18, {SPIN}
        s_cbranch_scc1 {N}_hgo{s}
        s_add_u32 s3, s21, {40960 + s*2048}
        s_add_u32 s4, s3, 4096
        """)
        for u in range(s, min(s + 4, 20)):
            a.I(f'buffer_load_dwordx4 {vr(AF+4*u,4)}, v{vA}, {W}, s{3+(u-s)//2} offen offset:{(u%2)*2048} sc1')
        a.I(f's_waitcnt vmcnt(0)')
        a.I(f's_branch {N}_hck{s}')
    for s in range(10):
        a.L(f'{N}_cl{s}')
        a.I(f'buffer_load_dwordx4 {vr(AF+4*s,4)}, v{vA}, {W}, s{CS[s//2]} offen offset:{(s%2)*2048} sc1')
    a.I(f's_setpc_b64 {RET}')
    a.L(f'{N}_last')
    return a.text()

def build(path):
    hdr = open('gated_mix__grouped_kv_mqa__sliding_local_dilated__prompt.s.ref').read().split('\n')
    head = [l for l in hdr if l.startswith(';') and '@launch' not in l]
    s = '\n'.join(head) + '\n'
    s += f'; @launch grid=(256,1,1) block=(512,1,1) lds={LDS}\n'
    s += '.amdgcn_target "amdgcn-amd-amdhsa--gfx950"\n.text\n'
    s += gen()
    s += '.section .rodata,"a"\n'
    s += kernel_desc(KNAME, 256, 0, 102)
    open(path, 'w').write(s)

if __name__ == '__main__':
    for arg in sys.argv[2:]:
        if arg == 'stamps': STAMPS = True
        elif '=' in arg:
            k, v = arg.split('='); OPT[k] = int(v)
    build(sys.argv[1])
```

```python
import math, sys
from asmlib import *

WS_QKB = 0
QKB_PT = 81920
WS_VBT = 64 * QKB_PT
VBT_NT = 131072
WS_KVF = WS_VBT + 20 * VBT_NT
KVT = 2816
KV_K2, KV_C, KV_V1, KV_V2 = 1024, 1280, 1408, 2080
WS_G = WS_KVF + 64 * KVT
WS_FLG = WS_G + 8192
WS_FG = WS_FLG + 8192
FG = 48 * 128
WS_OAB = WS_FG + 32 * FG
OAB_PT = 81920
WS_STAMP = WS_OAB + 64 * OAB_PT
WS_END = WS_STAMP + 524288
STAMPS = False
CSCALE = math.log2(math.e) / math.sqrt(20.0)
QBSCALE = 1.0
MF16 = 'v_mfma_f32_16x16x32_bf16'
MF32 = 'v_mfma_f32_32x32x16_bf16'
MF32h = 'v_mfma_f32_32x32x8_bf16'
KNAME = 'gated_mix__grouped_kv_mqa__sliding_local_dilated__prompt_kernel'

XT = 0
SLOT = [81920, 102400, 122880]
EXB = 122880
QX = 81920
SYNC = 161792
C_X, C_W, C_Q, C_H, C_N, C_2, C_3, C_F, C_R, C_S2, C_S3 = 0, 8, 16, 36, 40, 48, 52, 56, 60, 64, 68
C_T, C_M, C_P, C_B, C_E, C_S1 = 72, 76, 80, 96, 112, 116
GV = 162048
GL = 163328
LDS = 163840
HR = 122880
RA = 0
RB = 102400
EXA = 51200
PART = 51200
SPIN = 200000

OPT = dict(swapx=0, hpf=0, jeven=1, peel=1, kvpf=0, lk=4, eprio=1, pre1=0, p1m=1, cl=0, s3b=8, dstart=12, att2=1, gp=6, par=0, par3=0, ffin=1, ct=0, wqpf=0, tlb=0, dbg=0, st2=2, d1=4, h3prio=3, h2prio=3, h2d=1, AW=12, w0early=0, cpf=1, npre=2, hstart=2, wsub=3, psleep=2, PD=1, aprio=2, hprio=0, p1start=2, wstart=5, NB=8, nosc1=0, noatt=0, map2=1, pf=8, mprio=0, p1sleep=2, kvtest=0, vprio=1)

def srd(a, d, base, size):
    a.I(f's_mov_b32 s{d}, s{base}')
    a.I(f's_mov_b32 s{d+1}, s{base+1}')
    a.I(f's_mov_b32 s{d+2}, {size}')
    a.I(f's_mov_b32 s{d+3}, 0x20000')

def gen():
    a = Asm()
    a.stamps = STAMPS
    N = 'F'
    W = 's[48:51]'
    vL, vH, vP = 1, 2, 3
    T0, T1, T2, T3, T4, T5 = 4, 5, 6, 7, 8, 9
    vC, vG4 = 10, 11
    RET = 's[98:99]'
    ex = lambda r: a.I(f'v_exp_f32 v{r}, v{r}')
    cv = lambda d, s: a.I(f'v_cvt_pk_bf16_f32 v{d}, v{s}, v{s+1}')
    def lab():
        a.nlabel += 1
        return f'{N}_l{a.nlabel}'
    def ldswait(word, target, vt, va, sleep=1):
        l = lab()
        a.I(f'v_mov_b32 v{va}, {SYNC}')
        a.I('s_mov_b32 s4, 0')
        a.L(l)
        a.I(f'''
        ds_read_b32 v{vt}, v{va} offset:{word}
        s_add_u32 s4, s4, 1
        s_waitcnt lgkmcnt(0)
        v_readfirstlane_b32 s3, v{vt}
        s_cmp_ge_u32 s3, {target}
        s_cbranch_scc1 {l}_ok
        ''')
        if sleep: a.I(f's_sleep {sleep}')
        a.I(f'''
        s_cmp_lt_u32 s4, {SPIN*8}
        s_cbranch_scc1 {l}
        ''')
        a.L(l + '_ok')
    def arrive(word, va=T0, vd=T1):
        a.I(f'''
        v_mov_b32 v{va}, {SYNC}
        v_mov_b32 v{vd}, 1
        s_mov_b64 exec, 1
        ds_add_u32 v{va}, v{vd} offset:{word}
        s_mov_b64 exec, -1
        ''')

    def zero(r0, r1):
        assert r0 % 2 == 0 and r1 % 2 == 0
        for r in range(r0, r1, 2):
            a.I(f'v_mov_b64 {vr(r,2)}, 0')
    def vstamp(lane):
        if STAMPS:
            a.I(f's_memtime s[100:101]\ns_waitcnt lgkmcnt(0)\nv_writelane_b32 v0, s100, {lane}')
    def getnonce(vt, va):
        l = lab()
        a.I(f'v_mov_b32 v{va}, {SYNC}')
        a.I('s_mov_b32 s4, 0')
        a.L(l)
        a.I(f'''
        ds_read_b64 {vr(vt,2)}, v{va} offset:{C_N}
        s_add_u32 s4, s4, 1
        s_waitcnt lgkmcnt(0)
        v_readfirstlane_b32 s62, v{vt}
        v_readfirstlane_b32 s63, v{vt+1}
        s_cmp_lg_u32 s62, 0
        s_cbranch_scc1 {l}_ok
        s_cmp_lt_u32 s4, {SPIN*8}
        s_cbranch_scc1 {l}
        ''')
        a.L(l + '_ok')
    a.raw(kernel_header(KNAME))
    a.I('s_cmp_ge_u32 s2, 256')
    a.I(f's_cbranch_scc1 {N}_end')
    a.stamp(0)
    a.I('s_load_dwordx16 s[16:31], s[0:1], 0')
    a.I('s_load_dwordx8 s[32:39], s[0:1], 64')
    a.I(f'''
    v_and_b32 v{vL}, 63, v0
    v_lshrrev_b32 v{T0}, 6, v0
    v_lshrrev_b32 v{vH}, 5, v{vL}
    v_readfirstlane_b32 s9, v{T0}
    v_and_b32 v{vP}, 31, v{vL}
    v_and_b32 v{vC}, 15, v{vL}
    v_lshrrev_b32 v{vG4}, 4, v{vL}
    s_and_b32 s3, s2, 7
    s_lshr_b32 s6, s2, 3
    ''')
    if not OPT['map2']:
        a.I(f'''
        s_lshl_b32 s3, s3, 2
        s_lshr_b32 s5, s6, 3
        s_add_u32 s7, s3, s5
        s_and_b32 s8, s6, 7
        s_cmp_ge_u32 s8, 5
        s_cselect_b32 s3, 5, 0
        s_sub_u32 s60, s8, s3
        s_and_b32 s61, s7, 3
        s_lshl_b32 s3, s61, 1
        s_sub_u32 s96, s8, s3
        s_and_b32 s96, s96, 7
        ''')
    else:
        a.I(f'''
        s_lshr_b32 s4, s3, 1
        s_lshl_b32 s4, s4, 3
        s_lshr_b32 s5, s6, 2
        s_add_u32 s7, s4, s5
        {'s_not_b32 s3, s3' if OPT['swapx'] else ''}
        s_and_b32 s3, s3, 1
        s_lshl_b32 s3, s3, 2
        s_and_b32 s60, s6, 3
        s_add_u32 s8, s3, s60
        s_cmp_ge_u32 s5, 5
        s_cselect_b32 s3, 5, 0
        s_sub_u32 s61, s5, s3
        s_sub_u32 s96, s8, s5
        s_and_b32 s96, s96, {3 if OPT['jeven'] else 7}
        ''')
        if OPT['jeven']: a.I('s_and_b32 s3, s8, 4\ns_or_b32 s96, s96, s3')
    vSY, vOne = 22, 23
    vXa, vWa, vEa = 16, 24, 18
    a.I(f"""
    s_and_b32 s10, s9, 1
    s_cmp_ge_u32 s9, 4
    s_cbranch_scc1 {N}_hi
    s_cmp_lt_u32 s9, 2
    s_cbranch_scc1 {N}_lo
    """)
    a.I(f"""
    s_lshl_b32 s3, s7, 6
    s_lshl_b32 s4, s10, 4
    s_add_u32 s3, s3, s4
    v_lshrrev_b32 v{T0}, 3, v{vL}
    v_and_b32 v{T1}, 7, v{vL}
    v_xor_b32 v{T3}, v{vG4}, v{T1}
    v_add_u32 v{T2}, s3, v{T0}
    v_mul_u32_u24 v{T2}, 1280, v{T2}
    v_lshl_add_u32 v{vXa}, v{T3}, 4, v{T2}
    v_xor_b32 v{T3}, 4, v{T3}
    v_lshl_add_u32 v{vXa+1}, v{T3}, 4, v{T2}
    v_add_u32 v{vXa+1}, {8*1280}, v{vXa+1}
    s_lshl_b32 s11, s10, 10
    v_lshlrev_b32 v{vEa}, 4, v{vL}
    s_and_b32 s3, s96, 1
    s_mul_i32 s13, s3, 40960
    s_lshl_b32 s12, s3, 12
    s_lshl_b32 s4, s10, 11
    s_add_u32 s12, s12, s4
    s_lshl_b32 s3, s10, 2
    s_add_u32 s3, s3, {SYNC + C_X}
    v_mov_b32 v{vSY}, s3
    s_waitcnt lgkmcnt(0)
    """)
    srd(a, 40, 16, 2048 * 1280)
    q = []
    def issue(kind, slot=None):
        if kind == 'X':
            a.I(f's_call_b64 {RET}, {N}_xissue'); q.append(4)
        elif kind == 'E':
            a.I(f's_call_b64 {RET}, {N}_eissue'); q.append(7)
        else:
            a.I(f's_mov_b32 s15, {SLOT[slot]}')
            a.I(f's_call_b64 {RET}, {N}_wissue'); q.append(10)
    npub = [0]
    def pub(val=None, nowait=False):
        if val is None:
            q.pop(0)
            npub[0] += 1
            val = npub[0]
        else:
            q.clear()
        a.I(f'v_mov_b32 v{vOne}, {val}')
        if not nowait: a.I(f's_waitcnt vmcnt({sum(q)})')
        a.I(f'ds_write_b32 v{vSY}, v{vOne}')
        vstamp(16 + min(val, 6))
    flip = f"""
    s_xor_b32 s13, s13, 40960
    s_xor_b32 s12, s12, 4096
    """
    vstamp(23)
    a.I('s_barrier')
    vstamp(24)
    a.I(f"""
    s_cmp_ge_u32 s96, 4
    s_cbranch_scc1 {N}_noex
    s_cmp_lt_u32 s96, 2
    s_cselect_b32 s52, s20, s22
    s_cselect_b32 s53, s21, s23
    s_mov_b32 s54, 25600
    s_mov_b32 s55, 0x20000
    """)
    issue('E'); issue('E'); issue('E'); issue('E'); pub(); issue('E'); a.I(flip)
    for _ in range(4):
        pub(); issue('X')
    issue('X')
    a.I(f's_branch {N}_xdone')
    a.L(f'{N}_noex')
    a.I(f"""
    s_cmp_lg_u32 s96, 4
    s_cbranch_scc1 {N}_nog
    """)
    srd(a, 52, 32, 1280)
    a.I(f"""
    s_add_u32 m0, s11, {GV}
    s_cmp_eq_u32 s10, 0
    s_cselect_b32 exec_lo, -1, 0xffff
    s_cselect_b32 exec_hi, -1, 0
    buffer_load_dwordx4 v{vEa}, s[52:55], s11 offen lds
    s_mov_b64 exec, -1
    """)
    a.L(f'{N}_nog')
    for _ in range(5): issue('X')
    a.I(flip)
    for _ in range(5): issue('X')
    pub(5, nowait=True)
    a.L(f'{N}_xdone')
    pub(10)
    a.I(f's_branch {N}_work')
    a.L(f'{N}_hi')
    a.I(f"""
    s_barrier
    s_waitcnt lgkmcnt(0)
    """)
    def wqpf():
        srd(a, 52, 18, 819200)
        a.I(f"""
        s_lshl_b32 s3, s6, 1
        s_add_u32 s3, s3, s10
        s_mul_i32 s15, s3, 12800
        s_lshr_b32 s3, s8, 2
        s_mul_i32 s3, s3, 640
        s_add_u32 s15, s15, s3
        s_call_b64 {RET}, {N}_wpf
        """)
    if OPT['wqpf'] == 1:
        a.I(f's_cmp_lt_u32 s9, 6\ns_cbranch_scc1 {N}_nopf')
        wqpf()
        a.L(f'{N}_nopf')
    a.I(f"""
    {'' if OPT['w0early'] else f's_call_b64 {RET}, {N}_hsetup'}
    s_cmp_ge_u32 s9, 6
    s_cbranch_scc1 {N}_wload
    {f's_call_b64 {RET}, {N}_hsetup' if OPT['w0early'] else ''}
    s_cmp_eq_u32 s96, 4
    s_cbranch_scc1 {N}_extra
    s_cmp_gt_u32 s96, 4
    s_cbranch_scc1 {N}_hpre2
    s_cmp_eq_u32 s9, 5
    s_cbranch_scc1 {N}_hpre2
    s_branch {N}_extra
    """)
    a.L(f'{N}_wload')
    if OPT['wqpf'] == 2: wqpf()
    a.I(f's_mul_i32 s3, s8, 160')
    for n in range(5):
        a.I(f"""
        v_add_u32 v{T0}, {n*64}, v{vL}
        v_mul_u32_u24 v{T1}, 6554, v{T0}
        v_lshrrev_b32 v{T1}, 16, v{T1}
        v_mul_u32_u24 v{T2}, 160, v{T1}
        v_lshlrev_b32 v{T0}, 4, v{T0}
        v_sub_u32 v{T0}, v{T0}, v{T2}
        v_bfe_u32 v{T2}, v{T1}, 1, 2
        v_and_b32 v{T3}, 1, v{T1}
        v_lshl_add_u32 v{T2}, v{T3}, 2, v{T2}
        v_and_b32 v{T1}, 24, v{T1}
        v_add_u32 v{T1}, v{T1}, v{T2}
        v_mul_u32_u24 v{T1}, 1280, v{T1}
        v_add3_u32 v{vWa+n}, v{T1}, v{T0}, s3
        """)
    srd(a, 44, 18, 819200)
    a.I(f"""
    s_lshl_b32 s3, s10, 2
    s_add_u32 s3, s3, {SYNC + C_W}
    v_mov_b32 v{vSY}, s3
    s_mul_i32 s11, s10, {64*1280}
    s_mul_i32 s13, s10, 10240
    """)
    if OPT['w0early']:
        a.I(f's_cmp_lt_u32 s96, 4')
        a.I(f's_cbranch_scc1 {N}_w0a')
        issue('W', 0); q.clear()
        a.L(f'{N}_w0a')
        a.I(f's_call_b64 {RET}, {N}_hsetup')
    a.I(f's_call_b64 {RET}, {N}_hsetup2')
    if OPT['wqpf'] == 3: wqpf()
    vstamp(16)
    npub[0] = 0
    ldswait(C_X, OPT['wstart'], T0, T1, sleep=1)
    if OPT['w0early']:
        a.I(f's_cmp_ge_u32 s96, 4')
        a.I(f's_cbranch_scc1 {N}_w0b')
    issue('W', 0)
    a.L(f'{N}_w0b')
    issue('W', 1)
    pub()
    a.I(f's_cmp_ge_u32 s96, 4')
    a.I(f's_cbranch_scc1 {N}_nof')
    ldswait(C_F, 1, T0, T1, sleep=1)
    a.L(f'{N}_nof')
    issue('W', 2); pub()
    a.I(f"""
    v_add_u32 v{vOne}, 3, s10
    s_add_u32 s61, s61, s10
    s_cmp_eq_u32 s61, 5
    s_cselect_b32 s61, 0, s61
    s_mov_b32 s12, s61
    s_lshl_b32 s3, s10, 2
    s_add_u32 s3, s3, {SYNC + C_Q}
    v_mov_b32 v{T1}, s3
    s_mov_b32 s4, 0
    s_waitcnt vmcnt(0)
    ds_write_b32 v{vSY}, v{vOne}
    """.replace('v_add_u32 v23, 3, s10', 's_add_u32 s3, s10, 3\nv_mov_b32 v23, s3'))
    vstamp(19)
    a.L(f'{N}_wq')
    a.I(f"""
    ds_read_b32 v{T0}, v{T1}
    s_add_u32 s4, s4, 1
    s_waitcnt lgkmcnt(0)
    v_readfirstlane_b32 s3, v{T0}
    s_cmp_ge_u32 s3, 4
    s_cbranch_scc1 {N}_wq_ok
    s_cmp_lt_u32 s4, {SPIN*8}
    s_cbranch_scc1 {N}_wq
    """)
    a.L(f'{N}_wq_ok')
    for hf in range(2):
        a.I(f"""
        s_mov_b32 s11, {hf*64*1280}
        s_mov_b32 s13, {hf*10240}
        s_mov_b32 s61, s12
        s_mul_i32 s15, s10, 20480
        s_add_u32 s15, s15, {SLOT[0]}
        s_call_b64 {RET}, {N}_wissue
        """)
    vstamp(20)
    a.I(f"""
    v_mov_b32 v{vOne}, 5
    s_waitcnt vmcnt(0)
    ds_write_b32 v{vSY}, v{vOne}
    """)
    vstamp(21)
    a.stamp(1)
    a.I(f's_branch {N}_hpre')
    a.L(f'{N}_eissue')
    a.I(f"""
    s_mul_i32 s14, s60, 5120
    s_add_u32 s4, s14, s11
    s_add_u32 m0, s4, {EXB}
    s_add_u32 s14, s14, 4096
    buffer_load_dwordx4 v{vEa}, s[52:55], s4 offen lds
    buffer_load_dwordx4 v{vEa}, s[52:55], s4 offen offset:2048 lds
    s_add_u32 m0, s14, {EXB}
    s_nop 0
    buffer_load_dwordx4 v{vEa}, s[52:55], s14 offen lds
    """)
    a.L(f'{N}_xissue')
    a.I(f"""
    s_lshl_b32 s14, s60, 8
    s_add_u32 s14, s14, s13
    s_lshl_b32 s15, s60, 14
    s_add_u32 s15, s15, s12
    """)
    for c in range(2):
        for n in range(2):
            a.I(f's_add_u32 m0, s15, {c*8192 + n*1024}')
            a.I(f's_add_u32 s4, s14, {c*128}')
            a.I(f'buffer_load_dwordx4 v{vXa+n}, s[40:43], s4 offen lds')
    a.I(f"""
    s_add_u32 s60, s60, 1
    s_cmp_eq_u32 s60, 5
    s_cselect_b32 s60, 0, s60
    s_setpc_b64 {RET}
    """)
    a.L(f'{N}_wissue')
    a.I(f"""
    s_mul_i32 s14, s61, {128*1280}
    s_add_u32 s14, s14, s11
    s_add_u32 s15, s15, s13
    """)
    for g in range(2):
        for n in range(5):
            a.I(f's_add_u32 m0, s15, {g*5120 + n*1024}')
            a.I('s_nop 0' if (g, n) != (1, 0) else f's_add_u32 s14, s14, {32*1280}')
            a.I(f'buffer_load_dwordx4 v{vWa+n}, s[44:47], s14 offen lds')
    a.I(f"""
    s_add_u32 s61, s61, 1
    s_cmp_eq_u32 s61, 5
    s_cselect_b32 s61, 0, s61
    s_setpc_b64 {RET}
    """)

    a.L(f'{N}_lo')
    vXB = 12
    def xbases(vXB=12):
        a.I(f"""
        v_lshrrev_b32 v{T0}, 1, v{vP}
        v_and_b32 v{T0}, 7, v{T0}
        v_xor_b32 v{T0}, v{T0}, v{vH}
        v_lshlrev_b32 v{T1}, 7, v{vP}
        """)
        for ks in range(4):
            a.I(f'v_xor_b32 v{T2}, {2*ks}, v{T0}')
            a.I(f'v_lshl_add_u32 v{vXB+ks}, v{T2}, 4, v{T1}')
    a.I(f"""
    s_cmp_lg_u32 s9, 0
    s_cbranch_scc1 {N}_notpoll
    v_lshlrev_b32 v{T0}, 2, v{vL}
    v_add_u32 v{T0}, {SYNC}, v{T0}
    v_mov_b32 v{T1}, 0
    ds_write_b32 v{T0}, v{T1}
    s_waitcnt lgkmcnt(0)
    """)
    srd(a, 56, 36, 256)
    a.I(f"""
    s_cmp_lg_u32 s2, 0
    s_cbranch_scc1 {N}_n1
    s_memrealtime s[62:63]
    s_waitcnt lgkmcnt(0)
    s_or_b32 s62, s62, 1
    v_mov_b32 v{T2}, s62
    v_mov_b32 v{T3}, s63
    s_mov_b64 exec, 1
    buffer_store_dwordx2 {vr(T2,2)}, v{T1}, s[56:59], 0 offen sc1
    s_mov_b64 exec, -1
    s_barrier
    s_branch {N}_n2
    """)
    a.L(f'{N}_n1')
    a.I('s_barrier')
    a.I('s_mov_b32 s4, 0')
    a.I('s_sleep 8')
    a.L(f'{N}_n3')
    a.I(f"""
    s_sleep 4
    buffer_load_dwordx2 {vr(T2,2)}, v{T1}, s[56:59], 0 offen sc1
    s_add_u32 s4, s4, 1
    s_waitcnt vmcnt(0)
    v_readfirstlane_b32 s3, v{T2}
    s_cmp_lg_u32 s3, 0
    s_cbranch_scc1 {N}_n2
    s_cmp_lt_u32 s4, {SPIN}
    s_cbranch_scc1 {N}_n3
    """)
    a.L(f'{N}_n2')
    a.I(f"""
    v_mov_b32 v{T0}, {SYNC}
    ds_write_b64 v{T0}, {vr(T2,2)} offset:{C_N}
    """)
    vstamp(22)
    a.I(f's_branch {N}_work')
    a.L(f'{N}_notpoll')
    if OPT['cpf']:
        a.I(f"""
        s_getpc_b64 s[40:41]
        {N}_pc:
        s_sub_u32 s40, s40, {N}_pc-{KNAME}
        s_subb_u32 s41, s41, 0
        s_mov_b32 s42, {N}_last-{KNAME}
        s_mov_b32 s43, 0x20000
        s_lshl_b32 s3, s6, 11
        v_lshlrev_b32 v{T0}, 4, v{vL}
        buffer_load_dwordx4 v[144:147], v{T0}, s[40:43], s3 offen
        buffer_load_dwordx4 v[148:151], v{T0}, s[40:43], s3 offen offset:1024
        """)
    if OPT['tlb']:
        a.I(f"""
        s_mul_i32 s3, s7, {2*QKB_PT}
        s_add_u32 s4, s3, {WS_OAB}
        s_mul_i32 s5, s7, 81920
        s_mul_i32 s10, s8, {VBT_NT*5//2}
        s_add_u32 s10, s10, {WS_VBT}
        s_mov_b32 s11, {WS_KVF}
        s_mov_b32 s12, 0x12c000
        s_mov_b32 s13, 0x250000
        s_waitcnt lgkmcnt(0)
        s_load_dword s97, s[18:19], 0
        s_load_dword s97, s[38:39], s11
        s_load_dword s97, s[18:19], 0xc0000
        s_load_dword s97, s[28:29], 0
        s_load_dword s97, s[28:29], s12
        s_load_dword s97, s[28:29], s13
        s_load_dword s97, s[38:39], s3
        s_load_dword s97, s[38:39], s10
        s_load_dword s97, s[38:39], s4
        s_load_dword s97, s[24:25], 0
        s_load_dword s97, s[24:25], 0xc0000
        s_load_dword s97, s[30:31], 0
        s_load_dword s97, s[30:31], 0xc0000
        s_load_dword s97, s[34:35], s5
        """)
    a.I(f"""
    s_barrier
    """)
    a.L(f'{N}_work')
    vXQ = 108
    xbases(vXQ)
    vW0, vW1 = 106, 107
    vCX = 16
    vWB_, vCW = 20, 21
    FACC = 24
    FX = 56
    FWf = 88
    CNT = 104
    def worksetup():
        a.I(f"""
        v_bfe_u32 v{T0}, v{vL}, 2, 2
        v_lshl_add_u32 v{vW0}, v{vH}, 3, v{T0}
        v_and_b32 v{T1}, 3, v{vL}
        v_bfe_u32 v{T2}, v{vL}, 4, 1
        v_lshl_add_u32 v{T1}, v{T2}, 2, v{T1}
        v_min_u32 v{T1}, 4, v{T1}
        v_lshlrev_b32 v{vW1}, 3, v{T1}
        v_mov_b32 v{vSY}, {SYNC}
        v_mov_b32 v{vOne}, 1
        """)
        zero(FACC, FACC+16)
        a.I('s_waitcnt lgkmcnt(0)')
        srd(a, 48, 38, WS_END)
        a.I(f"""
        s_mov_b32 s5, 0
        s_mov_b32 s10, 0
        """)
    worksetup()
    def cntwait(top, need, first='s_waitcnt lgkmcnt(0)', off=C_X):
        if first: a.I(first)
        a.L(top)
        a.I(f"""
        v_readfirstlane_b32 s3, v{CNT}
        v_readfirstlane_b32 s4, v{CNT+1}
        s_min_u32 s3, s3, s4
        s_cmp_ge_u32 s3, {need}
        s_cbranch_scc1 {top}_go
        ds_read_b64 {vr(CNT,2)}, v{vSY} offset:{off}
        s_add_u32 s5, s5, 1
        s_cmp_lt_u32 s5, {SPIN*8}
        s_waitcnt lgkmcnt(0)
        s_cbranch_scc1 {top}
        """)
        a.L(top + '_go')
    vK1a, vK2a, vVa, vG = 12, 13, 14, 15
    Q1, Q2 = 16, 32
    P = 40
    S = [48, 64]
    O = 80
    NB = OPT['NB']
    KVB = 144
    def K1(b): return KVB + 14 * b
    def V1(b): return KVB + 14 * b + 4
    def V2(b): return KVB + 14 * b + 8
    def K2(b): return KVB + 14 * b + 12
    KZ = K1(NB-1); KZ2 = K2(NB-1)
    SC = '' if OPT['nosc1'] else ' sc1'
    srd(a, 44, 38, WS_END)
    a.I(f"""
    ds_read_b64 {vr(CNT,2)}, v{vSY}
    v_bfe_u32 v{T0}, v{vL}, 2, 2
    v_add_u32 v{T0}, v{T0}, v{vW0}
    v_mul_u32_u24 v{T0}, 160, v{T0}
    s_setprio 2
    s_mul_i32 s3, s9, 40
    v_add3_u32 v{vWB_}, v{T0}, v{vW1}, s3
    v_mov_b32 v{T5}, {SYNC + C_Q}
    s_mov_b32 s18, 1
    s_mov_b32 s19, {SLOT[0]}
    s_and_b32 s10, s9, 1
    s_lshr_b32 s11, s9, 1
    v_lshlrev_b32 v{vK1a}, 4, v{vL}
    v_lshlrev_b32 v{vK2a}, 3, v{vL}
    v_min_u32 v{vK2a}, 256, v{vK2a}
    v_mul_u32_u24 v{vVa}, 336, v{vH}
    v_lshl_add_u32 v{vVa}, v{vP}, 4, v{vVa}
    v_mov_b32 v{T3}, 0x7fffff00
    v_cmp_gt_u32 vcc, 21, v{vP}
    s_mul_i32 s12, s11, {32*KVT}
    s_add_u32 s12, s12, {WS_KVF}
    v_cndmask_b32 v{vVa}, v{T3}, v{vVa}, vcc
    s_add_u32 s13, s12, {32*KVT}
    s_mul_i32 s14, s6, {KVT}
    s_add_u32 s14, s14, s12
    s_mov_b32 s15, {WS_KVF}
    s_lshl_b32 s3, s9, 11
    s_add_u32 s3, s3, {QX}
    v_add_u32 v{T0}, s3, v{vK1a}
    s_lshl_b32 s3, s10, 13
    s_lshl_b32 s4, s11, 12
    s_add_u32 s3, s3, s4
    s_add_u32 s3, s3, {QX}
    v_add_u32 v{T1}, s3, v{vK1a}
    s_xor_b32 s3, s3, 4096
    v_add_u32 v{T2}, s3, v{vK1a}
    v_mov_b32 v{T3}, {f32hex(CSCALE)}
    """)
    assert QX % 8192 == 0
    zero(FACC+16, FACC+32)
    zero(112, 144)
    zero(V1(NB-1), V2(NB-1)+4)
    def qaddr():
        a.I('s_lshl_b32 s3, s61, 14')
        for k in range(4):
            a.I(f'v_add_u32 v{vCX+k}, s3, v{vXQ+k}')
        a.I(f'v_add_u32 v{vCW}, s19, v{vWB_}')
    def qreads(ks, tag):
        b = ks % 4
        for pt in range(2):
            a.LG(f'ds_read_b128 {vr(FX+b*8+pt*4,4)}, v{vCX+(ks&3)} offset:{(ks>>2)*8192 + pt*4096}', tag)
        for h in range(2):
            a.LG(f'ds_read_b64_tr_b16 {vr(FWf+b*4+2*h,2)}, v{vCW} offset:{(ks*16+h)*160}', tag)
    def loadK(r1, r2, so):
        a.I(f'buffer_load_dwordx4 {vr(r1,4)}, v{vK1a}, {W}, {so} offen{SC}')
        a.I(f'buffer_load_dwordx2 {vr(r2,2)}, v{vK2a}, {W}, {so} offen offset:{KV_K2}{SC}')
    def loadV(b, so):
        a.I(f'buffer_load_dwordx4 {vr(V1(b),4)}, v{vVa}, {W}, {so} offen offset:{KV_V1}{SC}')
        a.I(f'buffer_load_dwordx4 {vr(V2(b),4)}, v{vVa}, {W}, {so} offen offset:{KV_V2}{SC}')
    adv = [f's_add_u32 s14, s14, {KVT}', 's_cmp_eq_u32 s14, s13', 's_cselect_b32 s14, s12, s14']
    def ldtile(b):
        if b == 0: loadK(KZ, KZ2, 's15')
        loadK(K1(b), K2(b), 's14'); loadV(b, 's14')
        for i in adv: a.I(i)
    qaddr()
    cntwait(f'{N}_qwx', 10)
    a.I(f'ds_read_b64 {vr(CNT,2)}, v{vSY} offset:{C_W}')
    cntwait(f'{N}_qw0', 's18', off=C_W)
    vstamp(16)
    a.lg = []
    for ks in range(3): qreads(ks, ks)
    a.LG(f'ds_read_b64 {vr(CNT,2)}, v{vSY} offset:{C_W}', 2.5)
    a.L(f'{N}_qloop')
    for u in range(8):
        if u == 5:
            a.wait(lg=lambda t: t == 'c')
            cntwait(f'{N}_qw', 's18', first=None, off=C_W)
        qreads((u + 3) % 8, u + 3)
        if u == 2:
            a.LG(f'ds_read_b64 {vr(CNT,2)}, v{vSY} offset:{C_W}', 'c')
            a.I(f"""
            s_add_u32 s61, s61, 1
            s_cmp_eq_u32 s61, 5
            s_cselect_b32 s61, 0, s61
            s_add_u32 s19, s19, 20480
            s_cmp_eq_u32 s19, {SLOT[0]+3*20480}
            s_cselect_b32 s19, {SLOT[0]}, s19
            s_add_u32 s18, s18, 1
            s_cmp_eq_u32 s18, 6
            s_cselect_b32 s18, 0, s18
            """)
        a.wait(lg=lambda t: t != 'c' and t <= u)
        if u == 7:
            a.I('s_mov_b64 exec, 1')
            a.LG(f'ds_add_u32 v{T5}, v{vOne}', 10.5)
            a.I('s_mov_b64 exec, -1')
        b = u % 4
        for pt in range(2):
            d = vr(FACC + pt * 16, 16)
            a.I(f'{MF32} {d}, {vr(FWf + b * 4, 4)}, {vr(FX + b * 8 + pt * 4, 4)}, {d}')
        if u == 4: qaddr()
        if STAMPS and u == 6: a.I('s_memtime s[100:101]')
        if STAMPS and u == 1: a.I('s_add_u32 m0, s18, 24\nv_writelane_b32 v0, s100, m0')
    assert a.lg == [8]*4 + [9]*4 + [10]*4 + [10.5], a.lg
    a.I(f"""
    v_add_u32 v{T5}, 4, v{T5}
    s_cmp_lg_u32 s18, 0
    s_cbranch_scc1 {N}_qloop
    """)
    a.stamp(2)
    a.I(f'ds_read_b32 v{T3}, v{vSY} offset:{C_S1}')
    ldswait(C_Q + 12, 4, T4, T5, sleep=0)
    a.I(f'v_cmp_ne_u32 vcc, 0, v{T3}')
    a.stamp(1)
    a.I(f's_cbranch_vccz {N}_kv1')
    ldtile(0)
    a.L(f'{N}_kv1')
    for pt in range(2):
        r = FACC + 16 * pt
        for k in range(6):
            cv(r + k, r + 2 * k)
        a.I('s_mov_b32 exec_lo, 0')
        a.I(f'v_mov_b64 {vr(r+4,2)}, 0')
        a.I('s_mov_b32 exec_lo, -1')
        a.I(f'ds_write_b128 v{T0}, {vr(r,4)} offset:{pt*8192}')
        a.I(f'ds_write_b64 v{T0}, {vr(r+4,2)} offset:{pt*8192+1024}')
    arrive(C_R, T4, T5)
    a.I(f's_cbranch_vccz {N}_kv2')
    ldtile(1)
    a.L(f'{N}_kv2')
    vstamp(17)
    zero(80, 112)
    zero(P, P+8)
    ldswait(C_R, 4, T4, T5, sleep=0)
    a.stamp(3)
    for t in range(4):
        a.I(f'ds_read_b128 {vr(Q1+4*t,4)}, v{T1+(t>>1)} offset:{(t&1)*2048}')
        a.I(f'ds_read_b64 {vr(Q2+2*t,2)}, v{T1+(t>>1)} offset:{(t&1)*2048+1024}')
    arrive(C_H, T4, T5)
    if STAMPS: a.I('v_writelane_b32 v0, vcc_lo, 23')
    a.I(f's_cbranch_vccnz {N}_kvok')
    ldswait(C_S1, 1, T4, T5, sleep=0)
    ldtile(0); ldtile(1)
    a.L(f'{N}_kvok')
    NPRE = OPT['npre']
    for b in range(2, NPRE): ldtile(b)
    vstamp(18)
    a.I(f's_waitcnt vmcnt({4*NPRE}) lgkmcnt(0)')
    vstamp(19)
    def zmax(t, s):
        a.I(f'v_max3_f32 v{T0}, v{s}, v{s+1}, v{s+2}')
        for k in range(3, 15, 2):
            a.I(f'v_max3_f32 v{T0}, v{T0}, v{s+k}, v{s+k+1}')
        a.I(f'v_max_f32 v{T0}, v{T0}, v{s+15}')
        a.I('s_mov_b32 exec_lo, 0')
        a.I(f'v_cvt_pk_bf16_f32 v{Q2+2*t}, -v{T0}, 0')
        a.I('s_mov_b32 exec_lo, -1')
    def zqk(t, s):
        a.I(f'{MF32} {vr(s,16)}, {vr(KZ,4)}, {vr(Q1+4*t,4)}, 0')
        a.I(f'{MF32h} {vr(s,16)}, {vr(KZ2,2)}, {vr(Q2+2*t,2)}, {vr(s,16)}')
    zqk(0, S[0]); zqk(1, S[1])
    a.I('s_nop 7\ns_nop 1')
    zmax(0, S[0]); zqk(2, S[0])
    zmax(1, S[1]); zqk(3, S[1])
    a.I('s_nop 3')
    zmax(2, S[0])
    vstamp(20)
    a.I(f's_waitcnt vmcnt({4*(NPRE-1)})')
    vstamp(21)
    a.I(f'{MF32} {vr(S[0],16)}, {vr(K1(0),4)}, {vr(Q1,4)}, 0')
    a.I(f'{MF32h} {vr(S[0],16)}, {vr(K2(0),2)}, {vr(Q2,2)}, {vr(S[0],16)}')
    zmax(3, S[1])
    PEEL = NB - 1 - NPRE if OPT['peel'] else 0
    for b in range(NPRE, NB - 1 - PEEL):
        loadK(K1(b), K2(b), 's14'); loadV(b, 's14')
        for i in adv: a.I(i)
    a.I('s_nop 3')
    a.I(f's_setprio {OPT["aprio"]}')
    a.I('s_mov_b32 s19, 0')
    a.stamp(4)
    if STAMPS:
        a.I('s_mov_b32 m0, 0')
    vq = [b for b in range(1, NPRE) for _ in range(4)]
    for b in list(range(-PEEL, 0)) + list(range(NB)):
        peeled = b < 0
        if b == 0:
            if PEEL: a.I(f's_branch {N}_ab{PEEL}')
            a.raw('.p2align 6')
            a.L(f'{N}_aloop')
        if peeled: b += PEEL
        else: a.L(f'{N}_ab{b}')
        nb = (b + 1) % NB
        pb = (b - 1) % NB
        W2 = 's[44:47]'
        fill = {(0, 0): f'buffer_load_dwordx4 {vr(K1(pb),4)}, v{vK1a}, {W2}, s14 offen{SC}',
                (0, 2): f'buffer_load_dwordx2 {vr(K2(pb),2)}, v{vK2a}, {W2}, s14 offen offset:{KV_K2}{SC}',
                (1, 0): f'buffer_load_dwordx4 {vr(V1(pb),4)}, v{vVa}, {W2}, s14 offen offset:{KV_V1}{SC}',
                (1, 1): f'buffer_load_dwordx4 {vr(V2(pb),4)}, v{vVa}, {W2}, s14 offen offset:{KV_V2}{SC}',
                (1, 2): adv[0], (2, 0): adv[1], (2, 1): adv[2],
                (2, 2): f's_waitcnt vmcnt({4*(NB-2)})'}
        if OPT['kvtest'] == 1:
            del fill[(0,2)], fill[(1,0)], fill[(1,1)]
            fill[(2,2)] = f's_waitcnt vmcnt({NB-2})'
        if OPT['kvtest'] == 2:
            del fill[(0,0)], fill[(0,2)], fill[(1,0)], fill[(1,1)]
        if b == NB - 1:
            fill[(3, 0)] = 's_add_u32 s19, s19, 1'
            fill[(3, 1)] = f's_cmp_lt_u32 s19, {1 if OPT["noatt"] else 32//NB}'
        if b == 0:
            fill[(3, 0)] = f's_cmp_eq_u32 s19, {32//NB - 1}'
            fill[(3, 1)] = 's_cselect_b32 s46, 0, s46'
        sk = (0, 1)
        if peeled:
            fill = {}
            sk = (3, 2)
            slots = [(t, i) for t in range(4) for i in range(3) if (t, i) != (2, 2)]
            for x in ((NPRE + 2*b) % NB, (NPRE + 2*b + 1) % NB):
                assert x != b and (x != pb or len(slots) <= 6)
                its = [f'buffer_load_dwordx4 {vr(K1(x),4)}, v{vK1a}, {W2}, s14 offen{SC}',
                       f'buffer_load_dwordx2 {vr(K2(x),2)}, v{vK2a}, {W2}, s14 offen offset:{KV_K2}{SC}',
                       f'buffer_load_dwordx4 {vr(V1(x),4)}, v{vVa}, {W2}, s14 offen offset:{KV_V1}{SC}',
                       f'buffer_load_dwordx4 {vr(V2(x),4)}, v{vVa}, {W2}, s14 offen offset:{KV_V2}{SC}\n' + adv[0],
                       adv[1] + '\n' + adv[2]]
                for n, it in enumerate(its):
                    sl = slots.pop(0)
                    if sl == (3, 0):
                        last = max(i for i, y in enumerate(vq) if y == nb)
                        fill[(2, 2)] = f's_waitcnt vmcnt({len(vq) - 1 - last})'
                        vq = vq[last + 1:]
                    fill[sl] = it
                    if n < 4: vq.append(x)
        if STAMPS and b % 4 == 0:
            fill[sk] = 's_memtime s[96:97]'
        if STAMPS and b % 4 == 1:
            fill[sk] = 's_waitcnt lgkmcnt(0)\nv_writelane_b32 v0, s96, m0\ns_add_u32 m0, m0, 1'
        for t in range(4):
            Sc, Sn = S[t & 1], S[1 - (t & 1)]
            tn, tp = (t + 1) & 3, (t - 1) & 3
            kb = b if t < 3 else nb
            vpb = b if t > 0 else pb
            def F(i):
                if (t, i) in fill: a.I(fill[(t, i)])
            if OPT['att2']:
                Pc, Pp = (4, P) if t % 2 == 0 else (P, 4)
                M = [f'{MF32} {vr(Sn,16)}, {vr(K1(kb),4)}, {vr(Q1+4*tn,4)}, 0',
                     f'{MF32} {vr(O+16*tp,16)}, {vr(V1(vpb),4)}, {vr(Pp,4)}, {vr(O+16*tp,16)}',
                     f'{MF32h} {vr(Sn,16)}, {vr(K2(kb),2)}, {vr(Q2+2*tn,2)}, {vr(Sn,16)}',
                     f'{MF32} {vr(O+16*tp,16)}, {vr(V2(vpb),4)}, {vr(Pp+4,4)}, {vr(O+16*tp,16)}']
                pat = {0: 'MeeeMeeeMeeeMe0ce1ce2cececeeccc',
                       1: 'M0eeeM1eeeMeeeM2eeeeeeecccccccc',
                       2: 'M0eeeeM1eeeeMeeeeM2eeeecccccccc',
                       3: 'M0eeeeM1eeeeMcccceeeeM2eeeecccc',
                       4: 'M0eeeM1eeeM2eeeMecececececeeccc',
                       5: 'M0eeeM1eeeMeeeM2cccceeeeeeecccc',
                       6: 'M0eeeM1eeeMccceeM2eeeeeeeeccccc'}[OPT['gp']]
                ne = nc = nm = 0
                for ch in pat:
                    if ch == 'M': a.I(M[nm]); nm += 1
                    elif ch == 'e': ex(Sc + ne); ne += 1
                    elif ch == 'c':
                        assert 2 * nc + 1 < ne
                        cv(Pc + nc, Sc + 2 * nc); nc += 1
                    else: F(int(ch))
                assert (ne, nc, nm) == (16, 8, 4), (ne, nc, nm)
                continue
            a.I(f'{MF32} {vr(Sn,16)}, {vr(K1(kb),4)}, {vr(Q1+4*tn,4)}, 0'); F(0)
            for k in range(4): ex(Sc + k)
            a.I(f'{MF32} {vr(O+16*tp,16)}, {vr(V2(vpb),4)}, {vr(P+4,4)}, {vr(O+16*tp,16)}'); F(1)
            for k in range(4, 8): ex(Sc + k)
            a.I(f'{MF32h} {vr(Sn,16)}, {vr(K2(kb),2)}, {vr(Q2+2*tn,2)}, {vr(Sn,16)}')
            for k in range(4): cv(P + k, Sc + 2 * k)
            for k in range(8, 12): ex(Sc + k)
            a.I(f'{MF32} {vr(O+16*t,16)}, {vr(V1(b),4)}, {vr(P,4)}, {vr(O+16*t,16)}'); F(2)
            for k in range(12, 16): ex(Sc + k)
            for k in range(4, 8): cv(P + k, Sc + 2 * k)
    a.I(f'''
    s_cbranch_scc1 {N}_aloop
    v_and_b32 v{vC}, 15, v{vL}
    v_lshrrev_b32 v{vG4}, 4, v{vL}
    {f'{MF32} {vr(O+48,16)}, {vr(V1(NB-1),4)}, {vr(P,4)}, {vr(O+48,16)}' if OPT['att2'] else ''}
    {MF32} {vr(O+48,16)}, {vr(V2(NB-1),4)}, {vr(P+4,4)}, {vr(O+48,16)}
    s_setprio 3
    ''')
    a.stamp(5)
    HDONE = 16
    ldswait(C_E, 4, T0, T1)
    a.stamp(6)
    a.I(f'''
    s_lshl_b32 s3, s7, 1
    s_add_u32 s20, s3, s10
    s_xor_b32 s3, s9, 2
    s_mul_i32 s3, s3, 6144
    s_add_u32 s3, s3, {EXA}
    v_add_u32 v{T1}, s3, v{vK1a}
    s_mul_i32 s3, s9, 6144
    s_add_u32 s3, s3, {EXA}
    v_add_u32 v{T2}, s3, v{vK1a}
    s_lshl_b32 s3, s10, 7
    s_add_u32 s3, s3, {GL}
    v_lshlrev_b32 v{T0}, 2, v{vP}
    v_add_u32 v{T0}, s3, v{T0}
    s_lshl_b32 s3, s9, 2
    s_add_u32 s3, s3, {SYNC + C_B}
    v_mov_b32 v{T4}, s3
    v_xor_b32 v{T5}, 8, v{T4}
    ''')
    for t in (2, 3):
        for i in range(3):
            a.I(f'ds_write_b128 v{T1}, {vr(O+16*t+4*i,4)} offset:{(t-2)*3072+i*1024}')
    a.I(f'ds_write_b32 v{T5}, v{T5}')
    a.I(f'ds_read_b32 v{vG}, v{T0}')
    a.I(f'''
    s_mul_i32 s36, s20, {OAB_PT}
    s_mul_i32 s3, s8, 5120
    s_add_u32 s36, s36, s3
    s_add_u32 s36, s36, {WS_OAB}
    s_lshl_b32 s3, s11, 11
    s_add_u32 s37, s36, s3
    s_lshl_b32 s3, s11, 9
    s_add_u32 s40, s36, s3
    s_add_u32 s40, s40, 4096
    s_mov_b32 s42, {f32hex(2.0**100)}
    ''')
    a.I('s_mov_b32 s4, 0')
    a.L(f'{N}_bb1')
    a.I(f'ds_read_b32 v{T0}, v{T4}')
    for k in range(6):
        a.I(f'ds_read_b128 {vr(O+32+4*k,4)}, v{T2} offset:{k*1024}')
    a.I(f'''
    s_add_u32 s4, s4, 1
    s_waitcnt lgkmcnt(6)
    v_readfirstlane_b32 s3, v{T0}
    s_cmp_lg_u32 s3, 0
    s_cbranch_scc1 {N}_bb2
    s_sleep 1
    s_cmp_lt_u32 s4, {SPIN*8}
    s_cbranch_scc1 {N}_bb1
    ''')
    a.L(f'{N}_bb2')
    PKO = O + 32
    a.I(f'v_mov_b64 {vr(T2,2)}, 0')
    for t in range(2):
        a.I(f's_waitcnt lgkmcnt({3-3*t})')
        for r in (8, 0, 2, 4, 6, 10):
            a.I(f'v_pk_add_f32 {vr(O+16*t+r,2)}, {vr(O+16*t+r,2)}, {vr(O+32+12*t+r,2)}')
        if OPT['ffin']:
            a.I(f'v_mov_b32 v{T0+4*t}, v{O+16*t+8}')
            a.I(f'v_mov_b32 v{T1+4*t}, v{O+16*t+8}')
            for r in range(0, 12, 2):
                a.I(f'v_pk_fma_f32 {vr(T2,2)}, {vr(O+16*t+r,2)}, 0, {vr(T2,2)}')
                if r == 2: a.I(f'v_permlane32_swap_b32 v{T0+4*t}, v{T1+4*t}')
                if r == 6: a.I(f'v_rcp_f32 v{T0+4*t}, v{T1+4*t}')
    a.I('s_mov_b32 s41, 0')
    a.I('s_waitcnt vmcnt(0)')
    if OPT['ffin']:
        a.I(f'''
        v_add_f32 v{T2}, v{T2}, v{T3}
        v_mul_f32 v{T0}, v{T0}, v{vG}
        v_add_f32 v{T1}, v{T2}, v{T1}
        v_add_f32 v{T5}, v{T2}, v{T5}
        v_mul_f32 v{T4}, v{T4}, v{vG}
        v_cmp_nlt_f32 vcc, {f32hex(2.0**-60)}, v{T1}
        v_cmp_ngt_f32 s[4:5], s42, v{T1}
        s_or_b64 s[4:5], s[4:5], vcc
        v_cmp_nlt_f32 vcc, {f32hex(2.0**-60)}, v{T5}
        v_cmp_ngt_f32 s[18:19], s42, v{T5}
        s_or_b64 s[4:5], s[4:5], vcc
        s_or_b64 s[4:5], s[4:5], s[18:19]
        s_cbranch_scc1 {N}_fin0
        ''')
        for t in range(2):
            for r in range(0, 12, 2):
                a.I(f'v_pk_mul_f32 {vr(O+16*t+r,2)}, {vr(O+16*t+r,2)}, {vr(T0+4*t,2)} op_sel_hi:[1,0]')
            for k in range(4):
                cv(PKO + 4*t + k, O + 16*t + 2 * k)
            for k in range(4):
                a.I(f'v_min_u32 v{PKO+4*t+k}, -2, v{PKO+4*t+k}')
            a.I(f'buffer_store_dwordx4 {vr(PKO+4*t,4)}, v{vK1a}, {W}, s37 offen offset:{1024*t} sc1')
            cv(PKO + 8 + 2*t, O + 16*t + 8); cv(PKO + 9 + 2*t, O + 16*t + 10)
        for k in range(8, 12):
            a.I(f'v_min_u32 v{PKO+k}, -2, v{PKO+k}')
        a.I(f's_branch {N}_fin2')
    a.L(f'{N}_fin0')
    a.I('s_mov_b32 s43, 0')
    a.L(f'{N}_final')
    a.I(f'''
    v_mov_b32 v{T0}, v{O+8}
    v_mov_b32 v{T1}, v{O+8}
    v_mov_b32 v{T2}, 0
    v_mov_b32 v{T3}, 0
    v_permlane32_swap_b32 v{T0}, v{T1}
    ''')
    for r in range(12):
        a.I(f'v_fma_f32 v{T2}, v{O+r}, v{T3}, v{T2}')
    a.I(f'''
    v_add_f32 v{T2}, v{T2}, v{T1}
    v_cmp_nlt_f32 vcc, {f32hex(2.0**-60)}, v{T2}
    v_cmp_ngt_f32 s[4:5], s42, v{T2}
    s_or_b64 s[4:5], s[4:5], vcc
    s_cmp_eq_u64 s[4:5], 0
    s_cbranch_scc1 {N}_norm
    s_cmp_lg_u32 s43, 0
    s_cbranch_scc0 {N}_slow
    ''')
    a.L(f'{N}_norm')
    a.I(f'''
    v_rcp_f32 v{T1}, v{T1}
    s_nop 0
    v_mul_f32 v{T1}, v{T1}, v{vG}
    ''')
    for r in range(12):
        a.I(f'v_mul_f32 v{O+r}, v{T1}, v{O+r}')
    a.I(f's_cmp_lg_u32 s41, 0')
    a.I(f's_cbranch_scc1 {N}_fin1')
    for k in range(4):
        cv(PKO + k, O + 2 * k)
    cv(PKO + 8, O + 8); cv(PKO + 9, O + 10)
    for k in (0, 1, 2, 3, 8, 9): a.I(f'v_min_u32 v{PKO+k}, -2, v{PKO+k}')
    a.I(f'buffer_store_dwordx4 {vr(PKO,4)}, v{vK1a}, {W}, s37 offen sc1')
    for r in range(12):
        a.I(f'v_mov_b32 v{O+r}, v{O+16+r}')
    for r in range(4):
        a.I(f'v_mov_b32 v{Q1+r}, v{Q1+4+r}')
    for r in range(2):
        a.I(f'v_mov_b32 v{Q2+r}, v{Q2+2+r}')
    a.I('s_mov_b32 s41, 1')
    a.I(f's_branch {N}_fin0')
    a.L(f'{N}_fin1')
    for k in range(4):
        cv(PKO + 4 + k, O + 2 * k)
    cv(PKO + 10, O + 8); cv(PKO + 11, O + 10)
    for k in (4, 5, 6, 7, 10, 11): a.I(f'v_min_u32 v{PKO+k}, -2, v{PKO+k}')
    a.I(f'buffer_store_dwordx4 {vr(PKO+4,4)}, v{vK1a}, {W}, s37 offen offset:1024 sc1')
    a.L(f'{N}_fin2')
    a.I(f'''
    s_mov_b32 exec_hi, 0
    buffer_store_dwordx4 {vr(PKO+8,4)}, v{vK1a}, {W}, s40 offen sc1
    s_mov_b32 exec_hi, -1
    ''')
    a.stamp(7)
    vR = 249
    vA = 254
    CACC = 24
    AF = 44
    WF = 84
    if OPT['ct'] == 1: arrive(C_T, T4, T5)
    a.I(f'''
    s_mov_b32 s100, {RB}
    s_call_b64 {RET}, {N}_gsetup
    s_and_b32 s3, s8, {OPT['par']}
    s_mul_i32 s3, s3, 20480
    s_add_u32 s22, s21, s3
    ''')
    zero(CACC, CACC+20)
    a.stamp(8)
    if OPT['cl']: a.I(f"""
    s_add_u32 s23, s22, 4096
    s_add_u32 s26, s22, 8192
    s_add_u32 s27, s22, 12288
    s_add_u32 s28, s22, 16384
    s_mov_b32 s19, 0
    s_call_b64 {RET}, {N}_cl0
    """)
    a.I(f's_call_b64 {RET}, {N}_wpre')
    if OPT['ct'] == 0: arrive(C_T, T4, T5)
    a.stamp(9)
    a.I(f's_branch {N}_phaseC{OPT["cl"]}')

    a.L(f'{N}_slow')
    a.I(f'''
    s_mov_b32 s43, 1
    s_mov_b32 exec_lo, 0
    v_mov_b32 v{Q2}, 0
    v_mov_b32 v{Q2+1}, 0
    s_mov_b32 exec_lo, -1
    v_mov_b32 v{T4}, 0xff800000
    s_mov_b32 s14, {WS_KVF}
    ''')
    a.L(f'{N}_sl1')
    loadK(K1(0), K2(0), 's14')
    a.I(f'''
    s_waitcnt vmcnt(0)
    {MF32} {vr(S[0],16)}, {vr(K1(0),4)}, {vr(Q1,4)}, 0
    {MF32h} {vr(S[0],16)}, {vr(K2(0),2)}, {vr(Q2,2)}, {vr(S[0],16)}
    s_nop 7
    s_nop 7
    ''')
    for k in range(0, 16, 2):
        a.I(f'v_max3_f32 v{T4}, v{T4}, v{S[0]+k}, v{S[0]+k+1}')
    a.I(f'''
    s_add_u32 s14, s14, {KVT}
    s_cmp_lt_u32 s14, {WS_KVF+64*KVT}
    s_cbranch_scc1 {N}_sl1
    v_mov_b32 v{T5}, v{T4}
    s_nop 1
    v_permlane32_swap_b32 v{T4}, v{T5}
    s_nop 1
    v_max_f32 v{T4}, v{T4}, v{T5}
    v_sub_f32 v{T4}, 0, v{T4}
    v_and_b32 v{T0}, 0xffff0000, v{T4}
    v_sub_f32 v{T4}, v{T4}, v{T0}
    v_and_b32 v{T1}, 0xffff0000, v{T4}
    v_sub_f32 v{T4}, v{T4}, v{T1}
    s_mov_b32 exec_lo, 0
    v_lshrrev_b32 v{T0}, 16, v{T0}
    v_or_b32 v{Q2}, v{T0}, v{T1}
    v_lshrrev_b32 v{Q2+1}, 16, v{T4}
    s_mov_b32 exec_lo, -1
    s_mov_b32 s14, {WS_KVF}
    ''')
    for r in range(16):
        a.I(f'v_mov_b32 v{O+r}, 0')
    a.L(f'{N}_sl2')
    loadK(K1(0), K2(0), 's14'); loadV(0, 's14')
    a.I(f'''
    s_waitcnt vmcnt(0)
    {MF32} {vr(S[0],16)}, {vr(K1(0),4)}, {vr(Q1,4)}, 0
    {MF32h} {vr(S[0],16)}, {vr(K2(0),2)}, {vr(Q2,2)}, {vr(S[0],16)}
    s_nop 7
    s_nop 7
    ''')
    for k in range(16): ex(S[0] + k)
    a.I('s_nop 0')
    for k in range(8): cv(P + k, S[0] + 2 * k)
    a.I(f'''
    s_nop 1
    {MF32} {vr(O,16)}, {vr(V1(0),4)}, {vr(P,4)}, {vr(O,16)}
    {MF32} {vr(O,16)}, {vr(V2(0),4)}, {vr(P+4,4)}, {vr(O,16)}
    s_add_u32 s14, s14, {KVT}
    s_cmp_lt_u32 s14, {WS_KVF+64*KVT}
    s_cbranch_scc1 {N}_sl2
    s_nop 7
    s_nop 7
    s_branch {N}_final
    ''')

    HACC = 172
    vHW = 236
    vHR = 240
    vF2, vF3 = 242, 243
    VWO = 244
    LA, LB, ONES, vOB = 148, 156, 168, 153
    a.L(f'{N}_hsetup')
    xbases()
    a.I(f"""
    s_sub_u32 s5, s9, 4
    s_lshl_b32 s3, s8, 9
    s_lshl_b32 s4, s5, 7
    s_add_u32 s3, s3, s4
    v_lshrrev_b32 v{T0}, 3, v{vL}
    v_and_b32 v{T1}, 7, v{vL}
    v_lshlrev_b32 v{vF3}, 7, v{T1}
    v_lshlrev_b32 v{T2}, 1, v{T0}
    v_and_b32 v{T2}, 4, v{T2}
    v_xor_b32 v{T1}, v{T1}, v{T2}
    v_mul_u32_u24 v{T0}, 3840, v{T0}
    v_lshl_add_u32 v{T0}, v{T1}, 4, v{T0}
    v_add_u32 v{vHW}, s3, v{T0}
    v_add_u32 v{vHW+1}, {8*3840}, v{vHW}
    v_add_u32 v{vHW+2}, {16*3840}, v{vHW}
    v_add_u32 v{vHW+3}, {24*3840}, v{vHW}
    s_lshl_b32 s3, s5, 13
    s_add_u32 s3, s3, {HR}
    v_bfe_u32 v{T0}, v{vL}, 2, 2
    v_lshl_add_u32 v{T1}, v{vH}, 3, v{T0}
    v_lshlrev_b32 v{T1}, 7, v{T1}
    v_and_b32 v{T2}, 3, v{vL}
    v_lshl_add_u32 v{T1}, v{T2}, 3, v{T1}
    v_bfe_u32 v{T2}, v{vL}, 4, 1
    v_lshl_add_u32 v{T1}, v{T2}, 5, v{T1}
    v_add_u32 v{T1}, s3, v{T1}
    v_lshrrev_b32 v{T0}, 1, v{T0}
    v_lshlrev_b32 v{T0}, 6, v{T0}
    v_add_u32 v{vHR}, v{T1}, v{T0}
    v_xor_b32 v{T0}, 64, v{T0}
    v_add_u32 v{vHR+1}, v{T1}, v{T0}
    v_lshlrev_b32 v{vOB}, 4, v{vC}
    v_lshl_add_u32 v{vOB+1}, v{T2}, 9, v{vOB}
    v_lshl_add_u32 v{vOB+1}, v{vH}, 8, v{vOB+1}
    s_cmp_eq_u32 s7, 0
    s_cselect_b32 s3, 0, {FG}
    v_mul_u32_u24 v{T1}, s3, v{vH}
    v_add_u32 v{vF2}, v{vF3}, v{T1}
    """)
    zero(HACC, HACC+64)
    a.I(f's_setpc_b64 {RET}')
    a.L(f'{N}_hsetup2')
    a.I(f"""
    s_sub_u32 s5, s9, 4
    s_mul_i32 s3, s8, 160
    s_lshl_b32 s4, s5, 6
    """)
    for j in range(5):
        a.I(f"""
        v_add_u32 v{T0}, s4, v{vL}
        v_add_u32 v{T0}, {j*256}, v{T0}
        v_mul_u32_u24 v{T1}, 6554, v{T0}
        v_lshrrev_b32 v{T1}, 16, v{T1}
        v_mul_u32_u24 v{T1}, {1280-160}, v{T1}
        v_lshl_add_u32 v{T1}, v{T0}, 4, v{T1}
        v_add_u32 v{VWO+j}, s3, v{T1}
        """)
    a.I(f"""
    s_lshl_b32 s100, s8, 2
    s_add_u32 s100, s100, s5
    s_mul_i32 s3, s100, 5
    v_add_u32 v{T0}, s3, v{vG4}
    v_lshrrev_b32 v{T1}, 2, v{T0}
    v_lshlrev_b32 v{T1}, 10, v{T1}
    v_and_b32 v{T2}, 1, v{T0}
    v_lshl_add_u32 v{T1}, v{T2}, 9, v{T1}
    v_bfe_u32 v{T2}, v{T0}, 1, 1
    v_lshl_add_u32 v{T1}, v{T2}, 3, v{T1}
    v_lshl_add_u32 v{LA}, v{vC}, 4, v{T1}
    s_add_u32 s3, s3, 4
    s_lshr_b32 s4, s3, 2
    s_lshl_b32 s4, s4, 10
    s_and_b32 s5, s3, 1
    s_lshl_b32 s5, s5, 9
    s_add_u32 s4, s4, s5
    s_bfe_u32 s5, s3, 0x10001
    s_lshl_b32 s5, s5, 3
    s_add_u32 s4, s4, s5
    v_add_u32 v{LA+1}, s4, v{vOB}
    s_mul_i32 s3, s100, 20
    v_and_b32 v{T4}, 1, v{vG4}
    v_lshlrev_b32 v{T4}, 9, v{T4}
    v_lshl_add_u32 v{T4}, v{vH}, 3, v{T4}
    """)
    for d in range(2):
        a.I(f"""
        v_add_u32 v{T1}, s3, v{vC}
        v_add_u32 v{T1}, {16*d}, v{T1}
        v_min_u32 v{T1}, 639, v{T1}
        v_lshrrev_b32 v{T2}, 5, v{T1}
        v_lshlrev_b32 v{T2}, 17, v{T2}
        v_and_b32 v{T1}, 31, v{T1}
        v_lshl_add_u32 v{T2}, v{T1}, 4, v{T2}
        v_add_u32 v{LA+2+d}, v{T2}, v{T4}
        """)
    a.I(f"""
    v_lshlrev_b32 v{LA+4}, 2, v{vC}
    v_lshlrev_b32 v{T1}, 2, v{vG4}
    v_sub_u32 v{T1}, v{vC}, v{T1}
    v_mov_b32 v{T3}, 0xff800000
    s_cmp_eq_u32 s7, 0
    s_cselect_b64 s[4:5], 0, -1
    """)
    for k in range(8):
        r, pv = k % 4, k // 4
        a.I(f"""
        v_add_u32 v{T2}, {16*pv - r}, v{T1}
        v_and_b32 v{T2}, 0xfffffff1, v{T2}
        v_cmp_eq_u32 vcc, 0, v{T2}
        v_mov_b32 v{ONES+r}, 0x3f803f80
        s_nop 0
        v_cndmask_b32 v{LB+k}, v{T3}, 0, vcc
        """)
        if pv:
            a.I(f'v_cndmask_b32 v{LB+4+k}, v{T3}, v{LB+k}, s[4:5]')
    a.I(f's_mov_b32 s100, {RA}')
    a.L(f'{N}_gsetup')
    a.I(f"""
    v_and_b32 v{T0}, 1, v{vG4}
    v_lshrrev_b32 v{T2}, 2, v{vC}
    v_mul_u32_u24 v{T2}, 160, v{T2}
    v_and_b32 v{T3}, 3, v{vC}
    v_lshl_add_u32 v{T2}, v{T3}, 3, v{T2}
    v_add_u32 v{T2}, s100, v{T2}
    v_mul_u32_u24 v{T3}, {4*160}, v{T0}
    v_add_u32 v{T3}, v{T3}, v{T2}
    v_mul_u32_u24 v{T0}, {40*160}, v{T0}
    v_add_u32 v{T0}, v{T0}, v{T2}
    v_mul_u32_u24 v{T1}, {20*160}, v{vH}
    v_add_u32 v{vR}, v{T1}, v{T3}
    v_cmp_eq_u32 vcc, 1, v{vH}
    """)
    for h in range(2):
        a.I(f"""
        v_add_u32 v{T1}, {(16+20*h)*160}, v{T0}
        v_add_u32 v{T2}, {(80+8*h)*160}, v{T3}
        v_cndmask_b32 v{vR+1+h}, v{T1}, v{T2}, vcc
        v_add_u32 v{T1}, {(140+8*h)*160}, v{T3}
        v_add_u32 v{T2}, {(96+20*h)*160}, v{T0}
        v_cndmask_b32 v{vR+3+h}, v{T1}, v{T2}, vcc
        """)
    a.I(f"""
    s_and_b32 s3, s9, 1
    s_lshl_b32 s3, s3, 8
    v_lshlrev_b32 v{vA}, 4, v{vC}
    v_lshl_add_u32 v{vA}, v{vG4}, 9, v{vA}
    v_add_u32 v{vA}, s3, v{vA}
    s_bfe_u32 s3, s9, 0x10001
    s_lshl_b32 s4, s7, 1
    s_add_u32 s3, s3, s4
    s_mul_i32 s21, s3, {OAB_PT}
    s_add_u32 s21, s21, {WS_OAB}
    s_setpc_b64 {RET}
    """)
    def waddr(k5, h):
        if k5 == 2: return vR + 1 + h, 0
        if k5 == 4: return vR + 3 + h, 0
        return vR, ({0: 0, 1: 40, 3: 100}[k5] + 8 * h) * 160
    def wread(s, base):
        st, k5 = divmod(s, 5)
        for t in range(5):
            for h in range(2):
                r, o = waddr(k5, h)
                yield f'ds_read_b64_tr_b16 {vr(base+t*4+2*h,2)}, v{r} offset:{(st&1)*25600 + o + t*32}'
    a.L(f'{N}_wpre')
    for s in range(8):
        for i in wread(s, WF + s*20): a.I(i)
    a.I(f's_setpc_b64 {RET}')


    a.L(f'{N}_wpf')
    a.I(f"""
    v_lshlrev_b32 v92, 4, v{vL}
    s_mov_b32 exec_hi, 0xff
    """)
    for r in range(10):
        a.I(f'buffer_load_dwordx4 v[96:99], v92, s[52:55], s15 offen offset:{(r%3)*1280}')
        if r % 3 == 2: a.I('s_add_u32 s15, s15, 3840')
    a.I(f"""
    s_mov_b32 exec_hi, -1
    s_setpc_b64 {RET}
    """)
    a.L(f'{N}_wob')
    a.I(f"""
    s_cmp_ge_u32 s15, s14
    s_cbranch_scc1 {N}_wob9
    s_setprio {OPT['hprio']}
    s_cmp_ge_u32 s15, 5
    s_cbranch_scc1 {N}_wobA
    s_add_u32 s3, s15, s13
    s_cmp_ge_u32 s3, 5
    s_cselect_b32 s4, 5, 0
    s_sub_u32 s3, s3, s4
    s_mul_i32 s4, s3, {128*1280}
    s_mul_i32 s5, s3, 20480
    s_add_u32 s5, s5, {RA}
    s_mov_b32 s3, 0
    s_branch {N}_wob1
    """)
    a.L(f'{N}_wobA')
    a.I(f"""
    s_mov_b32 s44, s24
    s_mov_b32 s45, s25
    s_add_u32 s3, s15, s13
    s_mul_i32 s4, s3, 86
    s_lshr_b32 s4, s4, 8
    s_mul_i32 s4, s4, 3
    s_sub_u32 s3, s3, s4
    s_mul_i32 s4, s3, {128*1280}
    s_mul_i32 s5, s3, 20480
    s_cmp_ge_u32 s15, 8
    s_cselect_b32 s20, 1, 0
    {'s_xor_b32 s20, s20, s8' if OPT['par'] else ''}
    s_and_b32 s20, s20, 1
    s_mul_i32 s20, s20, {320*1280}
    s_add_u32 s4, s4, s20
    s_cmp_ge_u32 s15, 8
    s_cselect_b32 s20, 0, {RB-RA}
    s_add_u32 s5, s5, s20
    s_lshr_b32 s3, s3, 1
    s_lshr_b32 s20, s10, 1
    s_mul_i32 s20, s20, s3
    s_add_u32 s3, s3, s20
    """)
    a.L(f'{N}_wob1')
    a.I('s_add_u32 s5, s5, s12')
    a.I('s_add_u32 s15, s15, 1')
    for j in range(5):
        if j == 2:
            a.I('s_cmp_eq_u32 s3, 2')
            a.I(f's_cbranch_scc1 {N}_wob8')
        if j == 3:
            a.I('s_cmp_eq_u32 s3, 1')
            a.I(f's_cbranch_scc1 {N}_wob8')
        a.I(f's_add_u32 m0, s5, {j*4096}')
        a.I('s_nop 0' if OPT['wsub'] < 0 else f's_waitcnt vmcnt({OPT["wsub"]})')
        a.I(f'buffer_load_dwordx4 v{VWO+j}, s[44:47], s4 offen lds')
    a.L(f'{N}_wob8')
    a.I(f's_setprio {OPT["vprio"]}')
    a.L(f'{N}_wob9')
    a.I(f's_setpc_b64 {RET}')

    a.L(f'{N}_extra')
    worksetup()
    EXX, EXW = 40, 72
    a.I(f'''
    ds_read_b64 {vr(CNT,2)}, v{vSY}
    v_mul_u32_u24 v{T0}, 40, v{vW0}
    v_add_u32 v{vWB_}, v{T0}, v{vW1}
    v_add_u32 v{vWB_}, {EXB}, v{vWB_}
    s_mov_b32 s12, 5120
    s_setprio 3
    s_sub_u32 s11, s9, 4
    s_and_b32 s3, s96, 1
    s_add_u32 s11, s11, s3
    s_lshl_b32 s15, s11, 12
    s_lshl_b32 s3, s7, 1
    s_add_u32 s3, s3, s11
    s_mul_i32 s3, s3, {KVT}
    s_add_u32 s13, s3, {WS_KVF}
    s_cmp_eq_u32 s96, 4
    s_cbranch_scc1 {N}_exG
    s_cmp_ge_u32 s96, 2
    s_cbranch_scc1 {N}_exV
    ''')
    def exloop(orient, gate=False):
        l = lab()
        def addr():
            a.I(f"""
            s_lshl_b32 s3, s60, 14
            s_add_u32 s3, s3, s15
            s_mul_i32 s4, s60, s12
            s_add_u32 s60, s60, 1
            s_cmp_eq_u32 s60, 5
            s_cselect_b32 s60, 0, s60
            s_add_u32 s10, s10, 1
            s_cmp_eq_u32 s10, 6
            s_cselect_b32 s10, 0, s10
            """)
            for k in range(4):
                a.I(f'v_add_u32 v{vCX+k}, s3, v{vXB+k}')
            a.I(f'v_add_u32 v{vCW}, s4, v{vWB_}')
        def reads(ks, tag):
            a.LG(f'ds_read_b128 {vr(EXX+ks*4,4)}, v{vCX+(ks&3)} offset:{(ks>>2)*8192}', tag)
            if gate:
                a.LG(f'ds_read_b128 {vr(EXW+ks*4,4)}, v{vCW} offset:{ks*32}', tag)
            else:
                for h in range(2):
                    a.LG(f'ds_read_b64_tr_b16 {vr(EXW+ks*4+2*h,2)}, v{vCW} offset:{(ks*16+4*h)*40}', tag)
        addr()
        vstamp(16)
        cntwait(l + 'w0', 10 if gate else 's10')
        vstamp(17)
        a.lg = []
        for ks in range(4): reads(ks, ks)
        q0 = list(a.lg)
        a.L(l)
        for u in range(8):
            if u == 4:
                addr()
                a.wait(lg=lambda t: t == 'c')
                cntwait(l + 'w', 's10', first=None)
            reads((u + 4) % 8, u + 4)
            if STAMPS and u == 5: a.I('s_memtime s[100:101]')
            if STAMPS and u == 3: a.I('s_add_u32 m0, s10, 24\nv_writelane_b32 v0, s100, m0')
            if u == 1:
                a.LG(f'ds_read_b64 {vr(CNT,2)}, v{vSY}', 'c')
            a.wait(lg=lambda t: t != 'c' and t <= u)
            d = vr(FACC, 16)
            x, w = vr(EXX + u * 4, 4), vr(EXW + u * 4, 4)
            if orient == 'T':
                a.I(f'{MF32} {d}, {w}, {x}, {d}')
            else:
                a.I(f'{MF32} {d}, {x}, {w}, {d}')
        assert a.lg == [t + 8 for t in q0], a.lg
        a.I(f"""
        s_cmp_lg_u32 s10, 0
        s_cbranch_scc1 {l}
        s_waitcnt lgkmcnt(0)
        s_mov_b64 exec, 1
        ds_add_u32 v{vSY}, v{vOne} offset:{C_F}
        s_mov_b64 exec, -1
        s_nop 7
        s_nop 3
        """)
        vstamp(18)
    exloop('T')
    r = FACC
    a.I(f'''
    v_lshlrev_b32 v{T0}, 4, v{vL}
    v_lshlrev_b32 v{T1}, 3, v{vL}
    v_mov_b32 v{T2}, {f32hex(CSCALE)}
    ''')
    for k in range(6):
        a.I(f'v_pk_mul_f32 {vr(r+2*k,2)}, {vr(r+2*k,2)}, {vr(T2,2)} op_sel_hi:[1,0]')
        cv(r + k, r + 2 * k)
    a.I(f'''
    s_mov_b32 exec_lo, 0
    v_mov_b32 v{r+4}, 0x3f803f80
    v_mov_b32 v{r+5}, 0x3f80
    s_mov_b32 exec_lo, -1
    buffer_store_dwordx4 {vr(r,4)}, v{T0}, {W}, s13 offen sc1
    s_mov_b32 exec_hi, 1
    buffer_store_dwordx2 {vr(r+4,2)}, v{T1}, {W}, s13 offen offset:{KV_K2} sc1
    s_mov_b32 exec_hi, -1
    ''')
    a.L(f'{N}_exflag')
    a.stamp(1)
    getnonce(T2, T4)
    a.I(f'''
    s_lshl_b32 s3, s7, 1
    s_lshr_b32 s4, s96, 1
    s_add_u32 s3, s3, s4
    s_lshl_b32 s3, s3, 7
    s_lshl_b32 s4, s11, 3
    s_add_u32 s3, s3, s4
    s_add_u32 s3, s3, {WS_FLG}
    v_mov_b32 v{T0}, 0
    s_waitcnt vmcnt(0)
    s_mov_b64 exec, 1
    buffer_store_dwordx2 {vr(T2,2)}, v{T0}, {W}, s3 offen sc1
    s_mov_b64 exec, -1
    ''')
    a.stamp(2)
    a.I(f's_branch {N}_hpre2')
    a.L(f'{N}_exV')
    exloop('N')
    a.I(f'''
    v_mul_u32_u24 v{T0}, 336, v{vH}
    v_lshl_add_u32 v{T0}, v{vP}, 4, v{T0}
    v_mov_b32 v{T1}, 0x3f803f80
    v_cmp_eq_u32 vcc, 20, v{vP}
    s_mov_b32 s4, 0x1fffff
    s_mov_b32 s5, 0x1fffff
    ''')
    for k in range(8):
        cv(r + k, r + 2 * k)
    for k in range(8):
        a.I(f'v_cndmask_b32 v{r+k}, v{r+k}, v{T1}, vcc')
    a.I(f'''
    s_mov_b64 exec, s[4:5]
    buffer_store_dwordx4 {vr(r,4)}, v{T0}, {W}, s13 offen offset:{KV_V1} sc1
    buffer_store_dwordx4 {vr(r+4,4)}, v{T0}, {W}, s13 offen offset:{KV_V2} sc1
    s_mov_b64 exec, -1
    ''')
    a.I(f's_branch {N}_exflag')
    a.L(f'{N}_exG')
    a.I(f'''
    v_lshlrev_b32 v{vWB_}, 4, v{vH}
    v_add_u32 v{vWB_}, {GV}, v{vWB_}
    s_setprio 0
    s_mov_b32 s12, 256
    ''')
    exloop('T', True)
    a.I(f'''
    s_lshl_b32 s3, s7, 8
    s_lshl_b32 s4, s11, 7
    s_add_u32 s3, s3, s4
    s_add_u32 s3, s3, {WS_G}
    v_mul_f32 v{T0}, {f32hex(-math.log2(math.e))}, v{FACC}
    v_exp_f32 v{T0}, v{T0}
    v_lshlrev_b32 v{T1}, 2, v{vP}
    v_add_f32 v{T0}, 1.0, v{T0}
    v_rcp_f32 v{T0}, v{T0}
    s_mov_b32 exec_hi, 0
    buffer_store_dword v{T0}, v{T1}, {W}, s3 offen sc1
    s_mov_b32 exec_hi, -1
    ''')
    a.L(f'{N}_hpre2')
    a.I('s_setprio 0')
    a.I(f's_call_b64 {RET}, {N}_hsetup2')
    a.L(f'{N}_hpre')
    PD = OPT['PD']
    HX = 28
    HWf = 60
    srd(a, 48, 38, WS_END)
    srd(a, 44, 28, 2457600)
    a.I(f'''
    s_sub_u32 s10, s9, 4
    s_lshl_b32 s3, s8, 9
    s_lshl_b32 s4, s10, 7
    s_add_u32 s11, s3, s4
    s_lshl_b32 s12, s10, 13
    s_add_u32 s12, s12, {HR}
    ''')
    if not OPT['map2']:
        a.I('s_and_b32 s3, s7, 3\ns_mul_i32 s3, s3, 5\ns_lshr_b32 s13, s3, 1')
    else:
        a.I('s_and_b32 s3, s7, 7\ns_mul_i32 s3, s3, 5\ns_lshr_b32 s13, s3, 2')
    a.I(f'''
    s_mul_i32 s14, s13, {64*3840}
    s_lshl_b32 s13, s13, 13
    s_mov_b32 s19, 0
    s_cmp_ge_u32 s11, 3840
    s_cselect_b32 s46, 0, s46
    ''')
    for k in range(4):
        a.I(f'v_add_u32 v{vCX+k}, s13, v{vXB+k}')
    getnonce(T2, T1)
    def p1check(first):
        a.I(f'''
        s_add_u32 s4, s4, 1
        s_waitcnt vmcnt({first})
        v_cmp_eq_u64 vcc, s[62:63], v[92:93]
        v_cmp_eq_u64 s[56:57], s[62:63], v[94:95]
        s_and_b64 vcc, vcc, s[56:57]
        s_cmp_eq_u64 vcc, -1
        s_cbranch_scc1 {N}_p1g
        ''')
    p1ld = f'buffer_load_dwordx4 v[92:95], v{T4}, {W}, s3 offen sc1'
    def p1rest():
        a.L(f'{N}_p1')
        a.I(p1ld)
        p1check(0)
        a.I(f'''
        s_cmp_lt_u32 s4, {SPIN}
        s_cbranch_scc1 {N}_p1
        ''')
        a.L(f'{N}_p1g')
        a.I(f'''
        v_mov_b32 v{T0}, {SYNC}
        v_mov_b32 v{T1}, 64
        ds_write_b32 v{T0}, v{T1} offset:{C_S1}
        ''')
        if OPT['kvpf']:
            a.I(f'''
            v_lshlrev_b32 v{T4}, 4, v{vL}
            s_mul_i32 s3, s6, {2*KVT}
            s_add_u32 s3, s3, {WS_KVF}
            s_add_u32 s5, s3, 4096
            ''')
            for k in range(4): a.I(f'buffer_load_dwordx4 v[92:95], v{T4}, {W}, s3 offen offset:{k*1024} sc1')
            a.I(f'buffer_load_dwordx4 v[92:95], v{T4}, {W}, s5 offen sc1')
            a.I(f'buffer_load_dwordx4 v[92:95], v{T4}, {W}, s5 offen offset:512 sc1')
        if STAMPS: a.I(f'v_writelane_b32 v0, s4, 25')
        vstamp(23)
        a.L(f'{N}_p1ok')
    if not OPT['p1m']:
        a.I(f'''
        s_cmp_lg_u32 s9, 5
        s_cbranch_scc1 {N}_p1ok
        ''')
        ldswait(C_Q + 4*OPT['p1start'], 4, T0, T1, sleep=1)
    a.I(f'v_lshlrev_b32 v{T4}, 7, v{vL}')
    if not OPT['p1m']:
        a.I(f's_mov_b32 s3, {WS_FLG}\ns_mov_b32 s4, 0')
        vstamp(22)
        p1rest()
    if OPT['hstart'] <= 4: ldswait(C_Q + 4*OPT['hstart'], 4, T0, T1, sleep=1)
    else: ldswait(C_H, 4, T0, T1, sleep=1)
    a.stamp(3)
    if OPT['p1m']:
        a.I(f'''
        s_mov_b32 s3, {WS_FLG}
        s_mov_b32 s4, 0
        s_cmp_lg_u32 s9, 5
        s_cbranch_scc1 {N}_p1a
        {p1ld}
        ''')
        a.L(f'{N}_p1a')
    a.I(f's_setprio {OPT["hprio"]}')
    hadv = [f's_add_u32 s14, s14, {32*3840}', f's_cmp_eq_u32 s14, {640*3840}', 's_cselect_b32 s14, 0, s14',
            's_add_u32 s19, s19, 1', 's_cmp_ge_u32 s19, 20', 's_cselect_b32 s46, 0, s46']
    def hm0(q, e): return f's_add_u32 m0, s12, {q*2048 + e*1024}'
    def hld(q, e): return f'buffer_load_dwordx4 v{vHW+(q&1)*2+e}, s[44:47], s14 offen lds'
    def hxr(q): return [f'ds_read_b128 {vr(HX+(q&1)*8+pt*4,4)}, v{vCX+q} offset:{pt*4096}' for pt in range(2)]
    def hwr(q): return [f'ds_read_b64_tr_b16 {vr(HWf+(q&1)*8+j*4+2*h,2)}, v{vHR+j} offset:{q*2048 + h*512}' for j in range(2) for h in range(2)]
    if OPT['hpf']:
        a.I(f'''
        s_bfe_u32 s5, s7, 0x10002
        s_mul_i32 s5, s5, {320*3840}
        s_and_b32 s20, s7, 3
        s_mul_i32 s20, s20, {16*3840}
        s_add_u32 s5, s5, s20
        s_add_u32 s5, s5, {256*3840}
        buffer_load_dwordx4 v[96:99], v{vHW}, s[44:47], s5 offen
        buffer_load_dwordx4 v[96:99], v{vHW+1}, s[44:47], s5 offen
        ''')
    for q_ in range(4):
        for e in range(2):
            a.I(hm0(q_, e)); a.I('s_nop 0'); a.I(hld(q_, e))
        if q_ & 1:
            for i in hadv: a.I(i)
    if OPT['p1m']:
        a.I(f's_cmp_lg_u32 s9, 5\ns_cbranch_scc1 {N}_p1ok')
        p1check(8 + 2*OPT['hpf'])
        p1rest()
    a.I('s_waitcnt vmcnt(6)')
    for i in hxr(0) + hwr(0): a.I(i)
    a.I(f"""
    s_cmp_ge_u32 s6, 16
    s_cselect_b32 s52, s24, s30
    s_cselect_b32 s53, s25, s31
    s_mov_b32 s54, 819200
    s_mov_b32 s55, 0x20000
    s_and_b32 s3, s6, 15
    s_lshl_b32 s3, s3, 2
    s_add_u32 s3, s3, s10
    s_mul_i32 s15, s3, 12800
    s_lshr_b32 s3, s8, 2
    s_mul_i32 s3, s3, 640
    s_add_u32 s15, s15, s3
    s_mov_b32 s20, 0
    s_cmp_ge_u32 s8, 5
    s_cbranch_scc1 {N}_h1N
    """)
    def h1loop(orient):
        l = lab()
        a.L(l)
        if STAMPS:
            a.I('s_memtime s[96:97]\ns_mov_b32 m0, s20\ns_waitcnt lgkmcnt(0)\nv_writelane_b32 v0, s96, m0')
        if OPT['pf'] and OPT['pf'] <= 10:
            a.I(f's_cmp_lg_u32 s20, {OPT["pf"]-1}')
            a.I(f's_cbranch_scc1 {l}npf')
            a.I(f's_call_b64 {RET}, {N}_wpf')
            a.L(l + 'npf')
        for q in range(4):
            qn = (q + 1) & 3
            a.I('s_waitcnt vmcnt(4) lgkmcnt(0)')
            fl = [hwr(qn), [hm0(q, 0)] + hxr(qn), [hld(q, 0), hm0(q, 1)], [hld(q, 1)]]
            if q & 1: fl[3] += hadv
            if q == 0:
                fl[3] += ['s_add_u32 s13, s13, 8192', 's_cmp_eq_u32 s13, 81920', 's_cselect_b32 s13, 0, s13', 's_add_u32 s20, s20, 1']
            if q == 2:
                fl[3] += [f'v_add_u32 v{vCX+k}, s13, v{vXB+k}' for k in range(4)]
            if q == 3:
                fl[3] += ['s_cmp_lt_u32 s20, 10']
            m = 0
            for pt in range(2):
                for j in range(2):
                    d = vr(HACC + (pt * 2 + j) * 16, 16)
                    x, w = vr(HX + (q&1)*8 + pt*4, 4), vr(HWf + (q&1)*8 + j*4, 4)
                    if OPT['mprio'] != OPT['hprio']: a.I(f's_setprio {OPT["mprio"]}')
                    if orient == 'T':
                        a.I(f'{MF32} {d}, {w}, {x}, {d}')
                    else:
                        a.I(f'{MF32} {d}, {x}, {w}, {d}')
                    if m == 3 and q == 2:
                        for i in fl[m][1:]: a.I(i)
                        fl[m] = fl[m][:1]
                    if OPT['mprio'] != OPT['hprio']: a.I(f's_setprio {OPT["hprio"]}')
                    for i in fl[m]: a.I(i)
                    m += 1
        a.I(f"""
        s_cbranch_scc1 {l}
        s_waitcnt vmcnt(0) lgkmcnt(0)
        s_setprio {OPT['eprio']}
        """)
        arrive(C_H)
        if OPT['pf'] == 11:
            a.I(f's_setprio {OPT["hprio"]}')
            a.I(f's_call_b64 {RET}, {N}_wpf')
            a.I(f's_setprio {OPT["vprio"]}')
        a.I(f"""
        v_lshlrev_b32 v{T0}, 4, v{vL}
        s_mul_i32 s3, s7, {2*OAB_PT}
        s_mul_i32 s4, s8, 5120
        s_add_u32 s3, s3, s4
        v_mov_b64 v[100:101], -1
        v_mov_b64 v[102:103], -1
        s_and_b32 s4, s10, 1
        s_mul_i32 s4, s4, {OAB_PT}
        s_add_u32 s3, s3, s4
        s_lshr_b32 s4, s10, 1
        s_lshl_b32 s4, s4, 11
        s_add_u32 s3, s3, {WS_OAB}
        s_add_u32 s4, s4, s3
        buffer_store_dwordx4 v[100:103], v{T0}, {W}, s4 offen sc1
        buffer_store_dwordx4 v[100:103], v{T0}, {W}, s4 offen offset:1024 sc1
        buffer_store_dwordx4 v[100:103], v{T0}, {W}, s4 offen offset:2048 sc1
        s_add_u32 s4, s4, 40960
        buffer_store_dwordx4 v[100:103], v{T0}, {W}, s4 offen sc1
        buffer_store_dwordx4 v[100:103], v{T0}, {W}, s4 offen offset:1024 sc1
        buffer_store_dwordx4 v[100:103], v{T0}, {W}, s4 offen offset:2048 sc1
        """)
        if STAMPS:
            a.I('s_memtime s[96:97]\ns_mov_b32 m0, s20\ns_waitcnt lgkmcnt(0)\nv_writelane_b32 v0, s96, m0')
    h1loop('T')
    a.I(f'''
    s_lshl_b32 s3, s7, 1
    s_mul_i32 s3, s3, {QKB_PT}
    s_lshl_b32 s4, s11, 5
    s_add_u32 s3, s3, s4
    s_add_u32 s4, s3, {QKB_PT}
    ''')
    for pt in range(2):
        for j in range(2):
            r = HACC + (pt * 2 + j) * 16
            for k in range(8):
                cv(r + k, r + 2 * k)
            for b in range(2):
                a.I(f'buffer_store_dwordx4 {vr(r+4*b,4)}, v{T0}, {W}, s{3+pt} offen offset:{(2*j+b)*1024} sc1')
    a.I(f's_branch {N}_h1done')
    a.L(f'{N}_h1N')
    h1loop('N')
    a.I(f'''
    s_cmp_ge_u32 s11, 3840
    s_cbranch_scc1 {N}_h1done
    s_sub_u32 s3, s11, 2560
    s_lshl_b32 s3, s3, 11
    s_lshl_b32 s4, s7, 12
    s_add_u32 s3, s3, s4
    s_add_u32 s3, s3, {WS_VBT}
    s_add_u32 s4, s3, {VBT_NT}
    ''')
    for pt in range(2):
        for j in range(2):
            r = HACC + (pt * 2 + j) * 16
            for k in range(8):
                cv(r + k, r + 2 * k)
            for b in range(2):
                a.I(f'buffer_store_dwordx4 {vr(r+4*b,4)}, v{T0}, {W}, s{3+j} offen offset:{(2*pt+b)*1024} sc1')
    a.L(f'{N}_h1done')
    a.I(f's_setprio {OPT["vprio"]}')
    a.stamp(4)
    def setflag(word, cw):
        l = lab()
        a.I(f'''
        v_mov_b32 v{T0}, {SYNC}
        v_mov_b32 v{T1}, 1
        s_mov_b64 exec, 1
        ds_add_rtn_u32 v{T1}, v{T0}, v{T1} offset:{cw}
        v_mov_b32 v{T0}, 0
        v_mov_b32 v{T2}, s62
        v_mov_b32 v{T3}, s63
        s_waitcnt lgkmcnt(0)
        v_cmp_eq_u32 vcc, 3, v{T1}
        s_cbranch_vccz {l}
        buffer_store_dwordx2 {vr(T2,2)}, v{T0}, {W}, s23 offen offset:{word*1024} sc1
        ''')
        a.L(l)
        a.I('s_mov_b64 exec, -1')
    def pollflag(soff, va, minb=None, sleep=OPT['psleep']):
        l = lab()
        a.I('s_mov_b32 s19, 0')
        a.L(l)
        if minb is not None:
            a.I(f's_call_b64 {RET}, {N}_wob')
        a.I(f'''
        buffer_load_dwordx2 {vr(T2,2)}, v{va}, {W}, {soff} offen sc1
        s_add_u32 s19, s19, 1
        s_waitcnt vmcnt(0)
        v_cmp_ne_u64 vcc, s[62:63], {vr(T2,2)}
        ''')
        if minb:
            a.I(f's_cmp_lt_u32 s15, {minb}')
            a.I(f's_cbranch_scc1 {l}')
        a.I(f's_cbranch_vccz {l}_ok')
        if sleep: a.I(f's_sleep {sleep}')
        a.I(f'''
        s_cmp_lt_u32 s19, {SPIN}
        s_cbranch_scc1 {l}
        ''')
        a.L(l + '_ok')
    def stream(lim):
        l = lab()
        a.L(l)
        a.I(f'''
        s_call_b64 {RET}, {N}_wob
        s_cmp_lt_u32 s15, {lim}
        s_cbranch_scc1 {l}
        ''')
    def pollshare(soff, va, pw, cw):
        l = lab()
        a.I(f's_cmp_lg_u32 s9, {pw}')
        a.I(f's_cbranch_scc1 {l}')
        pollflag(soff, va)
        arrive(cw)
        a.I(f's_branch {l}_ok')
        a.L(l)
        a.I(f'v_mov_b32 v{T3}, {SYNC}')
        a.I('s_mov_b32 s19, 0')
        a.L(l + '_w')
        a.I(f'''
        ds_read_b32 v{T2}, v{T3} offset:{cw}
        s_add_u32 s19, s19, 1
        s_waitcnt lgkmcnt(0)
        v_readfirstlane_b32 s3, v{T2}
        s_cmp_lg_u32 s3, 0
        s_cbranch_scc1 {l}_ok
        s_call_b64 {RET}, {N}_wob
        s_sleep 1
        s_cmp_lt_u32 s19, {SPIN*8}
        s_cbranch_scc1 {l}_w
        ''')
        a.L(l + '_ok')
    srd(a, 44, 30, 819200)
    LQ, LK, LV, LG = 28, 44, 64, 84
    LS, LP, M, LO, LL = 88, 120, 136, 172, 204
    a.I(f'''
    s_lshl_b32 s12, s10, 10
    s_mul_i32 s22, s7, {FG}
    s_add_u32 s22, s22, {WS_FG}
    s_lshl_b32 s3, s8, 7
    s_add_u32 s23, s22, s3
    s_and_b32 s13, s7, {7 if OPT['map2'] else 3}
    s_cmp_ge_u32 s13, 5
    s_cselect_b32 s3, 5, 0
    s_sub_u32 s13, s13, s3
    s_mov_b32 s14, {OPT['st2']}
    s_mov_b32 s15, 0
    s_lshl_b32 s3, s7, 1
    s_mul_i32 s29, s3, {QKB_PT}
    s_add_u32 s30, s29, {QKB_PT}
    s_add_u32 s31, s29, 40960
    s_add_u32 s32, s30, 40960
    s_sub_u32 s33, s31, {QKB_PT}
    s_lshl_b32 s26, s7, 12
    s_add_u32 s26, s26, {WS_VBT}
    s_sub_u32 s27, s26, 1024
    s_sub_u32 s28, s22, {FG}
    s_cmp_eq_u32 s7, 0
    s_cselect_b32 s33, s31, s33
    s_cselect_b32 s27, s26, s27
    s_cselect_b32 s28, s22, s28
    s_lshl_b32 s18, s7, 8
    s_add_u32 s18, s18, {WS_G}
    ''')
    for u in range(4):
        a.I(f'v_mov_b32 v{LQ+4*u+2}, 0')
        a.I(f'v_mov_b32 v{LQ+4*u+3}, 0')
    a.I('s_waitcnt vmcnt(0)')
    vstamp(19)
    setflag(0, C_2)
    ldswait(C_H, 8, T2, T3)
    vstamp(20)
    stream(OPT['st2'])
    vstamp(21)
    pollshare('s28', vF2, 4, C_S2)
    if STAMPS: a.I('v_writelane_b32 v0, s19, 27')
    a.stamp(5)
    if STAMPS: a.I('v_writelane_b32 v0, s15, 31')
    a.I(f's_setprio {OPT["hprio"]}')
    for u in range(4):
        a.I(f'buffer_load_dwordx2 {vr(LQ+4*u,2)}, v{LA}, {W}, s{29+(u>>1)} offen offset:{256*(u&1)} sc1')
    a.I('s_mov_b64 exec, 0xffff')
    for u in range(4):
        a.I(f'buffer_load_dwordx2 {vr(LQ+4*u+2,2)}, v{LA+1}, {W}, s{29+(u>>1)} offen offset:{256*(u&1)} sc1')
    a.I('s_mov_b64 exec, -1')
    for kt, (so, off) in enumerate([('s33', 256), ('s31', 0), ('s31', 256), ('s32', 0), ('s32', 256)]):
        a.I(f'buffer_load_dwordx2 {vr(LK+4*kt,2)}, v{LA}, {W}, {so} offen offset:{off} sc1')
        a.I(f'buffer_load_dwordx2 {vr(LK+4*kt+2,2)}, v{LA+1}, {W}, {so} offen offset:{off} sc1')
    for d in range(2):
        for kt in range(5):
            so, off = ('s27', 0) if kt == 0 else ('s26', (kt - 1) * 1024)
            a.I(f'buffer_load_dwordx2 {vr(LV+10*d+2*kt,2)}, v{LA+2+d}, {W}, {so} offen offset:{off} sc1')
    for u in range(4):
        a.I(f'buffer_load_dword v{LG+u}, v{LA+4}, {W}, s18 offen offset:{64*u} sc1')
    a.I(f's_setprio {OPT["h2prio"]}')
    a.I(f'''
    s_lshl_b32 s3, s7, 1
    s_mul_i32 s36, s3, {OAB_PT}
    s_mul_i32 s3, s8, 5120
    s_add_u32 s36, s36, s3
    s_add_u32 s36, s36, {WS_OAB + 40960}
    s_lshl_b32 s3, s10, 10
    s_add_u32 s37, s36, s3
    s_add_u32 s38, s37, {OAB_PT}
    s_lshr_b32 s3, s10, 1
    s_lshl_b32 s3, s3, 9
    s_and_b32 s4, s10, 1
    s_lshl_b32 s4, s4, 3
    s_add_u32 s3, s3, s4
    s_add_u32 s40, s36, s3
    s_add_u32 s40, s40, 4096
    s_add_u32 s41, s40, {OAB_PT}
    v_mov_b32 v{T4}, {f32hex(CSCALE)}
    v_mov_b32 v{T5}, {f32hex(-CSCALE)}
    ''')
    a.I(f'''
    s_add_u32 s3, s15, s13
    s_cmp_ge_u32 s3, 5
    s_cselect_b32 s4, 5, 0
    s_sub_u32 s3, s3, s4
    s_mul_i32 s42, s3, {128*1280}
    s_mul_i32 s43, s3, 20480
    s_add_u32 s43, s43, s12
    s_add_u32 s15, s15, {OPT['h2d']}
    s_mov_b32 s14, 5
    ''')
    nd = [0]
    def hd():
        if not OPT['h2d']: return
        j = nd[0]; nd[0] += 1
        a.I(f's_add_u32 m0, s43, {RA + j*4096}')
        a.I(f's_setprio {OPT["hprio"]}')
        a.I(f'buffer_load_dwordx4 v{VWO+j}, s[44:47], s42 offen lds')
        a.I(f's_setprio {OPT["h2prio"]}')
    vstamp(22)
    a.I('s_waitcnt vmcnt(14)')
    vstamp(24)
    for u in range(4):
        bp = LB + 8 if u == 0 else LB + 4
        a.I(f'{MF16} {vr(LS+8*u,4)}, {vr(LK+4*u,4)}, {vr(LQ+4*u,4)}, {vr(bp,4)}')
        a.I(f'{MF16} {vr(LS+8*u+4,4)}, {vr(LK+4*u+4,4)}, {vr(LQ+4*u,4)}, {vr(LB,4)}')
    hd()
    a.I('s_nop 3')
    for u in range(4):
        s = LS + 8 * u
        m = M + 2 * u
        a.I(f'''
        v_max3_f32 v{m}, v{s}, v{s+1}, v{s+2}
        v_max3_f32 v{m}, v{m}, v{s+3}, v{s+4}
        v_max3_f32 v{m}, v{m}, v{s+5}, v{s+6}
        v_max_f32 v{m}, v{m}, v{s+7}
        v_mov_b32 v{m+1}, v{m}
        ''')
    a.I('s_nop 1')
    for u in range(4):
        a.I(f'v_permlane16_swap_b32 v{M+2*u}, v{M+2*u+1}')
    for u in range(4):
        a.I(f'v_max_f32 v{M+2*u}, v{M+2*u}, v{M+2*u+1}')
    for u in range(4):
        a.I(f'v_mov_b32 v{M+2*u+1}, v{M+2*u}')
    a.I('s_nop 1')
    for u in range(4):
        a.I(f'v_permlane32_swap_b32 v{M+2*u}, v{M+2*u+1}')
    for u in range(4):
        a.I(f'v_max_f32 v{M+2*u}, v{M+2*u}, v{M+2*u+1}')
    for u in range(4):
        a.I(f'v_mul_f32 v{M+2*u}, v{T5}, v{M+2*u}')
    for u in range(4):
        s = LS + 8 * u
        for k in range(8):
            a.I(f'v_fma_f32 v{s+k}, v{s+k}, v{T4}, v{M+2*u}')
        for k in range(8):
            ex(s + k)
        if u % 2 == 0: hd()
    a.I('s_nop 0')
    for u in range(4):
        for k in range(4):
            cv(LP + 4 * u + k, LS + 8 * u + 2 * k)
    a.I(f's_waitcnt vmcnt({nd[0]})')
    a.I(f'v_add_u32 v{T2}, {GL}, v{LA+4}')
    for u in range(4):
        a.I(f'{MF16} {vr(LL+4*u,4)}, {vr(ONES,4)}, {vr(LP+4*u,4)}, 0')
        a.I(f'{MF16} {vr(LO+8*u,4)}, {vr(LV+2*u,4)}, {vr(LP+4*u,4)}, 0')
        a.I(f'{MF16} {vr(LO+8*u+4,4)}, {vr(LV+10+2*u,4)}, {vr(LP+4*u,4)}, 0')
        a.I(f'ds_write_b32 v{T2}, v{LG+u} offset:{64*u}')
    a.I('s_nop 3')
    for u in range(4):
        o = LO + 8 * u
        a.I(f'''
        v_rcp_f32 v{T2}, v{LL+4*u}
        v_sub_f32 v{T3}, 1.0, v{LG+u}
        v_mul_f32 v{T2}, v{T2}, v{T3}
        ''')
        for k in range(8):
            a.I(f'v_mul_f32 v{o+k}, v{T2}, v{o+k}')
        p = LS + 4 * (u >> 1) + 2 * (u & 1)
        cv(p, o); cv(p + 1, o + 2)
        cv(o, o + 4); cv(o + 1, o + 6)
        for r in (p, p + 1, o, o + 1): a.I(f'v_min_u32 v{r}, -2, v{r}')
        if u % 2 == 0: hd()
    a.I('s_nop 1')
    for pp in range(2):
        p = LS + 4 * pp
        a.I(f'v_permlane32_swap_b32 v{p}, v{p+2}')
        a.I(f'v_permlane32_swap_b32 v{p+1}, v{p+3}')
        a.I(f'buffer_store_dwordx4 {vr(p,4)}, v{vOB+1}, {W}, s{37+pp} offen sc1')
    a.I('s_mov_b64 exec, 0xffff')
    for u in range(4):
        a.I(f'buffer_store_dwordx2 {vr(LO+8*u,2)}, v{vOB}, {W}, s{40+(u>>1)} offen offset:{256*(u&1)} sc1')
    a.I('s_mov_b64 exec, -1')
    a.stamp(6)
    stream(5)
    dma = [(bi, j) for bi in range(3) for j in range(5 if bi < 2 else 3)]
    dma1 = list(dma)
    a.I('s_mov_b32 s44, s24\ns_mov_b32 s45, s25')
    a.I(f's_setprio {OPT["hprio"]}')
    for _ in range(OPT['pre1']):
        bi, j = dma1.pop(0)
        a.I(f's_add_u32 m0, s12, {RB + bi*20480 + j*4096}')
        a.I(f's_mov_b32 s4, {128*bi*1280}')
        a.I(f's_waitcnt vmcnt({OPT["wsub"]})')
        a.I(f'buffer_load_dwordx4 v{VWO+j}, s[44:47], s4 offen lds')
    a.I(f's_setprio {OPT["vprio"]}')
    a.I('s_waitcnt vmcnt(0)')
    arrive(C_H)
    a.stamp(7)
    HWR = 124
    NR = 6
    AW = OPT['AW']
    a.vm = []; a.lg = []
    def w3(s):
        for n, i in enumerate(wread(s, HWR + (s % NR) * 20)):
            a.LG(i, (s, n))
    def a3(s):
        a.VM(f'buffer_load_dwordx4 {vr(AF+4*s,4)}, v{vA}, {W}, s19 offen offset:{(s%2)*2048} sc1', s)
        if s % 2 == 1:
            a.I('s_add_u32 s19, s19, 4096')
    def check(s, nm):
        r = AF + 4 * s
        a.L(f'{N}_{nm}ck{s}')
        a.I(f"""
        v_max3_u32 v{T0}, v{r}, v{r+1}, v{r+2}
        v_max3_u32 v{T1}, v{r+3}, v{r+4}, v{r+5}
        v_max3_u32 v{T0}, v{T0}, v{r+6}, v{r+7}
        v_max_u32 v{T0}, v{T0}, v{T1}
        v_cmp_eq_u32 vcc, -1, v{T0}
        s_cbranch_vccnz {N}_{nm}rt{s}
        """)
        a.L(f'{N}_{nm}go{s}')
    a.I('s_add_u32 s19, s21, 40960')
    a.I('s_mov_b32 s18, 0')
    a.I(f's_setprio {OPT["hprio"]}')
    for s in range(AW): a3(s)
    a.I(f's_setprio {OPT["h3prio"]}')
    ldswait(C_H, 12, T2, T3)
    vstamp(11)
    if STAMPS: a.I('v_writelane_b32 v0, s15, 30')
    a.I(f'v_mov_b32 v{T4}, {SYNC}\nv_mov_b32 v{T5}, 1')
    for s in range(NR - 1): w3(s)
    DS = OPT['dstart']
    for s in range(20):
        sn = s + NR - 1
        if sn == 10:
            for k in range(5):
                a.I(f'v_add_u32 v{vR+k}, 51200, v{vR+k}')
        if s == DS:
            a.wait(vm=lambda tg: tg < 100)
            for u in range(s + (s & 1), 20, 2): check(u, 'h')
            ldswait(C_M, 4, T2, T3, sleep=0)
            a.lg = []
        if sn < 20: w3(sn)
        if s in (10, 15):
            if s == 15: a.wait(vm=lambda tg: tg <= 1000)
            a.I('s_mov_b64 exec, 1')
            a.LG(f'ds_add_u32 v{T4}, v{T5} offset:{C_M if s == 10 else C_E}', (s + 3, 99))
            a.I('s_mov_b64 exec, -1')
        a.wait(vm=lambda tg: tg <= s + 1 - (s & 1), lg=lambda tg: tg[0] <= s)
        if s % 2 == 0 and s < DS: check(s, 'h')
        for t in range(5):
            d = vr(CACC + 4 * t, 4)
            a.I(f'{MF16} {d}, {vr(HWR+(s%NR)*20+t*4,4)}, {vr(AF+4*s,4)}, {d if s else 0}')
            if t == 0 and s + AW < 20: a3(s + AW)
            if s >= OPT['d1'] and t in (1, 3) and dma1:
                bi, j = dma1.pop(0)
                a.I(f's_add_u32 m0, s12, {RB + bi*20480 + j*4096}')
                a.I(f's_mov_b32 s4, {128*bi*1280}')
                a.I(f's_setprio {OPT["hprio"]}')
                a.VM(f'buffer_load_dwordx4 v{VWO+j}, s[44:47], s4 offen lds', 1000)
                a.I(f's_setprio {OPT["h3prio"]}')
            elif s >= DS and t in (1, 3) and dma:
                bi, j = dma.pop(0)
                a.I(f's_add_u32 m0, s12, {RA + bi*20480 + j*4096}')
                a.I(f's_mov_b32 s4, {(320 + 128*bi)*1280}')
                if (bi, j) == (2, 2):
                    a.I(f's_cmp_ge_u32 s10, 2\ns_cbranch_scc1 {N}_nodma')
                a.I(f's_setprio {OPT["hprio"]}')
                a.VM(f'buffer_load_dwordx4 v{VWO+j}, s[44:47], s4 offen lds', 2000)
                a.I(f's_setprio {OPT["h3prio"]}')
                if (bi, j) == (2, 2):
                    assert s > 15
                    a.L(f'{N}_nodma')
    assert not dma and DS + AW >= 20 and DS > 10
    vstamp(12)
    if STAMPS: a.I('v_writelane_b32 v0, s18, 28')
    for k in range(5):
        a.I(f'v_subrev_u32 v{vR+k}, 51200, v{vR+k}')
    a.I('s_add_u32 s22, s21, 20480')
    a.I('s_waitcnt vmcnt(0)')
    arrive(C_H)
    a.stamp(8)
    a.I('s_setprio 0')
    ldswait(C_H, HDONE, T2, T3)
    vstamp(13)
    a.I(f's_call_b64 {RET}, {N}_wpre')
    vstamp(14)
    ldswait(C_T, 4, T2, T3)

    a.stamp(9)
    a.L(f'{N}_phaseC0')
    CS = [22, 23, 26, 27, 28]
    a.I(f"""
    s_add_u32 s23, s22, 4096
    s_add_u32 s26, s22, 8192
    s_add_u32 s27, s22, 12288
    s_add_u32 s28, s22, 16384
    s_mov_b32 s19, 0
    s_call_b64 {RET}, {N}_cl0
    """)
    a.L(f'{N}_phaseC1')
    a.stamp(10)
    a.vm = []; a.lg = []
    srd(a, 52, 34, 2048 * 1280)
    vPa = 12
    a.I(f'''
    s_and_b32 s5, s9, 3
    s_mul_i32 s3, s5, 6144
    s_add_u32 s3, s3, {EXA}
    v_lshlrev_b32 v{vPa}, 4, v{vL}
    v_add_u32 v{vPa}, s3, v{vPa}
    s_lshl_b32 s3, s5, 2
    s_add_u32 s3, s3, {SYNC + C_P}
    v_mov_b32 v{vPa+1}, s3
    v_mul_u32_u24 v{vPa+2}, 1280, v{vC}
    v_and_b32 v{vPa+4}, 1, v{vG4}
    v_lshl_add_u32 v{vPa+4}, v{vPa+4}, 5, v{vPa+2}
    v_lshl_add_u32 v{vPa+4}, v{vH}, 4, v{vPa+4}
    v_lshl_add_u32 v{vPa+2}, v{vG4}, 3, v{vPa+2}
    s_lshl_b32 s3, s7, 6
    s_lshl_b32 s4, s5, 4
    s_add_u32 s3, s3, s4
    s_mul_i32 s13, s3, 1280
    s_mul_i32 s5, s8, 160
    s_add_u32 s13, s13, s5
    v_mov_b32 v{vPa+3}, 1
    ''')
    a.I('s_waitcnt lgkmcnt(0)')
    for s in range(10):
        if s == 8: a.I('s_waitcnt lgkmcnt(10)')
        if s == 9: a.I('s_waitcnt lgkmcnt(0)')
        if s % 2 == 0:
            r = AF + 4 * s
            a.L(f'{N}_ck{s}')
            a.I(f"""
            s_waitcnt vmcnt({8-s})
            v_max3_u32 v{T0}, v{r}, v{r+1}, v{r+2}
            v_max3_u32 v{T1}, v{r+3}, v{r+4}, v{r+5}
            v_max3_u32 v{T0}, v{T0}, v{r+6}, v{r+7}
            v_max_u32 v{T0}, v{T0}, v{T1}
            v_cmp_eq_u32 vcc, -1, v{T0}
            s_cbranch_vccnz {N}_rt{s}
            """)
            a.L(f'{N}_go{s}')
        for t in range(5):
            d = vr(CACC + 4 * t, 4)
            a.I(f'{MF16} {d}, {vr(WF+(s%8)*20+t*4,4)}, {vr(AF+4*s,4)}, {d}')
        if s in (1, 2):
            for i in wread(7 + s, WF + (s - 1)*20): a.I(i)
    if STAMPS: a.I('v_writelane_b32 v0, s19, 29')
    a.stamp(11)
    a.I(f'''
    s_cmp_ge_u32 s9, 4
    s_cbranch_scc1 {N}_red
    s_nop 3
    ''')
    for t in range(5):
        a.I(f'ds_write_b128 v{vPa}, {vr(CACC+4*t,4)} offset:{t*1024}')
    a.I(f'''
    s_waitcnt lgkmcnt(0)
    ds_write_b32 v{vPa+1}, v{vPa+3}
    s_waitcnt lgkmcnt(0)
    s_branch {N}_fin
    ''')
    a.L(f'{N}_red')
    a.I('s_mov_b32 s4, 0')
    a.L(f'{N}_red1')
    a.I(f'ds_read_b32 v{T0}, v{vPa+1}')
    for t in range(5):
        a.I(f'ds_read_b128 {vr(AF+4*t,4)}, v{vPa} offset:{t*1024}')
    a.I(f'''
    s_add_u32 s4, s4, 1
    s_waitcnt lgkmcnt(5)
    v_readfirstlane_b32 s3, v{T0}
    s_cmp_lg_u32 s3, 0
    s_cbranch_scc1 {N}_red2
    s_cmp_lt_u32 s4, {SPIN*8}
    s_cbranch_scc1 {N}_red1
    ''')
    a.L(f'{N}_red2')
    for t in range(5):
        c, b = CACC + 4 * t, AF + 4 * t
        a.I(f's_waitcnt lgkmcnt({4-t})')
        a.I(f'v_pk_add_f32 {vr(c,2)}, {vr(c,2)}, {vr(b,2)}')
        a.I(f'v_pk_add_f32 {vr(c+2,2)}, {vr(c+2,2)}, {vr(b+2,2)}')
        d = CACC + 8 * (t >> 1) + 2 * (t & 1)
        cv(d, c); cv(d + 1, c + 2)
        if t == 4:
            a.I(f'buffer_store_dwordx2 {vr(d,2)}, v{vPa+2}, s[52:55], s13 offen offset:{t*32}')
        if t in (2, 4):
            d = CACC + 4 * (t - 2)
            a.I(f'v_permlane16_swap_b32 v{d}, v{d+2}')
            a.I(f'v_permlane16_swap_b32 v{d+1}, v{d+3}')
            a.I(f'buffer_store_dwordx4 {vr(d,4)}, v{vPa+4}, s[52:55], s13 offen offset:{(t-2)*32}')
    a.L(f'{N}_fin')
    if STAMPS:
        a.stamp(12)
        a.I('s_waitcnt vmcnt(0)')
        a.stamp(13)
        if OPT['dbg']:
            a.I('s_memrealtime s[94:95]')
            a.I('s_load_dwordx2 s[36:37], s[0:1], 80')
            a.I('s_waitcnt lgkmcnt(0)')
            srd(a, 56, 36, 256)
            a.I(f's_cmp_lg_u32 s2, {OPT["dbg"]-1}')
            a.I(f's_cbranch_scc1 {N}_end')
            a.I(f's_and_b32 s3, s9, 3')
            a.I(f's_cmp_lg_u32 s3, 0')
            a.I(f's_cbranch_scc1 {N}_end')
            a.I('s_mov_b64 exec, 1')
            a.I(f'v_mov_b32 v{T0}, 0')
            a.I('s_lshr_b32 s5, s9, 2')
            a.I('s_mul_i32 s5, s5, 28')
            sel = [2,4,5,8,10,13,15]
            selh = [3,4,5,7,8,10,13]
            a.I('s_sub_u32 s94, s94, s92')
            a.I('s_add_u32 s94, s94, s64')
            for k in range(7):
                a.I(f's_cmp_eq_u32 s9, 0')
                a.I(f's_cselect_b32 s3, s{64+2*sel[k]}, s{64+2*selh[k]}')
                a.I(f's_sub_u32 s3, s3, s64')
                a.I(f'v_mov_b32 v{T1}, s3')
                a.I(f'buffer_store_dword v{T1}, v{T0}, s[56:59], s5 offen offset:{8+4*k}')
            a.I(f's_branch {N}_end')
        a.dump_stamps(14, 48, WS_STAMP, 9, T0, T1)
        a.I(f'''
        v_lshlrev_b32 v{T0}, 2, v{vL}
        s_getreg_b32 s4, hwreg(HW_REG_HW_ID)
        v_writelane_b32 v0, s4, 15
        s_lshl_b32 s3, s2, 3
        s_add_u32 s3, s3, s9
        s_lshl_b32 s3, s3, 7
        s_add_u32 s3, s3, {WS_STAMP + 262144}
        s_mov_b32 exec_hi, 0
        buffer_store_dword v0, v{T0}, {W}, s3 offen
        ''')
    a.L(f'{N}_end')
    a.I('s_endpgm')
    for s in range(0, 10, 2):
        a.L(f'{N}_rt{s}')
        a.I(f"""
        s_add_u32 s19, s19, 1
        s_cmp_gt_u32 s19, {SPIN}
        s_cbranch_scc1 {N}_go{s}
        s_call_b64 {RET}, {N}_cl{s}
        s_branch {N}_ck{s}
        """)
    for s in range(0, 20, 2):
        a.L(f'{N}_hrt{s}')
        a.I(f"""
        s_add_u32 s18, s18, 1
        s_cmp_gt_u32 s18, {SPIN}
        s_cbranch_scc1 {N}_hgo{s}
        s_add_u32 s3, s21, {40960 + s*2048}
        s_add_u32 s4, s3, 4096
        """)
        for u in range(s, min(s + 4, 20)):
            a.I(f'buffer_load_dwordx4 {vr(AF+4*u,4)}, v{vA}, {W}, s{3+(u-s)//2} offen offset:{(u%2)*2048} sc1')
        a.I(f's_waitcnt vmcnt(0)')
        a.I(f's_branch {N}_hck{s}')
    for s in range(10):
        a.L(f'{N}_cl{s}')
        a.I(f'buffer_load_dwordx4 {vr(AF+4*s,4)}, v{vA}, {W}, s{CS[s//2]} offen offset:{(s%2)*2048} sc1')
    a.I(f's_setpc_b64 {RET}')
    a.L(f'{N}_last')
    return a.text()

def build(path):
    hdr = open('gated_mix__grouped_kv_mqa__sliding_local_dilated__prompt.s.ref').read().split('\n')
    head = [l for l in hdr if l.startswith(';') and '@launch' not in l]
    s = '\n'.join(head) + '\n'
    s += f'; @launch grid=(256,1,1) block=(512,1,1) lds={LDS}\n'
    s += '.amdgcn_target "amdgcn-amd-amdhsa--gfx950"\n.text\n'
    s += gen()
    s += '.section .rodata,"a"\n'
    s += kernel_desc(KNAME, 256, 0, 102)
    open(path, 'w').write(s)

if __name__ == '__main__':
    for arg in sys.argv[2:]:
        if arg == 'stamps': STAMPS = True
        elif '=' in arg:
            k, v = arg.split('='); OPT[k] = int(v)
    build(sys.argv[1])
```

```python
import math, sys
from asmlib import *

WS_QKB = 0
QKB_PT = 81920
WS_VBT = 64 * QKB_PT
VBT_NT = 131072
WS_KVF = WS_VBT + 20 * VBT_NT
KVT = 2816
KV_K2, KV_C, KV_V1, KV_V2 = 1024, 1280, 1408, 2080
WS_G = WS_KVF + 64 * KVT
WS_FLG = WS_G + 8192
WS_FG = WS_FLG + 8192
FG = 48 * 128
WS_OAB = WS_FG + 32 * FG
OAB_PT = 81920
WS_STAMP = WS_OAB + 64 * OAB_PT
WS_END = WS_STAMP + 524288
STAMPS = False
CSCALE = math.log2(math.e) / math.sqrt(20.0)
QBSCALE = 1.0
MF16 = 'v_mfma_f32_16x16x32_bf16'
MF32 = 'v_mfma_f32_32x32x16_bf16'
MF32h = 'v_mfma_f32_32x32x8_bf16'
KNAME = 'gated_mix__grouped_kv_mqa__sliding_local_dilated__prompt_kernel'

XT = 0
SLOT = [81920, 102400, 122880]
EXB = 122880
QX = 81920
SYNC = 161792
C_X, C_W, C_Q, C_H, C_N, C_2, C_3, C_F, C_R, C_S2, C_S3 = 0, 8, 16, 36, 40, 48, 52, 56, 60, 64, 68
C_T, C_M, C_P, C_B, C_E, C_S1, C_A, C_QH = 72, 76, 80, 96, 112, 116, 128, 120
GV = 162048
GL = 163328
LDS = 163840
HR = 122880
RA = 0
RB = 102400
EXA = 51200
PART = 51200
SPIN = 200000

OPT = dict(kg=39, swapx=0, hpf=0, jeven=1, peel=1, kvpf=0, lk=4, eprio=1, pre1=0, p1m=1, cl=0, s3b=8, dstart=12, att2=1, gp=6, par=0, par3=0, ffin=1, ct=0, wqpf=0, tlb=0, dbg=0, st2=2, d1=4, h3prio=3, h2prio=3, h2d=1, AW=12, w0early=0, cpf=1, npre=2, hstart=2, wsub=3, psleep=2, PD=1, aprio=2, hprio=0, p1start=2, wstart=5, NB=8, nosc1=0, noatt=0, map2=1, pf=8, mprio=0, p1sleep=2, kvtest=0, vprio=1)

def srd(a, d, base, size):
    a.I(f's_mov_b32 s{d}, s{base}')
    a.I(f's_mov_b32 s{d+1}, s{base+1}')
    a.I(f's_mov_b32 s{d+2}, {size}')
    a.I(f's_mov_b32 s{d+3}, 0x20000')

def gen():
    a = Asm()
    a.stamps = STAMPS
    N = 'F'
    W = 's[48:51]'
    vL, vH, vP = 1, 2, 3
    T0, T1, T2, T3, T4, T5 = 4, 5, 6, 7, 8, 9
    vC, vG4 = 10, 11
    RET = 's[98:99]'
    ex = lambda r: a.I(f'v_exp_f32 v{r}, v{r}')
    cv = lambda d, s: a.I(f'v_cvt_pk_bf16_f32 v{d}, v{s}, v{s+1}')
    def lab():
        a.nlabel += 1
        return f'{N}_l{a.nlabel}'
    def ldswait(word, target, vt, va, sleep=1):
        l = lab()
        a.I(f'v_mov_b32 v{va}, {SYNC}')
        a.I('s_mov_b32 s4, 0')
        a.L(l)
        a.I(f'''
        ds_read_b32 v{vt}, v{va} offset:{word}
        s_add_u32 s4, s4, 1
        s_waitcnt lgkmcnt(0)
        v_readfirstlane_b32 s3, v{vt}
        s_cmp_ge_u32 s3, {target}
        s_cbranch_scc1 {l}_ok
        ''')
        if sleep: a.I(f's_sleep {sleep}')
        a.I(f'''
        s_cmp_lt_u32 s4, {SPIN*8}
        s_cbranch_scc1 {l}
        ''')
        a.L(l + '_ok')
    def arrive(word, va=T0, vd=T1):
        a.I(f'''
        v_mov_b32 v{va}, {SYNC}
        v_mov_b32 v{vd}, 1
        s_mov_b64 exec, 1
        ds_add_u32 v{va}, v{vd} offset:{word}
        s_mov_b64 exec, -1
        ''')

    def zero(r0, r1):
        assert r0 % 2 == 0 and r1 % 2 == 0
        for r in range(r0, r1, 2):
            a.I(f'v_mov_b64 {vr(r,2)}, 0')
    def vstamp(lane):
        if STAMPS:
            a.I(f's_memtime s[100:101]\ns_waitcnt lgkmcnt(0)\nv_writelane_b32 v0, s100, {lane}')
    def getnonce(vt, va):
        l = lab()
        a.I(f'v_mov_b32 v{va}, {SYNC}')
        a.I('s_mov_b32 s4, 0')
        a.L(l)
        a.I(f'''
        ds_read_b64 {vr(vt,2)}, v{va} offset:{C_N}
        s_add_u32 s4, s4, 1
        s_waitcnt lgkmcnt(0)
        v_readfirstlane_b32 s62, v{vt}
        v_readfirstlane_b32 s63, v{vt+1}
        s_cmp_lg_u32 s62, 0
        s_cbranch_scc1 {l}_ok
        s_cmp_lt_u32 s4, {SPIN*8}
        s_cbranch_scc1 {l}
        ''')
        a.L(l + '_ok')
    a.raw(kernel_header(KNAME))
    a.I('s_cmp_ge_u32 s2, 256')
    a.I(f's_cbranch_scc1 {N}_end')
    a.stamp(0)
    a.I('s_load_dwordx16 s[16:31], s[0:1], 0')
    a.I('s_load_dwordx8 s[32:39], s[0:1], 64')
    a.I(f'''
    v_and_b32 v{vL}, 63, v0
    v_lshrrev_b32 v{T0}, 6, v0
    v_lshrrev_b32 v{vH}, 5, v{vL}
    v_readfirstlane_b32 s9, v{T0}
    v_and_b32 v{vP}, 31, v{vL}
    v_and_b32 v{vC}, 15, v{vL}
    v_lshrrev_b32 v{vG4}, 4, v{vL}
    s_and_b32 s3, s2, 7
    s_lshr_b32 s6, s2, 3
    ''')
    if not OPT['map2']:
        a.I(f'''
        s_lshl_b32 s3, s3, 2
        s_lshr_b32 s5, s6, 3
        s_add_u32 s7, s3, s5
        s_and_b32 s8, s6, 7
        s_cmp_ge_u32 s8, 5
        s_cselect_b32 s3, 5, 0
        s_sub_u32 s60, s8, s3
        s_and_b32 s61, s7, 3
        s_lshl_b32 s3, s61, 1
        s_sub_u32 s96, s8, s3
        s_and_b32 s96, s96, 7
        ''')
    else:
        a.I(f'''
        s_lshr_b32 s4, s3, 1
        s_lshl_b32 s4, s4, 3
        s_lshr_b32 s5, s6, 2
        s_add_u32 s7, s4, s5
        {'s_not_b32 s3, s3' if OPT['swapx'] else ''}
        s_and_b32 s3, s3, 1
        s_lshl_b32 s3, s3, 2
        s_and_b32 s60, s6, 3
        s_add_u32 s8, s3, s60
        s_cmp_ge_u32 s5, 5
        s_cselect_b32 s3, 5, 0
        s_sub_u32 s61, s5, s3
        s_sub_u32 s96, s8, s5
        s_and_b32 s96, s96, {3 if OPT['jeven'] else 7}
        ''')
        if OPT['jeven']: a.I('s_and_b32 s3, s8, 4\ns_or_b32 s96, s96, s3')
    vSY, vOne = 22, 23
    vXa, vWa, vEa = 16, 24, 18
    a.I(f"""
    s_and_b32 s10, s9, 1
    s_cmp_ge_u32 s9, 4
    s_cbranch_scc1 {N}_hi
    s_cmp_lt_u32 s9, 2
    s_cbranch_scc1 {N}_lo
    """)
    a.I(f"""
    s_lshl_b32 s3, s7, 6
    s_lshl_b32 s4, s10, 4
    s_add_u32 s3, s3, s4
    v_lshrrev_b32 v{T0}, 3, v{vL}
    v_and_b32 v{T1}, 7, v{vL}
    v_xor_b32 v{T3}, v{vG4}, v{T1}
    v_add_u32 v{T2}, s3, v{T0}
    v_mul_u32_u24 v{T2}, 1280, v{T2}
    v_lshl_add_u32 v{vXa}, v{T3}, 4, v{T2}
    v_xor_b32 v{T3}, 4, v{T3}
    v_lshl_add_u32 v{vXa+1}, v{T3}, 4, v{T2}
    v_add_u32 v{vXa+1}, {8*1280}, v{vXa+1}
    s_lshl_b32 s11, s10, 10
    v_lshlrev_b32 v{vEa}, 4, v{vL}
    s_and_b32 s3, s96, 1
    s_mul_i32 s13, s3, 40960
    s_lshl_b32 s12, s3, 12
    s_lshl_b32 s4, s10, 11
    s_add_u32 s12, s12, s4
    s_lshl_b32 s3, s10, 2
    s_add_u32 s3, s3, {SYNC + C_X}
    v_mov_b32 v{vSY}, s3
    s_waitcnt lgkmcnt(0)
    """)
    srd(a, 40, 16, 2048 * 1280)
    q = []
    def issue(kind, slot=None):
        if kind == 'X':
            a.I(f's_call_b64 {RET}, {N}_xissue'); q.append(4)
        elif kind == 'E':
            a.I(f's_call_b64 {RET}, {N}_eissue'); q.append(7)
        else:
            a.I(f's_mov_b32 s15, {SLOT[slot]}')
            a.I(f's_call_b64 {RET}, {N}_wissue'); q.append(10)
    npub = [0]
    def pub(val=None, nowait=False):
        if val is None:
            q.pop(0)
            npub[0] += 1
            val = npub[0]
        else:
            q.clear()
        a.I(f'v_mov_b32 v{vOne}, {val}')
        if not nowait: a.I(f's_waitcnt vmcnt({sum(q)})')
        a.I(f'ds_write_b32 v{vSY}, v{vOne}')
        vstamp(16 + min(val, 6))
    flip = f"""
    s_xor_b32 s13, s13, 40960
    s_xor_b32 s12, s12, 4096
    """
    vstamp(23)
    a.I('s_barrier')
    vstamp(24)
    a.I(f"""
    s_cmp_ge_u32 s96, 4
    s_cbranch_scc1 {N}_noex
    s_cmp_lt_u32 s96, 2
    s_cselect_b32 s52, s20, s22
    s_cselect_b32 s53, s21, s23
    s_mov_b32 s54, 25600
    s_mov_b32 s55, 0x20000
    """)
    issue('E'); issue('E'); issue('E'); issue('E'); pub(); issue('E'); a.I(flip)
    for _ in range(4):
        pub(); issue('X')
    issue('X')
    a.I(f's_branch {N}_xdone')
    a.L(f'{N}_noex')
    a.I(f"""
    s_cmp_lg_u32 s96, 4
    s_cbranch_scc1 {N}_nog
    """)
    srd(a, 52, 32, 1280)
    a.I(f"""
    s_add_u32 m0, s11, {GV}
    s_cmp_eq_u32 s10, 0
    s_cselect_b32 exec_lo, -1, 0xffff
    s_cselect_b32 exec_hi, -1, 0
    buffer_load_dwordx4 v{vEa}, s[52:55], s11 offen lds
    s_mov_b64 exec, -1
    """)
    a.L(f'{N}_nog')
    for _ in range(5): issue('X')
    a.I(flip)
    for _ in range(5): issue('X')
    pub(5, nowait=True)
    a.L(f'{N}_xdone')
    pub(10)
    a.I(f's_branch {N}_work')
    a.L(f'{N}_hi')
    a.I(f"""
    s_barrier
    s_waitcnt lgkmcnt(0)
    """)
    def wqpf():
        srd(a, 52, 18, 819200)
        a.I(f"""
        s_lshl_b32 s3, s6, 1
        s_add_u32 s3, s3, s10
        s_mul_i32 s15, s3, 12800
        s_lshr_b32 s3, s8, 2
        s_mul_i32 s3, s3, 640
        s_add_u32 s15, s15, s3
        s_call_b64 {RET}, {N}_wpf
        """)
    if OPT['wqpf'] == 1:
        a.I(f's_cmp_lt_u32 s9, 6\ns_cbranch_scc1 {N}_nopf')
        wqpf()
        a.L(f'{N}_nopf')
    a.I(f"""
    {'' if OPT['w0early'] else f's_call_b64 {RET}, {N}_hsetup'}
    s_cmp_ge_u32 s9, 6
    s_cbranch_scc1 {N}_wload
    {f's_call_b64 {RET}, {N}_hsetup' if OPT['w0early'] else ''}
    s_cmp_eq_u32 s96, 4
    s_cbranch_scc1 {N}_extra
    s_cmp_gt_u32 s96, 4
    s_cbranch_scc1 {N}_hpre2
    s_cmp_eq_u32 s9, 5
    s_cbranch_scc1 {N}_hpre2
    s_branch {N}_extra
    """)
    a.L(f'{N}_wload')
    if OPT['wqpf'] == 2: wqpf()
    a.I(f's_mul_i32 s3, s8, 160')
    for n in range(5):
        a.I(f"""
        v_add_u32 v{T0}, {n*64}, v{vL}
        v_mul_u32_u24 v{T1}, 6554, v{T0}
        v_lshrrev_b32 v{T1}, 16, v{T1}
        v_mul_u32_u24 v{T2}, 160, v{T1}
        v_lshlrev_b32 v{T0}, 4, v{T0}
        v_sub_u32 v{T0}, v{T0}, v{T2}
        v_bfe_u32 v{T2}, v{T1}, 1, 2
        v_and_b32 v{T3}, 1, v{T1}
        v_lshl_add_u32 v{T2}, v{T3}, 2, v{T2}
        v_and_b32 v{T1}, 24, v{T1}
        v_add_u32 v{T1}, v{T1}, v{T2}
        v_mul_u32_u24 v{T1}, 1280, v{T1}
        v_add3_u32 v{vWa+n}, v{T1}, v{T0}, s3
        """)
    srd(a, 44, 18, 819200)
    a.I(f"""
    s_lshl_b32 s3, s10, 2
    s_add_u32 s3, s3, {SYNC + C_W}
    v_mov_b32 v{vSY}, s3
    s_mul_i32 s11, s10, {64*1280}
    s_mul_i32 s13, s10, 10240
    """)
    if OPT['w0early']:
        a.I(f's_cmp_lt_u32 s96, 4')
        a.I(f's_cbranch_scc1 {N}_w0a')
        issue('W', 0); q.clear()
        a.L(f'{N}_w0a')
        a.I(f's_call_b64 {RET}, {N}_hsetup')
    a.I(f's_call_b64 {RET}, {N}_hsetup2')
    if OPT['wqpf'] == 3: wqpf()
    vstamp(16)
    npub[0] = 0
    ldswait(C_X, OPT['wstart'], T0, T1, sleep=1)
    if OPT['w0early']:
        a.I(f's_cmp_ge_u32 s96, 4')
        a.I(f's_cbranch_scc1 {N}_w0b')
    issue('W', 0)
    a.L(f'{N}_w0b')
    issue('W', 1)
    pub()
    a.I(f's_cmp_ge_u32 s96, 4')
    a.I(f's_cbranch_scc1 {N}_nof')
    ldswait(C_F, 1, T0, T1, sleep=1)
    a.L(f'{N}_nof')
    issue('W', 2); pub()
    a.I(f"""
    s_cmp_eq_u32 s10, 0
    s_cselect_b32 s3, {SYNC + C_QH}, {SYNC + C_Q}
    v_mov_b32 v{T1}, s3
    """.replace(f's_cselect_b32 s3, {SYNC + C_QH}, {SYNC + C_Q}', f's_cselect_b32 s3, {C_QH - C_Q}, 0\ns_add_u32 s3, s3, {SYNC + C_Q}'))
    for st in (3, 4):
        a.I('s_mov_b32 s4, 0')
        a.L(f'{N}_wq{st}')
        a.I(f"""
        ds_read_b32 v{T0}, v{T1} offset:{4*(st-3)}
        s_add_u32 s4, s4, 1
        s_waitcnt lgkmcnt(0)
        v_readfirstlane_b32 s3, v{T0}
        s_cmp_ge_u32 s3, 4
        s_cbranch_scc1 {N}_wq{st}_ok
        s_cmp_lt_u32 s4, {SPIN*8}
        s_cbranch_scc1 {N}_wq{st}
        """)
        a.L(f'{N}_wq{st}_ok')
        issue('W', st - 3); pub()
    pub()
    a.stamp(1)
    a.I(f's_branch {N}_hpre')
    a.L(f'{N}_eissue')
    a.I(f"""
    s_mul_i32 s14, s60, 5120
    s_add_u32 s4, s14, s11
    s_add_u32 m0, s4, {EXB}
    s_add_u32 s14, s14, 4096
    buffer_load_dwordx4 v{vEa}, s[52:55], s4 offen lds
    buffer_load_dwordx4 v{vEa}, s[52:55], s4 offen offset:2048 lds
    s_add_u32 m0, s14, {EXB}
    s_nop 0
    buffer_load_dwordx4 v{vEa}, s[52:55], s14 offen lds
    """)
    a.L(f'{N}_xissue')
    a.I(f"""
    s_lshl_b32 s14, s60, 8
    s_add_u32 s14, s14, s13
    s_lshl_b32 s15, s60, 14
    s_add_u32 s15, s15, s12
    """)
    for c in range(2):
        for n in range(2):
            a.I(f's_add_u32 m0, s15, {c*8192 + n*1024}')
            a.I(f's_add_u32 s4, s14, {c*128}')
            a.I(f'buffer_load_dwordx4 v{vXa+n}, s[40:43], s4 offen lds')
    a.I(f"""
    s_add_u32 s60, s60, 1
    s_cmp_eq_u32 s60, 5
    s_cselect_b32 s60, 0, s60
    s_setpc_b64 {RET}
    """)
    a.L(f'{N}_wissue')
    a.I(f"""
    s_mul_i32 s14, s61, {128*1280}
    s_add_u32 s14, s14, s11
    s_add_u32 s15, s15, s13
    """)
    for g in range(2):
        for n in range(5):
            a.I(f's_add_u32 m0, s15, {g*5120 + n*1024}')
            a.I('s_nop 0' if (g, n) != (1, 0) else f's_add_u32 s14, s14, {32*1280}')
            a.I(f'buffer_load_dwordx4 v{vWa+n}, s[44:47], s14 offen lds')
    a.I(f"""
    s_add_u32 s61, s61, 1
    s_cmp_eq_u32 s61, 5
    s_cselect_b32 s61, 0, s61
    s_setpc_b64 {RET}
    """)

    a.L(f'{N}_lo')
    vXB = 12
    def xbases(vXB=12):
        a.I(f"""
        v_lshrrev_b32 v{T0}, 1, v{vP}
        v_and_b32 v{T0}, 7, v{T0}
        v_xor_b32 v{T0}, v{T0}, v{vH}
        v_lshlrev_b32 v{T1}, 7, v{vP}
        """)
        for ks in range(4):
            a.I(f'v_xor_b32 v{T2}, {2*ks}, v{T0}')
            a.I(f'v_lshl_add_u32 v{vXB+ks}, v{T2}, 4, v{T1}')
    a.I(f"""
    s_cmp_lg_u32 s9, 0
    s_cbranch_scc1 {N}_notpoll
    v_lshlrev_b32 v{T0}, 2, v{vL}
    v_add_u32 v{T0}, {SYNC}, v{T0}
    v_mov_b32 v{T1}, 0
    ds_write_b32 v{T0}, v{T1}
    s_waitcnt lgkmcnt(0)
    """)
    srd(a, 56, 36, 256)
    a.I(f"""
    s_cmp_lg_u32 s2, 0
    s_cbranch_scc1 {N}_n1
    s_memrealtime s[62:63]
    s_waitcnt lgkmcnt(0)
    s_or_b32 s62, s62, 1
    v_mov_b32 v{T2}, s62
    v_mov_b32 v{T3}, s63
    s_mov_b64 exec, 1
    buffer_store_dwordx2 {vr(T2,2)}, v{T1}, s[56:59], 0 offen sc1
    s_mov_b64 exec, -1
    s_barrier
    s_branch {N}_n2
    """)
    a.L(f'{N}_n1')
    a.I('s_barrier')
    a.I('s_mov_b32 s4, 0')
    a.I('s_sleep 8')
    a.L(f'{N}_n3')
    a.I(f"""
    s_sleep 4
    buffer_load_dwordx2 {vr(T2,2)}, v{T1}, s[56:59], 0 offen sc1
    s_add_u32 s4, s4, 1
    s_waitcnt vmcnt(0)
    v_readfirstlane_b32 s3, v{T2}
    s_cmp_lg_u32 s3, 0
    s_cbranch_scc1 {N}_n2
    s_cmp_lt_u32 s4, {SPIN}
    s_cbranch_scc1 {N}_n3
    """)
    a.L(f'{N}_n2')
    a.I(f"""
    v_mov_b32 v{T0}, {SYNC}
    ds_write_b64 v{T0}, {vr(T2,2)} offset:{C_N}
    """)
    vstamp(22)
    a.I(f's_branch {N}_work')
    a.L(f'{N}_notpoll')
    if OPT['cpf']:
        a.I(f"""
        s_getpc_b64 s[40:41]
        {N}_pc:
        s_sub_u32 s40, s40, {N}_pc-{KNAME}
        s_subb_u32 s41, s41, 0
        s_mov_b32 s42, {N}_last-{KNAME}
        s_mov_b32 s43, 0x20000
        s_lshl_b32 s3, s6, 11
        v_lshlrev_b32 v{T0}, 4, v{vL}
        buffer_load_dwordx4 v[144:147], v{T0}, s[40:43], s3 offen
        buffer_load_dwordx4 v[148:151], v{T0}, s[40:43], s3 offen offset:1024
        """)
    if OPT['tlb']:
        a.I(f"""
        s_mul_i32 s3, s7, {2*QKB_PT}
        s_add_u32 s4, s3, {WS_OAB}
        s_mul_i32 s5, s7, 81920
        s_mul_i32 s10, s8, {VBT_NT*5//2}
        s_add_u32 s10, s10, {WS_VBT}
        s_mov_b32 s11, {WS_KVF}
        s_mov_b32 s12, 0x12c000
        s_mov_b32 s13, 0x250000
        s_waitcnt lgkmcnt(0)
        s_load_dword s97, s[18:19], 0
        s_load_dword s97, s[38:39], s11
        s_load_dword s97, s[18:19], 0xc0000
        s_load_dword s97, s[28:29], 0
        s_load_dword s97, s[28:29], s12
        s_load_dword s97, s[28:29], s13
        s_load_dword s97, s[38:39], s3
        s_load_dword s97, s[38:39], s10
        s_load_dword s97, s[38:39], s4
        s_load_dword s97, s[24:25], 0
        s_load_dword s97, s[24:25], 0xc0000
        s_load_dword s97, s[30:31], 0
        s_load_dword s97, s[30:31], 0xc0000
        s_load_dword s97, s[34:35], s5
        """)
    a.I(f"""
    s_barrier
    """)
    a.L(f'{N}_work')
    vXQ = 90
    xbases(vXQ)
    vW0, vW1 = 106, 107
    vCX = 16
    vWB_, vCW = 20, 21
    FACC = 24
    FX = 56
    FWf = 88
    CNT = 104
    def worksetup():
        a.I(f"""
        v_bfe_u32 v{T0}, v{vL}, 2, 2
        v_lshl_add_u32 v{vW0}, v{vH}, 3, v{T0}
        v_and_b32 v{T1}, 3, v{vL}
        v_bfe_u32 v{T2}, v{vL}, 4, 1
        v_lshl_add_u32 v{T1}, v{T2}, 2, v{T1}
        v_min_u32 v{T1}, 4, v{T1}
        v_lshlrev_b32 v{vW1}, 3, v{T1}
        v_mov_b32 v{vSY}, {SYNC}
        v_mov_b32 v{vOne}, 1
        """)
        zero(FACC, FACC+16)
        a.I('s_waitcnt lgkmcnt(0)')
        srd(a, 48, 38, WS_END)
        a.I(f"""
        s_mov_b32 s5, 0
        s_mov_b32 s10, 0
        """)
    worksetup()
    def cntwait(top, need, first='s_waitcnt lgkmcnt(0)', off=C_X, CNT=CNT):
        if first: a.I(first)
        a.L(top)
        a.I(f"""
        v_readfirstlane_b32 s3, v{CNT}
        v_readfirstlane_b32 s4, v{CNT+1}
        s_min_u32 s3, s3, s4
        s_cmp_ge_u32 s3, {need}
        s_cbranch_scc1 {top}_go
        ds_read_b64 {vr(CNT,2)}, v{vSY} offset:{off}
        s_add_u32 s5, s5, 1
        s_cmp_lt_u32 s5, {SPIN*8}
        s_waitcnt lgkmcnt(0)
        s_cbranch_scc1 {top}
        """)
        a.L(top + '_go')
    vK1a, vK2a, vVa, vG = 12, 13, 14, 15
    Q1, Q2 = 16, 32
    P = 40
    S = [48, 64]
    O = 80
    NB = OPT['NB']
    KVB = 144
    def K1(b): return KVB + 14 * b
    def V1(b): return KVB + 14 * b + 4
    def V2(b): return KVB + 14 * b + 8
    def K2(b): return KVB + 14 * b + 12
    KZ = K1(NB-1); KZ2 = K2(NB-1)
    SC = '' if OPT['nosc1'] else ' sc1'
    srd(a, 44, 38, WS_END)
    QC = 88
    QW = 56
    XR = list(range(240, 256, 4)) + list(range(144, 172, 4)) + list(range(96, 144, 4)) + list(range(172, 240, 4))
    assert len(XR) == 40
    a.I(f"""
    ds_read_b64 {vr(QC,2)}, v{vSY}
    v_bfe_u32 v{T0}, v{vL}, 2, 2
    v_add_u32 v{T0}, v{T0}, v{vW0}
    v_mul_u32_u24 v{T0}, 160, v{T0}
    s_setprio 2
    s_and_b32 s10, s9, 1
    s_lshr_b32 s11, s9, 1
    s_mul_i32 s3, s11, 80
    v_add3_u32 v{vWB_}, v{T0}, v{vW1}, s3
    v_lshlrev_b32 v{vK1a}, 4, v{vL}
    v_lshlrev_b32 v{vK2a}, 3, v{vL}
    v_min_u32 v{vK2a}, 256, v{vK2a}
    v_mul_u32_u24 v{vVa}, 336, v{vH}
    v_lshl_add_u32 v{vVa}, v{vP}, 4, v{vVa}
    v_mov_b32 v{T3}, 0x7fffff00
    v_cmp_gt_u32 vcc, 21, v{vP}
    s_mul_i32 s12, s11, {32*KVT}
    s_add_u32 s12, s12, {WS_KVF}
    v_cndmask_b32 v{vVa}, v{T3}, v{vVa}, vcc
    s_add_u32 s13, s12, {32*KVT}
    s_mul_i32 s14, s6, {KVT}
    s_add_u32 s14, s14, s12
    s_mov_b32 s15, {WS_KVF}
    s_lshl_b32 s3, s9, 12
    s_add_u32 s3, s3, {QX}
    v_add_u32 v{T0}, s3, v{vK1a}
    v_xor_b32 v{T1}, 8192, v{T0}
    s_lshl_b32 s3, s9, 2
    s_add_u32 s3, s3, {SYNC + C_A}
    v_mov_b32 v{T2}, s3
    s_xor_b32 s3, s96, s10
    s_and_b32 s3, s3, 5
    s_cselect_b32 s18, 10, 5
    s_lshl_b32 s19, s10, 12
    v_add_u32 v{vCW}, {SLOT[0]}, v{vWB_}
    s_waitcnt vmcnt(0)
    """)
    assert QX % 16384 == 0 and (SYNC + C_A) % 16 == 0
    zero(FACC+16, FACC+32)
    def qreads(ks, tag):
        b = ks % 4
        for j in range(2):
            for h in range(2):
                a.LG(f'ds_read_b64_tr_b16 {vr(QW+b*8+j*4+2*h,2)}, v{vCW} offset:{(ks*16+h)*160 + 40*j}', tag)
    def loadK(r1, r2, so):
        a.I(f'buffer_load_dwordx4 {vr(r1,4)}, v{vK1a}, {W}, {so} offen{SC}')
        a.I(f'buffer_load_dwordx2 {vr(r2,2)}, v{vK2a}, {W}, {so} offen offset:{KV_K2}{SC}')
    def loadV(b, so):
        a.I(f'buffer_load_dwordx4 {vr(V1(b),4)}, v{vVa}, {W}, {so} offen offset:{KV_V1}{SC}')
        a.I(f'buffer_load_dwordx4 {vr(V2(b),4)}, v{vVa}, {W}, {so} offen offset:{KV_V2}{SC}')
    adv = [f's_add_u32 s14, s14, {KVT}', 's_cmp_eq_u32 s14, s13', 's_cselect_b32 s14, s12, s14']
    def ldtile(b):
        if b == 0: loadK(KZ, KZ2, 's15')
        loadK(K1(b), K2(b), 's14'); loadV(b, 's14')
        for i in adv: a.I(i)
    cntwait(f'{N}_qwx', 's18', CNT=QC)
    vstamp(24)
    for st in range(5):
        a.I(f"""
        s_lshl_b32 s3, s61, 14
        s_add_u32 s3, s3, s19
        s_add_u32 s61, s61, 1
        s_cmp_eq_u32 s61, 5
        s_cselect_b32 s61, 0, s61
        """)
        for k in range(4):
            a.I(f'v_add_u32 v{vCX+k}, s3, v{vXQ+k}')
        for ks in range(8):
            a.I(f'ds_read_b128 {vr(XR[st*8+ks],4)}, v{vCX+(ks&3)} offset:{(ks>>2)*8192}')
    def wwait(top, need, h, first=None):
        if first: a.I(first)
        a.L(top)
        a.I(f"""
        v_readfirstlane_b32 s3, v{QC+h}
        s_cmp_ge_u32 s3, {need}
        s_cbranch_scc1 {top}_go
        ds_read_b32 v{QC+h}, v{vSY} offset:{C_W + 4*h}
        s_add_u32 s5, s5, 1
        s_cmp_lt_u32 s5, {SPIN*8}
        s_waitcnt lgkmcnt(0)
        s_cbranch_scc1 {top}
        """)
        a.L(top + '_go')
    a.I(f'ds_read_b64 {vr(QC,2)}, v{vSY} offset:{C_W}')
    wwait(f'{N}_qw0', 1, 0, 's_waitcnt lgkmcnt(0)')
    vstamp(16)
    a.lg = []
    a.LG(f'ds_read_b32 v{QC+1}, v{vSY} offset:{C_W+4}', 'c')
    for ks in range(3): qreads(ks, ks)
    zl = [V1(NB-1) + 2*k for k in range(4)] + list(range(96, 144, 2))
    for g in range(40):
        st, u = divmod(g, 8)
        if u == 5 and st < 4:
            a.wait(lg=lambda t: t == 'c')
            wwait(f'{N}_qw{st+1}', st + 2, 0)
            a.I(f'v_add_u32 v{vCW}, {SLOT[(st+1)%3]}, v{vWB_}')
        if u == 1:
            a.wait(lg=lambda t: t == 'c')
            wwait(f'{N}_qv{st}', st + 1, 1)
        if u in (3, 7) and st < 4:
            a.LG(f'ds_read_b32 v{QC + u//4}, v{vSY} offset:{C_W + 4*(u//4)}', 'c')
        if g + 3 < 40: qreads((u + 3) % 8, g + 3)
        if u == 4 or (u == 0 and st < 2):
            a.I('s_mov_b64 exec, 1')
            a.LG(f'ds_add_u32 v{vSY}, v{vOne} offset:{(C_Q if u else C_QH) + 4*st}', g + 3.5)
            a.I('s_mov_b64 exec, -1')
        if g == OPT['kg'] - 1:
            a.LG(f'ds_read_b32 v{T3}, v{vSY} offset:{C_S1}', g + 1)
        if g == 38:
            a.LG(f'ds_read_b32 v{T4}, v{vSY} offset:{C_Q + 12}', 50)
        a.wait(lg=lambda t: t != 'c' and t <= g)
        b = g % 4
        for j in range(2):
            d = vr(FACC + j * 16, 16)
            a.I(f'{MF32} {d}, {vr(QW + b*8 + j*4, 4)}, {vr(XR[g], 4)}, {d}')
            if g >= 25 and zl:
                a.I(f'v_mov_b64 {vr(zl.pop(0),2)}, 0')
        if g == OPT['kg']:
            a.I(f'v_cmp_ne_u32 vcc, 0, v{T3}')
            a.I(f's_cbranch_vccz {N}_kv1')
            ldtile(0)
            a.L(f'{N}_kv1')
        if STAMPS and u == 6: a.I('s_memtime s[100:101]')
        if STAMPS and u == 1 and st: a.I(f'v_writelane_b32 v0, s100, {24+st}')
    assert not zl
    a.stamp(2)
    R0 = K1(6)
    zero(88, 96); zero(80, 88)
    a.I(f"""
    v_mov_b32 v{R0}, v{T1}
    v_xor_b32 v{R0+1}, 8, v{T2}
    s_waitcnt lgkmcnt(0)
    v_readfirstlane_b32 s18, v{T4}
    v_mov_b32 v{T4}, {f32hex(CSCALE)}
    s_nop 4
    """)
    for j in range(2):
        r = FACC + 16 * j
        for k in range(6):
            a.I(f'v_pk_mul_f32 {vr(r+2*k,2)}, {vr(r+2*k,2)}, {vr(T4,2)} op_sel_hi:[1,0]')
        for k in range(4):
            cv(Q1 + 4*j + k, r + 2 * k)
        cv(Q2 + 2*j, r + 8); cv(Q2 + 2*j + 1, r + 10)
    a.I(f"""
    s_mov_b32 exec_lo, 0
    v_mov_b64 {vr(Q2,2)}, 0
    v_mov_b64 {vr(Q2+2,2)}, 0
    s_mov_b32 exec_lo, -1
    s_cmp_ge_u32 s18, 4
    s_cbranch_scc1 {N}_q3ok
    """)
    ldswait(C_Q + 12, 4, T4, T5, sleep=0)
    a.L(f'{N}_q3ok')
    for j in range(2):
        a.I(f'ds_write_b128 v{T0}, {vr(Q1+4*j,4)} offset:{j*1024}')
    a.stamp(1)
    if STAMPS: a.I('v_writelane_b32 v0, vcc_lo, 23')
    a.I(f's_cbranch_vccnz {N}_kvok')
    ldswait(C_S1, 1, T4, T5, sleep=0)
    ldtile(0)
    a.L(f'{N}_kvok')
    NPRE = OPT['npre']
    vstamp(18)
    zero(P, P+8)
    a.I(f's_waitcnt vmcnt(4)')
    vstamp(19)
    def zmax(t, s):
        a.I(f'v_max3_f32 v{T5}, v{s}, v{s+1}, v{s+2}')
        for k in range(3, 15, 2):
            a.I(f'v_max3_f32 v{T5}, v{T5}, v{s+k}, v{s+k+1}')
        a.I(f'v_max_f32 v{T5}, v{T5}, v{s+15}')
        a.I('s_mov_b32 exec_lo, 0')
        a.I(f'v_cvt_pk_bf16_f32 v{Q2+2*t}, -v{T5}, 0')
        a.I('s_mov_b32 exec_lo, -1')
    def zqk(t, s):
        a.I(f'{MF32} {vr(s,16)}, {vr(KZ,4)}, {vr(Q1+4*t,4)}, 0')
        a.I(f'{MF32h} {vr(s,16)}, {vr(KZ2,2)}, {vr(Q2+2*t,2)}, {vr(s,16)}')
    zqk(0, S[0]); zqk(1, S[1])
    for b in range(1, NPRE): ldtile(b)
    a.I('s_nop 2')
    zmax(0, S[0])
    a.I(f's_waitcnt vmcnt({4*(NPRE-1)})')
    a.I(f'{MF32} {vr(S[0],16)}, {vr(K1(0),4)}, {vr(Q1,4)}, 0')
    a.I(f'{MF32h} {vr(S[0],16)}, {vr(K2(0),2)}, {vr(Q2,2)}, {vr(S[0],16)}')
    zmax(1, S[1])
    a.I(f"""
    ds_write_b128 v{T0}, {vr(Q2,4)} offset:2048
    ds_write_b32 v{T2}, v{T2}
    """)
    rcv = f"""ds_read_b32 v{R0+2}, v{R0+1}
    ds_read_b128 {vr(Q1+8,4)}, v{R0}
    ds_read_b128 {vr(Q1+12,4)}, v{R0} offset:1024
    ds_read_b128 {vr(Q2+4,4)}, v{R0} offset:2048"""
    def recv():
        a.I('s_mov_b32 s4, 0')
        a.L(f'{N}_qx1')
        a.I(f"""
        s_waitcnt lgkmcnt(0)
        v_readfirstlane_b32 s3, v{R0+2}
        s_add_u32 s4, s4, 1
        s_cmp_lg_u32 s3, 0
        s_cbranch_scc1 {N}_qx2
        {rcv}
        s_cmp_lt_u32 s4, {SPIN*8}
        s_cbranch_scc1 {N}_qx1
        """)
        a.L(f'{N}_qx2')
        arrive(C_H, R0, R0+1)
    assert OPT['peel'] and OPT['att2'] and NPRE <= 4
    PEEL = NB - 1 - NPRE if OPT['peel'] else 0
    for b in range(NPRE, NB - 1 - PEEL):
        loadK(K1(b), K2(b), 's14'); loadV(b, 's14')
        for i in adv: a.I(i)
    a.I('s_nop 3')
    a.I(f's_setprio {OPT["aprio"]}')
    a.I('s_mov_b32 s19, 0')
    a.stamp(4)
    if STAMPS:
        a.I('s_mov_b32 m0, 0')
    vq = [b for b in range(1, NPRE) for _ in range(4)]
    for b in list(range(-PEEL, 0)) + list(range(NB)):
        peeled = b < 0
        if b == 0:
            if PEEL: a.I(f's_branch {N}_ab{PEEL}')
            a.raw('.p2align 6')
            a.L(f'{N}_aloop')
        if peeled: b += PEEL
        else: a.L(f'{N}_ab{b}')
        nb = (b + 1) % NB
        pb = (b - 1) % NB
        W2 = 's[44:47]'
        fill = {(0, 0): f'buffer_load_dwordx4 {vr(K1(pb),4)}, v{vK1a}, {W2}, s14 offen{SC}',
                (0, 2): f'buffer_load_dwordx2 {vr(K2(pb),2)}, v{vK2a}, {W2}, s14 offen offset:{KV_K2}{SC}',
                (1, 0): f'buffer_load_dwordx4 {vr(V1(pb),4)}, v{vVa}, {W2}, s14 offen offset:{KV_V1}{SC}',
                (1, 1): f'buffer_load_dwordx4 {vr(V2(pb),4)}, v{vVa}, {W2}, s14 offen offset:{KV_V2}{SC}',
                (1, 2): adv[0], (2, 0): adv[1], (2, 1): adv[2],
                (2, 2): f's_waitcnt vmcnt({4*(NB-2)})'}
        if OPT['kvtest'] == 1:
            del fill[(0,2)], fill[(1,0)], fill[(1,1)]
            fill[(2,2)] = f's_waitcnt vmcnt({NB-2})'
        if OPT['kvtest'] == 2:
            del fill[(0,0)], fill[(0,2)], fill[(1,0)], fill[(1,1)]
        if b == NB - 1:
            fill[(3, 0)] = 's_add_u32 s19, s19, 1'
            fill[(3, 1)] = f's_cmp_lt_u32 s19, {1 if OPT["noatt"] else 32//NB}'
        if b == 0:
            fill[(3, 0)] = f's_cmp_eq_u32 s19, {32//NB - 1}'
            fill[(3, 1)] = 's_cselect_b32 s46, 0, s46'
        sk = (0, 1)
        if peeled:
            fill = {}
            sk = (3, 2)
            slots = [(t, i) for t in range(4) for i in range(3) if (t, i) != (2, 2)]
            for x in ((NPRE + 2*b) % NB, (NPRE + 2*b + 1) % NB):
                assert x != b and (x != pb or len(slots) <= 6)
                its = [f'buffer_load_dwordx4 {vr(K1(x),4)}, v{vK1a}, {W2}, s14 offen{SC}',
                       f'buffer_load_dwordx2 {vr(K2(x),2)}, v{vK2a}, {W2}, s14 offen offset:{KV_K2}{SC}',
                       f'buffer_load_dwordx4 {vr(V1(x),4)}, v{vVa}, {W2}, s14 offen offset:{KV_V1}{SC}',
                       f'buffer_load_dwordx4 {vr(V2(x),4)}, v{vVa}, {W2}, s14 offen offset:{KV_V2}{SC}\n' + adv[0],
                       adv[1] + '\n' + adv[2]]
                for n, it in enumerate(its):
                    sl = slots.pop(0)
                    if sl == (3, 0):
                        last = max(i for i, y in enumerate(vq) if y == nb)
                        fill[(2, 2)] = f's_waitcnt vmcnt({len(vq) - 1 - last})'
                        vq = vq[last + 1:]
                    fill[sl] = it
                    if n < 4: vq.append(x)
        if STAMPS and b % 4 == 0:
            fill[sk] = 's_memtime s[96:97]'
        if STAMPS and b % 4 == 1:
            fill[sk] = 's_waitcnt lgkmcnt(0)\nv_writelane_b32 v0, s96, m0\ns_add_u32 m0, m0, 1'
        for t in range(4):
            Sc, Sn = S[t & 1], S[1 - (t & 1)]
            tn, tp = (t + 1) & 3, (t - 1) & 3
            kb = b if t < 3 else nb
            vpb = b if t > 0 else pb
            def F(i):
                if (t, i) in fill: a.I(fill[(t, i)])
            if OPT['att2']:
                Pc, Pp = (4, P) if t % 2 == 0 else (P, 4)
                M = [f'{MF32} {vr(Sn,16)}, {vr(K1(kb),4)}, {vr(Q1+4*tn,4)}, 0',
                     f'{MF32} {vr(O+16*tp,16)}, {vr(V1(vpb),4)}, {vr(Pp,4)}, {vr(O+16*tp,16)}',
                     f'{MF32h} {vr(Sn,16)}, {vr(K2(kb),2)}, {vr(Q2+2*tn,2)}, {vr(Sn,16)}',
                     f'{MF32} {vr(O+16*tp,16)}, {vr(V2(vpb),4)}, {vr(Pp+4,4)}, {vr(O+16*tp,16)}']
                pat = {0: 'MeeeMeeeMeeeMe0ce1ce2cececeeccc',
                       1: 'M0eeeM1eeeMeeeM2eeeeeeecccccccc',
                       2: 'M0eeeeM1eeeeMeeeeM2eeeecccccccc',
                       3: 'M0eeeeM1eeeeMcccceeeeM2eeeecccc',
                       4: 'M0eeeM1eeeM2eeeMecececececeeccc',
                       5: 'M0eeeM1eeeMeeeM2cccceeeeeeecccc',
                       6: 'M0eeeM1eeeMccceeM2eeeeeeeeccccc'}[OPT['gp']]
                ne = nc = nm = 0
                for ch in pat:
                    if ch == 'M':
                        a.I(M[nm]); nm += 1
                        if peeled and b == 0 and t == 0 and nm == 4: a.I(rcv)
                    elif ch == 'e': ex(Sc + ne); ne += 1
                    elif ch == 'c':
                        assert 2 * nc + 1 < ne
                        cv(Pc + nc, Sc + 2 * nc); nc += 1
                    else: F(int(ch))
                assert (ne, nc, nm) == (16, 8, 4), (ne, nc, nm)
                if peeled and b == 0 and t == 0: recv()
                continue
            a.I(f'{MF32} {vr(Sn,16)}, {vr(K1(kb),4)}, {vr(Q1+4*tn,4)}, 0'); F(0)
            for k in range(4): ex(Sc + k)
            a.I(f'{MF32} {vr(O+16*tp,16)}, {vr(V2(vpb),4)}, {vr(P+4,4)}, {vr(O+16*tp,16)}'); F(1)
            for k in range(4, 8): ex(Sc + k)
            a.I(f'{MF32h} {vr(Sn,16)}, {vr(K2(kb),2)}, {vr(Q2+2*tn,2)}, {vr(Sn,16)}')
            for k in range(4): cv(P + k, Sc + 2 * k)
            for k in range(8, 12): ex(Sc + k)
            a.I(f'{MF32} {vr(O+16*t,16)}, {vr(V1(b),4)}, {vr(P,4)}, {vr(O+16*t,16)}'); F(2)
            for k in range(12, 16): ex(Sc + k)
            for k in range(4, 8): cv(P + k, Sc + 2 * k)
    a.I(f'''
    s_cbranch_scc1 {N}_aloop
    v_and_b32 v{vC}, 15, v{vL}
    v_lshrrev_b32 v{vG4}, 4, v{vL}
    {f'{MF32} {vr(O+48,16)}, {vr(V1(NB-1),4)}, {vr(P,4)}, {vr(O+48,16)}' if OPT['att2'] else ''}
    {MF32} {vr(O+48,16)}, {vr(V2(NB-1),4)}, {vr(P+4,4)}, {vr(O+48,16)}
    s_setprio 3
    ''')
    a.stamp(5)
    HDONE = 16
    ldswait(C_E, 4, T0, T1)
    a.stamp(6)
    a.I(f'''
    s_lshl_b32 s3, s7, 1
    s_add_u32 s20, s3, s10
    s_xor_b32 s3, s9, 2
    s_mul_i32 s3, s3, 6144
    s_add_u32 s3, s3, {EXA}
    v_add_u32 v{T1}, s3, v{vK1a}
    s_mul_i32 s3, s9, 6144
    s_add_u32 s3, s3, {EXA}
    v_add_u32 v{T2}, s3, v{vK1a}
    s_lshl_b32 s3, s10, 7
    s_add_u32 s3, s3, {GL}
    v_lshlrev_b32 v{T0}, 2, v{vP}
    v_add_u32 v{T0}, s3, v{T0}
    s_lshl_b32 s3, s9, 2
    s_add_u32 s3, s3, {SYNC + C_B}
    v_mov_b32 v{T4}, s3
    v_xor_b32 v{T5}, 8, v{T4}
    ''')
    for t in (2, 3):
        for i in range(3):
            a.I(f'ds_write_b128 v{T1}, {vr(O+16*t+4*i,4)} offset:{(t-2)*3072+i*1024}')
    a.I(f'ds_write_b32 v{T5}, v{T5}')
    a.I(f'ds_read_b32 v{vG}, v{T0}')
    a.I(f'''
    s_mul_i32 s36, s20, {OAB_PT}
    s_mul_i32 s3, s8, 5120
    s_add_u32 s36, s36, s3
    s_add_u32 s36, s36, {WS_OAB}
    s_lshl_b32 s3, s11, 11
    s_add_u32 s37, s36, s3
    s_lshl_b32 s3, s11, 9
    s_add_u32 s40, s36, s3
    s_add_u32 s40, s40, 4096
    s_mov_b32 s42, {f32hex(2.0**100)}
    ''')
    a.I('s_mov_b32 s4, 0')
    a.L(f'{N}_bb1')
    a.I(f'ds_read_b32 v{T0}, v{T4}')
    for k in range(6):
        a.I(f'ds_read_b128 {vr(O+32+4*k,4)}, v{T2} offset:{k*1024}')
    a.I(f'''
    s_add_u32 s4, s4, 1
    s_waitcnt lgkmcnt(6)
    v_readfirstlane_b32 s3, v{T0}
    s_cmp_lg_u32 s3, 0
    s_cbranch_scc1 {N}_bb2
    s_sleep 1
    s_cmp_lt_u32 s4, {SPIN*8}
    s_cbranch_scc1 {N}_bb1
    ''')
    a.L(f'{N}_bb2')
    PKO = O + 32
    a.I(f'v_mov_b64 {vr(T2,2)}, 0')
    for t in range(2):
        a.I(f's_waitcnt lgkmcnt({3-3*t})')
        for r in (8, 0, 2, 4, 6, 10):
            a.I(f'v_pk_add_f32 {vr(O+16*t+r,2)}, {vr(O+16*t+r,2)}, {vr(O+32+12*t+r,2)}')
        if OPT['ffin']:
            a.I(f'v_mov_b32 v{T0+4*t}, v{O+16*t+8}')
            a.I(f'v_mov_b32 v{T1+4*t}, v{O+16*t+8}')
            for r in range(0, 12, 2):
                a.I(f'v_pk_fma_f32 {vr(T2,2)}, {vr(O+16*t+r,2)}, 0, {vr(T2,2)}')
                if r == 2: a.I(f'v_permlane32_swap_b32 v{T0+4*t}, v{T1+4*t}')
                if r == 6: a.I(f'v_rcp_f32 v{T0+4*t}, v{T1+4*t}')
    a.I('s_mov_b32 s41, 0')
    a.I('s_waitcnt vmcnt(0)')
    if OPT['ffin']:
        a.I(f'''
        v_add_f32 v{T2}, v{T2}, v{T3}
        v_mul_f32 v{T0}, v{T0}, v{vG}
        v_add_f32 v{T1}, v{T2}, v{T1}
        v_add_f32 v{T5}, v{T2}, v{T5}
        v_mul_f32 v{T4}, v{T4}, v{vG}
        v_cmp_nlt_f32 vcc, {f32hex(2.0**-60)}, v{T1}
        v_cmp_ngt_f32 s[4:5], s42, v{T1}
        s_or_b64 s[4:5], s[4:5], vcc
        v_cmp_nlt_f32 vcc, {f32hex(2.0**-60)}, v{T5}
        v_cmp_ngt_f32 s[18:19], s42, v{T5}
        s_or_b64 s[4:5], s[4:5], vcc
        s_or_b64 s[4:5], s[4:5], s[18:19]
        s_cbranch_scc1 {N}_fin0
        ''')
        for t in range(2):
            for r in range(0, 12, 2):
                a.I(f'v_pk_mul_f32 {vr(O+16*t+r,2)}, {vr(O+16*t+r,2)}, {vr(T0+4*t,2)} op_sel_hi:[1,0]')
            for k in range(4):
                cv(PKO + 4*t + k, O + 16*t + 2 * k)
            for k in range(4):
                a.I(f'v_min_u32 v{PKO+4*t+k}, -2, v{PKO+4*t+k}')
            a.I(f'buffer_store_dwordx4 {vr(PKO+4*t,4)}, v{vK1a}, {W}, s37 offen offset:{1024*t} sc1')
            cv(PKO + 8 + 2*t, O + 16*t + 8); cv(PKO + 9 + 2*t, O + 16*t + 10)
        for k in range(8, 12):
            a.I(f'v_min_u32 v{PKO+k}, -2, v{PKO+k}')
        a.I(f's_branch {N}_fin2')
    a.L(f'{N}_fin0')
    a.I('s_mov_b32 s43, 0')
    a.L(f'{N}_final')
    a.I(f'''
    v_mov_b32 v{T0}, v{O+8}
    v_mov_b32 v{T1}, v{O+8}
    v_mov_b32 v{T2}, 0
    v_mov_b32 v{T3}, 0
    v_permlane32_swap_b32 v{T0}, v{T1}
    ''')
    for r in range(12):
        a.I(f'v_fma_f32 v{T2}, v{O+r}, v{T3}, v{T2}')
    a.I(f'''
    v_add_f32 v{T2}, v{T2}, v{T1}
    v_cmp_nlt_f32 vcc, {f32hex(2.0**-60)}, v{T2}
    v_cmp_ngt_f32 s[4:5], s42, v{T2}
    s_or_b64 s[4:5], s[4:5], vcc
    s_cmp_eq_u64 s[4:5], 0
    s_cbranch_scc1 {N}_norm
    s_cmp_lg_u32 s43, 0
    s_cbranch_scc0 {N}_slow
    ''')
    a.L(f'{N}_norm')
    a.I(f'''
    v_rcp_f32 v{T1}, v{T1}
    s_nop 0
    v_mul_f32 v{T1}, v{T1}, v{vG}
    ''')
    for r in range(12):
        a.I(f'v_mul_f32 v{O+r}, v{T1}, v{O+r}')
    a.I(f's_cmp_lg_u32 s41, 0')
    a.I(f's_cbranch_scc1 {N}_fin1')
    for k in range(4):
        cv(PKO + k, O + 2 * k)
    cv(PKO + 8, O + 8); cv(PKO + 9, O + 10)
    for k in (0, 1, 2, 3, 8, 9): a.I(f'v_min_u32 v{PKO+k}, -2, v{PKO+k}')
    a.I(f'buffer_store_dwordx4 {vr(PKO,4)}, v{vK1a}, {W}, s37 offen sc1')
    for r in range(12):
        a.I(f'v_mov_b32 v{O+r}, v{O+16+r}')
    for r in range(4):
        a.I(f'v_mov_b32 v{Q1+r}, v{Q1+4+r}')
    for r in range(2):
        a.I(f'v_mov_b32 v{Q2+r}, v{Q2+2+r}')
    a.I('s_mov_b32 s41, 1')
    a.I(f's_branch {N}_fin0')
    a.L(f'{N}_fin1')
    for k in range(4):
        cv(PKO + 4 + k, O + 2 * k)
    cv(PKO + 10, O + 8); cv(PKO + 11, O + 10)
    for k in (4, 5, 6, 7, 10, 11): a.I(f'v_min_u32 v{PKO+k}, -2, v{PKO+k}')
    a.I(f'buffer_store_dwordx4 {vr(PKO+4,4)}, v{vK1a}, {W}, s37 offen offset:1024 sc1')
    a.L(f'{N}_fin2')
    a.I(f'''
    s_mov_b32 exec_hi, 0
    buffer_store_dwordx4 {vr(PKO+8,4)}, v{vK1a}, {W}, s40 offen sc1
    s_mov_b32 exec_hi, -1
    ''')
    a.stamp(7)
    vR = 249
    vA = 254
    CACC = 24
    AF = 44
    WF = 84
    if OPT['ct'] == 1: arrive(C_T, T4, T5)
    a.I(f'''
    s_mov_b32 s100, {RB}
    s_call_b64 {RET}, {N}_gsetup
    s_and_b32 s3, s8, {OPT['par']}
    s_mul_i32 s3, s3, 20480
    s_add_u32 s22, s21, s3
    ''')
    zero(CACC, CACC+20)
    a.stamp(8)
    if OPT['cl']: a.I(f"""
    s_add_u32 s23, s22, 4096
    s_add_u32 s26, s22, 8192
    s_add_u32 s27, s22, 12288
    s_add_u32 s28, s22, 16384
    s_mov_b32 s19, 0
    s_call_b64 {RET}, {N}_cl0
    """)
    a.I(f's_call_b64 {RET}, {N}_wpre')
    if OPT['ct'] == 0: arrive(C_T, T4, T5)
    a.stamp(9)
    a.I(f's_branch {N}_phaseC{OPT["cl"]}')

    a.L(f'{N}_slow')
    a.I(f'''
    s_mov_b32 s43, 1
    s_mov_b32 exec_lo, 0
    v_mov_b32 v{Q2}, 0
    v_mov_b32 v{Q2+1}, 0
    s_mov_b32 exec_lo, -1
    v_mov_b32 v{T4}, 0xff800000
    s_mov_b32 s14, {WS_KVF}
    ''')
    a.L(f'{N}_sl1')
    loadK(K1(0), K2(0), 's14')
    a.I(f'''
    s_waitcnt vmcnt(0)
    {MF32} {vr(S[0],16)}, {vr(K1(0),4)}, {vr(Q1,4)}, 0
    {MF32h} {vr(S[0],16)}, {vr(K2(0),2)}, {vr(Q2,2)}, {vr(S[0],16)}
    s_nop 7
    s_nop 7
    ''')
    for k in range(0, 16, 2):
        a.I(f'v_max3_f32 v{T4}, v{T4}, v{S[0]+k}, v{S[0]+k+1}')
    a.I(f'''
    s_add_u32 s14, s14, {KVT}
    s_cmp_lt_u32 s14, {WS_KVF+64*KVT}
    s_cbranch_scc1 {N}_sl1
    v_mov_b32 v{T5}, v{T4}
    s_nop 1
    v_permlane32_swap_b32 v{T4}, v{T5}
    s_nop 1
    v_max_f32 v{T4}, v{T4}, v{T5}
    v_sub_f32 v{T4}, 0, v{T4}
    v_and_b32 v{T0}, 0xffff0000, v{T4}
    v_sub_f32 v{T4}, v{T4}, v{T0}
    v_and_b32 v{T1}, 0xffff0000, v{T4}
    v_sub_f32 v{T4}, v{T4}, v{T1}
    s_mov_b32 exec_lo, 0
    v_lshrrev_b32 v{T0}, 16, v{T0}
    v_or_b32 v{Q2}, v{T0}, v{T1}
    v_lshrrev_b32 v{Q2+1}, 16, v{T4}
    s_mov_b32 exec_lo, -1
    s_mov_b32 s14, {WS_KVF}
    ''')
    for r in range(16):
        a.I(f'v_mov_b32 v{O+r}, 0')
    a.L(f'{N}_sl2')
    loadK(K1(0), K2(0), 's14'); loadV(0, 's14')
    a.I(f'''
    s_waitcnt vmcnt(0)
    {MF32} {vr(S[0],16)}, {vr(K1(0),4)}, {vr(Q1,4)}, 0
    {MF32h} {vr(S[0],16)}, {vr(K2(0),2)}, {vr(Q2,2)}, {vr(S[0],16)}
    s_nop 7
    s_nop 7
    ''')
    for k in range(16): ex(S[0] + k)
    a.I('s_nop 0')
    for k in range(8): cv(P + k, S[0] + 2 * k)
    a.I(f'''
    s_nop 1
    {MF32} {vr(O,16)}, {vr(V1(0),4)}, {vr(P,4)}, {vr(O,16)}
    {MF32} {vr(O,16)}, {vr(V2(0),4)}, {vr(P+4,4)}, {vr(O,16)}
    s_add_u32 s14, s14, {KVT}
    s_cmp_lt_u32 s14, {WS_KVF+64*KVT}
    s_cbranch_scc1 {N}_sl2
    s_nop 7
    s_nop 7
    s_branch {N}_final
    ''')

    HACC = 172
    vHW = 236
    vHR = 240
    vF2, vF3 = 242, 243
    VWO = 244
    LA, LB, ONES, vOB = 148, 156, 168, 153
    a.L(f'{N}_hsetup')
    xbases()
    a.I(f"""
    s_sub_u32 s5, s9, 4
    s_lshl_b32 s3, s8, 9
    s_lshl_b32 s4, s5, 7
    s_add_u32 s3, s3, s4
    v_lshrrev_b32 v{T0}, 3, v{vL}
    v_and_b32 v{T1}, 7, v{vL}
    v_lshlrev_b32 v{vF3}, 7, v{T1}
    v_lshlrev_b32 v{T2}, 1, v{T0}
    v_and_b32 v{T2}, 4, v{T2}
    v_xor_b32 v{T1}, v{T1}, v{T2}
    v_mul_u32_u24 v{T0}, 3840, v{T0}
    v_lshl_add_u32 v{T0}, v{T1}, 4, v{T0}
    v_add_u32 v{vHW}, s3, v{T0}
    v_add_u32 v{vHW+1}, {8*3840}, v{vHW}
    v_add_u32 v{vHW+2}, {16*3840}, v{vHW}
    v_add_u32 v{vHW+3}, {24*3840}, v{vHW}
    s_lshl_b32 s3, s5, 13
    s_add_u32 s3, s3, {HR}
    v_bfe_u32 v{T0}, v{vL}, 2, 2
    v_lshl_add_u32 v{T1}, v{vH}, 3, v{T0}
    v_lshlrev_b32 v{T1}, 7, v{T1}
    v_and_b32 v{T2}, 3, v{vL}
    v_lshl_add_u32 v{T1}, v{T2}, 3, v{T1}
    v_bfe_u32 v{T2}, v{vL}, 4, 1
    v_lshl_add_u32 v{T1}, v{T2}, 5, v{T1}
    v_add_u32 v{T1}, s3, v{T1}
    v_lshrrev_b32 v{T0}, 1, v{T0}
    v_lshlrev_b32 v{T0}, 6, v{T0}
    v_add_u32 v{vHR}, v{T1}, v{T0}
    v_xor_b32 v{T0}, 64, v{T0}
    v_add_u32 v{vHR+1}, v{T1}, v{T0}
    v_lshlrev_b32 v{vOB}, 4, v{vC}
    v_lshl_add_u32 v{vOB+1}, v{T2}, 9, v{vOB}
    v_lshl_add_u32 v{vOB+1}, v{vH}, 8, v{vOB+1}
    s_cmp_eq_u32 s7, 0
    s_cselect_b32 s3, 0, {FG}
    v_mul_u32_u24 v{T1}, s3, v{vH}
    v_add_u32 v{vF2}, v{vF3}, v{T1}
    """)
    zero(HACC, HACC+64)
    a.I(f's_setpc_b64 {RET}')
    a.L(f'{N}_hsetup2')
    a.I(f"""
    s_sub_u32 s5, s9, 4
    s_mul_i32 s3, s8, 160
    s_lshl_b32 s4, s5, 6
    """)
    for j in range(5):
        a.I(f"""
        v_add_u32 v{T0}, s4, v{vL}
        v_add_u32 v{T0}, {j*256}, v{T0}
        v_mul_u32_u24 v{T1}, 6554, v{T0}
        v_lshrrev_b32 v{T1}, 16, v{T1}
        v_mul_u32_u24 v{T1}, {1280-160}, v{T1}
        v_lshl_add_u32 v{T1}, v{T0}, 4, v{T1}
        v_add_u32 v{VWO+j}, s3, v{T1}
        """)
    a.I(f"""
    s_lshl_b32 s100, s8, 2
    s_add_u32 s100, s100, s5
    s_mul_i32 s3, s100, 5
    v_add_u32 v{T0}, s3, v{vG4}
    v_lshrrev_b32 v{T1}, 2, v{T0}
    v_lshlrev_b32 v{T1}, 10, v{T1}
    v_and_b32 v{T2}, 1, v{T0}
    v_lshl_add_u32 v{T1}, v{T2}, 9, v{T1}
    v_bfe_u32 v{T2}, v{T0}, 1, 1
    v_lshl_add_u32 v{T1}, v{T2}, 3, v{T1}
    v_lshl_add_u32 v{LA}, v{vC}, 4, v{T1}
    s_add_u32 s3, s3, 4
    s_lshr_b32 s4, s3, 2
    s_lshl_b32 s4, s4, 10
    s_and_b32 s5, s3, 1
    s_lshl_b32 s5, s5, 9
    s_add_u32 s4, s4, s5
    s_bfe_u32 s5, s3, 0x10001
    s_lshl_b32 s5, s5, 3
    s_add_u32 s4, s4, s5
    v_add_u32 v{LA+1}, s4, v{vOB}
    s_mul_i32 s3, s100, 20
    v_and_b32 v{T4}, 1, v{vG4}
    v_lshlrev_b32 v{T4}, 9, v{T4}
    v_lshl_add_u32 v{T4}, v{vH}, 3, v{T4}
    """)
    for d in range(2):
        a.I(f"""
        v_add_u32 v{T1}, s3, v{vC}
        v_add_u32 v{T1}, {16*d}, v{T1}
        v_min_u32 v{T1}, 639, v{T1}
        v_lshrrev_b32 v{T2}, 5, v{T1}
        v_lshlrev_b32 v{T2}, 17, v{T2}
        v_and_b32 v{T1}, 31, v{T1}
        v_lshl_add_u32 v{T2}, v{T1}, 4, v{T2}
        v_add_u32 v{LA+2+d}, v{T2}, v{T4}
        """)
    a.I(f"""
    v_lshlrev_b32 v{LA+4}, 2, v{vC}
    v_lshlrev_b32 v{T1}, 2, v{vG4}
    v_sub_u32 v{T1}, v{vC}, v{T1}
    v_mov_b32 v{T3}, 0xff800000
    s_cmp_eq_u32 s7, 0
    s_cselect_b64 s[4:5], 0, -1
    """)
    for k in range(8):
        r, pv = k % 4, k // 4
        a.I(f"""
        v_add_u32 v{T2}, {16*pv - r}, v{T1}
        v_and_b32 v{T2}, 0xfffffff1, v{T2}
        v_cmp_eq_u32 vcc, 0, v{T2}
        v_mov_b32 v{ONES+r}, 0x3f803f80
        s_nop 0
        v_cndmask_b32 v{LB+k}, v{T3}, 0, vcc
        """)
        if pv:
            a.I(f'v_cndmask_b32 v{LB+4+k}, v{T3}, v{LB+k}, s[4:5]')
    a.I(f's_mov_b32 s100, {RA}')
    a.L(f'{N}_gsetup')
    a.I(f"""
    v_and_b32 v{T0}, 1, v{vG4}
    v_lshrrev_b32 v{T2}, 2, v{vC}
    v_mul_u32_u24 v{T2}, 160, v{T2}
    v_and_b32 v{T3}, 3, v{vC}
    v_lshl_add_u32 v{T2}, v{T3}, 3, v{T2}
    v_add_u32 v{T2}, s100, v{T2}
    v_mul_u32_u24 v{T3}, {4*160}, v{T0}
    v_add_u32 v{T3}, v{T3}, v{T2}
    v_mul_u32_u24 v{T0}, {40*160}, v{T0}
    v_add_u32 v{T0}, v{T0}, v{T2}
    v_mul_u32_u24 v{T1}, {20*160}, v{vH}
    v_add_u32 v{vR}, v{T1}, v{T3}
    v_cmp_eq_u32 vcc, 1, v{vH}
    """)
    for h in range(2):
        a.I(f"""
        v_add_u32 v{T1}, {(16+20*h)*160}, v{T0}
        v_add_u32 v{T2}, {(80+8*h)*160}, v{T3}
        v_cndmask_b32 v{vR+1+h}, v{T1}, v{T2}, vcc
        v_add_u32 v{T1}, {(140+8*h)*160}, v{T3}
        v_add_u32 v{T2}, {(96+20*h)*160}, v{T0}
        v_cndmask_b32 v{vR+3+h}, v{T1}, v{T2}, vcc
        """)
    a.I(f"""
    s_and_b32 s3, s9, 1
    s_lshl_b32 s3, s3, 8
    v_lshlrev_b32 v{vA}, 4, v{vC}
    v_lshl_add_u32 v{vA}, v{vG4}, 9, v{vA}
    v_add_u32 v{vA}, s3, v{vA}
    s_bfe_u32 s3, s9, 0x10001
    s_lshl_b32 s4, s7, 1
    s_add_u32 s3, s3, s4
    s_mul_i32 s21, s3, {OAB_PT}
    s_add_u32 s21, s21, {WS_OAB}
    s_setpc_b64 {RET}
    """)
    def waddr(k5, h):
        if k5 == 2: return vR + 1 + h, 0
        if k5 == 4: return vR + 3 + h, 0
        return vR, ({0: 0, 1: 40, 3: 100}[k5] + 8 * h) * 160
    def wread(s, base):
        st, k5 = divmod(s, 5)
        for t in range(5):
            for h in range(2):
                r, o = waddr(k5, h)
                yield f'ds_read_b64_tr_b16 {vr(base+t*4+2*h,2)}, v{r} offset:{(st&1)*25600 + o + t*32}'
    a.L(f'{N}_wpre')
    for s in range(8):
        for i in wread(s, WF + s*20): a.I(i)
    a.I(f's_setpc_b64 {RET}')


    a.L(f'{N}_wpf')
    a.I(f"""
    v_lshlrev_b32 v92, 4, v{vL}
    s_mov_b32 exec_hi, 0xff
    """)
    for r in range(10):
        a.I(f'buffer_load_dwordx4 v[96:99], v92, s[52:55], s15 offen offset:{(r%3)*1280}')
        if r % 3 == 2: a.I('s_add_u32 s15, s15, 3840')
    a.I(f"""
    s_mov_b32 exec_hi, -1
    s_setpc_b64 {RET}
    """)
    a.L(f'{N}_wob')
    a.I(f"""
    s_cmp_ge_u32 s15, s14
    s_cbranch_scc1 {N}_wob9
    s_setprio {OPT['hprio']}
    s_cmp_ge_u32 s15, 5
    s_cbranch_scc1 {N}_wobA
    s_add_u32 s3, s15, s13
    s_cmp_ge_u32 s3, 5
    s_cselect_b32 s4, 5, 0
    s_sub_u32 s3, s3, s4
    s_mul_i32 s4, s3, {128*1280}
    s_mul_i32 s5, s3, 20480
    s_add_u32 s5, s5, {RA}
    s_mov_b32 s3, 0
    s_branch {N}_wob1
    """)
    a.L(f'{N}_wobA')
    a.I(f"""
    s_mov_b32 s44, s24
    s_mov_b32 s45, s25
    s_add_u32 s3, s15, s13
    s_mul_i32 s4, s3, 86
    s_lshr_b32 s4, s4, 8
    s_mul_i32 s4, s4, 3
    s_sub_u32 s3, s3, s4
    s_mul_i32 s4, s3, {128*1280}
    s_mul_i32 s5, s3, 20480
    s_cmp_ge_u32 s15, 8
    s_cselect_b32 s20, 1, 0
    {'s_xor_b32 s20, s20, s8' if OPT['par'] else ''}
    s_and_b32 s20, s20, 1
    s_mul_i32 s20, s20, {320*1280}
    s_add_u32 s4, s4, s20
    s_cmp_ge_u32 s15, 8
    s_cselect_b32 s20, 0, {RB-RA}
    s_add_u32 s5, s5, s20
    s_lshr_b32 s3, s3, 1
    s_lshr_b32 s20, s10, 1
    s_mul_i32 s20, s20, s3
    s_add_u32 s3, s3, s20
    """)
    a.L(f'{N}_wob1')
    a.I('s_add_u32 s5, s5, s12')
    a.I('s_add_u32 s15, s15, 1')
    for j in range(5):
        if j == 2:
            a.I('s_cmp_eq_u32 s3, 2')
            a.I(f's_cbranch_scc1 {N}_wob8')
        if j == 3:
            a.I('s_cmp_eq_u32 s3, 1')
            a.I(f's_cbranch_scc1 {N}_wob8')
        a.I(f's_add_u32 m0, s5, {j*4096}')
        a.I('s_nop 0' if OPT['wsub'] < 0 else f's_waitcnt vmcnt({OPT["wsub"]})')
        a.I(f'buffer_load_dwordx4 v{VWO+j}, s[44:47], s4 offen lds')
    a.L(f'{N}_wob8')
    a.I(f's_setprio {OPT["vprio"]}')
    a.L(f'{N}_wob9')
    a.I(f's_setpc_b64 {RET}')

    a.L(f'{N}_extra')
    worksetup()
    EXX, EXW = 40, 72
    a.I(f'''
    ds_read_b64 {vr(CNT,2)}, v{vSY}
    v_mul_u32_u24 v{T0}, 40, v{vW0}
    v_add_u32 v{vWB_}, v{T0}, v{vW1}
    v_add_u32 v{vWB_}, {EXB}, v{vWB_}
    s_mov_b32 s12, 5120
    s_setprio 3
    s_sub_u32 s11, s9, 4
    s_and_b32 s3, s96, 1
    s_add_u32 s11, s11, s3
    s_lshl_b32 s15, s11, 12
    s_lshl_b32 s3, s7, 1
    s_add_u32 s3, s3, s11
    s_mul_i32 s3, s3, {KVT}
    s_add_u32 s13, s3, {WS_KVF}
    s_cmp_eq_u32 s96, 4
    s_cbranch_scc1 {N}_exG
    s_cmp_ge_u32 s96, 2
    s_cbranch_scc1 {N}_exV
    ''')
    def exloop(orient, gate=False):
        l = lab()
        def addr():
            a.I(f"""
            s_lshl_b32 s3, s60, 14
            s_add_u32 s3, s3, s15
            s_mul_i32 s4, s60, s12
            s_add_u32 s60, s60, 1
            s_cmp_eq_u32 s60, 5
            s_cselect_b32 s60, 0, s60
            s_add_u32 s10, s10, 1
            s_cmp_eq_u32 s10, 6
            s_cselect_b32 s10, 0, s10
            """)
            for k in range(4):
                a.I(f'v_add_u32 v{vCX+k}, s3, v{vXB+k}')
            a.I(f'v_add_u32 v{vCW}, s4, v{vWB_}')
        def reads(ks, tag):
            a.LG(f'ds_read_b128 {vr(EXX+ks*4,4)}, v{vCX+(ks&3)} offset:{(ks>>2)*8192}', tag)
            if gate:
                a.LG(f'ds_read_b128 {vr(EXW+ks*4,4)}, v{vCW} offset:{ks*32}', tag)
            else:
                for h in range(2):
                    a.LG(f'ds_read_b64_tr_b16 {vr(EXW+ks*4+2*h,2)}, v{vCW} offset:{(ks*16+4*h)*40}', tag)
        addr()
        vstamp(16)
        cntwait(l + 'w0', 10 if gate else 's10')
        vstamp(17)
        a.lg = []
        for ks in range(4): reads(ks, ks)
        q0 = list(a.lg)
        a.L(l)
        for u in range(8):
            if u == 4:
                addr()
                a.wait(lg=lambda t: t == 'c')
                cntwait(l + 'w', 's10', first=None)
            reads((u + 4) % 8, u + 4)
            if STAMPS and u == 5: a.I('s_memtime s[100:101]')
            if STAMPS and u == 3: a.I('s_add_u32 m0, s10, 24\nv_writelane_b32 v0, s100, m0')
            if u == 1:
                a.LG(f'ds_read_b64 {vr(CNT,2)}, v{vSY}', 'c')
            a.wait(lg=lambda t: t != 'c' and t <= u)
            d = vr(FACC, 16)
            x, w = vr(EXX + u * 4, 4), vr(EXW + u * 4, 4)
            if orient == 'T':
                a.I(f'{MF32} {d}, {w}, {x}, {d}')
            else:
                a.I(f'{MF32} {d}, {x}, {w}, {d}')
        assert a.lg == [t + 8 for t in q0], a.lg
        a.I(f"""
        s_cmp_lg_u32 s10, 0
        s_cbranch_scc1 {l}
        s_waitcnt lgkmcnt(0)
        s_mov_b64 exec, 1
        ds_add_u32 v{vSY}, v{vOne} offset:{C_F}
        s_mov_b64 exec, -1
        s_nop 7
        s_nop 3
        """)
        vstamp(18)
    exloop('T')
    r = FACC
    a.I(f'''
    v_lshlrev_b32 v{T0}, 4, v{vL}
    v_lshlrev_b32 v{T1}, 3, v{vL}
    ''')
    for k in range(6):
        cv(r + k, r + 2 * k)
    a.I(f'''
    s_mov_b32 exec_lo, 0
    v_mov_b32 v{r+4}, 0x3f803f80
    v_mov_b32 v{r+5}, 0x3f80
    s_mov_b32 exec_lo, -1
    buffer_store_dwordx4 {vr(r,4)}, v{T0}, {W}, s13 offen sc1
    s_mov_b32 exec_hi, 1
    buffer_store_dwordx2 {vr(r+4,2)}, v{T1}, {W}, s13 offen offset:{KV_K2} sc1
    s_mov_b32 exec_hi, -1
    ''')
    a.L(f'{N}_exflag')
    a.stamp(1)
    getnonce(T2, T4)
    a.I(f'''
    s_lshl_b32 s3, s7, 1
    s_lshr_b32 s4, s96, 1
    s_add_u32 s3, s3, s4
    s_lshl_b32 s3, s3, 7
    s_lshl_b32 s4, s11, 3
    s_add_u32 s3, s3, s4
    s_add_u32 s3, s3, {WS_FLG}
    v_mov_b32 v{T0}, 0
    s_waitcnt vmcnt(0)
    s_mov_b64 exec, 1
    buffer_store_dwordx2 {vr(T2,2)}, v{T0}, {W}, s3 offen sc1
    s_mov_b64 exec, -1
    ''')
    a.stamp(2)
    a.I(f's_branch {N}_hpre2')
    a.L(f'{N}_exV')
    exloop('N')
    a.I(f'''
    v_mul_u32_u24 v{T0}, 336, v{vH}
    v_lshl_add_u32 v{T0}, v{vP}, 4, v{T0}
    v_mov_b32 v{T1}, 0x3f803f80
    v_cmp_eq_u32 vcc, 20, v{vP}
    s_mov_b32 s4, 0x1fffff
    s_mov_b32 s5, 0x1fffff
    ''')
    for k in range(8):
        cv(r + k, r + 2 * k)
    for k in range(8):
        a.I(f'v_cndmask_b32 v{r+k}, v{r+k}, v{T1}, vcc')
    a.I(f'''
    s_mov_b64 exec, s[4:5]
    buffer_store_dwordx4 {vr(r,4)}, v{T0}, {W}, s13 offen offset:{KV_V1} sc1
    buffer_store_dwordx4 {vr(r+4,4)}, v{T0}, {W}, s13 offen offset:{KV_V2} sc1
    s_mov_b64 exec, -1
    ''')
    a.I(f's_branch {N}_exflag')
    a.L(f'{N}_exG')
    a.I(f'''
    v_lshlrev_b32 v{vWB_}, 4, v{vH}
    v_add_u32 v{vWB_}, {GV}, v{vWB_}
    s_setprio 0
    s_mov_b32 s12, 256
    ''')
    exloop('T', True)
    a.I(f'''
    s_lshl_b32 s3, s7, 8
    s_lshl_b32 s4, s11, 7
    s_add_u32 s3, s3, s4
    s_add_u32 s3, s3, {WS_G}
    v_mul_f32 v{T0}, {f32hex(-math.log2(math.e))}, v{FACC}
    v_exp_f32 v{T0}, v{T0}
    v_lshlrev_b32 v{T1}, 2, v{vP}
    v_add_f32 v{T0}, 1.0, v{T0}
    v_rcp_f32 v{T0}, v{T0}
    s_mov_b32 exec_hi, 0
    buffer_store_dword v{T0}, v{T1}, {W}, s3 offen sc1
    s_mov_b32 exec_hi, -1
    ''')
    a.L(f'{N}_hpre2')
    a.I('s_setprio 0')
    a.I(f's_call_b64 {RET}, {N}_hsetup2')
    a.L(f'{N}_hpre')
    PD = OPT['PD']
    HX = 28
    HWf = 60
    srd(a, 48, 38, WS_END)
    srd(a, 44, 28, 2457600)
    a.I(f'''
    s_sub_u32 s10, s9, 4
    s_lshl_b32 s3, s8, 9
    s_lshl_b32 s4, s10, 7
    s_add_u32 s11, s3, s4
    s_lshl_b32 s12, s10, 13
    s_add_u32 s12, s12, {HR}
    ''')
    if not OPT['map2']:
        a.I('s_and_b32 s3, s7, 3\ns_mul_i32 s3, s3, 5\ns_lshr_b32 s13, s3, 1')
    else:
        a.I('s_and_b32 s3, s7, 7\ns_mul_i32 s3, s3, 5\ns_lshr_b32 s13, s3, 2')
    a.I(f'''
    s_mul_i32 s14, s13, {64*3840}
    s_lshl_b32 s13, s13, 13
    s_mov_b32 s19, 0
    s_cmp_ge_u32 s11, 3840
    s_cselect_b32 s46, 0, s46
    ''')
    for k in range(4):
        a.I(f'v_add_u32 v{vCX+k}, s13, v{vXB+k}')
    getnonce(T2, T1)
    def p1check(first):
        a.I(f'''
        s_add_u32 s4, s4, 1
        s_waitcnt vmcnt({first})
        v_cmp_eq_u64 vcc, s[62:63], v[92:93]
        v_cmp_eq_u64 s[56:57], s[62:63], v[94:95]
        s_and_b64 vcc, vcc, s[56:57]
        s_cmp_eq_u64 vcc, -1
        s_cbranch_scc1 {N}_p1g
        ''')
    p1ld = f'buffer_load_dwordx4 v[92:95], v{T4}, {W}, s3 offen sc1'
    def p1rest():
        a.L(f'{N}_p1')
        a.I(p1ld)
        p1check(0)
        a.I(f'''
        s_cmp_lt_u32 s4, {SPIN}
        s_cbranch_scc1 {N}_p1
        ''')
        a.L(f'{N}_p1g')
        a.I(f'''
        v_mov_b32 v{T0}, {SYNC}
        v_mov_b32 v{T1}, 64
        ds_write_b32 v{T0}, v{T1} offset:{C_S1}
        ''')
        if OPT['kvpf']:
            a.I(f'''
            v_lshlrev_b32 v{T4}, 4, v{vL}
            s_mul_i32 s3, s6, {2*KVT}
            s_add_u32 s3, s3, {WS_KVF}
            s_add_u32 s5, s3, 4096
            ''')
            for k in range(4): a.I(f'buffer_load_dwordx4 v[92:95], v{T4}, {W}, s3 offen offset:{k*1024} sc1')
            a.I(f'buffer_load_dwordx4 v[92:95], v{T4}, {W}, s5 offen sc1')
            a.I(f'buffer_load_dwordx4 v[92:95], v{T4}, {W}, s5 offen offset:512 sc1')
        if STAMPS: a.I(f'v_writelane_b32 v0, s4, 25')
        vstamp(23)
        a.L(f'{N}_p1ok')
    if not OPT['p1m']:
        a.I(f'''
        s_cmp_lg_u32 s9, 5
        s_cbranch_scc1 {N}_p1ok
        ''')
        ldswait(C_Q + 4*OPT['p1start'], 4, T0, T1, sleep=1)
    a.I(f'v_lshlrev_b32 v{T4}, 7, v{vL}')
    if not OPT['p1m']:
        a.I(f's_mov_b32 s3, {WS_FLG}\ns_mov_b32 s4, 0')
        vstamp(22)
        p1rest()
    if OPT['hstart'] <= 4: ldswait(C_Q + 4*OPT['hstart'], 4, T0, T1, sleep=1)
    else: ldswait(C_H, 4, T0, T1, sleep=1)
    a.stamp(3)
    if OPT['p1m']:
        a.I(f'''
        s_mov_b32 s3, {WS_FLG}
        s_mov_b32 s4, 0
        s_cmp_lg_u32 s9, 5
        s_cbranch_scc1 {N}_p1a
        {p1ld}
        ''')
        a.L(f'{N}_p1a')
    a.I(f's_setprio {OPT["hprio"]}')
    hadv = [f's_add_u32 s14, s14, {32*3840}', f's_cmp_eq_u32 s14, {640*3840}', 's_cselect_b32 s14, 0, s14',
            's_add_u32 s19, s19, 1', 's_cmp_ge_u32 s19, 20', 's_cselect_b32 s46, 0, s46']
    def hm0(q, e): return f's_add_u32 m0, s12, {q*2048 + e*1024}'
    def hld(q, e): return f'buffer_load_dwordx4 v{vHW+(q&1)*2+e}, s[44:47], s14 offen lds'
    def hxr(q): return [f'ds_read_b128 {vr(HX+(q&1)*8+pt*4,4)}, v{vCX+q} offset:{pt*4096}' for pt in range(2)]
    def hwr(q): return [f'ds_read_b64_tr_b16 {vr(HWf+(q&1)*8+j*4+2*h,2)}, v{vHR+j} offset:{q*2048 + h*512}' for j in range(2) for h in range(2)]
    if OPT['hpf']:
        a.I(f'''
        s_bfe_u32 s5, s7, 0x10002
        s_mul_i32 s5, s5, {320*3840}
        s_and_b32 s20, s7, 3
        s_mul_i32 s20, s20, {16*3840}
        s_add_u32 s5, s5, s20
        s_add_u32 s5, s5, {256*3840}
        buffer_load_dwordx4 v[96:99], v{vHW}, s[44:47], s5 offen
        buffer_load_dwordx4 v[96:99], v{vHW+1}, s[44:47], s5 offen
        ''')
    for q_ in range(4):
        for e in range(2):
            a.I(hm0(q_, e)); a.I('s_nop 0'); a.I(hld(q_, e))
        if q_ & 1:
            for i in hadv: a.I(i)
    if OPT['p1m']:
        a.I(f's_cmp_lg_u32 s9, 5\ns_cbranch_scc1 {N}_p1ok')
        p1check(8 + 2*OPT['hpf'])
        p1rest()
    a.I('s_waitcnt vmcnt(6)')
    for i in hxr(0) + hwr(0): a.I(i)
    a.I(f"""
    s_cmp_ge_u32 s6, 16
    s_cselect_b32 s52, s24, s30
    s_cselect_b32 s53, s25, s31
    s_mov_b32 s54, 819200
    s_mov_b32 s55, 0x20000
    s_and_b32 s3, s6, 15
    s_lshl_b32 s3, s3, 2
    s_add_u32 s3, s3, s10
    s_mul_i32 s15, s3, 12800
    s_lshr_b32 s3, s8, 2
    s_mul_i32 s3, s3, 640
    s_add_u32 s15, s15, s3
    s_mov_b32 s20, 0
    s_cmp_ge_u32 s8, 5
    s_cbranch_scc1 {N}_h1N
    """)
    def h1loop(orient):
        l = lab()
        a.L(l)
        if STAMPS:
            a.I('s_memtime s[96:97]\ns_mov_b32 m0, s20\ns_waitcnt lgkmcnt(0)\nv_writelane_b32 v0, s96, m0')
        if OPT['pf'] and OPT['pf'] <= 10:
            a.I(f's_cmp_lg_u32 s20, {OPT["pf"]-1}')
            a.I(f's_cbranch_scc1 {l}npf')
            a.I(f's_call_b64 {RET}, {N}_wpf')
            a.L(l + 'npf')
        for q in range(4):
            qn = (q + 1) & 3
            a.I('s_waitcnt vmcnt(4) lgkmcnt(0)')
            fl = [hwr(qn), [hm0(q, 0)] + hxr(qn), [hld(q, 0), hm0(q, 1)], [hld(q, 1)]]
            if q & 1: fl[3] += hadv
            if q == 0:
                fl[3] += ['s_add_u32 s13, s13, 8192', 's_cmp_eq_u32 s13, 81920', 's_cselect_b32 s13, 0, s13', 's_add_u32 s20, s20, 1']
            if q == 2:
                fl[3] += [f'v_add_u32 v{vCX+k}, s13, v{vXB+k}' for k in range(4)]
            if q == 3:
                fl[3] += ['s_cmp_lt_u32 s20, 10']
            m = 0
            for pt in range(2):
                for j in range(2):
                    d = vr(HACC + (pt * 2 + j) * 16, 16)
                    x, w = vr(HX + (q&1)*8 + pt*4, 4), vr(HWf + (q&1)*8 + j*4, 4)
                    if OPT['mprio'] != OPT['hprio']: a.I(f's_setprio {OPT["mprio"]}')
                    if orient == 'T':
                        a.I(f'{MF32} {d}, {w}, {x}, {d}')
                    else:
                        a.I(f'{MF32} {d}, {x}, {w}, {d}')
                    if m == 3 and q == 2:
                        for i in fl[m][1:]: a.I(i)
                        fl[m] = fl[m][:1]
                    if OPT['mprio'] != OPT['hprio']: a.I(f's_setprio {OPT["hprio"]}')
                    for i in fl[m]: a.I(i)
                    m += 1
        a.I(f"""
        s_cbranch_scc1 {l}
        s_waitcnt vmcnt(0) lgkmcnt(0)
        s_setprio {OPT['eprio']}
        """)
        arrive(C_H)
        if OPT['pf'] == 11:
            a.I(f's_setprio {OPT["hprio"]}')
            a.I(f's_call_b64 {RET}, {N}_wpf')
            a.I(f's_setprio {OPT["vprio"]}')
        a.I(f"""
        v_lshlrev_b32 v{T0}, 4, v{vL}
        s_mul_i32 s3, s7, {2*OAB_PT}
        s_mul_i32 s4, s8, 5120
        s_add_u32 s3, s3, s4
        v_mov_b64 v[100:101], -1
        v_mov_b64 v[102:103], -1
        s_and_b32 s4, s10, 1
        s_mul_i32 s4, s4, {OAB_PT}
        s_add_u32 s3, s3, s4
        s_lshr_b32 s4, s10, 1
        s_lshl_b32 s4, s4, 11
        s_add_u32 s3, s3, {WS_OAB}
        s_add_u32 s4, s4, s3
        buffer_store_dwordx4 v[100:103], v{T0}, {W}, s4 offen sc1
        buffer_store_dwordx4 v[100:103], v{T0}, {W}, s4 offen offset:1024 sc1
        buffer_store_dwordx4 v[100:103], v{T0}, {W}, s4 offen offset:2048 sc1
        s_add_u32 s4, s4, 40960
        buffer_store_dwordx4 v[100:103], v{T0}, {W}, s4 offen sc1
        buffer_store_dwordx4 v[100:103], v{T0}, {W}, s4 offen offset:1024 sc1
        buffer_store_dwordx4 v[100:103], v{T0}, {W}, s4 offen offset:2048 sc1
        """)
        if STAMPS:
            a.I('s_memtime s[96:97]\ns_mov_b32 m0, s20\ns_waitcnt lgkmcnt(0)\nv_writelane_b32 v0, s96, m0')
    h1loop('T')
    a.I(f'''
    s_lshl_b32 s3, s7, 1
    s_mul_i32 s3, s3, {QKB_PT}
    s_lshl_b32 s4, s11, 5
    s_add_u32 s3, s3, s4
    s_add_u32 s4, s3, {QKB_PT}
    ''')
    for pt in range(2):
        for j in range(2):
            r = HACC + (pt * 2 + j) * 16
            for k in range(8):
                cv(r + k, r + 2 * k)
            for b in range(2):
                a.I(f'buffer_store_dwordx4 {vr(r+4*b,4)}, v{T0}, {W}, s{3+pt} offen offset:{(2*j+b)*1024} sc1')
    a.I(f's_branch {N}_h1done')
    a.L(f'{N}_h1N')
    h1loop('N')
    a.I(f'''
    s_cmp_ge_u32 s11, 3840
    s_cbranch_scc1 {N}_h1done
    s_sub_u32 s3, s11, 2560
    s_lshl_b32 s3, s3, 11
    s_lshl_b32 s4, s7, 12
    s_add_u32 s3, s3, s4
    s_add_u32 s3, s3, {WS_VBT}
    s_add_u32 s4, s3, {VBT_NT}
    ''')
    for pt in range(2):
        for j in range(2):
            r = HACC + (pt * 2 + j) * 16
            for k in range(8):
                cv(r + k, r + 2 * k)
            for b in range(2):
                a.I(f'buffer_store_dwordx4 {vr(r+4*b,4)}, v{T0}, {W}, s{3+j} offen offset:{(2*pt+b)*1024} sc1')
    a.L(f'{N}_h1done')
    a.I(f's_setprio {OPT["vprio"]}')
    a.stamp(4)
    def setflag(word, cw):
        l = lab()
        a.I(f'''
        v_mov_b32 v{T0}, {SYNC}
        v_mov_b32 v{T1}, 1
        s_mov_b64 exec, 1
        ds_add_rtn_u32 v{T1}, v{T0}, v{T1} offset:{cw}
        v_mov_b32 v{T0}, 0
        v_mov_b32 v{T2}, s62
        v_mov_b32 v{T3}, s63
        s_waitcnt lgkmcnt(0)
        v_cmp_eq_u32 vcc, 3, v{T1}
        s_cbranch_vccz {l}
        buffer_store_dwordx2 {vr(T2,2)}, v{T0}, {W}, s23 offen offset:{word*1024} sc1
        ''')
        a.L(l)
        a.I('s_mov_b64 exec, -1')
    def pollflag(soff, va, minb=None, sleep=OPT['psleep']):
        l = lab()
        a.I('s_mov_b32 s19, 0')
        a.L(l)
        if minb is not None:
            a.I(f's_call_b64 {RET}, {N}_wob')
        a.I(f'''
        buffer_load_dwordx2 {vr(T2,2)}, v{va}, {W}, {soff} offen sc1
        s_add_u32 s19, s19, 1
        s_waitcnt vmcnt(0)
        v_cmp_ne_u64 vcc, s[62:63], {vr(T2,2)}
        ''')
        if minb:
            a.I(f's_cmp_lt_u32 s15, {minb}')
            a.I(f's_cbranch_scc1 {l}')
        a.I(f's_cbranch_vccz {l}_ok')
        if sleep: a.I(f's_sleep {sleep}')
        a.I(f'''
        s_cmp_lt_u32 s19, {SPIN}
        s_cbranch_scc1 {l}
        ''')
        a.L(l + '_ok')
    def stream(lim):
        l = lab()
        a.L(l)
        a.I(f'''
        s_call_b64 {RET}, {N}_wob
        s_cmp_lt_u32 s15, {lim}
        s_cbranch_scc1 {l}
        ''')
    def pollshare(soff, va, pw, cw):
        l = lab()
        a.I(f's_cmp_lg_u32 s9, {pw}')
        a.I(f's_cbranch_scc1 {l}')
        pollflag(soff, va)
        arrive(cw)
        a.I(f's_branch {l}_ok')
        a.L(l)
        a.I(f'v_mov_b32 v{T3}, {SYNC}')
        a.I('s_mov_b32 s19, 0')
        a.L(l + '_w')
        a.I(f'''
        ds_read_b32 v{T2}, v{T3} offset:{cw}
        s_add_u32 s19, s19, 1
        s_waitcnt lgkmcnt(0)
        v_readfirstlane_b32 s3, v{T2}
        s_cmp_lg_u32 s3, 0
        s_cbranch_scc1 {l}_ok
        s_call_b64 {RET}, {N}_wob
        s_sleep 1
        s_cmp_lt_u32 s19, {SPIN*8}
        s_cbranch_scc1 {l}_w
        ''')
        a.L(l + '_ok')
    srd(a, 44, 30, 819200)
    LQ, LK, LV, LG = 28, 44, 64, 84
    LS, LP, M, LO, LL = 88, 120, 136, 172, 204
    a.I(f'''
    s_lshl_b32 s12, s10, 10
    s_mul_i32 s22, s7, {FG}
    s_add_u32 s22, s22, {WS_FG}
    s_lshl_b32 s3, s8, 7
    s_add_u32 s23, s22, s3
    s_and_b32 s13, s7, {7 if OPT['map2'] else 3}
    s_cmp_ge_u32 s13, 5
    s_cselect_b32 s3, 5, 0
    s_sub_u32 s13, s13, s3
    s_mov_b32 s14, {OPT['st2']}
    s_mov_b32 s15, 0
    s_lshl_b32 s3, s7, 1
    s_mul_i32 s29, s3, {QKB_PT}
    s_add_u32 s30, s29, {QKB_PT}
    s_add_u32 s31, s29, 40960
    s_add_u32 s32, s30, 40960
    s_sub_u32 s33, s31, {QKB_PT}
    s_lshl_b32 s26, s7, 12
    s_add_u32 s26, s26, {WS_VBT}
    s_sub_u32 s27, s26, 1024
    s_sub_u32 s28, s22, {FG}
    s_cmp_eq_u32 s7, 0
    s_cselect_b32 s33, s31, s33
    s_cselect_b32 s27, s26, s27
    s_cselect_b32 s28, s22, s28
    s_lshl_b32 s18, s7, 8
    s_add_u32 s18, s18, {WS_G}
    ''')
    for u in range(4):
        a.I(f'v_mov_b32 v{LQ+4*u+2}, 0')
        a.I(f'v_mov_b32 v{LQ+4*u+3}, 0')
    a.I('s_waitcnt vmcnt(0)')
    vstamp(19)
    setflag(0, C_2)
    ldswait(C_H, 8, T2, T3)
    vstamp(20)
    stream(OPT['st2'])
    vstamp(21)
    pollshare('s28', vF2, 4, C_S2)
    if STAMPS: a.I('v_writelane_b32 v0, s19, 27')
    a.stamp(5)
    if STAMPS: a.I('v_writelane_b32 v0, s15, 31')
    a.I(f's_setprio {OPT["hprio"]}')
    for u in range(4):
        a.I(f'buffer_load_dwordx2 {vr(LQ+4*u,2)}, v{LA}, {W}, s{29+(u>>1)} offen offset:{256*(u&1)} sc1')
    a.I('s_mov_b64 exec, 0xffff')
    for u in range(4):
        a.I(f'buffer_load_dwordx2 {vr(LQ+4*u+2,2)}, v{LA+1}, {W}, s{29+(u>>1)} offen offset:{256*(u&1)} sc1')
    a.I('s_mov_b64 exec, -1')
    for kt, (so, off) in enumerate([('s33', 256), ('s31', 0), ('s31', 256), ('s32', 0), ('s32', 256)]):
        a.I(f'buffer_load_dwordx2 {vr(LK+4*kt,2)}, v{LA}, {W}, {so} offen offset:{off} sc1')
        a.I(f'buffer_load_dwordx2 {vr(LK+4*kt+2,2)}, v{LA+1}, {W}, {so} offen offset:{off} sc1')
    for d in range(2):
        for kt in range(5):
            so, off = ('s27', 0) if kt == 0 else ('s26', (kt - 1) * 1024)
            a.I(f'buffer_load_dwordx2 {vr(LV+10*d+2*kt,2)}, v{LA+2+d}, {W}, {so} offen offset:{off} sc1')
    for u in range(4):
        a.I(f'buffer_load_dword v{LG+u}, v{LA+4}, {W}, s18 offen offset:{64*u} sc1')
    a.I(f's_setprio {OPT["h2prio"]}')
    a.I(f'''
    s_lshl_b32 s3, s7, 1
    s_mul_i32 s36, s3, {OAB_PT}
    s_mul_i32 s3, s8, 5120
    s_add_u32 s36, s36, s3
    s_add_u32 s36, s36, {WS_OAB + 40960}
    s_lshl_b32 s3, s10, 10
    s_add_u32 s37, s36, s3
    s_add_u32 s38, s37, {OAB_PT}
    s_lshr_b32 s3, s10, 1
    s_lshl_b32 s3, s3, 9
    s_and_b32 s4, s10, 1
    s_lshl_b32 s4, s4, 3
    s_add_u32 s3, s3, s4
    s_add_u32 s40, s36, s3
    s_add_u32 s40, s40, 4096
    s_add_u32 s41, s40, {OAB_PT}
    v_mov_b32 v{T4}, {f32hex(CSCALE)}
    v_mov_b32 v{T5}, {f32hex(-CSCALE)}
    ''')
    a.I(f'''
    s_add_u32 s3, s15, s13
    s_cmp_ge_u32 s3, 5
    s_cselect_b32 s4, 5, 0
    s_sub_u32 s3, s3, s4
    s_mul_i32 s42, s3, {128*1280}
    s_mul_i32 s43, s3, 20480
    s_add_u32 s43, s43, s12
    s_add_u32 s15, s15, {OPT['h2d']}
    s_mov_b32 s14, 5
    ''')
    nd = [0]
    def hd():
        if not OPT['h2d']: return
        j = nd[0]; nd[0] += 1
        a.I(f's_add_u32 m0, s43, {RA + j*4096}')
        a.I(f's_setprio {OPT["hprio"]}')
        a.I(f'buffer_load_dwordx4 v{VWO+j}, s[44:47], s42 offen lds')
        a.I(f's_setprio {OPT["h2prio"]}')
    vstamp(22)
    a.I('s_waitcnt vmcnt(14)')
    vstamp(24)
    for u in range(4):
        bp = LB + 8 if u == 0 else LB + 4
        a.I(f'{MF16} {vr(LS+8*u,4)}, {vr(LK+4*u,4)}, {vr(LQ+4*u,4)}, {vr(bp,4)}')
        a.I(f'{MF16} {vr(LS+8*u+4,4)}, {vr(LK+4*u+4,4)}, {vr(LQ+4*u,4)}, {vr(LB,4)}')
    hd()
    a.I('s_nop 3')
    for u in range(4):
        s = LS + 8 * u
        m = M + 2 * u
        a.I(f'''
        v_max3_f32 v{m}, v{s}, v{s+1}, v{s+2}
        v_max3_f32 v{m}, v{m}, v{s+3}, v{s+4}
        v_max3_f32 v{m}, v{m}, v{s+5}, v{s+6}
        v_max_f32 v{m}, v{m}, v{s+7}
        v_mov_b32 v{m+1}, v{m}
        ''')
    a.I('s_nop 1')
    for u in range(4):
        a.I(f'v_permlane16_swap_b32 v{M+2*u}, v{M+2*u+1}')
    for u in range(4):
        a.I(f'v_max_f32 v{M+2*u}, v{M+2*u}, v{M+2*u+1}')
    for u in range(4):
        a.I(f'v_mov_b32 v{M+2*u+1}, v{M+2*u}')
    a.I('s_nop 1')
    for u in range(4):
        a.I(f'v_permlane32_swap_b32 v{M+2*u}, v{M+2*u+1}')
    for u in range(4):
        a.I(f'v_max_f32 v{M+2*u}, v{M+2*u}, v{M+2*u+1}')
    for u in range(4):
        a.I(f'v_mul_f32 v{M+2*u}, v{T5}, v{M+2*u}')
    for u in range(4):
        s = LS + 8 * u
        for k in range(8):
            a.I(f'v_fma_f32 v{s+k}, v{s+k}, v{T4}, v{M+2*u}')
        for k in range(8):
            ex(s + k)
        if u % 2 == 0: hd()
    a.I('s_nop 0')
    for u in range(4):
        for k in range(4):
            cv(LP + 4 * u + k, LS + 8 * u + 2 * k)
    a.I(f's_waitcnt vmcnt({nd[0]})')
    a.I(f'v_add_u32 v{T2}, {GL}, v{LA+4}')
    for u in range(4):
        a.I(f'{MF16} {vr(LL+4*u,4)}, {vr(ONES,4)}, {vr(LP+4*u,4)}, 0')
        a.I(f'{MF16} {vr(LO+8*u,4)}, {vr(LV+2*u,4)}, {vr(LP+4*u,4)}, 0')
        a.I(f'{MF16} {vr(LO+8*u+4,4)}, {vr(LV+10+2*u,4)}, {vr(LP+4*u,4)}, 0')
        a.I(f'ds_write_b32 v{T2}, v{LG+u} offset:{64*u}')
    a.I('s_nop 3')
    for u in range(4):
        o = LO + 8 * u
        a.I(f'''
        v_rcp_f32 v{T2}, v{LL+4*u}
        v_sub_f32 v{T3}, 1.0, v{LG+u}
        v_mul_f32 v{T2}, v{T2}, v{T3}
        ''')
        for k in range(8):
            a.I(f'v_mul_f32 v{o+k}, v{T2}, v{o+k}')
        p = LS + 4 * (u >> 1) + 2 * (u & 1)
        cv(p, o); cv(p + 1, o + 2)
        cv(o, o + 4); cv(o + 1, o + 6)
        for r in (p, p + 1, o, o + 1): a.I(f'v_min_u32 v{r}, -2, v{r}')
        if u % 2 == 0: hd()
    a.I('s_nop 1')
    for pp in range(2):
        p = LS + 4 * pp
        a.I(f'v_permlane32_swap_b32 v{p}, v{p+2}')
        a.I(f'v_permlane32_swap_b32 v{p+1}, v{p+3}')
        a.I(f'buffer_store_dwordx4 {vr(p,4)}, v{vOB+1}, {W}, s{37+pp} offen sc1')
    a.I('s_mov_b64 exec, 0xffff')
    for u in range(4):
        a.I(f'buffer_store_dwordx2 {vr(LO+8*u,2)}, v{vOB}, {W}, s{40+(u>>1)} offen offset:{256*(u&1)} sc1')
    a.I('s_mov_b64 exec, -1')
    a.stamp(6)
    stream(5)
    dma = [(bi, j) for bi in range(3) for j in range(5 if bi < 2 else 3)]
    dma1 = list(dma)
    a.I('s_mov_b32 s44, s24\ns_mov_b32 s45, s25')
    a.I(f's_setprio {OPT["hprio"]}')
    for _ in range(OPT['pre1']):
        bi, j = dma1.pop(0)
        a.I(f's_add_u32 m0, s12, {RB + bi*20480 + j*4096}')
        a.I(f's_mov_b32 s4, {128*bi*1280}')
        a.I(f's_waitcnt vmcnt({OPT["wsub"]})')
        a.I(f'buffer_load_dwordx4 v{VWO+j}, s[44:47], s4 offen lds')
    a.I(f's_setprio {OPT["vprio"]}')
    a.I('s_waitcnt vmcnt(0)')
    arrive(C_H)
    a.stamp(7)
    HWR = 124
    NR = 6
    AW = OPT['AW']
    a.vm = []; a.lg = []
    def w3(s):
        for n, i in enumerate(wread(s, HWR + (s % NR) * 20)):
            a.LG(i, (s, n))
    def a3(s):
        a.VM(f'buffer_load_dwordx4 {vr(AF+4*s,4)}, v{vA}, {W}, s19 offen offset:{(s%2)*2048} sc1', s)
        if s % 2 == 1:
            a.I('s_add_u32 s19, s19, 4096')
    def check(s, nm):
        r = AF + 4 * s
        a.L(f'{N}_{nm}ck{s}')
        a.I(f"""
        v_max3_u32 v{T0}, v{r}, v{r+1}, v{r+2}
        v_max3_u32 v{T1}, v{r+3}, v{r+4}, v{r+5}
        v_max3_u32 v{T0}, v{T0}, v{r+6}, v{r+7}
        v_max_u32 v{T0}, v{T0}, v{T1}
        v_cmp_eq_u32 vcc, -1, v{T0}
        s_cbranch_vccnz {N}_{nm}rt{s}
        """)
        a.L(f'{N}_{nm}go{s}')
    a.I('s_add_u32 s19, s21, 40960')
    a.I('s_mov_b32 s18, 0')
    a.I(f's_setprio {OPT["hprio"]}')
    for s in range(AW): a3(s)
    a.I(f's_setprio {OPT["h3prio"]}')
    ldswait(C_H, 12, T2, T3)
    vstamp(11)
    if STAMPS: a.I('v_writelane_b32 v0, s15, 30')
    a.I(f'v_mov_b32 v{T4}, {SYNC}\nv_mov_b32 v{T5}, 1')
    for s in range(NR - 1): w3(s)
    DS = OPT['dstart']
    for s in range(20):
        sn = s + NR - 1
        if sn == 10:
            for k in range(5):
                a.I(f'v_add_u32 v{vR+k}, 51200, v{vR+k}')
        if s == DS:
            a.wait(vm=lambda tg: tg < 100)
            for u in range(s + (s & 1), 20, 2): check(u, 'h')
            ldswait(C_M, 4, T2, T3, sleep=0)
            a.lg = []
        if sn < 20: w3(sn)
        if s in (10, 15):
            if s == 15: a.wait(vm=lambda tg: tg <= 1000)
            a.I('s_mov_b64 exec, 1')
            a.LG(f'ds_add_u32 v{T4}, v{T5} offset:{C_M if s == 10 else C_E}', (s + 3, 99))
            a.I('s_mov_b64 exec, -1')
        a.wait(vm=lambda tg: tg <= s + 1 - (s & 1), lg=lambda tg: tg[0] <= s)
        if s % 2 == 0 and s < DS: check(s, 'h')
        for t in range(5):
            d = vr(CACC + 4 * t, 4)
            a.I(f'{MF16} {d}, {vr(HWR+(s%NR)*20+t*4,4)}, {vr(AF+4*s,4)}, {d if s else 0}')
            if t == 0 and s + AW < 20: a3(s + AW)
            if s >= OPT['d1'] and t in (1, 3) and dma1:
                bi, j = dma1.pop(0)
                a.I(f's_add_u32 m0, s12, {RB + bi*20480 + j*4096}')
                a.I(f's_mov_b32 s4, {128*bi*1280}')
                a.I(f's_setprio {OPT["hprio"]}')
                a.VM(f'buffer_load_dwordx4 v{VWO+j}, s[44:47], s4 offen lds', 1000)
                a.I(f's_setprio {OPT["h3prio"]}')
            elif s >= DS and t in (1, 3) and dma:
                bi, j = dma.pop(0)
                a.I(f's_add_u32 m0, s12, {RA + bi*20480 + j*4096}')
                a.I(f's_mov_b32 s4, {(320 + 128*bi)*1280}')
                if (bi, j) == (2, 2):
                    a.I(f's_cmp_ge_u32 s10, 2\ns_cbranch_scc1 {N}_nodma')
                a.I(f's_setprio {OPT["hprio"]}')
                a.VM(f'buffer_load_dwordx4 v{VWO+j}, s[44:47], s4 offen lds', 2000)
                a.I(f's_setprio {OPT["h3prio"]}')
                if (bi, j) == (2, 2):
                    assert s > 15
                    a.L(f'{N}_nodma')
    assert not dma and DS + AW >= 20 and DS > 10
    vstamp(12)
    if STAMPS: a.I('v_writelane_b32 v0, s18, 28')
    for k in range(5):
        a.I(f'v_subrev_u32 v{vR+k}, 51200, v{vR+k}')
    a.I('s_add_u32 s22, s21, 20480')
    a.I('s_waitcnt vmcnt(0)')
    arrive(C_H)
    a.stamp(8)
    a.I('s_setprio 0')
    ldswait(C_H, HDONE, T2, T3)
    vstamp(13)
    a.I(f's_call_b64 {RET}, {N}_wpre')
    vstamp(14)
    ldswait(C_T, 4, T2, T3)

    a.stamp(9)
    a.L(f'{N}_phaseC0')
    CS = [22, 23, 26, 27, 28]
    a.I(f"""
    s_add_u32 s23, s22, 4096
    s_add_u32 s26, s22, 8192
    s_add_u32 s27, s22, 12288
    s_add_u32 s28, s22, 16384
    s_mov_b32 s19, 0
    s_call_b64 {RET}, {N}_cl0
    """)
    a.L(f'{N}_phaseC1')
    a.stamp(10)
    a.vm = []; a.lg = []
    srd(a, 52, 34, 2048 * 1280)
    vPa = 12
    a.I(f'''
    s_and_b32 s5, s9, 3
    s_mul_i32 s3, s5, 6144
    s_add_u32 s3, s3, {EXA}
    v_lshlrev_b32 v{vPa}, 4, v{vL}
    v_add_u32 v{vPa}, s3, v{vPa}
    s_lshl_b32 s3, s5, 2
    s_add_u32 s3, s3, {SYNC + C_P}
    v_mov_b32 v{vPa+1}, s3
    v_mul_u32_u24 v{vPa+2}, 1280, v{vC}
    v_and_b32 v{vPa+4}, 1, v{vG4}
    v_lshl_add_u32 v{vPa+4}, v{vPa+4}, 5, v{vPa+2}
    v_lshl_add_u32 v{vPa+4}, v{vH}, 4, v{vPa+4}
    v_lshl_add_u32 v{vPa+2}, v{vG4}, 3, v{vPa+2}
    s_lshl_b32 s3, s7, 6
    s_lshl_b32 s4, s5, 4
    s_add_u32 s3, s3, s4
    s_mul_i32 s13, s3, 1280
    s_mul_i32 s5, s8, 160
    s_add_u32 s13, s13, s5
    v_mov_b32 v{vPa+3}, 1
    ''')
    a.I('s_waitcnt lgkmcnt(0)')
    for s in range(10):
        if s == 8: a.I('s_waitcnt lgkmcnt(10)')
        if s == 9: a.I('s_waitcnt lgkmcnt(0)')
        if s % 2 == 0:
            r = AF + 4 * s
            a.L(f'{N}_ck{s}')
            a.I(f"""
            s_waitcnt vmcnt({8-s})
            v_max3_u32 v{T0}, v{r}, v{r+1}, v{r+2}
            v_max3_u32 v{T1}, v{r+3}, v{r+4}, v{r+5}
            v_max3_u32 v{T0}, v{T0}, v{r+6}, v{r+7}
            v_max_u32 v{T0}, v{T0}, v{T1}
            v_cmp_eq_u32 vcc, -1, v{T0}
            s_cbranch_vccnz {N}_rt{s}
            """)
            a.L(f'{N}_go{s}')
        for t in range(5):
            d = vr(CACC + 4 * t, 4)
            a.I(f'{MF16} {d}, {vr(WF+(s%8)*20+t*4,4)}, {vr(AF+4*s,4)}, {d}')
        if s in (1, 2):
            for i in wread(7 + s, WF + (s - 1)*20): a.I(i)
    if STAMPS: a.I('v_writelane_b32 v0, s19, 29')
    a.stamp(11)
    a.I(f'''
    s_cmp_ge_u32 s9, 4
    s_cbranch_scc1 {N}_red
    s_nop 3
    ''')
    for t in range(5):
        a.I(f'ds_write_b128 v{vPa}, {vr(CACC+4*t,4)} offset:{t*1024}')
    a.I(f'''
    s_waitcnt lgkmcnt(0)
    ds_write_b32 v{vPa+1}, v{vPa+3}
    s_waitcnt lgkmcnt(0)
    s_branch {N}_fin
    ''')
    a.L(f'{N}_red')
    a.I('s_mov_b32 s4, 0')
    a.L(f'{N}_red1')
    a.I(f'ds_read_b32 v{T0}, v{vPa+1}')
    for t in range(5):
        a.I(f'ds_read_b128 {vr(AF+4*t,4)}, v{vPa} offset:{t*1024}')
    a.I(f'''
    s_add_u32 s4, s4, 1
    s_waitcnt lgkmcnt(5)
    v_readfirstlane_b32 s3, v{T0}
    s_cmp_lg_u32 s3, 0
    s_cbranch_scc1 {N}_red2
    s_cmp_lt_u32 s4, {SPIN*8}
    s_cbranch_scc1 {N}_red1
    ''')
    a.L(f'{N}_red2')
    for t in range(5):
        c, b = CACC + 4 * t, AF + 4 * t
        a.I(f's_waitcnt lgkmcnt({4-t})')
        a.I(f'v_pk_add_f32 {vr(c,2)}, {vr(c,2)}, {vr(b,2)}')
        a.I(f'v_pk_add_f32 {vr(c+2,2)}, {vr(c+2,2)}, {vr(b+2,2)}')
        d = CACC + 8 * (t >> 1) + 2 * (t & 1)
        cv(d, c); cv(d + 1, c + 2)
        if t == 4:
            a.I(f'buffer_store_dwordx2 {vr(d,2)}, v{vPa+2}, s[52:55], s13 offen offset:{t*32}')
        if t in (2, 4):
            d = CACC + 4 * (t - 2)
            a.I(f'v_permlane16_swap_b32 v{d}, v{d+2}')
            a.I(f'v_permlane16_swap_b32 v{d+1}, v{d+3}')
            a.I(f'buffer_store_dwordx4 {vr(d,4)}, v{vPa+4}, s[52:55], s13 offen offset:{(t-2)*32}')
    a.L(f'{N}_fin')
    if STAMPS:
        a.stamp(12)
        a.I('s_waitcnt vmcnt(0)')
        a.stamp(13)
        if OPT['dbg']:
            a.I('s_memrealtime s[94:95]')
            a.I('s_load_dwordx2 s[36:37], s[0:1], 80')
            a.I('s_waitcnt lgkmcnt(0)')
            srd(a, 56, 36, 256)
            a.I(f's_cmp_lg_u32 s2, {OPT["dbg"]-1}')
            a.I(f's_cbranch_scc1 {N}_end')
            a.I(f's_and_b32 s3, s9, 3')
            a.I(f's_cmp_lg_u32 s3, 0')
            a.I(f's_cbranch_scc1 {N}_end')
            a.I('s_mov_b64 exec, 1')
            a.I(f'v_mov_b32 v{T0}, 0')
            a.I('s_lshr_b32 s5, s9, 2')
            a.I('s_mul_i32 s5, s5, 28')
            sel = [2,4,5,8,10,13,15]
            selh = [3,4,5,7,8,10,13]
            a.I('s_sub_u32 s94, s94, s92')
            a.I('s_add_u32 s94, s94, s64')
            for k in range(7):
                a.I(f's_cmp_eq_u32 s9, 0')
                a.I(f's_cselect_b32 s3, s{64+2*sel[k]}, s{64+2*selh[k]}')
                a.I(f's_sub_u32 s3, s3, s64')
                a.I(f'v_mov_b32 v{T1}, s3')
                a.I(f'buffer_store_dword v{T1}, v{T0}, s[56:59], s5 offen offset:{8+4*k}')
            a.I(f's_branch {N}_end')
        a.dump_stamps(14, 48, WS_STAMP, 9, T0, T1)
        a.I(f'''
        v_lshlrev_b32 v{T0}, 2, v{vL}
        s_getreg_b32 s4, hwreg(HW_REG_HW_ID)
        v_writelane_b32 v0, s4, 15
        s_lshl_b32 s3, s2, 3
        s_add_u32 s3, s3, s9
        s_lshl_b32 s3, s3, 7
        s_add_u32 s3, s3, {WS_STAMP + 262144}
        s_mov_b32 exec_hi, 0
        buffer_store_dword v0, v{T0}, {W}, s3 offen
        ''')
    a.L(f'{N}_end')
    a.I('s_endpgm')
    for s in range(0, 10, 2):
        a.L(f'{N}_rt{s}')
        a.I(f"""
        s_add_u32 s19, s19, 1
        s_cmp_gt_u32 s19, {SPIN}
        s_cbranch_scc1 {N}_go{s}
        s_call_b64 {RET}, {N}_cl{s}
        s_branch {N}_ck{s}
        """)
    for s in range(0, 20, 2):
        a.L(f'{N}_hrt{s}')
        a.I(f"""
        s_add_u32 s18, s18, 1
        s_cmp_gt_u32 s18, {SPIN}
        s_cbranch_scc1 {N}_hgo{s}
        s_add_u32 s3, s21, {40960 + s*2048}
        s_add_u32 s4, s3, 4096
        """)
        for u in range(s, min(s + 4, 20)):
            a.I(f'buffer_load_dwordx4 {vr(AF+4*u,4)}, v{vA}, {W}, s{3+(u-s)//2} offen offset:{(u%2)*2048} sc1')
        a.I(f's_waitcnt vmcnt(0)')
        a.I(f's_branch {N}_hck{s}')
    for s in range(10):
        a.L(f'{N}_cl{s}')
        a.I(f'buffer_load_dwordx4 {vr(AF+4*s,4)}, v{vA}, {W}, s{CS[s//2]} offen offset:{(s%2)*2048} sc1')
    a.I(f's_setpc_b64 {RET}')
    a.L(f'{N}_last')
    return a.text()

def build(path):
    hdr = open('gated_mix__grouped_kv_mqa__sliding_local_dilated__prompt.s.ref').read().split('\n')
    head = [l for l in hdr if l.startswith(';') and '@launch' not in l]
    s = '\n'.join(head) + '\n'
    s += f'; @launch grid=(256,1,1) block=(512,1,1) lds={LDS}\n'
    s += '.amdgcn_target "amdgcn-amd-amdhsa--gfx950"\n.text\n'
    s += gen()
    s += '.section .rodata,"a"\n'
    s += kernel_desc(KNAME, 256, 0, 102)
    open(path, 'w').write(s)

if __name__ == '__main__':
    for arg in sys.argv[2:]:
        if arg == 'stamps': STAMPS = True
        elif '=' in arg:
            k, v = arg.split('='); OPT[k] = int(v)
    build(sys.argv[1])
```

```python
import math, sys
from asmlib import *

WS_QKB = 0
QKB_PT = 81920
WS_VBT = 64 * QKB_PT
VBT_NT = 131072
WS_KVF = WS_VBT + 20 * VBT_NT
KVT = 2816
KV_K2, KV_C, KV_V1, KV_V2 = 1024, 1280, 1408, 2080
WS_G = WS_KVF + 64 * KVT
WS_FLG = WS_G + 8192
WS_FG = WS_FLG + 8192
FG = 48 * 128
WS_OAB = WS_FG + 32 * FG
OAB_PT = 81920
WS_STAMP = WS_OAB + 64 * OAB_PT
WS_END = WS_STAMP + 524288
STAMPS = False
CSCALE = math.log2(math.e) / math.sqrt(20.0)
QBSCALE = 1.0
MF16 = 'v_mfma_f32_16x16x32_bf16'
MF32 = 'v_mfma_f32_32x32x16_bf16'
MF32h = 'v_mfma_f32_32x32x8_bf16'
KNAME = 'gated_mix__grouped_kv_mqa__sliding_local_dilated__prompt_kernel'

XT = 0
SLOT = [81920, 102400, 122880]
EXB = 122880
QX = 81920
SYNC = 161792
C_X, C_W, C_Q, C_H, C_N, C_2, C_3, C_F, C_R, C_S2, C_S3 = 0, 8, 16, 36, 40, 48, 52, 56, 60, 64, 68
C_T, C_M, C_P, C_B, C_E, C_S1, C_A, C_QH = 72, 76, 80, 96, 112, 116, 128, 120
GV = 162048
GL = 163328
LDS = 163840
HR = 122880
RA = 0
RB = 102400
EXA = 51200
PART = 51200
SPIN = 200000

OPT = dict(wprio=1, wsleep=1, boost=0, xprio=3, cprio=3, bj=0, kg=39, swapx=0, hpf=0, jeven=1, peel=1, kvpf=0, lk=4, eprio=3, pre1=0, p1m=1, cl=0, s3b=8, dstart=12, att2=1, gp=2, par=0, par3=0, ffin=1, ct=0, wqpf=0, tlb=0, dbg=0, st2=2, d1=4, h3prio=1, h3sw=99, h2prio=3, h2d=1, AW=12, w0early=0, cpf=1, npre=2, hstart=2, wsub=3, psleep=2, PD=1, aprio=2, hprio=0, p1start=2, wstart=5, NB=8, nosc1=0, noatt=0, map2=1, pf=8, sprio=0, pf0=3, mprio=0, p1sleep=2, kvtest=0, vprio=1)

def srd(a, d, base, size):
    a.I(f's_mov_b32 s{d}, s{base}')
    a.I(f's_mov_b32 s{d+1}, s{base+1}')
    a.I(f's_mov_b32 s{d+2}, {size}')
    a.I(f's_mov_b32 s{d+3}, 0x20000')

def gen():
    a = Asm()
    a.stamps = STAMPS
    N = 'F'
    W = 's[48:51]'
    vL, vH, vP = 1, 2, 3
    T0, T1, T2, T3, T4, T5 = 4, 5, 6, 7, 8, 9
    vC, vG4 = 10, 11
    RET = 's[98:99]'
    ex = lambda r: a.I(f'v_exp_f32 v{r}, v{r}')
    cv = lambda d, s: a.I(f'v_cvt_pk_bf16_f32 v{d}, v{s}, v{s+1}')
    def lab():
        a.nlabel += 1
        return f'{N}_l{a.nlabel}'
    def ldswait(word, target, vt, va, sleep=1, hp=None):
        l = lab()
        a.I(f'v_mov_b32 v{va}, {SYNC}')
        a.I('s_mov_b32 s4, 0')
        a.L(l)
        a.I(f'''
        ds_read_b32 v{vt}, v{va} offset:{word}
        s_add_u32 s4, s4, 1
        s_waitcnt lgkmcnt(0)
        v_readfirstlane_b32 s3, v{vt}
        s_cmp_ge_u32 s3, {target}
        s_cbranch_scc1 {l}_ok
        ''')
        if hp is not None: a.I(f's_setprio {OPT["vprio"]}')
        if sleep: a.I(f's_sleep {sleep}')
        a.I(f'''
        s_cmp_lt_u32 s4, {SPIN*8}
        s_cbranch_scc1 {l}
        ''')
        a.L(l + '_ok')
        if hp is not None: a.I(f's_setprio {hp}')
    def arrive(word, va=T0, vd=T1):
        a.I(f'''
        v_mov_b32 v{va}, {SYNC}
        v_mov_b32 v{vd}, 1
        s_mov_b64 exec, 1
        ds_add_u32 v{va}, v{vd} offset:{word}
        s_mov_b64 exec, -1
        ''')

    def zero(r0, r1):
        assert r0 % 2 == 0 and r1 % 2 == 0
        for r in range(r0, r1, 2):
            a.I(f'v_mov_b64 {vr(r,2)}, 0')
    def vstamp(lane):
        if STAMPS:
            a.I(f's_memtime s[100:101]\ns_waitcnt lgkmcnt(0)\nv_writelane_b32 v0, s100, {lane}')
    def getnonce(vt, va):
        l = lab()
        a.I(f'v_mov_b32 v{va}, {SYNC}')
        a.I('s_mov_b32 s4, 0')
        a.L(l)
        a.I(f'''
        ds_read_b64 {vr(vt,2)}, v{va} offset:{C_N}
        s_add_u32 s4, s4, 1
        s_waitcnt lgkmcnt(0)
        v_readfirstlane_b32 s62, v{vt}
        v_readfirstlane_b32 s63, v{vt+1}
        s_cmp_lg_u32 s62, 0
        s_cbranch_scc1 {l}_ok
        s_cmp_lt_u32 s4, {SPIN*8}
        s_cbranch_scc1 {l}
        ''')
        a.L(l + '_ok')
    a.raw(kernel_header(KNAME))
    a.I('s_cmp_ge_u32 s2, 256')
    a.I(f's_cbranch_scc1 {N}_end')
    a.stamp(0)
    a.I('s_load_dwordx16 s[16:31], s[0:1], 0')
    a.I('s_load_dwordx8 s[32:39], s[0:1], 64')
    a.I(f'''
    v_and_b32 v{vL}, 63, v0
    v_lshrrev_b32 v{T0}, 6, v0
    v_lshrrev_b32 v{vH}, 5, v{vL}
    v_readfirstlane_b32 s9, v{T0}
    v_and_b32 v{vP}, 31, v{vL}
    v_and_b32 v{vC}, 15, v{vL}
    v_lshrrev_b32 v{vG4}, 4, v{vL}
    s_and_b32 s3, s2, 7
    s_lshr_b32 s6, s2, 3
    ''')
    if not OPT['map2']:
        a.I(f'''
        s_lshl_b32 s3, s3, 2
        s_lshr_b32 s5, s6, 3
        s_add_u32 s7, s3, s5
        s_and_b32 s8, s6, 7
        s_cmp_ge_u32 s8, 5
        s_cselect_b32 s3, 5, 0
        s_sub_u32 s60, s8, s3
        s_and_b32 s61, s7, 3
        s_lshl_b32 s3, s61, 1
        s_sub_u32 s96, s8, s3
        s_and_b32 s96, s96, 7
        ''')
    else:
        a.I(f'''
        s_lshr_b32 s4, s3, 1
        s_lshl_b32 s4, s4, 3
        s_lshr_b32 s5, s6, 2
        s_add_u32 s7, s4, s5
        {'s_not_b32 s3, s3' if OPT['swapx'] else ''}
        s_and_b32 s3, s3, 1
        s_lshl_b32 s3, s3, 2
        s_and_b32 s60, s6, 3
        s_add_u32 s8, s3, s60
        s_cmp_ge_u32 s5, 5
        s_cselect_b32 s3, 5, 0
        s_sub_u32 s61, s5, s3
        s_sub_u32 s96, s8, s5
        s_and_b32 s96, s96, {3 if OPT['jeven'] else 7}
        ''')
        if OPT['jeven']: a.I('s_and_b32 s3, s8, 4\ns_or_b32 s96, s96, s3')
    vSY, vOne = 22, 23
    vXa, vWa, vEa = 16, 24, 18
    a.I(f"""
    s_and_b32 s10, s9, 1
    s_cmp_ge_u32 s9, 4
    s_cbranch_scc1 {N}_hi
    s_cmp_lt_u32 s9, 2
    s_cbranch_scc1 {N}_lo
    """)
    a.I(f"""
    s_lshl_b32 s3, s7, 6
    s_lshl_b32 s4, s10, 4
    s_add_u32 s3, s3, s4
    v_lshrrev_b32 v{T0}, 3, v{vL}
    v_and_b32 v{T1}, 7, v{vL}
    v_xor_b32 v{T3}, v{vG4}, v{T1}
    v_add_u32 v{T2}, s3, v{T0}
    v_mul_u32_u24 v{T2}, 1280, v{T2}
    v_lshl_add_u32 v{vXa}, v{T3}, 4, v{T2}
    v_xor_b32 v{T3}, 4, v{T3}
    v_lshl_add_u32 v{vXa+1}, v{T3}, 4, v{T2}
    v_add_u32 v{vXa+1}, {8*1280}, v{vXa+1}
    s_lshl_b32 s11, s10, 10
    v_lshlrev_b32 v{vEa}, 4, v{vL}
    s_and_b32 s3, s96, 1
    s_mul_i32 s13, s3, 40960
    s_lshl_b32 s12, s3, 12
    s_lshl_b32 s4, s10, 11
    s_add_u32 s12, s12, s4
    s_lshl_b32 s3, s10, 2
    s_add_u32 s3, s3, {SYNC + C_X}
    v_mov_b32 v{vSY}, s3
    s_waitcnt lgkmcnt(0)
    """)
    srd(a, 40, 16, 2048 * 1280)
    q = []
    def issue(kind, slot=None):
        if kind == 'X':
            a.I(f's_call_b64 {RET}, {N}_xissue'); q.append(4)
        elif kind == 'E':
            a.I(f's_call_b64 {RET}, {N}_eissue'); q.append(7)
        else:
            a.I(f's_mov_b32 s15, {SLOT[slot]}')
            a.I(f's_call_b64 {RET}, {N}_wissue'); q.append(10)
    npub = [0]
    def pub(val=None, nowait=False):
        if val is None:
            q.pop(0)
            npub[0] += 1
            val = npub[0]
        else:
            q.clear()
        a.I(f'v_mov_b32 v{vOne}, {val}')
        if not nowait: a.I(f's_waitcnt vmcnt({sum(q)})')
        a.I(f'ds_write_b32 v{vSY}, v{vOne}')
        vstamp(16 + min(val, 6))
    flip = f"""
    s_xor_b32 s13, s13, 40960
    s_xor_b32 s12, s12, 4096
    """
    vstamp(23)
    a.I('s_barrier')
    vstamp(24)
    a.I(f"""
    s_cmp_ge_u32 s96, 4
    s_cbranch_scc1 {N}_noex
    s_cmp_lt_u32 s96, 2
    s_cselect_b32 s52, s20, s22
    s_cselect_b32 s53, s21, s23
    s_mov_b32 s54, 25600
    s_mov_b32 s55, 0x20000
    """)
    issue('E'); issue('E'); issue('E'); issue('E'); pub(); issue('E'); a.I(flip)
    for _ in range(4):
        pub(); issue('X')
    issue('X')
    a.I(f's_branch {N}_xdone')
    a.L(f'{N}_noex')
    a.I(f"""
    s_cmp_lg_u32 s96, 4
    s_cbranch_scc1 {N}_nog
    """)
    srd(a, 52, 32, 1280)
    a.I(f"""
    s_add_u32 m0, s11, {GV}
    s_cmp_eq_u32 s10, 0
    s_cselect_b32 exec_lo, -1, 0xffff
    s_cselect_b32 exec_hi, -1, 0
    buffer_load_dwordx4 v{vEa}, s[52:55], s11 offen lds
    s_mov_b64 exec, -1
    """)
    a.L(f'{N}_nog')
    for _ in range(5): issue('X')
    a.I(flip)
    for _ in range(5): issue('X')
    pub(5, nowait=True)
    a.L(f'{N}_xdone')
    pub(10)
    a.I(f's_branch {N}_work')
    a.L(f'{N}_hi')
    a.I(f"""
    s_barrier
    s_waitcnt lgkmcnt(0)
    """)
    def wqpf():
        srd(a, 52, 18, 819200)
        a.I(f"""
        s_lshl_b32 s3, s6, 1
        s_add_u32 s3, s3, s10
        s_mul_i32 s15, s3, 12800
        s_lshr_b32 s3, s8, 2
        s_mul_i32 s3, s3, 640
        s_add_u32 s15, s15, s3
        s_call_b64 {RET}, {N}_wpf
        """)
    if OPT['wqpf'] == 1:
        a.I(f's_cmp_lt_u32 s9, 6\ns_cbranch_scc1 {N}_nopf')
        wqpf()
        a.L(f'{N}_nopf')
    a.I(f"""
    {'' if OPT['w0early'] else f's_call_b64 {RET}, {N}_hsetup'}
    s_cmp_ge_u32 s9, 6
    s_cbranch_scc1 {N}_wload
    {f's_call_b64 {RET}, {N}_hsetup' if OPT['w0early'] else ''}
    s_cmp_eq_u32 s96, 4
    s_cbranch_scc1 {N}_extra
    s_cmp_gt_u32 s96, 4
    s_cbranch_scc1 {N}_hpre2
    s_cmp_eq_u32 s9, 5
    s_cbranch_scc1 {N}_hpre2
    s_branch {N}_extra
    """)
    a.L(f'{N}_wload')
    if OPT['wqpf'] == 2: wqpf()
    a.I(f's_mul_i32 s3, s8, 160')
    for n in range(5):
        a.I(f"""
        v_add_u32 v{T0}, {n*64}, v{vL}
        v_mul_u32_u24 v{T1}, 6554, v{T0}
        v_lshrrev_b32 v{T1}, 16, v{T1}
        v_mul_u32_u24 v{T2}, 160, v{T1}
        v_lshlrev_b32 v{T0}, 4, v{T0}
        v_sub_u32 v{T0}, v{T0}, v{T2}
        v_bfe_u32 v{T2}, v{T1}, 1, 2
        v_and_b32 v{T3}, 1, v{T1}
        v_lshl_add_u32 v{T2}, v{T3}, 2, v{T2}
        v_and_b32 v{T1}, 24, v{T1}
        v_add_u32 v{T1}, v{T1}, v{T2}
        v_mul_u32_u24 v{T1}, 1280, v{T1}
        v_add3_u32 v{vWa+n}, v{T1}, v{T0}, s3
        """)
    srd(a, 44, 18, 819200)
    a.I(f"""
    s_lshl_b32 s3, s10, 2
    s_add_u32 s3, s3, {SYNC + C_W}
    v_mov_b32 v{vSY}, s3
    s_mul_i32 s11, s10, {64*1280}
    s_mul_i32 s13, s10, 10240
    """)
    if OPT['w0early']:
        a.I(f's_cmp_lt_u32 s96, 4')
        a.I(f's_cbranch_scc1 {N}_w0a')
        issue('W', 0); q.clear()
        a.L(f'{N}_w0a')
        a.I(f's_call_b64 {RET}, {N}_hsetup')
    a.I(f's_call_b64 {RET}, {N}_hsetup2')
    if OPT['wqpf'] == 3: wqpf()
    vstamp(16)
    npub[0] = 0
    ldswait(C_X, OPT['wstart'], T0, T1, sleep=1)
    if OPT['w0early']:
        a.I(f's_cmp_ge_u32 s96, 4')
        a.I(f's_cbranch_scc1 {N}_w0b')
    issue('W', 0)
    a.L(f'{N}_w0b')
    issue('W', 1)
    pub()
    a.I(f's_cmp_ge_u32 s96, 4')
    a.I(f's_cbranch_scc1 {N}_nof')
    ldswait(C_F, 1, T0, T1, sleep=1)
    a.L(f'{N}_nof')
    issue('W', 2); pub()
    a.I(f"""
    s_cmp_eq_u32 s10, 0
    s_cselect_b32 s3, {SYNC + C_QH}, {SYNC + C_Q}
    v_mov_b32 v{T1}, s3
    """.replace(f's_cselect_b32 s3, {SYNC + C_QH}, {SYNC + C_Q}', f's_cselect_b32 s3, {C_QH - C_Q}, 0\ns_add_u32 s3, s3, {SYNC + C_Q}'))
    for st in (3, 4):
        a.I('s_mov_b32 s4, 0')
        a.L(f'{N}_wq{st}')
        a.I(f"""
        ds_read_b32 v{T0}, v{T1} offset:{4*(st-3)}
        s_add_u32 s4, s4, 1
        s_waitcnt lgkmcnt(0)
        v_readfirstlane_b32 s3, v{T0}
        s_cmp_ge_u32 s3, 4
        s_cbranch_scc1 {N}_wq{st}_ok
        s_cmp_lt_u32 s4, {SPIN*8}
        s_cbranch_scc1 {N}_wq{st}
        """)
        a.L(f'{N}_wq{st}_ok')
        issue('W', st - 3); pub()
    pub()
    a.stamp(1)
    a.I(f's_branch {N}_hpre')
    a.L(f'{N}_eissue')
    a.I(f"""
    s_mul_i32 s14, s60, 5120
    s_add_u32 s4, s14, s11
    s_add_u32 m0, s4, {EXB}
    s_add_u32 s14, s14, 4096
    buffer_load_dwordx4 v{vEa}, s[52:55], s4 offen lds
    buffer_load_dwordx4 v{vEa}, s[52:55], s4 offen offset:2048 lds
    s_add_u32 m0, s14, {EXB}
    s_nop 0
    buffer_load_dwordx4 v{vEa}, s[52:55], s14 offen lds
    """)
    a.L(f'{N}_xissue')
    a.I(f"""
    s_lshl_b32 s14, s60, 8
    s_add_u32 s14, s14, s13
    s_lshl_b32 s15, s60, 14
    s_add_u32 s15, s15, s12
    """)
    for c in range(2):
        for n in range(2):
            a.I(f's_add_u32 m0, s15, {c*8192 + n*1024}')
            a.I(f's_add_u32 s4, s14, {c*128}')
            a.I(f'buffer_load_dwordx4 v{vXa+n}, s[40:43], s4 offen lds')
    a.I(f"""
    s_add_u32 s60, s60, 1
    s_cmp_eq_u32 s60, 5
    s_cselect_b32 s60, 0, s60
    s_setpc_b64 {RET}
    """)
    a.L(f'{N}_wissue')
    a.I(f"""
    s_mul_i32 s14, s61, {128*1280}
    s_add_u32 s14, s14, s11
    s_add_u32 s15, s15, s13
    """)
    for g in range(2):
        for n in range(5):
            a.I(f's_add_u32 m0, s15, {g*5120 + n*1024}')
            a.I('s_nop 0' if (g, n) != (1, 0) else f's_add_u32 s14, s14, {32*1280}')
            a.I(f'buffer_load_dwordx4 v{vWa+n}, s[44:47], s14 offen lds')
    a.I(f"""
    s_add_u32 s61, s61, 1
    s_cmp_eq_u32 s61, 5
    s_cselect_b32 s61, 0, s61
    s_setpc_b64 {RET}
    """)

    a.L(f'{N}_lo')
    vXB = 12
    def xbases(vXB=12):
        a.I(f"""
        v_lshrrev_b32 v{T0}, 1, v{vP}
        v_and_b32 v{T0}, 7, v{T0}
        v_xor_b32 v{T0}, v{T0}, v{vH}
        v_lshlrev_b32 v{T1}, 7, v{vP}
        """)
        for ks in range(4):
            a.I(f'v_xor_b32 v{T2}, {2*ks}, v{T0}')
            a.I(f'v_lshl_add_u32 v{vXB+ks}, v{T2}, 4, v{T1}')
    a.I(f"""
    s_cmp_lg_u32 s9, 0
    s_cbranch_scc1 {N}_notpoll
    v_lshlrev_b32 v{T0}, 2, v{vL}
    v_add_u32 v{T0}, {SYNC}, v{T0}
    v_mov_b32 v{T1}, 0
    ds_write_b32 v{T0}, v{T1}
    s_waitcnt lgkmcnt(0)
    """)
    srd(a, 56, 36, 256)
    a.I(f"""
    s_cmp_lg_u32 s2, 0
    s_cbranch_scc1 {N}_n1
    s_memrealtime s[62:63]
    s_waitcnt lgkmcnt(0)
    s_or_b32 s62, s62, 1
    v_mov_b32 v{T2}, s62
    v_mov_b32 v{T3}, s63
    s_mov_b64 exec, 1
    buffer_store_dwordx2 {vr(T2,2)}, v{T1}, s[56:59], 0 offen sc1
    s_mov_b64 exec, -1
    s_barrier
    s_branch {N}_n2
    """)
    a.L(f'{N}_n1')
    a.I('s_barrier')
    a.I('s_mov_b32 s4, 0')
    a.I('s_sleep 8')
    a.L(f'{N}_n3')
    a.I(f"""
    s_sleep 4
    buffer_load_dwordx2 {vr(T2,2)}, v{T1}, s[56:59], 0 offen sc1
    s_add_u32 s4, s4, 1
    s_waitcnt vmcnt(0)
    v_readfirstlane_b32 s3, v{T2}
    s_cmp_lg_u32 s3, 0
    s_cbranch_scc1 {N}_n2
    s_cmp_lt_u32 s4, {SPIN}
    s_cbranch_scc1 {N}_n3
    """)
    a.L(f'{N}_n2')
    a.I(f"""
    v_mov_b32 v{T0}, {SYNC}
    ds_write_b64 v{T0}, {vr(T2,2)} offset:{C_N}
    """)
    vstamp(22)
    a.I(f's_branch {N}_work')
    a.L(f'{N}_notpoll')
    if OPT['cpf']:
        a.I(f"""
        s_getpc_b64 s[40:41]
        {N}_pc:
        s_sub_u32 s40, s40, {N}_pc-{KNAME}
        s_subb_u32 s41, s41, 0
        s_mov_b32 s42, {N}_last-{KNAME}
        s_mov_b32 s43, 0x20000
        s_lshl_b32 s3, s6, 11
        v_lshlrev_b32 v{T0}, 4, v{vL}
        buffer_load_dwordx4 v[144:147], v{T0}, s[40:43], s3 offen
        buffer_load_dwordx4 v[148:151], v{T0}, s[40:43], s3 offen offset:1024
        """)
    if OPT['tlb']:
        a.I(f"""
        s_mul_i32 s3, s7, {2*QKB_PT}
        s_add_u32 s4, s3, {WS_OAB}
        s_mul_i32 s5, s7, 81920
        s_mul_i32 s10, s8, {VBT_NT*5//2}
        s_add_u32 s10, s10, {WS_VBT}
        s_mov_b32 s11, {WS_KVF}
        s_mov_b32 s12, 0x12c000
        s_mov_b32 s13, 0x250000
        s_waitcnt lgkmcnt(0)
        s_load_dword s97, s[18:19], 0
        s_load_dword s97, s[38:39], s11
        s_load_dword s97, s[18:19], 0xc0000
        s_load_dword s97, s[28:29], 0
        s_load_dword s97, s[28:29], s12
        s_load_dword s97, s[28:29], s13
        s_load_dword s97, s[38:39], s3
        s_load_dword s97, s[38:39], s10
        s_load_dword s97, s[38:39], s4
        s_load_dword s97, s[24:25], 0
        s_load_dword s97, s[24:25], 0xc0000
        s_load_dword s97, s[30:31], 0
        s_load_dword s97, s[30:31], 0xc0000
        s_load_dword s97, s[34:35], s5
        """)
    a.I(f"""
    s_barrier
    """)
    a.L(f'{N}_work')
    vXQ = 90
    xbases(vXQ)
    vW0, vW1 = 106, 107
    vCX = 16
    vWB_, vCW = 20, 21
    FACC = 24
    FX = 56
    FWf = 88
    CNT = 104
    def worksetup():
        a.I(f"""
        v_bfe_u32 v{T0}, v{vL}, 2, 2
        v_lshl_add_u32 v{vW0}, v{vH}, 3, v{T0}
        v_and_b32 v{T1}, 3, v{vL}
        v_bfe_u32 v{T2}, v{vL}, 4, 1
        v_lshl_add_u32 v{T1}, v{T2}, 2, v{T1}
        v_min_u32 v{T1}, 4, v{T1}
        v_lshlrev_b32 v{vW1}, 3, v{T1}
        v_mov_b32 v{vSY}, {SYNC}
        v_mov_b32 v{vOne}, 1
        """)
        zero(FACC, FACC+16)
        a.I('s_waitcnt lgkmcnt(0)')
        srd(a, 48, 38, WS_END)
        a.I(f"""
        s_mov_b32 s5, 0
        s_mov_b32 s10, 0
        """)
    worksetup()
    def cntwait(top, need, first='s_waitcnt lgkmcnt(0)', off=C_X, CNT=CNT):
        if first: a.I(first)
        a.L(top)
        a.I(f"""
        v_readfirstlane_b32 s3, v{CNT}
        v_readfirstlane_b32 s4, v{CNT+1}
        s_min_u32 s3, s3, s4
        s_cmp_ge_u32 s3, {need}
        s_cbranch_scc1 {top}_go
        ds_read_b64 {vr(CNT,2)}, v{vSY} offset:{off}
        s_add_u32 s5, s5, 1
        s_cmp_lt_u32 s5, {SPIN*8}
        s_waitcnt lgkmcnt(0)
        s_cbranch_scc1 {top}
        """)
        a.L(top + '_go')
    vK1a, vK2a, vVa, vG = 12, 13, 14, 15
    Q1, Q2 = 16, 32
    P = 40
    S = [48, 64]
    O = 80
    NB = OPT['NB']
    KVB = 144
    def K1(b): return KVB + 14 * b
    def V1(b): return KVB + 14 * b + 4
    def V2(b): return KVB + 14 * b + 8
    def K2(b): return KVB + 14 * b + 12
    KZ = K1(NB-1); KZ2 = K2(NB-1)
    SC = '' if OPT['nosc1'] else ' sc1'
    srd(a, 44, 38, WS_END)
    QC = 88
    QW = 56
    XR = list(range(240, 256, 4)) + list(range(144, 172, 4)) + list(range(96, 144, 4)) + list(range(172, 240, 4))
    assert len(XR) == 40
    a.I(f"""
    ds_read_b64 {vr(QC,2)}, v{vSY}
    v_bfe_u32 v{T0}, v{vL}, 2, 2
    v_add_u32 v{T0}, v{T0}, v{vW0}
    v_mul_u32_u24 v{T0}, 160, v{T0}
    s_setprio 2
    s_and_b32 s10, s9, 1
    s_lshr_b32 s11, s9, 1
    s_mul_i32 s3, s11, 80
    v_add3_u32 v{vWB_}, v{T0}, v{vW1}, s3
    v_lshlrev_b32 v{vK1a}, 4, v{vL}
    v_lshlrev_b32 v{vK2a}, 3, v{vL}
    v_min_u32 v{vK2a}, 256, v{vK2a}
    v_mul_u32_u24 v{vVa}, 336, v{vH}
    v_lshl_add_u32 v{vVa}, v{vP}, 4, v{vVa}
    v_mov_b32 v{T3}, 0x7fffff00
    v_cmp_gt_u32 vcc, 21, v{vP}
    s_mul_i32 s12, s11, {32*KVT}
    s_add_u32 s12, s12, {WS_KVF}
    v_cndmask_b32 v{vVa}, v{T3}, v{vVa}, vcc
    s_add_u32 s13, s12, {32*KVT}
    s_mul_i32 s14, s6, {KVT}
    s_add_u32 s14, s14, s12
    s_mov_b32 s15, {WS_KVF}
    s_lshl_b32 s3, s9, 12
    s_add_u32 s3, s3, {QX}
    v_add_u32 v{T0}, s3, v{vK1a}
    v_xor_b32 v{T1}, 8192, v{T0}
    s_lshl_b32 s3, s9, 2
    s_add_u32 s3, s3, {SYNC + C_A}
    v_mov_b32 v{T2}, s3
    s_xor_b32 s3, s96, s10
    s_and_b32 s3, s3, 5
    s_cselect_b32 s18, 10, 5
    s_lshl_b32 s19, s10, 12
    v_add_u32 v{vCW}, {SLOT[0]}, v{vWB_}
    s_waitcnt vmcnt(0)
    """)
    assert QX % 16384 == 0 and (SYNC + C_A) % 16 == 0
    zero(FACC+16, FACC+32)
    def qreads(ks, tag):
        b = ks % 4
        for j in range(2):
            for h in range(2):
                a.LG(f'ds_read_b64_tr_b16 {vr(QW+b*8+j*4+2*h,2)}, v{vCW} offset:{(ks*16+h)*160 + 40*j}', tag)
    def loadK(r1, r2, so):
        a.I(f'buffer_load_dwordx4 {vr(r1,4)}, v{vK1a}, {W}, {so} offen{SC}')
        a.I(f'buffer_load_dwordx2 {vr(r2,2)}, v{vK2a}, {W}, {so} offen offset:{KV_K2}{SC}')
    def loadV(b, so):
        a.I(f'buffer_load_dwordx4 {vr(V1(b),4)}, v{vVa}, {W}, {so} offen offset:{KV_V1}{SC}')
        a.I(f'buffer_load_dwordx4 {vr(V2(b),4)}, v{vVa}, {W}, {so} offen offset:{KV_V2}{SC}')
    adv = [f's_add_u32 s14, s14, {KVT}', 's_cmp_eq_u32 s14, s13', 's_cselect_b32 s14, s12, s14']
    def ldtile(b):
        if b == 0: loadK(KZ, KZ2, 's15')
        loadK(K1(b), K2(b), 's14'); loadV(b, 's14')
        for i in adv: a.I(i)
    cntwait(f'{N}_qwx', 's18', CNT=QC)
    vstamp(24)
    for st in range(5):
        a.I(f"""
        s_lshl_b32 s3, s61, 14
        s_add_u32 s3, s3, s19
        s_add_u32 s61, s61, 1
        s_cmp_eq_u32 s61, 5
        s_cselect_b32 s61, 0, s61
        """)
        for k in range(4):
            a.I(f'v_add_u32 v{vCX+k}, s3, v{vXQ+k}')
        for ks in range(8):
            a.I(f'ds_read_b128 {vr(XR[st*8+ks],4)}, v{vCX+(ks&3)} offset:{(ks>>2)*8192}')
    def wwait(top, need, h, first=None):
        if first: a.I(first)
        a.L(top)
        a.I(f"""
        v_readfirstlane_b32 s3, v{QC+h}
        s_cmp_ge_u32 s3, {need}
        s_cbranch_scc1 {top}_go
        ds_read_b32 v{QC+h}, v{vSY} offset:{C_W + 4*h}
        s_add_u32 s5, s5, 1
        s_cmp_lt_u32 s5, {SPIN*8}
        s_waitcnt lgkmcnt(0)
        s_cbranch_scc1 {top}
        """)
        a.L(top + '_go')
    a.I(f'ds_read_b64 {vr(QC,2)}, v{vSY} offset:{C_W}')
    wwait(f'{N}_qw0', 1, 0, 's_waitcnt lgkmcnt(0)')
    vstamp(16)
    a.lg = []
    a.LG(f'ds_read_b32 v{QC+1}, v{vSY} offset:{C_W+4}', 'c')
    for ks in range(3): qreads(ks, ks)
    zl = [V1(NB-1) + 2*k for k in range(4)] + list(range(96, 144, 2))
    for g in range(40):
        st, u = divmod(g, 8)
        if u == 5 and st < 4:
            a.wait(lg=lambda t: t == 'c')
            wwait(f'{N}_qw{st+1}', st + 2, 0)
            a.I(f'v_add_u32 v{vCW}, {SLOT[(st+1)%3]}, v{vWB_}')
        if u == 1:
            a.wait(lg=lambda t: t == 'c')
            wwait(f'{N}_qv{st}', st + 1, 1)
        if u in (3, 7) and st < 4:
            a.LG(f'ds_read_b32 v{QC + u//4}, v{vSY} offset:{C_W + 4*(u//4)}', 'c')
        if g + 3 < 40: qreads((u + 3) % 8, g + 3)
        if u == 4 or (u == 0 and st < 2):
            a.I('s_mov_b64 exec, 1')
            a.LG(f'ds_add_u32 v{vSY}, v{vOne} offset:{(C_Q if u else C_QH) + 4*st}', g + 3.5)
            a.I('s_mov_b64 exec, -1')
        if g == OPT['kg'] - 1:
            a.LG(f'ds_read_b32 v{T3}, v{vSY} offset:{C_S1}', g + 1)
        if g == 38:
            a.LG(f'ds_read_b32 v{T4}, v{vSY} offset:{C_Q + 12}', 50)
        a.wait(lg=lambda t: t != 'c' and t <= g)
        b = g % 4
        for j in range(2):
            d = vr(FACC + j * 16, 16)
            a.I(f'{MF32} {d}, {vr(QW + b*8 + j*4, 4)}, {vr(XR[g], 4)}, {d}')
            if g >= 25 and zl:
                a.I(f'v_mov_b64 {vr(zl.pop(0),2)}, 0')
        if g == OPT['kg']:
            a.I(f'v_cmp_ne_u32 vcc, 0, v{T3}')
            a.I(f's_cbranch_vccz {N}_kv1')
            ldtile(0)
            a.L(f'{N}_kv1')
        if STAMPS and u == 6: a.I('s_memtime s[100:101]')
        if STAMPS and u == 1 and st: a.I(f'v_writelane_b32 v0, s100, {24+st}')
    assert not zl
    a.stamp(2)
    R0 = K1(6)
    zero(88, 96); zero(80, 88)
    a.I(f"""
    v_mov_b32 v{R0}, v{T1}
    v_xor_b32 v{R0+1}, 8, v{T2}
    s_waitcnt lgkmcnt(0)
    v_readfirstlane_b32 s18, v{T4}
    v_mov_b32 v{T4}, {f32hex(CSCALE)}
    s_nop 4
    """)
    for j in range(2):
        r = FACC + 16 * j
        for k in range(6):
            a.I(f'v_pk_mul_f32 {vr(r+2*k,2)}, {vr(r+2*k,2)}, {vr(T4,2)} op_sel_hi:[1,0]')
        for k in range(4):
            cv(Q1 + 4*j + k, r + 2 * k)
        cv(Q2 + 2*j, r + 8); cv(Q2 + 2*j + 1, r + 10)
    a.I(f"""
    s_mov_b32 exec_lo, 0
    v_mov_b64 {vr(Q2,2)}, 0
    v_mov_b64 {vr(Q2+2,2)}, 0
    s_mov_b32 exec_lo, -1
    s_cmp_ge_u32 s18, 4
    s_cbranch_scc1 {N}_q3ok
    """)
    ldswait(C_Q + 12, 4, T4, T5, sleep=0)
    a.L(f'{N}_q3ok')
    for j in range(2):
        a.I(f'ds_write_b128 v{T0}, {vr(Q1+4*j,4)} offset:{j*1024}')
    a.stamp(1)
    if STAMPS: a.I('v_writelane_b32 v0, vcc_lo, 23')
    a.I(f's_cbranch_vccnz {N}_kvok')
    ldswait(C_S1, 1, T4, T5, sleep=0)
    ldtile(0)
    a.L(f'{N}_kvok')
    NPRE = OPT['npre']
    vstamp(18)
    zero(P, P+8)
    a.I(f's_waitcnt vmcnt(4)')
    vstamp(19)
    def zmax(t, s):
        a.I(f'v_max3_f32 v{T5}, v{s}, v{s+1}, v{s+2}')
        for k in range(3, 15, 2):
            a.I(f'v_max3_f32 v{T5}, v{T5}, v{s+k}, v{s+k+1}')
        a.I(f'v_max_f32 v{T5}, v{T5}, v{s+15}')
        a.I('s_mov_b32 exec_lo, 0')
        a.I(f'v_cvt_pk_bf16_f32 v{Q2+2*t}, -v{T5}, 0')
        a.I('s_mov_b32 exec_lo, -1')
    def zqk(t, s):
        a.I(f'{MF32} {vr(s,16)}, {vr(KZ,4)}, {vr(Q1+4*t,4)}, 0')
        a.I(f'{MF32h} {vr(s,16)}, {vr(KZ2,2)}, {vr(Q2+2*t,2)}, {vr(s,16)}')
    zqk(0, S[0]); zqk(1, S[1])
    for b in range(1, NPRE): ldtile(b)
    a.I('s_nop 2')
    zmax(0, S[0])
    a.I(f's_waitcnt vmcnt({4*(NPRE-1)})')
    a.I(f'{MF32} {vr(S[0],16)}, {vr(K1(0),4)}, {vr(Q1,4)}, 0')
    a.I(f'{MF32h} {vr(S[0],16)}, {vr(K2(0),2)}, {vr(Q2,2)}, {vr(S[0],16)}')
    zmax(1, S[1])
    a.I(f"""
    ds_write_b128 v{T0}, {vr(Q2,4)} offset:2048
    ds_write_b32 v{T2}, v{T2}
    """)
    rcv = f"""ds_read_b32 v{R0+2}, v{R0+1}
    ds_read_b128 {vr(Q1+8,4)}, v{R0}
    ds_read_b128 {vr(Q1+12,4)}, v{R0} offset:1024
    ds_read_b128 {vr(Q2+4,4)}, v{R0} offset:2048"""
    def recv():
        a.I('s_mov_b32 s4, 0')
        a.L(f'{N}_qx1')
        a.I(f"""
        s_waitcnt lgkmcnt(0)
        v_readfirstlane_b32 s3, v{R0+2}
        s_add_u32 s4, s4, 1
        s_cmp_lg_u32 s3, 0
        s_cbranch_scc1 {N}_qx2
        {rcv}
        s_cmp_lt_u32 s4, {SPIN*8}
        s_cbranch_scc1 {N}_qx1
        """)
        a.L(f'{N}_qx2')
        arrive(C_H, R0, R0+1)
    assert OPT['peel'] and OPT['att2'] and NPRE <= 4
    PEEL = NB - 1 - NPRE if OPT['peel'] else 0
    for b in range(NPRE, NB - 1 - PEEL):
        loadK(K1(b), K2(b), 's14'); loadV(b, 's14')
        for i in adv: a.I(i)
    a.I('s_nop 3')
    a.I(f's_setprio {OPT["aprio"]}')
    a.I('s_mov_b32 s19, 0')
    a.stamp(4)
    if STAMPS:
        a.I('s_mov_b32 m0, 0')
    vq = [b for b in range(1, NPRE) for _ in range(4)]
    for b in list(range(-PEEL, 0)) + list(range(NB)):
        peeled = b < 0
        if b == 0:
            if PEEL: a.I(f's_branch {N}_ab{PEEL}')
            a.raw('.p2align 6')
            a.L(f'{N}_aloop')
        if peeled: b += PEEL
        else: a.L(f'{N}_ab{b}')
        nb = (b + 1) % NB
        pb = (b - 1) % NB
        W2 = 's[44:47]'
        fill = {(0, 0): f'buffer_load_dwordx4 {vr(K1(pb),4)}, v{vK1a}, {W2}, s14 offen{SC}',
                (0, 2): f'buffer_load_dwordx2 {vr(K2(pb),2)}, v{vK2a}, {W2}, s14 offen offset:{KV_K2}{SC}',
                (1, 0): f'buffer_load_dwordx4 {vr(V1(pb),4)}, v{vVa}, {W2}, s14 offen offset:{KV_V1}{SC}',
                (1, 1): f'buffer_load_dwordx4 {vr(V2(pb),4)}, v{vVa}, {W2}, s14 offen offset:{KV_V2}{SC}',
                (1, 2): adv[0], (2, 0): adv[1], (2, 1): adv[2],
                (2, 2): f's_waitcnt vmcnt({4*(NB-2)})'}
        if OPT['kvtest'] == 1:
            del fill[(0,2)], fill[(1,0)], fill[(1,1)]
            fill[(2,2)] = f's_waitcnt vmcnt({NB-2})'
        if OPT['kvtest'] == 2:
            del fill[(0,0)], fill[(0,2)], fill[(1,0)], fill[(1,1)]
        if b == NB - 1:
            fill[(3, 0)] = 's_add_u32 s19, s19, 1'
            fill[(3, 1)] = f's_cmp_lt_u32 s19, {1 if OPT["noatt"] else 32//NB}'
        if b == 0:
            fill[(3, 0)] = f's_cmp_eq_u32 s19, {32//NB - 1}'
            fill[(3, 1)] = 's_cselect_b32 s46, 0, s46'
        sk = (0, 1)
        if peeled:
            fill = {}
            sk = (3, 2)
            slots = [(t, i) for t in range(4) for i in range(3) if (t, i) != (2, 2)]
            for x in ((NPRE + 2*b) % NB, (NPRE + 2*b + 1) % NB):
                assert x != b and (x != pb or len(slots) <= 6)
                its = [f'buffer_load_dwordx4 {vr(K1(x),4)}, v{vK1a}, {W2}, s14 offen{SC}',
                       f'buffer_load_dwordx2 {vr(K2(x),2)}, v{vK2a}, {W2}, s14 offen offset:{KV_K2}{SC}',
                       f'buffer_load_dwordx4 {vr(V1(x),4)}, v{vVa}, {W2}, s14 offen offset:{KV_V1}{SC}',
                       f'buffer_load_dwordx4 {vr(V2(x),4)}, v{vVa}, {W2}, s14 offen offset:{KV_V2}{SC}\n' + adv[0],
                       adv[1] + '\n' + adv[2]]
                for n, it in enumerate(its):
                    sl = slots.pop(0)
                    if sl == (3, 0):
                        last = max(i for i, y in enumerate(vq) if y == nb)
                        fill[(2, 2)] = f's_waitcnt vmcnt({len(vq) - 1 - last})'
                        vq = vq[last + 1:]
                    fill[sl] = it
                    if n < 4: vq.append(x)
        if STAMPS and b % 4 == 0:
            fill[sk] = 's_memtime s[96:97]'
        if STAMPS and b % 4 == 1:
            fill[sk] = 's_waitcnt lgkmcnt(0)\nv_writelane_b32 v0, s96, m0\ns_add_u32 m0, m0, 1'
        for t in range(4):
            Sc, Sn = S[t & 1], S[1 - (t & 1)]
            tn, tp = (t + 1) & 3, (t - 1) & 3
            kb = b if t < 3 else nb
            vpb = b if t > 0 else pb
            def F(i):
                if (t, i) in fill: a.I(fill[(t, i)])
            if OPT['att2']:
                Pc, Pp = (4, P) if t % 2 == 0 else (P, 4)
                M = [f'{MF32} {vr(Sn,16)}, {vr(K1(kb),4)}, {vr(Q1+4*tn,4)}, 0',
                     f'{MF32} {vr(O+16*tp,16)}, {vr(V1(vpb),4)}, {vr(Pp,4)}, {vr(O+16*tp,16)}',
                     f'{MF32h} {vr(Sn,16)}, {vr(K2(kb),2)}, {vr(Q2+2*tn,2)}, {vr(Sn,16)}',
                     f'{MF32} {vr(O+16*tp,16)}, {vr(V2(vpb),4)}, {vr(Pp+4,4)}, {vr(O+16*tp,16)}']
                pat = {0: 'MeeeMeeeMeeeMe0ce1ce2cececeeccc',
                       1: 'M0eeeM1eeeMeeeM2eeeeeeecccccccc',
                       2: 'M0eeeeM1eeeeMeeeeM2eeeecccccccc',
                       3: 'M0eeeeM1eeeeMcccceeeeM2eeeecccc',
                       4: 'M0eeeM1eeeM2eeeMecececececeeccc',
                       5: 'M0eeeM1eeeMeeeM2cccceeeeeeecccc',
                       6: 'M0eeeM1eeeMccceeM2eeeeeeeeccccc'}[OPT['gp']]
                ne = nc = nm = 0
                for ch in pat:
                    if ch == 'M':
                        a.I(M[nm]); nm += 1
                        if peeled and b == 0 and t == 0 and nm == 4: a.I(rcv)
                    elif ch == 'e': ex(Sc + ne); ne += 1
                    elif ch == 'c':
                        assert 2 * nc + 1 < ne
                        cv(Pc + nc, Sc + 2 * nc); nc += 1
                    else: F(int(ch))
                assert (ne, nc, nm) == (16, 8, 4), (ne, nc, nm)
                if peeled and b == 0 and t == 0: recv()
                continue
            a.I(f'{MF32} {vr(Sn,16)}, {vr(K1(kb),4)}, {vr(Q1+4*tn,4)}, 0'); F(0)
            for k in range(4): ex(Sc + k)
            a.I(f'{MF32} {vr(O+16*tp,16)}, {vr(V2(vpb),4)}, {vr(P+4,4)}, {vr(O+16*tp,16)}'); F(1)
            for k in range(4, 8): ex(Sc + k)
            a.I(f'{MF32h} {vr(Sn,16)}, {vr(K2(kb),2)}, {vr(Q2+2*tn,2)}, {vr(Sn,16)}')
            for k in range(4): cv(P + k, Sc + 2 * k)
            for k in range(8, 12): ex(Sc + k)
            a.I(f'{MF32} {vr(O+16*t,16)}, {vr(V1(b),4)}, {vr(P,4)}, {vr(O+16*t,16)}'); F(2)
            for k in range(12, 16): ex(Sc + k)
            for k in range(4, 8): cv(P + k, Sc + 2 * k)
    a.I(f'''
    s_cbranch_scc1 {N}_aloop
    v_and_b32 v{vC}, 15, v{vL}
    v_lshrrev_b32 v{vG4}, 4, v{vL}
    {f'{MF32} {vr(O+48,16)}, {vr(V1(NB-1),4)}, {vr(P,4)}, {vr(O+48,16)}' if OPT['att2'] else ''}
    {MF32} {vr(O+48,16)}, {vr(V2(NB-1),4)}, {vr(P+4,4)}, {vr(O+48,16)}
    s_setprio 3
    ''')
    a.stamp(5)
    HDONE = 16
    ldswait(C_E, 4, T0, T1)
    a.stamp(6)
    a.I(f'''
    s_lshl_b32 s3, s7, 1
    s_add_u32 s20, s3, s10
    s_xor_b32 s3, s9, 2
    s_mul_i32 s3, s3, 6144
    s_add_u32 s3, s3, {EXA}
    v_add_u32 v{T1}, s3, v{vK1a}
    s_mul_i32 s3, s9, 6144
    s_add_u32 s3, s3, {EXA}
    v_add_u32 v{T2}, s3, v{vK1a}
    s_lshl_b32 s3, s10, 7
    s_add_u32 s3, s3, {GL}
    v_lshlrev_b32 v{T0}, 2, v{vP}
    v_add_u32 v{T0}, s3, v{T0}
    s_lshl_b32 s3, s9, 2
    s_add_u32 s3, s3, {SYNC + C_B}
    v_mov_b32 v{T4}, s3
    v_xor_b32 v{T5}, 8, v{T4}
    ''')
    for t in (2, 3):
        for i in range(3):
            a.I(f'ds_write_b128 v{T1}, {vr(O+16*t+4*i,4)} offset:{(t-2)*3072+i*1024}')
    a.I(f'ds_write_b32 v{T5}, v{T5}')
    a.I(f'ds_read_b32 v{vG}, v{T0}')
    a.I(f'''
    s_mul_i32 s36, s20, {OAB_PT}
    s_mul_i32 s3, s8, 5120
    s_add_u32 s36, s36, s3
    s_add_u32 s36, s36, {WS_OAB}
    s_lshl_b32 s3, s11, 11
    s_add_u32 s37, s36, s3
    s_lshl_b32 s3, s11, 9
    s_add_u32 s40, s36, s3
    s_add_u32 s40, s40, 4096
    s_mov_b32 s42, {f32hex(2.0**100)}
    ''')
    a.I('s_mov_b32 s4, 0')
    a.L(f'{N}_bb1')
    a.I(f'ds_read_b32 v{T0}, v{T4}')
    for k in range(6):
        a.I(f'ds_read_b128 {vr(O+32+4*k,4)}, v{T2} offset:{k*1024}')
    a.I(f'''
    s_add_u32 s4, s4, 1
    s_waitcnt lgkmcnt(6)
    v_readfirstlane_b32 s3, v{T0}
    s_cmp_lg_u32 s3, 0
    s_cbranch_scc1 {N}_bb2
    s_sleep 1
    s_cmp_lt_u32 s4, {SPIN*8}
    s_cbranch_scc1 {N}_bb1
    ''')
    a.L(f'{N}_bb2')
    PKO = O + 32
    a.I(f'v_mov_b64 {vr(T2,2)}, 0')
    for t in range(2):
        a.I(f's_waitcnt lgkmcnt({3-3*t})')
        for r in (8, 0, 2, 4, 6, 10):
            a.I(f'v_pk_add_f32 {vr(O+16*t+r,2)}, {vr(O+16*t+r,2)}, {vr(O+32+12*t+r,2)}')
        if OPT['ffin']:
            a.I(f'v_mov_b32 v{T0+4*t}, v{O+16*t+8}')
            a.I(f'v_mov_b32 v{T1+4*t}, v{O+16*t+8}')
            for r in range(0, 12, 2):
                a.I(f'v_pk_fma_f32 {vr(T2,2)}, {vr(O+16*t+r,2)}, 0, {vr(T2,2)}')
                if r == 2: a.I(f'v_permlane32_swap_b32 v{T0+4*t}, v{T1+4*t}')
                if r == 6: a.I(f'v_rcp_f32 v{T0+4*t}, v{T1+4*t}')
    a.I('s_mov_b32 s41, 0')
    a.I('s_waitcnt vmcnt(0)')
    if OPT['ffin']:
        a.I(f'''
        v_add_f32 v{T2}, v{T2}, v{T3}
        v_mul_f32 v{T0}, v{T0}, v{vG}
        v_add_f32 v{T1}, v{T2}, v{T1}
        v_add_f32 v{T5}, v{T2}, v{T5}
        v_mul_f32 v{T4}, v{T4}, v{vG}
        v_cmp_nlt_f32 vcc, {f32hex(2.0**-60)}, v{T1}
        v_cmp_ngt_f32 s[4:5], s42, v{T1}
        s_or_b64 s[4:5], s[4:5], vcc
        v_cmp_nlt_f32 vcc, {f32hex(2.0**-60)}, v{T5}
        v_cmp_ngt_f32 s[18:19], s42, v{T5}
        s_or_b64 s[4:5], s[4:5], vcc
        s_or_b64 s[4:5], s[4:5], s[18:19]
        s_cbranch_scc1 {N}_fin0
        ''')
        for t in range(2):
            for r in range(0, 12, 2):
                a.I(f'v_pk_mul_f32 {vr(O+16*t+r,2)}, {vr(O+16*t+r,2)}, {vr(T0+4*t,2)} op_sel_hi:[1,0]')
            for k in range(4):
                cv(PKO + 4*t + k, O + 16*t + 2 * k)
            for k in range(4):
                a.I(f'v_min_u32 v{PKO+4*t+k}, -2, v{PKO+4*t+k}')
            a.I(f'buffer_store_dwordx4 {vr(PKO+4*t,4)}, v{vK1a}, {W}, s37 offen offset:{1024*t} sc1')
            cv(PKO + 8 + 2*t, O + 16*t + 8); cv(PKO + 9 + 2*t, O + 16*t + 10)
        for k in range(8, 12):
            a.I(f'v_min_u32 v{PKO+k}, -2, v{PKO+k}')
        a.I(f's_branch {N}_fin2')
    a.L(f'{N}_fin0')
    a.I('s_mov_b32 s43, 0')
    a.L(f'{N}_final')
    a.I(f'''
    v_mov_b32 v{T0}, v{O+8}
    v_mov_b32 v{T1}, v{O+8}
    v_mov_b32 v{T2}, 0
    v_mov_b32 v{T3}, 0
    v_permlane32_swap_b32 v{T0}, v{T1}
    ''')
    for r in range(12):
        a.I(f'v_fma_f32 v{T2}, v{O+r}, v{T3}, v{T2}')
    a.I(f'''
    v_add_f32 v{T2}, v{T2}, v{T1}
    v_cmp_nlt_f32 vcc, {f32hex(2.0**-60)}, v{T2}
    v_cmp_ngt_f32 s[4:5], s42, v{T2}
    s_or_b64 s[4:5], s[4:5], vcc
    s_cmp_eq_u64 s[4:5], 0
    s_cbranch_scc1 {N}_norm
    s_cmp_lg_u32 s43, 0
    s_cbranch_scc0 {N}_slow
    ''')
    a.L(f'{N}_norm')
    a.I(f'''
    v_rcp_f32 v{T1}, v{T1}
    s_nop 0
    v_mul_f32 v{T1}, v{T1}, v{vG}
    ''')
    for r in range(12):
        a.I(f'v_mul_f32 v{O+r}, v{T1}, v{O+r}')
    a.I(f's_cmp_lg_u32 s41, 0')
    a.I(f's_cbranch_scc1 {N}_fin1')
    for k in range(4):
        cv(PKO + k, O + 2 * k)
    cv(PKO + 8, O + 8); cv(PKO + 9, O + 10)
    for k in (0, 1, 2, 3, 8, 9): a.I(f'v_min_u32 v{PKO+k}, -2, v{PKO+k}')
    a.I(f'buffer_store_dwordx4 {vr(PKO,4)}, v{vK1a}, {W}, s37 offen sc1')
    for r in range(12):
        a.I(f'v_mov_b32 v{O+r}, v{O+16+r}')
    for r in range(4):
        a.I(f'v_mov_b32 v{Q1+r}, v{Q1+4+r}')
    for r in range(2):
        a.I(f'v_mov_b32 v{Q2+r}, v{Q2+2+r}')
    a.I('s_mov_b32 s41, 1')
    a.I(f's_branch {N}_fin0')
    a.L(f'{N}_fin1')
    for k in range(4):
        cv(PKO + 4 + k, O + 2 * k)
    cv(PKO + 10, O + 8); cv(PKO + 11, O + 10)
    for k in (4, 5, 6, 7, 10, 11): a.I(f'v_min_u32 v{PKO+k}, -2, v{PKO+k}')
    a.I(f'buffer_store_dwordx4 {vr(PKO+4,4)}, v{vK1a}, {W}, s37 offen offset:1024 sc1')
    a.L(f'{N}_fin2')
    a.I(f'''
    s_mov_b32 exec_hi, 0
    buffer_store_dwordx4 {vr(PKO+8,4)}, v{vK1a}, {W}, s40 offen sc1
    s_mov_b32 exec_hi, -1
    ''')
    a.stamp(7)
    vR = 249
    vA = 254
    CACC = 24
    AF = 44
    WF = 84
    if OPT['ct'] == 1: arrive(C_T, T4, T5)
    a.I(f'''
    s_mov_b32 s100, {RB}
    s_call_b64 {RET}, {N}_gsetup
    s_and_b32 s3, s8, {OPT['par']}
    s_mul_i32 s3, s3, 20480
    s_add_u32 s22, s21, s3
    ''')
    zero(CACC, CACC+20)
    a.stamp(8)
    if OPT['cl']: a.I(f"""
    s_add_u32 s23, s22, 4096
    s_add_u32 s26, s22, 8192
    s_add_u32 s27, s22, 12288
    s_add_u32 s28, s22, 16384
    s_mov_b32 s19, 0
    s_call_b64 {RET}, {N}_cl0
    """)
    a.I(f's_call_b64 {RET}, {N}_wpre')
    if OPT['ct'] == 0: arrive(C_T, T4, T5)
    a.stamp(9)
    a.I(f's_branch {N}_phaseC{OPT["cl"]}')

    a.L(f'{N}_slow')
    a.I(f'''
    s_mov_b32 s43, 1
    s_mov_b32 exec_lo, 0
    v_mov_b32 v{Q2}, 0
    v_mov_b32 v{Q2+1}, 0
    s_mov_b32 exec_lo, -1
    v_mov_b32 v{T4}, 0xff800000
    s_mov_b32 s14, {WS_KVF}
    ''')
    a.L(f'{N}_sl1')
    loadK(K1(0), K2(0), 's14')
    a.I(f'''
    s_waitcnt vmcnt(0)
    {MF32} {vr(S[0],16)}, {vr(K1(0),4)}, {vr(Q1,4)}, 0
    {MF32h} {vr(S[0],16)}, {vr(K2(0),2)}, {vr(Q2,2)}, {vr(S[0],16)}
    s_nop 7
    s_nop 7
    ''')
    for k in range(0, 16, 2):
        a.I(f'v_max3_f32 v{T4}, v{T4}, v{S[0]+k}, v{S[0]+k+1}')
    a.I(f'''
    s_add_u32 s14, s14, {KVT}
    s_cmp_lt_u32 s14, {WS_KVF+64*KVT}
    s_cbranch_scc1 {N}_sl1
    v_mov_b32 v{T5}, v{T4}
    s_nop 1
    v_permlane32_swap_b32 v{T4}, v{T5}
    s_nop 1
    v_max_f32 v{T4}, v{T4}, v{T5}
    v_sub_f32 v{T4}, 0, v{T4}
    v_and_b32 v{T0}, 0xffff0000, v{T4}
    v_sub_f32 v{T4}, v{T4}, v{T0}
    v_and_b32 v{T1}, 0xffff0000, v{T4}
    v_sub_f32 v{T4}, v{T4}, v{T1}
    s_mov_b32 exec_lo, 0
    v_lshrrev_b32 v{T0}, 16, v{T0}
    v_or_b32 v{Q2}, v{T0}, v{T1}
    v_lshrrev_b32 v{Q2+1}, 16, v{T4}
    s_mov_b32 exec_lo, -1
    s_mov_b32 s14, {WS_KVF}
    ''')
    for r in range(16):
        a.I(f'v_mov_b32 v{O+r}, 0')
    a.L(f'{N}_sl2')
    loadK(K1(0), K2(0), 's14'); loadV(0, 's14')
    a.I(f'''
    s_waitcnt vmcnt(0)
    {MF32} {vr(S[0],16)}, {vr(K1(0),4)}, {vr(Q1,4)}, 0
    {MF32h} {vr(S[0],16)}, {vr(K2(0),2)}, {vr(Q2,2)}, {vr(S[0],16)}
    s_nop 7
    s_nop 7
    ''')
    for k in range(16): ex(S[0] + k)
    a.I('s_nop 0')
    for k in range(8): cv(P + k, S[0] + 2 * k)
    a.I(f'''
    s_nop 1
    {MF32} {vr(O,16)}, {vr(V1(0),4)}, {vr(P,4)}, {vr(O,16)}
    {MF32} {vr(O,16)}, {vr(V2(0),4)}, {vr(P+4,4)}, {vr(O,16)}
    s_add_u32 s14, s14, {KVT}
    s_cmp_lt_u32 s14, {WS_KVF+64*KVT}
    s_cbranch_scc1 {N}_sl2
    s_nop 7
    s_nop 7
    s_branch {N}_final
    ''')

    HACC = 172
    vHW = 236
    vHR = 240
    vF2, vF3 = 242, 243
    VWO = 244
    LA, LB, ONES, vOB = 148, 156, 168, 153
    a.L(f'{N}_hsetup')
    xbases()
    a.I(f"""
    s_sub_u32 s5, s9, 4
    s_lshl_b32 s3, s8, 9
    s_lshl_b32 s4, s5, 7
    s_add_u32 s3, s3, s4
    v_lshrrev_b32 v{T0}, 3, v{vL}
    v_and_b32 v{T1}, 7, v{vL}
    v_lshlrev_b32 v{vF3}, 7, v{T1}
    v_lshlrev_b32 v{T2}, 1, v{T0}
    v_and_b32 v{T2}, 4, v{T2}
    v_xor_b32 v{T1}, v{T1}, v{T2}
    v_mul_u32_u24 v{T0}, 3840, v{T0}
    v_lshl_add_u32 v{T0}, v{T1}, 4, v{T0}
    v_add_u32 v{vHW}, s3, v{T0}
    v_add_u32 v{vHW+1}, {8*3840}, v{vHW}
    v_add_u32 v{vHW+2}, {16*3840}, v{vHW}
    v_add_u32 v{vHW+3}, {24*3840}, v{vHW}
    s_lshl_b32 s3, s5, 13
    s_add_u32 s3, s3, {HR}
    v_bfe_u32 v{T0}, v{vL}, 2, 2
    v_lshl_add_u32 v{T1}, v{vH}, 3, v{T0}
    v_lshlrev_b32 v{T1}, 7, v{T1}
    v_and_b32 v{T2}, 3, v{vL}
    v_lshl_add_u32 v{T1}, v{T2}, 3, v{T1}
    v_bfe_u32 v{T2}, v{vL}, 4, 1
    v_lshl_add_u32 v{T1}, v{T2}, 5, v{T1}
    v_add_u32 v{T1}, s3, v{T1}
    v_lshrrev_b32 v{T0}, 1, v{T0}
    v_lshlrev_b32 v{T0}, 6, v{T0}
    v_add_u32 v{vHR}, v{T1}, v{T0}
    v_xor_b32 v{T0}, 64, v{T0}
    v_add_u32 v{vHR+1}, v{T1}, v{T0}
    v_lshlrev_b32 v{vOB}, 4, v{vC}
    v_lshl_add_u32 v{vOB+1}, v{T2}, 9, v{vOB}
    v_lshl_add_u32 v{vOB+1}, v{vH}, 8, v{vOB+1}
    s_cmp_eq_u32 s7, 0
    s_cselect_b32 s3, 0, {FG}
    v_mul_u32_u24 v{T1}, s3, v{vH}
    v_add_u32 v{vF2}, v{vF3}, v{T1}
    """)
    zero(HACC, HACC+64)
    a.I(f's_setpc_b64 {RET}')
    a.L(f'{N}_hsetup2')
    a.I(f"""
    s_sub_u32 s5, s9, 4
    s_mul_i32 s3, s8, 160
    s_lshl_b32 s4, s5, 6
    """)
    for j in range(5):
        a.I(f"""
        v_add_u32 v{T0}, s4, v{vL}
        v_add_u32 v{T0}, {j*256}, v{T0}
        v_mul_u32_u24 v{T1}, 6554, v{T0}
        v_lshrrev_b32 v{T1}, 16, v{T1}
        v_mul_u32_u24 v{T1}, {1280-160}, v{T1}
        v_lshl_add_u32 v{T1}, v{T0}, 4, v{T1}
        v_add_u32 v{VWO+j}, s3, v{T1}
        """)
    a.I(f"""
    s_lshl_b32 s100, s8, 2
    s_add_u32 s100, s100, s5
    s_mul_i32 s3, s100, 5
    v_add_u32 v{T0}, s3, v{vG4}
    v_lshrrev_b32 v{T1}, 2, v{T0}
    v_lshlrev_b32 v{T1}, 10, v{T1}
    v_and_b32 v{T2}, 1, v{T0}
    v_lshl_add_u32 v{T1}, v{T2}, 9, v{T1}
    v_bfe_u32 v{T2}, v{T0}, 1, 1
    v_lshl_add_u32 v{T1}, v{T2}, 3, v{T1}
    v_lshl_add_u32 v{LA}, v{vC}, 4, v{T1}
    s_add_u32 s3, s3, 4
    s_lshr_b32 s4, s3, 2
    s_lshl_b32 s4, s4, 10
    s_and_b32 s5, s3, 1
    s_lshl_b32 s5, s5, 9
    s_add_u32 s4, s4, s5
    s_bfe_u32 s5, s3, 0x10001
    s_lshl_b32 s5, s5, 3
    s_add_u32 s4, s4, s5
    v_add_u32 v{LA+1}, s4, v{vOB}
    s_mul_i32 s3, s100, 20
    v_and_b32 v{T4}, 1, v{vG4}
    v_lshlrev_b32 v{T4}, 9, v{T4}
    v_lshl_add_u32 v{T4}, v{vH}, 3, v{T4}
    """)
    for d in range(2):
        a.I(f"""
        v_add_u32 v{T1}, s3, v{vC}
        v_add_u32 v{T1}, {16*d}, v{T1}
        v_min_u32 v{T1}, 639, v{T1}
        v_lshrrev_b32 v{T2}, 5, v{T1}
        v_lshlrev_b32 v{T2}, 17, v{T2}
        v_and_b32 v{T1}, 31, v{T1}
        v_lshl_add_u32 v{T2}, v{T1}, 4, v{T2}
        v_add_u32 v{LA+2+d}, v{T2}, v{T4}
        """)
    a.I(f"""
    v_lshlrev_b32 v{LA+4}, 2, v{vC}
    v_lshlrev_b32 v{T1}, 2, v{vG4}
    v_sub_u32 v{T1}, v{vC}, v{T1}
    v_mov_b32 v{T3}, 0xff800000
    s_cmp_eq_u32 s7, 0
    s_cselect_b64 s[4:5], 0, -1
    """)
    for k in range(8):
        r, pv = k % 4, k // 4
        a.I(f"""
        v_add_u32 v{T2}, {16*pv - r}, v{T1}
        v_and_b32 v{T2}, 0xfffffff1, v{T2}
        v_cmp_eq_u32 vcc, 0, v{T2}
        v_mov_b32 v{ONES+r}, 0x3f803f80
        s_nop 0
        v_cndmask_b32 v{LB+k}, v{T3}, 0, vcc
        """)
        if pv:
            a.I(f'v_cndmask_b32 v{LB+4+k}, v{T3}, v{LB+k}, s[4:5]')
    a.I(f's_mov_b32 s100, {RA}')
    a.L(f'{N}_gsetup')
    a.I(f"""
    v_and_b32 v{T0}, 1, v{vG4}
    v_lshrrev_b32 v{T2}, 2, v{vC}
    v_mul_u32_u24 v{T2}, 160, v{T2}
    v_and_b32 v{T3}, 3, v{vC}
    v_lshl_add_u32 v{T2}, v{T3}, 3, v{T2}
    v_add_u32 v{T2}, s100, v{T2}
    v_mul_u32_u24 v{T3}, {4*160}, v{T0}
    v_add_u32 v{T3}, v{T3}, v{T2}
    v_mul_u32_u24 v{T0}, {40*160}, v{T0}
    v_add_u32 v{T0}, v{T0}, v{T2}
    v_mul_u32_u24 v{T1}, {20*160}, v{vH}
    v_add_u32 v{vR}, v{T1}, v{T3}
    v_cmp_eq_u32 vcc, 1, v{vH}
    """)
    for h in range(2):
        a.I(f"""
        v_add_u32 v{T1}, {(16+20*h)*160}, v{T0}
        v_add_u32 v{T2}, {(80+8*h)*160}, v{T3}
        v_cndmask_b32 v{vR+1+h}, v{T1}, v{T2}, vcc
        v_add_u32 v{T1}, {(140+8*h)*160}, v{T3}
        v_add_u32 v{T2}, {(96+20*h)*160}, v{T0}
        v_cndmask_b32 v{vR+3+h}, v{T1}, v{T2}, vcc
        """)
    a.I(f"""
    s_and_b32 s3, s9, 1
    s_lshl_b32 s3, s3, 8
    v_lshlrev_b32 v{vA}, 4, v{vC}
    v_lshl_add_u32 v{vA}, v{vG4}, 9, v{vA}
    v_add_u32 v{vA}, s3, v{vA}
    s_bfe_u32 s3, s9, 0x10001
    s_lshl_b32 s4, s7, 1
    s_add_u32 s3, s3, s4
    s_mul_i32 s21, s3, {OAB_PT}
    s_add_u32 s21, s21, {WS_OAB}
    s_setpc_b64 {RET}
    """)
    def waddr(k5, h):
        if k5 == 2: return vR + 1 + h, 0
        if k5 == 4: return vR + 3 + h, 0
        return vR, ({0: 0, 1: 40, 3: 100}[k5] + 8 * h) * 160
    def wread(s, base):
        st, k5 = divmod(s, 5)
        for t in range(5):
            for h in range(2):
                r, o = waddr(k5, h)
                yield f'ds_read_b64_tr_b16 {vr(base+t*4+2*h,2)}, v{r} offset:{(st&1)*25600 + o + t*32}'
    a.L(f'{N}_wpre')
    for s in range(8):
        for i in wread(s, WF + s*20): a.I(i)
    a.I(f's_setpc_b64 {RET}')


    a.L(f'{N}_wpf')
    a.I(f"""
    v_lshlrev_b32 v92, 4, v{vL}
    s_mov_b32 exec_hi, 0xff
    """)
    for r in range(10):
        a.I(f'buffer_load_dwordx4 v[96:99], v92, s[52:55], s15 offen offset:{(r%3)*1280}')
        if r % 3 == 2: a.I('s_add_u32 s15, s15, 3840')
    a.I(f"""
    s_mov_b32 exec_hi, -1
    s_setpc_b64 {RET}
    """)
    a.L(f'{N}_wob')
    a.I(f"""
    s_cmp_ge_u32 s15, s14
    s_cbranch_scc1 {N}_wob9
    s_setprio {OPT['hprio']}
    s_cmp_ge_u32 s15, 5
    s_cbranch_scc1 {N}_wobA
    s_add_u32 s3, s15, s13
    s_cmp_ge_u32 s3, 5
    s_cselect_b32 s4, 5, 0
    s_sub_u32 s3, s3, s4
    s_mul_i32 s4, s3, {128*1280}
    s_mul_i32 s5, s3, 20480
    s_add_u32 s5, s5, {RA}
    s_mov_b32 s3, 0
    s_branch {N}_wob1
    """)
    a.L(f'{N}_wobA')
    a.I(f"""
    s_mov_b32 s44, s24
    s_mov_b32 s45, s25
    s_add_u32 s3, s15, s13
    s_mul_i32 s4, s3, 86
    s_lshr_b32 s4, s4, 8
    s_mul_i32 s4, s4, 3
    s_sub_u32 s3, s3, s4
    s_mul_i32 s4, s3, {128*1280}
    s_mul_i32 s5, s3, 20480
    s_cmp_ge_u32 s15, 8
    s_cselect_b32 s20, 1, 0
    {'s_xor_b32 s20, s20, s8' if OPT['par'] else ''}
    s_and_b32 s20, s20, 1
    s_mul_i32 s20, s20, {320*1280}
    s_add_u32 s4, s4, s20
    s_cmp_ge_u32 s15, 8
    s_cselect_b32 s20, 0, {RB-RA}
    s_add_u32 s5, s5, s20
    s_lshr_b32 s3, s3, 1
    s_lshr_b32 s20, s10, 1
    s_mul_i32 s20, s20, s3
    s_add_u32 s3, s3, s20
    """)
    a.L(f'{N}_wob1')
    a.I('s_add_u32 s5, s5, s12')
    a.I('s_add_u32 s15, s15, 1')
    for j in range(5):
        if j == 2:
            a.I('s_cmp_eq_u32 s3, 2')
            a.I(f's_cbranch_scc1 {N}_wob8')
        if j == 3:
            a.I('s_cmp_eq_u32 s3, 1')
            a.I(f's_cbranch_scc1 {N}_wob8')
        a.I(f's_add_u32 m0, s5, {j*4096}')
        a.I('s_nop 0' if OPT['wsub'] < 0 else f's_waitcnt vmcnt({OPT["wsub"]})')
        a.I(f'buffer_load_dwordx4 v{VWO+j}, s[44:47], s4 offen lds')
    a.L(f'{N}_wob8')
    a.I(f's_setprio {OPT["cprio"]}')
    a.L(f'{N}_wob9')
    a.I(f's_setpc_b64 {RET}')

    a.L(f'{N}_extra')
    worksetup()
    EXX, EXW = 40, 72
    a.I(f'''
    ds_read_b64 {vr(CNT,2)}, v{vSY}
    v_mul_u32_u24 v{T0}, 40, v{vW0}
    v_add_u32 v{vWB_}, v{T0}, v{vW1}
    v_add_u32 v{vWB_}, {EXB}, v{vWB_}
    s_mov_b32 s12, 5120
    s_setprio 3
    s_sub_u32 s11, s9, 4
    s_and_b32 s3, s96, 1
    s_add_u32 s11, s11, s3
    s_lshl_b32 s15, s11, 12
    s_lshl_b32 s3, s7, 1
    s_add_u32 s3, s3, s11
    s_mul_i32 s3, s3, {KVT}
    s_add_u32 s13, s3, {WS_KVF}
    s_cmp_eq_u32 s96, 4
    s_cbranch_scc1 {N}_exG
    s_cmp_ge_u32 s96, 2
    s_cbranch_scc1 {N}_exV
    ''')
    def exloop(orient, gate=False):
        l = lab()
        def addr():
            a.I(f"""
            s_lshl_b32 s3, s60, 14
            s_add_u32 s3, s3, s15
            s_mul_i32 s4, s60, s12
            s_add_u32 s60, s60, 1
            s_cmp_eq_u32 s60, 5
            s_cselect_b32 s60, 0, s60
            s_add_u32 s10, s10, 1
            s_cmp_eq_u32 s10, 6
            s_cselect_b32 s10, 0, s10
            """)
            for k in range(4):
                a.I(f'v_add_u32 v{vCX+k}, s3, v{vXB+k}')
            a.I(f'v_add_u32 v{vCW}, s4, v{vWB_}')
        def reads(ks, tag):
            a.LG(f'ds_read_b128 {vr(EXX+ks*4,4)}, v{vCX+(ks&3)} offset:{(ks>>2)*8192}', tag)
            if gate:
                a.LG(f'ds_read_b128 {vr(EXW+ks*4,4)}, v{vCW} offset:{ks*32}', tag)
            else:
                for h in range(2):
                    a.LG(f'ds_read_b64_tr_b16 {vr(EXW+ks*4+2*h,2)}, v{vCW} offset:{(ks*16+4*h)*40}', tag)
        addr()
        vstamp(16)
        cntwait(l + 'w0', 10 if gate else 's10')
        vstamp(17)
        a.lg = []
        for ks in range(4): reads(ks, ks)
        q0 = list(a.lg)
        a.L(l)
        for u in range(8):
            if u == 4:
                addr()
                a.wait(lg=lambda t: t == 'c')
                cntwait(l + 'w', 's10', first=None)
            reads((u + 4) % 8, u + 4)
            if STAMPS and u == 5: a.I('s_memtime s[100:101]')
            if STAMPS and u == 3: a.I('s_add_u32 m0, s10, 24\nv_writelane_b32 v0, s100, m0')
            if u == 1:
                a.LG(f'ds_read_b64 {vr(CNT,2)}, v{vSY}', 'c')
            a.wait(lg=lambda t: t != 'c' and t <= u)
            d = vr(FACC, 16)
            x, w = vr(EXX + u * 4, 4), vr(EXW + u * 4, 4)
            if orient == 'T':
                a.I(f'{MF32} {d}, {w}, {x}, {d}')
            else:
                a.I(f'{MF32} {d}, {x}, {w}, {d}')
        assert a.lg == [t + 8 for t in q0], a.lg
        a.I(f"""
        s_cmp_lg_u32 s10, 0
        s_cbranch_scc1 {l}
        s_waitcnt lgkmcnt(0)
        s_mov_b64 exec, 1
        ds_add_u32 v{vSY}, v{vOne} offset:{C_F}
        s_mov_b64 exec, -1
        s_nop 7
        s_nop 3
        """)
        vstamp(18)
    exloop('T')
    r = FACC
    a.I(f'''
    v_lshlrev_b32 v{T0}, 4, v{vL}
    v_lshlrev_b32 v{T1}, 3, v{vL}
    ''')
    for k in range(6):
        cv(r + k, r + 2 * k)
    a.I(f'''
    s_mov_b32 exec_lo, 0
    v_mov_b32 v{r+4}, 0x3f803f80
    v_mov_b32 v{r+5}, 0x3f80
    s_mov_b32 exec_lo, -1
    buffer_store_dwordx4 {vr(r,4)}, v{T0}, {W}, s13 offen sc1
    s_mov_b32 exec_hi, 1
    buffer_store_dwordx2 {vr(r+4,2)}, v{T1}, {W}, s13 offen offset:{KV_K2} sc1
    s_mov_b32 exec_hi, -1
    ''')
    a.L(f'{N}_exflag')
    a.stamp(1)
    getnonce(T2, T4)
    a.I(f'''
    s_lshl_b32 s3, s7, 1
    s_lshr_b32 s4, s96, 1
    s_add_u32 s3, s3, s4
    s_lshl_b32 s3, s3, 7
    s_lshl_b32 s4, s11, 3
    s_add_u32 s3, s3, s4
    s_add_u32 s3, s3, {WS_FLG}
    v_mov_b32 v{T0}, 0
    s_waitcnt vmcnt(0)
    s_mov_b64 exec, 1
    buffer_store_dwordx2 {vr(T2,2)}, v{T0}, {W}, s3 offen sc1
    s_mov_b64 exec, -1
    ''')
    a.stamp(2)
    a.I(f's_branch {N}_hpre2')
    a.L(f'{N}_exV')
    exloop('N')
    a.I(f'''
    v_mul_u32_u24 v{T0}, 336, v{vH}
    v_lshl_add_u32 v{T0}, v{vP}, 4, v{T0}
    v_mov_b32 v{T1}, 0x3f803f80
    v_cmp_eq_u32 vcc, 20, v{vP}
    s_mov_b32 s4, 0x1fffff
    s_mov_b32 s5, 0x1fffff
    ''')
    for k in range(8):
        cv(r + k, r + 2 * k)
    for k in range(8):
        a.I(f'v_cndmask_b32 v{r+k}, v{r+k}, v{T1}, vcc')
    a.I(f'''
    s_mov_b64 exec, s[4:5]
    buffer_store_dwordx4 {vr(r,4)}, v{T0}, {W}, s13 offen offset:{KV_V1} sc1
    buffer_store_dwordx4 {vr(r+4,4)}, v{T0}, {W}, s13 offen offset:{KV_V2} sc1
    s_mov_b64 exec, -1
    ''')
    a.I(f's_branch {N}_exflag')
    a.L(f'{N}_exG')
    a.I(f'''
    v_lshlrev_b32 v{vWB_}, 4, v{vH}
    v_add_u32 v{vWB_}, {GV}, v{vWB_}
    s_setprio 0
    s_mov_b32 s12, 256
    ''')
    exloop('T', True)
    a.I(f'''
    s_lshl_b32 s3, s7, 8
    s_lshl_b32 s4, s11, 7
    s_add_u32 s3, s3, s4
    s_add_u32 s3, s3, {WS_G}
    v_mul_f32 v{T0}, {f32hex(-math.log2(math.e))}, v{FACC}
    v_exp_f32 v{T0}, v{T0}
    v_lshlrev_b32 v{T1}, 2, v{vP}
    v_add_f32 v{T0}, 1.0, v{T0}
    v_rcp_f32 v{T0}, v{T0}
    s_mov_b32 exec_hi, 0
    buffer_store_dword v{T0}, v{T1}, {W}, s3 offen sc1
    s_mov_b32 exec_hi, -1
    ''')
    a.L(f'{N}_hpre2')
    a.I('s_setprio 0')
    a.I(f's_call_b64 {RET}, {N}_hsetup2')
    a.L(f'{N}_hpre')
    PD = OPT['PD']
    HX = 28
    HWf = 60
    srd(a, 48, 38, WS_END)
    srd(a, 44, 28, 2457600)
    a.I(f'''
    s_sub_u32 s10, s9, 4
    s_lshl_b32 s3, s8, 9
    s_lshl_b32 s4, s10, 7
    s_add_u32 s11, s3, s4
    s_lshl_b32 s12, s10, 13
    s_add_u32 s12, s12, {HR}
    ''')
    if not OPT['map2']:
        a.I('s_and_b32 s3, s7, 3\ns_mul_i32 s3, s3, 5\ns_lshr_b32 s13, s3, 1')
    else:
        a.I('s_and_b32 s3, s7, 7\ns_mul_i32 s3, s3, 5\ns_lshr_b32 s13, s3, 2')
    a.I(f'''
    s_mul_i32 s14, s13, {64*3840}
    s_lshl_b32 s13, s13, 13
    s_mov_b32 s19, 0
    s_cmp_ge_u32 s11, 3840
    s_cselect_b32 s46, 0, s46
    ''')
    for k in range(4):
        a.I(f'v_add_u32 v{vCX+k}, s13, v{vXB+k}')
    getnonce(T2, T1)
    def p1check(first):
        a.I(f'''
        s_add_u32 s4, s4, 1
        s_waitcnt vmcnt({first})
        v_cmp_eq_u64 vcc, s[62:63], v[92:93]
        v_cmp_eq_u64 s[56:57], s[62:63], v[94:95]
        s_and_b64 vcc, vcc, s[56:57]
        s_cmp_eq_u64 vcc, -1
        s_cbranch_scc1 {N}_p1g
        ''')
    p1ld = f'buffer_load_dwordx4 v[92:95], v{T4}, {W}, s3 offen sc1'
    def p1rest():
        a.L(f'{N}_p1')
        a.I(p1ld)
        p1check(0)
        a.I(f'''
        s_cmp_lt_u32 s4, {SPIN}
        s_cbranch_scc1 {N}_p1
        ''')
        a.L(f'{N}_p1g')
        a.I(f'''
        v_mov_b32 v{T0}, {SYNC}
        v_mov_b32 v{T1}, 64
        ds_write_b32 v{T0}, v{T1} offset:{C_S1}
        ''')
        if OPT['kvpf']:
            a.I(f'''
            v_lshlrev_b32 v{T4}, 4, v{vL}
            s_mul_i32 s3, s6, {2*KVT}
            s_add_u32 s3, s3, {WS_KVF}
            s_add_u32 s5, s3, 4096
            ''')
            for k in range(4): a.I(f'buffer_load_dwordx4 v[92:95], v{T4}, {W}, s3 offen offset:{k*1024} sc1')
            a.I(f'buffer_load_dwordx4 v[92:95], v{T4}, {W}, s5 offen sc1')
            a.I(f'buffer_load_dwordx4 v[92:95], v{T4}, {W}, s5 offen offset:512 sc1')
        if STAMPS: a.I(f'v_writelane_b32 v0, s4, 25')
        vstamp(23)
        a.L(f'{N}_p1ok')
    if not OPT['p1m']:
        a.I(f'''
        s_cmp_lg_u32 s9, 5
        s_cbranch_scc1 {N}_p1ok
        ''')
        ldswait(C_Q + 4*OPT['p1start'], 4, T0, T1, sleep=1)
    a.I(f'v_lshlrev_b32 v{T4}, 7, v{vL}')
    if not OPT['p1m']:
        a.I(f's_mov_b32 s3, {WS_FLG}\ns_mov_b32 s4, 0')
        vstamp(22)
        p1rest()
    if OPT['hstart'] <= 4: ldswait(C_Q + 4*OPT['hstart'], 4, T0, T1, sleep=1)
    else: ldswait(C_H, 4, T0, T1, sleep=1)
    a.stamp(3)
    if OPT['p1m']:
        a.I(f'''
        s_mov_b32 s3, {WS_FLG}
        s_mov_b32 s4, 0
        s_cmp_lg_u32 s9, 5
        s_cbranch_scc1 {N}_p1a
        {p1ld}
        ''')
        a.L(f'{N}_p1a')
    a.I(f's_setprio {OPT["hprio"]}')
    hadv = [f's_add_u32 s14, s14, {32*3840}', f's_cmp_eq_u32 s14, {640*3840}', 's_cselect_b32 s14, 0, s14',
            's_add_u32 s19, s19, 1', 's_cmp_ge_u32 s19, 20', 's_cselect_b32 s46, 0, s46']
    def hm0(q, e): return f's_add_u32 m0, s12, {q*2048 + e*1024}'
    def hld(q, e): return f'buffer_load_dwordx4 v{vHW+(q&1)*2+e}, s[44:47], s14 offen lds'
    def hxr(q): return [f'ds_read_b128 {vr(HX+(q&1)*8+pt*4,4)}, v{vCX+q} offset:{pt*4096}' for pt in range(2)]
    def hwr(q): return [f'ds_read_b64_tr_b16 {vr(HWf+(q&1)*8+j*4+2*h,2)}, v{vHR+j} offset:{q*2048 + h*512}' for j in range(2) for h in range(2)]
    if OPT['hpf']:
        a.I(f'''
        s_bfe_u32 s5, s7, 0x10002
        s_mul_i32 s5, s5, {320*3840}
        s_and_b32 s20, s7, 3
        s_mul_i32 s20, s20, {16*3840}
        s_add_u32 s5, s5, s20
        s_add_u32 s5, s5, {256*3840}
        buffer_load_dwordx4 v[96:99], v{vHW}, s[44:47], s5 offen
        buffer_load_dwordx4 v[96:99], v{vHW+1}, s[44:47], s5 offen
        ''')
    for q_ in range(4):
        for e in range(2):
            a.I(hm0(q_, e)); a.I('s_nop 0'); a.I(hld(q_, e))
        if q_ & 1:
            for i in hadv: a.I(i)
    if OPT['p1m']:
        a.I(f's_cmp_lg_u32 s9, 5\ns_cbranch_scc1 {N}_p1ok')
        p1check(8 + 2*OPT['hpf'])
        p1rest()
    a.I('s_waitcnt vmcnt(6)')
    for i in hxr(0) + hwr(0): a.I(i)
    a.I(f"""
    s_cmp_ge_u32 s6, 16
    s_cselect_b32 s52, s24, s30
    s_cselect_b32 s53, s25, s31
    s_mov_b32 s54, 819200
    s_mov_b32 s55, 0x20000
    s_and_b32 s3, s6, 15
    s_lshl_b32 s3, s3, 2
    s_add_u32 s3, s3, s10
    s_mul_i32 s15, s3, 12800
    s_lshr_b32 s3, s8, 2
    s_mul_i32 s3, s3, 640
    s_add_u32 s15, s15, s3
    s_mov_b32 s20, 0
    v_mov_b32 v95, {SYNC}
    s_cmp_lt_u32 s96, 4
    s_cselect_b32 s5, {OPT['bj'] % 10}, {OPT['bj'] // 10}
    v_lshlrev_b32 v92, 4, v{vL}
    v_mov_b32 v93, 0x7fffff00
    v_cmp_gt_u32 vcc, 40, v{vL}
    s_sub_u32 s15, s15, {2560*OPT['pf0'] if OPT['pf'] == 20 else 0}
    v_cndmask_b32 v92, v93, v92, vcc
    s_cmp_ge_u32 s8, 5
    s_cbranch_scc1 {N}_h1N
    """)
    def h1loop(orient):
        l = lab()
        a.L(l)
        if STAMPS:
            a.I('s_memtime s[96:97]\ns_mov_b32 m0, s20\ns_waitcnt lgkmcnt(0)\nv_writelane_b32 v0, s96, m0')
        if OPT['pf'] and OPT['pf'] <= 10:
            a.I(f's_cmp_lg_u32 s20, {OPT["pf"]-1}')
            a.I(f's_cbranch_scc1 {l}npf')
            a.I(f's_call_b64 {RET}, {N}_wpf')
            a.L(l + 'npf')
        for q in range(4):
            qn = (q + 1) & 3
            a.I(f's_waitcnt vmcnt({6 if OPT["pf"] == 20 and q else 4}) lgkmcnt(0)')
            fl = [hwr(qn), [hm0(q, 0)] + hxr(qn), [hld(q, 0), hm0(q, 1)], [hld(q, 1)]]
            if q & 1: fl[3] += hadv
            if OPT['boost'] and q % 2 == 0:
                fl[1] += [f'ds_read_b32 v94, v95 offset:{C_H}']
            if OPT['boost'] and q % 2 == 1:
                fl[0] += ['v_readfirstlane_b32 s3, v94', 's_cmp_lt_u32 s3, 5', f's_cbranch_scc1 {l}b{q}', 's_setprio 3', f'{l}b{q}:']
            if OPT['bj'] and q == 0:
                fl[0] += ['s_add_u32 s3, s20, s5', f's_cmp_lt_u32 s3, 10', f's_cbranch_scc1 {l}c', 's_setprio 3', f'{l}c:']
            if q == 0 and OPT['pf'] == 20:
                fl[2] += [f's_sub_u32 s3, s20, {OPT["pf0"]}', 's_cmp_lt_u32 s3, 5', 's_cselect_b32 s54, 819200, 0']
                fl[3] += ['buffer_load_dwordx4 v[96:99], v92, s[52:55], s15 offen',
                          'buffer_load_dwordx4 v[96:99], v92, s[52:55], s15 offen offset:1280', 's_add_u32 s15, s15, 2560']
            if q == 0:
                fl[3] += ['s_add_u32 s13, s13, 8192', 's_cmp_eq_u32 s13, 81920', 's_cselect_b32 s13, 0, s13', 's_add_u32 s20, s20, 1']
            if q == 2:
                fl[3] += [f's_setprio {OPT["xprio"]}'] + [f'v_add_u32 v{vCX+k}, s13, v{vXB+k}' for k in range(4)] + [f's_setprio {OPT["hprio"]}']
            if q == 3:
                fl[3] += ['s_cmp_lt_u32 s20, 10']
            m = 0
            for pt in range(2):
                for j in range(2):
                    d = vr(HACC + (pt * 2 + j) * 16, 16)
                    x, w = vr(HX + (q&1)*8 + pt*4, 4), vr(HWf + (q&1)*8 + j*4, 4)
                    if OPT['mprio'] != OPT['hprio']: a.I(f's_setprio {OPT["mprio"]}')
                    if orient == 'T':
                        a.I(f'{MF32} {d}, {w}, {x}, {d}')
                    else:
                        a.I(f'{MF32} {d}, {x}, {w}, {d}')
                    if m == 3 and q == 2:
                        for i in fl[m][1:]: a.I(i)
                        fl[m] = fl[m][:1]
                    if OPT['mprio'] != OPT['hprio']: a.I(f's_setprio {OPT["hprio"]}')
                    for i in fl[m]: a.I(i)
                    m += 1
        a.I(f"""
        s_cbranch_scc1 {l}
        s_waitcnt vmcnt(0) lgkmcnt(0)
        s_setprio {OPT['eprio']}
        """)
        arrive(C_H)
        if OPT['pf'] == 11:
            a.I(f's_setprio {OPT["hprio"]}')
            a.I(f's_call_b64 {RET}, {N}_wpf')
            a.I(f's_setprio {OPT["vprio"]}')
        a.I(f"""
        v_lshlrev_b32 v104, 4, v{vL}
        s_mul_i32 s3, s7, {2*OAB_PT}
        s_mul_i32 s4, s8, 5120
        s_add_u32 s3, s3, s4
        v_mov_b64 v[100:101], -1
        v_mov_b64 v[102:103], -1
        s_and_b32 s4, s10, 1
        s_mul_i32 s4, s4, {OAB_PT}
        s_add_u32 s3, s3, s4
        s_lshr_b32 s4, s10, 1
        s_lshl_b32 s4, s4, 11
        s_add_u32 s3, s3, {WS_OAB}
        s_add_u32 s42, s4, s3
        s_add_u32 s43, s42, 40960
        """)
        for r in range(HACC, HACC + 64, 16):
            for k in range(8):
                cv(r + k, r + 2 * k)
        a.I(f's_setprio {OPT["sprio"]}')
        if STAMPS:
            a.I('s_memtime s[96:97]\ns_mov_b32 m0, s20\ns_waitcnt lgkmcnt(0)\nv_writelane_b32 v0, s96, m0')
    h1loop('T')
    a.I(f'''
    s_lshl_b32 s3, s7, 1
    s_mul_i32 s3, s3, {QKB_PT}
    s_lshl_b32 s4, s11, 5
    s_add_u32 s3, s3, s4
    s_add_u32 s4, s3, {QKB_PT}
    ''')
    for pt in range(2):
        for j in range(2):
            r = HACC + (pt * 2 + j) * 16
            for b in range(2):
                a.I(f'buffer_store_dwordx4 {vr(r+4*b,4)}, v104, {W}, s{3+pt} offen offset:{(2*j+b)*1024} sc1')
    a.I(f's_branch {N}_h1done')
    a.L(f'{N}_h1N')
    h1loop('N')
    a.I(f'''
    s_cmp_ge_u32 s11, 3840
    s_cbranch_scc1 {N}_h1done
    s_sub_u32 s3, s11, 2560
    s_lshl_b32 s3, s3, 11
    s_lshl_b32 s4, s7, 12
    s_add_u32 s3, s3, s4
    s_add_u32 s3, s3, {WS_VBT}
    s_add_u32 s4, s3, {VBT_NT}
    ''')
    for pt in range(2):
        for j in range(2):
            r = HACC + (pt * 2 + j) * 16
            for b in range(2):
                a.I(f'buffer_store_dwordx4 {vr(r+4*b,4)}, v104, {W}, s{3+j} offen offset:{(2*pt+b)*1024} sc1')
    a.L(f'{N}_h1done')
    for k in range(3): a.I(f'buffer_store_dwordx4 v[100:103], v104, {W}, s43 offen offset:{k*1024} sc1')
    a.I(f's_setprio {OPT["cprio"]}')
    a.stamp(4)
    def setflag(word, cw):
        l = lab()
        a.I(f'''
        v_mov_b32 v{T0}, {SYNC}
        v_mov_b32 v{T1}, 1
        s_mov_b64 exec, 1
        ds_add_rtn_u32 v{T1}, v{T0}, v{T1} offset:{cw}
        v_mov_b32 v{T0}, 0
        v_mov_b32 v{T2}, s62
        v_mov_b32 v{T3}, s63
        s_waitcnt lgkmcnt(0)
        v_cmp_eq_u32 vcc, 3, v{T1}
        s_cbranch_vccz {l}
        buffer_store_dwordx2 {vr(T2,2)}, v{T0}, {W}, s23 offen offset:{word*1024} sc1
        ''')
        a.L(l)
        a.I('s_mov_b64 exec, -1')
    def pollflag(soff, va, minb=None, sleep=OPT['psleep']):
        l = lab()
        a.I('s_mov_b32 s19, 0')
        a.L(l)
        if minb is not None:
            a.I(f's_call_b64 {RET}, {N}_wob')
        a.I(f'''
        buffer_load_dwordx2 {vr(T2,2)}, v{va}, {W}, {soff} offen sc1
        s_add_u32 s19, s19, 1
        s_waitcnt vmcnt(0)
        v_cmp_ne_u64 vcc, s[62:63], {vr(T2,2)}
        ''')
        if minb:
            a.I(f's_cmp_lt_u32 s15, {minb}')
            a.I(f's_cbranch_scc1 {l}')
        a.I(f's_cbranch_vccz {l}_ok')
        if sleep: a.I(f's_sleep {sleep}')
        a.I(f'''
        s_cmp_lt_u32 s19, {SPIN}
        s_cbranch_scc1 {l}
        ''')
        a.L(l + '_ok')
    def stream(lim):
        l = lab()
        a.L(l)
        a.I(f'''
        s_call_b64 {RET}, {N}_wob
        s_cmp_lt_u32 s15, {lim}
        s_cbranch_scc1 {l}
        ''')
    def pollshare(soff, va, pw, cw):
        l = lab()
        a.I(f's_cmp_lg_u32 s9, {pw}')
        a.I(f's_cbranch_scc1 {l}')
        pollflag(soff, va)
        arrive(cw)
        a.I(f's_branch {l}_ok')
        a.L(l)
        a.I(f'v_mov_b32 v{T3}, {SYNC}')
        a.I('s_mov_b32 s19, 0')
        a.I('s_waitcnt vmcnt(0)')
        a.L(l + '_w')
        a.I(f'''
        ds_read_b32 v{T2}, v{T3} offset:{cw}
        s_add_u32 s19, s19, 1
        s_waitcnt lgkmcnt(0)
        v_readfirstlane_b32 s3, v{T2}
        s_cmp_lg_u32 s3, 0
        s_cbranch_scc1 {l}_ok
        s_setprio {OPT['wprio']}
        s_sleep {OPT['wsleep']}
        s_cmp_lt_u32 s19, {SPIN*8}
        s_cbranch_scc1 {l}_w
        ''')
        a.L(l + '_ok')
    srd(a, 44, 30, 819200)
    LQ, LK, LV, LG = 28, 44, 64, 84
    LS, LP, M, LO, LL = 88, 120, 136, 172, 204
    a.I(f'''
    s_lshl_b32 s12, s10, 10
    s_mul_i32 s22, s7, {FG}
    s_add_u32 s22, s22, {WS_FG}
    s_lshl_b32 s3, s8, 7
    s_add_u32 s23, s22, s3
    s_and_b32 s13, s7, {7 if OPT['map2'] else 3}
    s_cmp_ge_u32 s13, 5
    s_cselect_b32 s3, 5, 0
    s_sub_u32 s13, s13, s3
    s_mov_b32 s14, {OPT['st2']}
    s_mov_b32 s15, 0
    s_lshl_b32 s3, s7, 1
    s_mul_i32 s29, s3, {QKB_PT}
    s_add_u32 s30, s29, {QKB_PT}
    s_add_u32 s31, s29, 40960
    s_add_u32 s32, s30, 40960
    s_sub_u32 s33, s31, {QKB_PT}
    s_lshl_b32 s26, s7, 12
    s_add_u32 s26, s26, {WS_VBT}
    s_sub_u32 s27, s26, 1024
    s_sub_u32 s28, s22, {FG}
    s_cmp_eq_u32 s7, 0
    s_cselect_b32 s33, s31, s33
    s_cselect_b32 s27, s26, s27
    s_cselect_b32 s28, s22, s28
    s_lshl_b32 s18, s7, 8
    s_add_u32 s18, s18, {WS_G}
    ''')
    for u in range(4):
        a.I(f'v_mov_b32 v{LQ+4*u+2}, 0')
        a.I(f'v_mov_b32 v{LQ+4*u+3}, 0')
    a.I('s_waitcnt vmcnt(0)')
    vstamp(19)
    setflag(0, C_2)
    ldswait(C_H, 8, T2, T3, hp=OPT['cprio'])
    vstamp(20)
    stream(OPT['st2'])
    a.I(f's_setprio {OPT["hprio"]}')
    for k in range(3): a.I(f'buffer_store_dwordx4 v[100:103], v104, {W}, s42 offen offset:{k*1024} sc1')
    a.I(f's_setprio {OPT["cprio"]}')
    vstamp(21)
    pollshare('s28', vF2, 4, C_S2)
    if STAMPS: a.I('v_writelane_b32 v0, s19, 27')
    a.stamp(5)
    if STAMPS: a.I('v_writelane_b32 v0, s15, 31')
    a.I(f's_setprio {OPT["hprio"]}')
    for u in range(4):
        a.I(f'buffer_load_dwordx2 {vr(LQ+4*u,2)}, v{LA}, {W}, s{29+(u>>1)} offen offset:{256*(u&1)} sc1')
    a.I('s_mov_b64 exec, 0xffff')
    for u in range(4):
        a.I(f'buffer_load_dwordx2 {vr(LQ+4*u+2,2)}, v{LA+1}, {W}, s{29+(u>>1)} offen offset:{256*(u&1)} sc1')
    a.I('s_mov_b64 exec, -1')
    for kt, (so, off) in enumerate([('s33', 256), ('s31', 0), ('s31', 256), ('s32', 0), ('s32', 256)]):
        a.I(f'buffer_load_dwordx2 {vr(LK+4*kt,2)}, v{LA}, {W}, {so} offen offset:{off} sc1')
        a.I(f'buffer_load_dwordx2 {vr(LK+4*kt+2,2)}, v{LA+1}, {W}, {so} offen offset:{off} sc1')
    for d in range(2):
        for kt in range(5):
            so, off = ('s27', 0) if kt == 0 else ('s26', (kt - 1) * 1024)
            a.I(f'buffer_load_dwordx2 {vr(LV+10*d+2*kt,2)}, v{LA+2+d}, {W}, {so} offen offset:{off} sc1')
    for u in range(4):
        a.I(f'buffer_load_dword v{LG+u}, v{LA+4}, {W}, s18 offen offset:{64*u} sc1')
    a.I(f's_setprio {OPT["h2prio"]}')
    a.I(f'''
    s_lshl_b32 s3, s7, 1
    s_mul_i32 s36, s3, {OAB_PT}
    s_mul_i32 s3, s8, 5120
    s_add_u32 s36, s36, s3
    s_add_u32 s36, s36, {WS_OAB + 40960}
    s_lshl_b32 s3, s10, 10
    s_add_u32 s37, s36, s3
    s_add_u32 s38, s37, {OAB_PT}
    s_lshr_b32 s3, s10, 1
    s_lshl_b32 s3, s3, 9
    s_and_b32 s4, s10, 1
    s_lshl_b32 s4, s4, 3
    s_add_u32 s3, s3, s4
    s_add_u32 s40, s36, s3
    s_add_u32 s40, s40, 4096
    s_add_u32 s41, s40, {OAB_PT}
    v_mov_b32 v{T4}, {f32hex(CSCALE)}
    v_mov_b32 v{T5}, {f32hex(-CSCALE)}
    ''')
    a.I(f'''
    s_add_u32 s3, s15, s13
    s_cmp_ge_u32 s3, 5
    s_cselect_b32 s4, 5, 0
    s_sub_u32 s3, s3, s4
    s_mul_i32 s42, s3, {128*1280}
    s_mul_i32 s43, s3, 20480
    s_add_u32 s43, s43, s12
    s_add_u32 s15, s15, {OPT['h2d']}
    s_mov_b32 s14, 5
    ''')
    nd = [0]
    def hd():
        if not OPT['h2d']: return
        j = nd[0]; nd[0] += 1
        a.I(f's_add_u32 m0, s43, {RA + j*4096}')
        a.I(f's_setprio {OPT["hprio"]}')
        a.I(f'buffer_load_dwordx4 v{VWO+j}, s[44:47], s42 offen lds')
        a.I(f's_setprio {OPT["h2prio"]}')
    vstamp(22)
    a.I('s_waitcnt vmcnt(14)')
    vstamp(24)
    for u in range(4):
        bp = LB + 8 if u == 0 else LB + 4
        a.I(f'{MF16} {vr(LS+8*u,4)}, {vr(LK+4*u,4)}, {vr(LQ+4*u,4)}, {vr(bp,4)}')
        a.I(f'{MF16} {vr(LS+8*u+4,4)}, {vr(LK+4*u+4,4)}, {vr(LQ+4*u,4)}, {vr(LB,4)}')
    hd()
    a.I('s_nop 3')
    for u in range(4):
        s = LS + 8 * u
        m = M + 2 * u
        a.I(f'''
        v_max3_f32 v{m}, v{s}, v{s+1}, v{s+2}
        v_max3_f32 v{m}, v{m}, v{s+3}, v{s+4}
        v_max3_f32 v{m}, v{m}, v{s+5}, v{s+6}
        v_max_f32 v{m}, v{m}, v{s+7}
        v_mov_b32 v{m+1}, v{m}
        ''')
    a.I('s_nop 1')
    for u in range(4):
        a.I(f'v_permlane16_swap_b32 v{M+2*u}, v{M+2*u+1}')
    for u in range(4):
        a.I(f'v_max_f32 v{M+2*u}, v{M+2*u}, v{M+2*u+1}')
    for u in range(4):
        a.I(f'v_mov_b32 v{M+2*u+1}, v{M+2*u}')
    a.I('s_nop 1')
    for u in range(4):
        a.I(f'v_permlane32_swap_b32 v{M+2*u}, v{M+2*u+1}')
    for u in range(4):
        a.I(f'v_max_f32 v{M+2*u}, v{M+2*u}, v{M+2*u+1}')
    for u in range(4):
        a.I(f'v_mul_f32 v{M+2*u}, v{T5}, v{M+2*u}')
    for u in range(4):
        s = LS + 8 * u
        for k in range(8):
            a.I(f'v_fma_f32 v{s+k}, v{s+k}, v{T4}, v{M+2*u}')
        for k in range(8):
            ex(s + k)
        if u % 2 == 0: hd()
    a.I('s_nop 0')
    for u in range(4):
        for k in range(4):
            cv(LP + 4 * u + k, LS + 8 * u + 2 * k)
    a.I(f's_waitcnt vmcnt({nd[0]})')
    a.I(f'v_add_u32 v{T2}, {GL}, v{LA+4}')
    for u in range(4):
        a.I(f'{MF16} {vr(LL+4*u,4)}, {vr(ONES,4)}, {vr(LP+4*u,4)}, 0')
        a.I(f'{MF16} {vr(LO+8*u,4)}, {vr(LV+2*u,4)}, {vr(LP+4*u,4)}, 0')
        a.I(f'{MF16} {vr(LO+8*u+4,4)}, {vr(LV+10+2*u,4)}, {vr(LP+4*u,4)}, 0')
        a.I(f'ds_write_b32 v{T2}, v{LG+u} offset:{64*u}')
    a.I('s_nop 3')
    for u in range(4):
        o = LO + 8 * u
        a.I(f'''
        v_rcp_f32 v{T2}, v{LL+4*u}
        v_sub_f32 v{T3}, 1.0, v{LG+u}
        v_mul_f32 v{T2}, v{T2}, v{T3}
        ''')
        for k in range(8):
            a.I(f'v_mul_f32 v{o+k}, v{T2}, v{o+k}')
        p = LS + 4 * (u >> 1) + 2 * (u & 1)
        cv(p, o); cv(p + 1, o + 2)
        cv(o, o + 4); cv(o + 1, o + 6)
        for r in (p, p + 1, o, o + 1): a.I(f'v_min_u32 v{r}, -2, v{r}')
        if u % 2 == 0: hd()
    a.I('s_nop 1')
    for pp in range(2):
        p = LS + 4 * pp
        a.I(f'v_permlane32_swap_b32 v{p}, v{p+2}')
        a.I(f'v_permlane32_swap_b32 v{p+1}, v{p+3}')
        a.I(f'buffer_store_dwordx4 {vr(p,4)}, v{vOB+1}, {W}, s{37+pp} offen sc1')
    a.I('s_mov_b64 exec, 0xffff')
    for u in range(4):
        a.I(f'buffer_store_dwordx2 {vr(LO+8*u,2)}, v{vOB}, {W}, s{40+(u>>1)} offen offset:{256*(u&1)} sc1')
    a.I('s_mov_b64 exec, -1')
    a.stamp(6)
    stream(5)
    dma = [(bi, j) for bi in range(3) for j in range(5 if bi < 2 else 3)]
    dma1 = list(dma)
    a.I('s_mov_b32 s44, s24\ns_mov_b32 s45, s25')
    a.I(f's_setprio {OPT["hprio"]}')
    for _ in range(OPT['pre1']):
        bi, j = dma1.pop(0)
        a.I(f's_add_u32 m0, s12, {RB + bi*20480 + j*4096}')
        a.I(f's_mov_b32 s4, {128*bi*1280}')
        a.I(f's_waitcnt vmcnt({OPT["wsub"]})')
        a.I(f'buffer_load_dwordx4 v{VWO+j}, s[44:47], s4 offen lds')
    a.I(f's_setprio {OPT["cprio"]}')
    a.I('s_waitcnt vmcnt(0)')
    arrive(C_H)
    a.stamp(7)
    HWR = 124
    NR = 6
    AW = OPT['AW']
    a.vm = []; a.lg = []
    def w3(s):
        for n, i in enumerate(wread(s, HWR + (s % NR) * 20)):
            a.LG(i, (s, n))
    def a3(s):
        a.VM(f'buffer_load_dwordx4 {vr(AF+4*s,4)}, v{vA}, {W}, s19 offen offset:{(s%2)*2048} sc1', s)
        if s % 2 == 1:
            a.I('s_add_u32 s19, s19, 4096')
    def check(s, nm):
        r = AF + 4 * s
        a.L(f'{N}_{nm}ck{s}')
        a.I(f"""
        s_setprio 3
        v_max3_u32 v{T0}, v{r}, v{r+1}, v{r+2}
        v_max3_u32 v{T1}, v{r+3}, v{r+4}, v{r+5}
        v_max3_u32 v{T0}, v{T0}, v{r+6}, v{r+7}
        v_max_u32 v{T0}, v{T0}, v{T1}
        v_cmp_eq_u32 vcc, -1, v{T0}
        s_setprio {OPT['h3prio'] if s < OPT['h3sw'] else 3}
        s_cbranch_vccnz {N}_{nm}rt{s}
        """)
        a.L(f'{N}_{nm}go{s}')
    a.I('s_add_u32 s19, s21, 40960')
    a.I('s_mov_b32 s18, 0')
    a.I(f's_setprio {OPT["hprio"]}')
    for s in range(AW): a3(s)
    a.I(f's_setprio {OPT["h3prio"]}')
    a.I('s_setprio 3')
    a.I(f'v_mov_b32 v{T4}, {SYNC}\nv_mov_b32 v{T5}, 1')
    ldswait(C_H, 12, T2, T3, hp=OPT['h3prio'])
    vstamp(11)
    if STAMPS: a.I('v_writelane_b32 v0, s15, 30')
    for s in range(NR - 1): w3(s)
    DS = OPT['dstart']
    for s in range(20):
        sn = s + NR - 1
        if s == OPT['h3sw']: OPT['h3prio'] = 3; a.I('s_setprio 3')
        if sn == 10:
            a.I('s_setprio 3')
            for k in range(5):
                a.I(f'v_add_u32 v{vR+k}, 51200, v{vR+k}')
            a.I(f's_setprio {OPT["h3prio"]}')
        if s == DS:
            a.wait(vm=lambda tg: tg < 100)
            for u in range(s + (s & 1), 20, 2): check(u, 'h')
            a.I('s_setprio 3')
            ldswait(C_M, 4, T2, T3, sleep=0, hp=OPT['h3prio'])
            a.lg = []
        if sn < 20: w3(sn)
        if s in (10, 15):
            if s == 15: a.wait(vm=lambda tg: tg <= 1000)
            a.I('s_mov_b64 exec, 1')
            a.LG(f'ds_add_u32 v{T4}, v{T5} offset:{C_M if s == 10 else C_E}', (s + 3, 99))
            a.I('s_mov_b64 exec, -1')
        a.wait(vm=lambda tg: tg <= s + 1 - (s & 1), lg=lambda tg: tg[0] <= s)
        if s % 2 == 0 and s < DS: check(s, 'h')
        for t in range(5):
            d = vr(CACC + 4 * t, 4)
            a.I(f'{MF16} {d}, {vr(HWR+(s%NR)*20+t*4,4)}, {vr(AF+4*s,4)}, {d if s else 0}')
            if t == 0 and s + AW < 20: a3(s + AW)
            if s >= OPT['d1'] and t in (1, 3) and dma1:
                bi, j = dma1.pop(0)
                a.I(f's_add_u32 m0, s12, {RB + bi*20480 + j*4096}')
                a.I(f's_mov_b32 s4, {128*bi*1280}')
                a.I(f's_setprio {OPT["hprio"]}')
                a.VM(f'buffer_load_dwordx4 v{VWO+j}, s[44:47], s4 offen lds', 1000)
                a.I(f's_setprio {OPT["h3prio"]}')
            elif s >= DS and t in (1, 3) and dma:
                bi, j = dma.pop(0)
                a.I(f's_add_u32 m0, s12, {RA + bi*20480 + j*4096}')
                a.I(f's_mov_b32 s4, {(320 + 128*bi)*1280}')
                if (bi, j) == (2, 2):
                    a.I(f's_cmp_ge_u32 s10, 2\ns_cbranch_scc1 {N}_nodma')
                a.I(f's_setprio {OPT["hprio"]}')
                a.VM(f'buffer_load_dwordx4 v{VWO+j}, s[44:47], s4 offen lds', 2000)
                a.I(f's_setprio {OPT["h3prio"]}')
                if (bi, j) == (2, 2):
                    assert s > 15
                    a.L(f'{N}_nodma')
    assert not dma and DS + AW >= 20 and DS > 10
    a.I('s_setprio 3')
    vstamp(12)
    if STAMPS: a.I('v_writelane_b32 v0, s18, 28')
    for k in range(5):
        a.I(f'v_subrev_u32 v{vR+k}, 51200, v{vR+k}')
    a.I('s_add_u32 s22, s21, 20480')
    a.I('s_waitcnt vmcnt(0)')
    arrive(C_H)
    a.stamp(8)
    a.I('s_setprio 0')
    ldswait(C_H, HDONE, T2, T3)
    vstamp(13)
    a.I(f's_call_b64 {RET}, {N}_wpre')
    vstamp(14)
    ldswait(C_T, 4, T2, T3)

    a.stamp(9)
    a.L(f'{N}_phaseC0')
    CS = [22, 23, 26, 27, 28]
    a.I(f"""
    s_add_u32 s23, s22, 4096
    s_add_u32 s26, s22, 8192
    s_add_u32 s27, s22, 12288
    s_add_u32 s28, s22, 16384
    s_mov_b32 s19, 0
    s_call_b64 {RET}, {N}_cl0
    """)
    a.L(f'{N}_phaseC1')
    a.stamp(10)
    a.vm = []; a.lg = []
    srd(a, 52, 34, 2048 * 1280)
    vPa = 12
    a.I(f'''
    s_and_b32 s5, s9, 3
    s_mul_i32 s3, s5, 6144
    s_add_u32 s3, s3, {EXA}
    v_lshlrev_b32 v{vPa}, 4, v{vL}
    v_add_u32 v{vPa}, s3, v{vPa}
    s_lshl_b32 s3, s5, 2
    s_add_u32 s3, s3, {SYNC + C_P}
    v_mov_b32 v{vPa+1}, s3
    v_mul_u32_u24 v{vPa+2}, 1280, v{vC}
    v_and_b32 v{vPa+4}, 1, v{vG4}
    v_lshl_add_u32 v{vPa+4}, v{vPa+4}, 5, v{vPa+2}
    v_lshl_add_u32 v{vPa+4}, v{vH}, 4, v{vPa+4}
    v_lshl_add_u32 v{vPa+2}, v{vG4}, 3, v{vPa+2}
    s_lshl_b32 s3, s7, 6
    s_lshl_b32 s4, s5, 4
    s_add_u32 s3, s3, s4
    s_mul_i32 s13, s3, 1280
    s_mul_i32 s5, s8, 160
    s_add_u32 s13, s13, s5
    v_mov_b32 v{vPa+3}, 1
    ''')
    a.I('s_waitcnt lgkmcnt(0)')
    for s in range(10):
        if s == 8: a.I('s_waitcnt lgkmcnt(10)')
        if s == 9: a.I('s_waitcnt lgkmcnt(0)')
        if s % 2 == 0:
            r = AF + 4 * s
            a.L(f'{N}_ck{s}')
            a.I(f"""
            s_waitcnt vmcnt({8-s})
            v_max3_u32 v{T0}, v{r}, v{r+1}, v{r+2}
            v_max3_u32 v{T1}, v{r+3}, v{r+4}, v{r+5}
            v_max3_u32 v{T0}, v{T0}, v{r+6}, v{r+7}
            v_max_u32 v{T0}, v{T0}, v{T1}
            v_cmp_eq_u32 vcc, -1, v{T0}
            s_cbranch_vccnz {N}_rt{s}
            """)
            a.L(f'{N}_go{s}')
        for t in range(5):
            d = vr(CACC + 4 * t, 4)
            a.I(f'{MF16} {d}, {vr(WF+(s%8)*20+t*4,4)}, {vr(AF+4*s,4)}, {d}')
        if s in (1, 2):
            for i in wread(7 + s, WF + (s - 1)*20): a.I(i)
    if STAMPS: a.I('v_writelane_b32 v0, s19, 29')
    a.stamp(11)
    a.I(f'''
    s_cmp_ge_u32 s9, 4
    s_cbranch_scc1 {N}_red
    s_nop 3
    ''')
    for t in range(5):
        a.I(f'ds_write_b128 v{vPa}, {vr(CACC+4*t,4)} offset:{t*1024}')
    a.I(f'''
    s_waitcnt lgkmcnt(0)
    ds_write_b32 v{vPa+1}, v{vPa+3}
    s_waitcnt lgkmcnt(0)
    s_branch {N}_fin
    ''')
    a.L(f'{N}_red')
    a.I('s_mov_b32 s4, 0')
    a.L(f'{N}_red1')
    a.I(f'ds_read_b32 v{T0}, v{vPa+1}')
    for t in range(5):
        a.I(f'ds_read_b128 {vr(AF+4*t,4)}, v{vPa} offset:{t*1024}')
    a.I(f'''
    s_add_u32 s4, s4, 1
    s_waitcnt lgkmcnt(5)
    v_readfirstlane_b32 s3, v{T0}
    s_cmp_lg_u32 s3, 0
    s_cbranch_scc1 {N}_red2
    s_cmp_lt_u32 s4, {SPIN*8}
    s_cbranch_scc1 {N}_red1
    ''')
    a.L(f'{N}_red2')
    for t in range(5):
        c, b = CACC + 4 * t, AF + 4 * t
        a.I(f's_waitcnt lgkmcnt({4-t})')
        a.I(f'v_pk_add_f32 {vr(c,2)}, {vr(c,2)}, {vr(b,2)}')
        a.I(f'v_pk_add_f32 {vr(c+2,2)}, {vr(c+2,2)}, {vr(b+2,2)}')
        d = CACC + 8 * (t >> 1) + 2 * (t & 1)
        cv(d, c); cv(d + 1, c + 2)
        if t == 4:
            a.I(f'buffer_store_dwordx2 {vr(d,2)}, v{vPa+2}, s[52:55], s13 offen offset:{t*32}')
        if t in (2, 4):
            d = CACC + 4 * (t - 2)
            a.I(f'v_permlane16_swap_b32 v{d}, v{d+2}')
            a.I(f'v_permlane16_swap_b32 v{d+1}, v{d+3}')
            a.I(f'buffer_store_dwordx4 {vr(d,4)}, v{vPa+4}, s[52:55], s13 offen offset:{(t-2)*32}')
    a.L(f'{N}_fin')
    if STAMPS:
        a.stamp(12)
        a.I('s_waitcnt vmcnt(0)')
        a.stamp(13)
        if OPT['dbg']:
            a.I('s_memrealtime s[94:95]')
            a.I('s_load_dwordx2 s[36:37], s[0:1], 80')
            a.I('s_waitcnt lgkmcnt(0)')
            srd(a, 56, 36, 256)
            a.I(f's_cmp_lg_u32 s2, {OPT["dbg"]-1}')
            a.I(f's_cbranch_scc1 {N}_end')
            a.I(f's_and_b32 s3, s9, 3')
            a.I(f's_cmp_lg_u32 s3, 0')
            a.I(f's_cbranch_scc1 {N}_end')
            a.I('s_mov_b64 exec, 1')
            a.I(f'v_mov_b32 v{T0}, 0')
            a.I('s_lshr_b32 s5, s9, 2')
            a.I('s_mul_i32 s5, s5, 28')
            sel = [2,4,5,8,10,13,15]
            selh = [3,4,5,7,8,10,13]
            a.I('s_sub_u32 s94, s94, s92')
            a.I('s_add_u32 s94, s94, s64')
            for k in range(7):
                a.I(f's_cmp_eq_u32 s9, 0')
                a.I(f's_cselect_b32 s3, s{64+2*sel[k]}, s{64+2*selh[k]}')
                a.I(f's_sub_u32 s3, s3, s64')
                a.I(f'v_mov_b32 v{T1}, s3')
                a.I(f'buffer_store_dword v{T1}, v{T0}, s[56:59], s5 offen offset:{8+4*k}')
            a.I(f's_branch {N}_end')
        a.dump_stamps(14, 48, WS_STAMP, 9, T0, T1)
        a.I(f'''
        v_lshlrev_b32 v{T0}, 2, v{vL}
        s_getreg_b32 s4, hwreg(HW_REG_HW_ID)
        v_writelane_b32 v0, s4, 15
        s_lshl_b32 s3, s2, 3
        s_add_u32 s3, s3, s9
        s_lshl_b32 s3, s3, 7
        s_add_u32 s3, s3, {WS_STAMP + 262144}
        s_mov_b32 exec_hi, 0
        buffer_store_dword v0, v{T0}, {W}, s3 offen
        ''')
    a.L(f'{N}_end')
    a.I('s_endpgm')
    for s in range(0, 10, 2):
        a.L(f'{N}_rt{s}')
        a.I(f"""
        s_add_u32 s19, s19, 1
        s_cmp_gt_u32 s19, {SPIN}
        s_cbranch_scc1 {N}_go{s}
        s_call_b64 {RET}, {N}_cl{s}
        s_branch {N}_ck{s}
        """)
    for s in range(0, 20, 2):
        a.L(f'{N}_hrt{s}')
        a.I(f"""
        s_add_u32 s18, s18, 1
        s_cmp_gt_u32 s18, {SPIN}
        s_cbranch_scc1 {N}_hgo{s}
        s_add_u32 s3, s21, {40960 + s*2048}
        s_add_u32 s4, s3, 4096
        """)
        for u in range(s, min(s + 4, 20)):
            a.I(f'buffer_load_dwordx4 {vr(AF+4*u,4)}, v{vA}, {W}, s{3+(u-s)//2} offen offset:{(u%2)*2048} sc1')
        a.I(f's_waitcnt vmcnt(0)')
        a.I(f's_branch {N}_hck{s}')
    for s in range(10):
        a.L(f'{N}_cl{s}')
        a.I(f'buffer_load_dwordx4 {vr(AF+4*s,4)}, v{vA}, {W}, s{CS[s//2]} offen offset:{(s%2)*2048} sc1')
    a.I(f's_setpc_b64 {RET}')
    a.L(f'{N}_last')
    return a.text()

def build(path):
    hdr = open('gated_mix__grouped_kv_mqa__sliding_local_dilated__prompt.s.ref').read().split('\n')
    head = [l for l in hdr if l.startswith(';') and '@launch' not in l]
    s = '\n'.join(head) + '\n'
    s += f'; @launch grid=(256,1,1) block=(512,1,1) lds={LDS}\n'
    s += '.amdgcn_target "amdgcn-amd-amdhsa--gfx950"\n.text\n'
    s += gen()
    s += '.section .rodata,"a"\n'
    s += kernel_desc(KNAME, 256, 0, 102)
    open(path, 'w').write(s)

if __name__ == '__main__':
    for arg in sys.argv[2:]:
        if arg == 'stamps': STAMPS = True
        elif '=' in arg:
            k, v = arg.split('='); OPT[k] = int(v)
    build(sys.argv[1])
```

```python
import math, sys
from asmlib import *

WS_QKB = 0
QKB_PT = 81920
WS_VBT = 64 * QKB_PT
VBT_NT = 131072
WS_KVF = WS_VBT + 20 * VBT_NT
KVT = 2816
KV_K2, KV_C, KV_V1, KV_V2 = 1024, 1280, 1408, 2080
WS_G = WS_KVF + 64 * KVT
WS_FLG = WS_G + 8192
WS_FG = WS_FLG + 8192
FG = 48 * 128
WS_OAB = WS_FG + 32 * FG
OAB_PT = 81920
WS_STAMP = WS_OAB + 64 * OAB_PT
WS_END = WS_STAMP + 524288
STAMPS = False
CSCALE = math.log2(math.e) / math.sqrt(20.0)
QBSCALE = 1.0
MF16 = 'v_mfma_f32_16x16x32_bf16'
MF32 = 'v_mfma_f32_32x32x16_bf16'
MF32h = 'v_mfma_f32_32x32x8_bf16'
KNAME = 'gated_mix__grouped_kv_mqa__sliding_local_dilated__prompt_kernel'

XT = 0
SLOT = [81920, 102400, 122880]
EXB = 122880
QX = 81920
SYNC = 161792
C_X, C_W, C_Q, C_H, C_N, C_2, C_3, C_F, C_R, C_S2, C_S3 = 0, 8, 16, 36, 40, 48, 52, 56, 60, 64, 68
C_T, C_M, C_P, C_B, C_E, C_S1, C_A, C_QH = 72, 76, 80, 96, 112, 116, 128, 120
GV = 162048
GL = 163328
LDS = 163840
HR = 122880
RA = 0
RB = 102400
EXA = 51200
PART = 51200
SPIN = 200000

OPT = dict(rl=4, h2m=3, xpub=10, w2e=0, wprio=1, wsleep=1, boost=0, xprio=3, cprio=3, bj=0, kg=39, swapx=0, hpf=0, jeven=1, peel=1, kvpf=0, lk=4, eprio=3, pre1=0, p1m=1, cl=0, s3b=8, dstart=12, att2=1, gp=3, par=0, par3=0, ffin=1, ct=0, wqpf=0, tlb=0, dbg=0, st2=2, d1=4, h3prio=1, h3sw=99, h2prio=3, h2d=1, AW=12, w0early=0, cpf=1, npre=2, hstart=2, wsub=3, psleep=2, PD=1, aprio=2, hprio=0, p1start=2, wstart=5, NB=8, nosc1=0, noatt=0, map2=1, pf=8, sprio=0, pf0=3, mprio=0, p1sleep=2, kvtest=0, vprio=1)

def srd(a, d, base, size):
    a.I(f's_mov_b32 s{d}, s{base}')
    a.I(f's_mov_b32 s{d+1}, s{base+1}')
    a.I(f's_mov_b32 s{d+2}, {size}')
    a.I(f's_mov_b32 s{d+3}, 0x20000')

def gen():
    a = Asm()
    a.stamps = STAMPS
    N = 'F'
    W = 's[48:51]'
    vL, vH, vP = 1, 2, 3
    T0, T1, T2, T3, T4, T5 = 4, 5, 6, 7, 8, 9
    vC, vG4 = 10, 11
    RET = 's[98:99]'
    ex = lambda r: a.I(f'v_exp_f32 v{r}, v{r}')
    cv = lambda d, s: a.I(f'v_cvt_pk_bf16_f32 v{d}, v{s}, v{s+1}')
    def lab():
        a.nlabel += 1
        return f'{N}_l{a.nlabel}'
    def ldswait(word, target, vt, va, sleep=1, hp=None):
        l = lab()
        a.I(f'v_mov_b32 v{va}, {SYNC}')
        a.I('s_mov_b32 s4, 0')
        a.L(l)
        a.I(f'''
        ds_read_b32 v{vt}, v{va} offset:{word}
        s_add_u32 s4, s4, 1
        s_waitcnt lgkmcnt(0)
        v_readfirstlane_b32 s3, v{vt}
        s_cmp_ge_u32 s3, {target}
        s_cbranch_scc1 {l}_ok
        ''')
        if hp is not None: a.I(f's_setprio {OPT["vprio"]}')
        if sleep: a.I(f's_sleep {sleep}')
        a.I(f'''
        s_cmp_lt_u32 s4, {SPIN*8}
        s_cbranch_scc1 {l}
        ''')
        a.L(l + '_ok')
        if hp is not None: a.I(f's_setprio {hp}')
    def arrive(word, va=T0, vd=T1):
        a.I(f'''
        v_mov_b32 v{va}, {SYNC}
        v_mov_b32 v{vd}, 1
        s_mov_b64 exec, 1
        ds_add_u32 v{va}, v{vd} offset:{word}
        s_mov_b64 exec, -1
        ''')

    def zero(r0, r1):
        assert r0 % 2 == 0 and r1 % 2 == 0
        for r in range(r0, r1, 2):
            a.I(f'v_mov_b64 {vr(r,2)}, 0')
    def vstamp(lane):
        if STAMPS:
            a.I(f's_memtime s[100:101]\ns_waitcnt lgkmcnt(0)\nv_writelane_b32 v0, s100, {lane}')
    def getnonce(vt, va):
        l = lab()
        a.I(f'v_mov_b32 v{va}, {SYNC}')
        a.I('s_mov_b32 s4, 0')
        a.L(l)
        a.I(f'''
        ds_read_b64 {vr(vt,2)}, v{va} offset:{C_N}
        s_add_u32 s4, s4, 1
        s_waitcnt lgkmcnt(0)
        v_readfirstlane_b32 s62, v{vt}
        v_readfirstlane_b32 s63, v{vt+1}
        s_cmp_lg_u32 s62, 0
        s_cbranch_scc1 {l}_ok
        s_cmp_lt_u32 s4, {SPIN*8}
        s_cbranch_scc1 {l}
        ''')
        a.L(l + '_ok')
    a.raw(kernel_header(KNAME))
    a.I('s_cmp_ge_u32 s2, 256')
    a.I(f's_cbranch_scc1 {N}_end')
    a.stamp(0)
    a.I('s_load_dwordx16 s[16:31], s[0:1], 0')
    a.I('s_load_dwordx8 s[32:39], s[0:1], 64')
    a.I(f'''
    v_and_b32 v{vL}, 63, v0
    v_lshrrev_b32 v{T0}, 6, v0
    v_lshrrev_b32 v{vH}, 5, v{vL}
    v_readfirstlane_b32 s9, v{T0}
    v_and_b32 v{vP}, 31, v{vL}
    v_and_b32 v{vC}, 15, v{vL}
    v_lshrrev_b32 v{vG4}, 4, v{vL}
    s_and_b32 s3, s2, 7
    s_lshr_b32 s6, s2, 3
    ''')
    if not OPT['map2']:
        a.I(f'''
        s_lshl_b32 s3, s3, 2
        s_lshr_b32 s5, s6, 3
        s_add_u32 s7, s3, s5
        s_and_b32 s8, s6, 7
        s_cmp_ge_u32 s8, 5
        s_cselect_b32 s3, 5, 0
        s_sub_u32 s60, s8, s3
        s_and_b32 s61, s7, 3
        s_lshl_b32 s3, s61, 1
        s_sub_u32 s96, s8, s3
        s_and_b32 s96, s96, 7
        ''')
    else:
        a.I(f'''
        s_lshr_b32 s4, s3, 1
        s_lshl_b32 s4, s4, 3
        s_lshr_b32 s5, s6, 2
        s_add_u32 s7, s4, s5
        {'s_not_b32 s3, s3' if OPT['swapx'] else ''}
        s_and_b32 s3, s3, 1
        s_lshl_b32 s3, s3, 2
        s_and_b32 s60, s6, 3
        s_add_u32 s8, s3, s60
        s_cmp_ge_u32 s5, 5
        s_cselect_b32 s3, 5, 0
        s_sub_u32 s61, s5, s3
        s_sub_u32 s96, s8, s5
        s_and_b32 s96, s96, {3 if OPT['jeven'] else 7}
        ''')
        if OPT['jeven']: a.I('s_and_b32 s3, s8, 4\ns_or_b32 s96, s96, s3')
    vSY, vOne = 22, 23
    vXa, vWa, vEa = 16, 24, 18
    a.I(f"""
    s_and_b32 s10, s9, 1
    s_cmp_ge_u32 s9, 4
    s_cbranch_scc1 {N}_hi
    s_cmp_lt_u32 s9, 2
    s_cbranch_scc1 {N}_lo
    """)
    a.I(f"""
    s_lshl_b32 s3, s7, 6
    s_lshl_b32 s4, s10, 4
    s_add_u32 s3, s3, s4
    v_lshrrev_b32 v{T0}, 3, v{vL}
    v_and_b32 v{T1}, 7, v{vL}
    v_xor_b32 v{T3}, v{vG4}, v{T1}
    v_add_u32 v{T2}, s3, v{T0}
    v_mul_u32_u24 v{T2}, 1280, v{T2}
    v_lshl_add_u32 v{vXa}, v{T3}, 4, v{T2}
    v_xor_b32 v{T3}, 4, v{T3}
    v_lshl_add_u32 v{vXa+1}, v{T3}, 4, v{T2}
    v_add_u32 v{vXa+1}, {8*1280}, v{vXa+1}
    s_lshl_b32 s11, s10, 10
    v_lshlrev_b32 v{vEa}, 4, v{vL}
    s_and_b32 s3, s96, 1
    s_mul_i32 s13, s3, 40960
    s_lshl_b32 s12, s3, 12
    s_lshl_b32 s4, s10, 11
    s_add_u32 s12, s12, s4
    s_lshl_b32 s3, s10, 2
    s_add_u32 s3, s3, {SYNC + C_X}
    v_mov_b32 v{vSY}, s3
    s_waitcnt lgkmcnt(0)
    """)
    srd(a, 40, 16, 2048 * 1280)
    q = []
    def issue(kind, slot=None):
        if kind == 'X':
            a.I(f's_call_b64 {RET}, {N}_xissue'); q.append(4)
        elif kind == 'E':
            a.I(f's_call_b64 {RET}, {N}_eissue'); q.append(7)
        else:
            a.I(f's_mov_b32 s15, {SLOT[slot]}')
            a.I(f's_call_b64 {RET}, {N}_wissue'); q.append(10)
    npub = [0]
    def pub(val=None, nowait=False):
        if val is None:
            q.pop(0)
            npub[0] += 1
            val = npub[0]
        else:
            q.clear()
        a.I(f'v_mov_b32 v{vOne}, {val}')
        if not nowait: a.I(f's_waitcnt vmcnt({sum(q)})')
        a.I(f'ds_write_b32 v{vSY}, v{vOne}')
        vstamp(16 + min(val, 6))
    flip = f"""
    s_xor_b32 s13, s13, 40960
    s_xor_b32 s12, s12, 4096
    """
    vstamp(23)
    a.I('s_barrier')
    vstamp(24)
    a.I(f"""
    s_cmp_ge_u32 s96, 4
    s_cbranch_scc1 {N}_noex
    s_cmp_lt_u32 s96, 2
    s_cselect_b32 s52, s20, s22
    s_cselect_b32 s53, s21, s23
    s_mov_b32 s54, 25600
    s_mov_b32 s55, 0x20000
    """)
    issue('E'); issue('E'); issue('E'); issue('E'); pub(); issue('E'); a.I(flip)
    for _ in range(4):
        pub(); issue('X')
    issue('X')
    a.I(f's_branch {N}_xdone')
    a.L(f'{N}_noex')
    a.I(f"""
    s_cmp_lg_u32 s96, 4
    s_cbranch_scc1 {N}_nog
    """)
    srd(a, 52, 32, 1280)
    a.I(f"""
    s_add_u32 m0, s11, {GV}
    s_cmp_eq_u32 s10, 0
    s_cselect_b32 exec_lo, -1, 0xffff
    s_cselect_b32 exec_hi, -1, 0
    buffer_load_dwordx4 v{vEa}, s[52:55], s11 offen lds
    s_mov_b64 exec, -1
    """)
    a.L(f'{N}_nog')
    for n in range(10):
        if n == 5: a.I(flip)
        issue('X')
        if n + 1 == OPT['xpub']: pub(5, nowait=True)
    a.L(f'{N}_xdone')
    pub(10)
    a.I(f's_branch {N}_work')
    a.L(f'{N}_hi')
    a.I(f"""
    s_barrier
    s_waitcnt lgkmcnt(0)
    """)
    def wqpf():
        srd(a, 52, 18, 819200)
        a.I(f"""
        s_lshl_b32 s3, s6, 1
        s_add_u32 s3, s3, s10
        s_mul_i32 s15, s3, 12800
        s_lshr_b32 s3, s8, 2
        s_mul_i32 s3, s3, 640
        s_add_u32 s15, s15, s3
        s_call_b64 {RET}, {N}_wpf
        """)
    if OPT['wqpf'] == 1:
        a.I(f's_cmp_lt_u32 s9, 6\ns_cbranch_scc1 {N}_nopf')
        wqpf()
        a.L(f'{N}_nopf')
    a.I(f"""
    {'' if OPT['w0early'] else f's_call_b64 {RET}, {N}_hsetup'}
    s_cmp_ge_u32 s9, 6
    s_cbranch_scc1 {N}_wload
    {f's_call_b64 {RET}, {N}_hsetup' if OPT['w0early'] else ''}
    s_cmp_eq_u32 s96, 4
    s_cbranch_scc1 {N}_extra
    s_cmp_gt_u32 s96, 4
    s_cbranch_scc1 {N}_hpre2
    s_cmp_eq_u32 s9, 5
    s_cbranch_scc1 {N}_hpre2
    s_branch {N}_extra
    """)
    a.L(f'{N}_wload')
    if OPT['wqpf'] == 2: wqpf()
    a.I(f's_mul_i32 s3, s8, 160')
    for n in range(5):
        a.I(f"""
        v_add_u32 v{T0}, {n*64}, v{vL}
        v_mul_u32_u24 v{T1}, 6554, v{T0}
        v_lshrrev_b32 v{T1}, 16, v{T1}
        v_mul_u32_u24 v{T2}, 160, v{T1}
        v_lshlrev_b32 v{T0}, 4, v{T0}
        v_sub_u32 v{T0}, v{T0}, v{T2}
        v_bfe_u32 v{T2}, v{T1}, 1, 2
        v_and_b32 v{T3}, 1, v{T1}
        v_lshl_add_u32 v{T2}, v{T3}, 2, v{T2}
        v_and_b32 v{T1}, 24, v{T1}
        v_add_u32 v{T1}, v{T1}, v{T2}
        v_mul_u32_u24 v{T1}, 1280, v{T1}
        v_add3_u32 v{vWa+n}, v{T1}, v{T0}, s3
        """)
    srd(a, 44, 18, 819200)
    a.I(f"""
    s_lshl_b32 s3, s10, 2
    s_add_u32 s3, s3, {SYNC + C_W}
    v_mov_b32 v{vSY}, s3
    s_mul_i32 s11, s10, {64*1280}
    s_mul_i32 s13, s10, 10240
    """)
    if OPT['w0early']:
        a.I(f's_cmp_lt_u32 s96, 4')
        a.I(f's_cbranch_scc1 {N}_w0a')
        issue('W', 0); q.clear()
        a.L(f'{N}_w0a')
        a.I(f's_call_b64 {RET}, {N}_hsetup')
    a.I(f's_call_b64 {RET}, {N}_hsetup2')
    if OPT['wqpf'] == 3: wqpf()
    vstamp(16)
    npub[0] = 0
    ldswait(C_X, OPT['wstart'], T0, T1, sleep=1)
    if OPT['w0early']:
        a.I(f's_cmp_ge_u32 s96, 4')
        a.I(f's_cbranch_scc1 {N}_w0b')
    issue('W', 0)
    a.L(f'{N}_w0b')
    issue('W', 1)
    if OPT['w2e']:
        a.I(f's_cmp_lt_u32 s96, 4')
        a.I(f's_cbranch_scc1 {N}_jw')
        q0, n0 = list(q), npub[0]
        issue('W', 2); pub()
        a.I(f's_branch {N}_nof2')
        a.L(f'{N}_jw')
        q[:] = q0; npub[0] = n0
    pub()
    a.I(f's_cmp_ge_u32 s96, 4')
    a.I(f's_cbranch_scc1 {N}_nof')
    ldswait(C_F, 1, T0, T1, sleep=1)
    a.L(f'{N}_nof')
    issue('W', 2)
    a.L(f'{N}_nof2')
    pub()
    a.I(f"""
    s_cmp_eq_u32 s10, 0
    s_cselect_b32 s3, {SYNC + C_QH}, {SYNC + C_Q}
    v_mov_b32 v{T1}, s3
    """.replace(f's_cselect_b32 s3, {SYNC + C_QH}, {SYNC + C_Q}', f's_cselect_b32 s3, {C_QH - C_Q}, 0\ns_add_u32 s3, s3, {SYNC + C_Q}'))
    for st in (3, 4):
        a.I('s_mov_b32 s4, 0')
        a.L(f'{N}_wq{st}')
        a.I(f"""
        ds_read_b32 v{T0}, v{T1} offset:{4*(st-3)}
        s_add_u32 s4, s4, 1
        s_waitcnt lgkmcnt(0)
        v_readfirstlane_b32 s3, v{T0}
        s_cmp_ge_u32 s3, 4
        s_cbranch_scc1 {N}_wq{st}_ok
        s_cmp_lt_u32 s4, {SPIN*8}
        s_cbranch_scc1 {N}_wq{st}
        """)
        a.L(f'{N}_wq{st}_ok')
        issue('W', st - 3); pub()
    pub()
    a.stamp(1)
    a.I(f's_branch {N}_hpre')
    a.L(f'{N}_eissue')
    a.I(f"""
    s_mul_i32 s14, s60, 5120
    s_add_u32 s4, s14, s11
    s_add_u32 m0, s4, {EXB}
    s_add_u32 s14, s14, 4096
    buffer_load_dwordx4 v{vEa}, s[52:55], s4 offen lds
    buffer_load_dwordx4 v{vEa}, s[52:55], s4 offen offset:2048 lds
    s_add_u32 m0, s14, {EXB}
    s_nop 0
    buffer_load_dwordx4 v{vEa}, s[52:55], s14 offen lds
    """)
    a.L(f'{N}_xissue')
    a.I(f"""
    s_lshl_b32 s14, s60, 8
    s_add_u32 s14, s14, s13
    s_lshl_b32 s15, s60, 14
    s_add_u32 s15, s15, s12
    """)
    for c in range(2):
        for n in range(2):
            a.I(f's_add_u32 m0, s15, {c*8192 + n*1024}')
            a.I(f's_add_u32 s4, s14, {c*128}')
            a.I(f'buffer_load_dwordx4 v{vXa+n}, s[40:43], s4 offen lds')
    a.I(f"""
    s_add_u32 s60, s60, 1
    s_cmp_eq_u32 s60, 5
    s_cselect_b32 s60, 0, s60
    s_setpc_b64 {RET}
    """)
    a.L(f'{N}_wissue')
    a.I(f"""
    s_mul_i32 s14, s61, {128*1280}
    s_add_u32 s14, s14, s11
    s_add_u32 s15, s15, s13
    """)
    for g in range(2):
        for n in range(5):
            a.I(f's_add_u32 m0, s15, {g*5120 + n*1024}')
            a.I('s_nop 0' if (g, n) != (1, 0) else f's_add_u32 s14, s14, {32*1280}')
            a.I(f'buffer_load_dwordx4 v{vWa+n}, s[44:47], s14 offen lds')
    a.I(f"""
    s_add_u32 s61, s61, 1
    s_cmp_eq_u32 s61, 5
    s_cselect_b32 s61, 0, s61
    s_setpc_b64 {RET}
    """)

    a.L(f'{N}_lo')
    vXB = 12
    def xbases(vXB=12):
        a.I(f"""
        v_lshrrev_b32 v{T0}, 1, v{vP}
        v_and_b32 v{T0}, 7, v{T0}
        v_xor_b32 v{T0}, v{T0}, v{vH}
        v_lshlrev_b32 v{T1}, 7, v{vP}
        """)
        for ks in range(4):
            a.I(f'v_xor_b32 v{T2}, {2*ks}, v{T0}')
            a.I(f'v_lshl_add_u32 v{vXB+ks}, v{T2}, 4, v{T1}')
    a.I(f"""
    s_cmp_lg_u32 s9, 0
    s_cbranch_scc1 {N}_notpoll
    v_lshlrev_b32 v{T0}, 2, v{vL}
    v_add_u32 v{T0}, {SYNC}, v{T0}
    v_mov_b32 v{T1}, 0
    ds_write_b32 v{T0}, v{T1}
    s_waitcnt lgkmcnt(0)
    """)
    srd(a, 56, 36, 256)
    a.I(f"""
    s_cmp_lg_u32 s2, 0
    s_cbranch_scc1 {N}_n1
    s_memrealtime s[62:63]
    s_waitcnt lgkmcnt(0)
    s_or_b32 s62, s62, 1
    v_mov_b32 v{T2}, s62
    v_mov_b32 v{T3}, s63
    s_mov_b64 exec, 1
    buffer_store_dwordx2 {vr(T2,2)}, v{T1}, s[56:59], 0 offen sc1
    s_mov_b64 exec, -1
    s_barrier
    s_branch {N}_n2
    """)
    a.L(f'{N}_n1')
    a.I('s_barrier')
    a.I('s_mov_b32 s4, 0')
    a.I('s_sleep 8')
    a.L(f'{N}_n3')
    a.I(f"""
    s_sleep 4
    buffer_load_dwordx2 {vr(T2,2)}, v{T1}, s[56:59], 0 offen sc1
    s_add_u32 s4, s4, 1
    s_waitcnt vmcnt(0)
    v_readfirstlane_b32 s3, v{T2}
    s_cmp_lg_u32 s3, 0
    s_cbranch_scc1 {N}_n2
    s_cmp_lt_u32 s4, {SPIN}
    s_cbranch_scc1 {N}_n3
    """)
    a.L(f'{N}_n2')
    a.I(f"""
    v_mov_b32 v{T0}, {SYNC}
    ds_write_b64 v{T0}, {vr(T2,2)} offset:{C_N}
    """)
    vstamp(22)
    a.I(f's_branch {N}_work')
    a.L(f'{N}_notpoll')
    if OPT['cpf']:
        a.I(f"""
        s_getpc_b64 s[40:41]
        {N}_pc:
        s_sub_u32 s40, s40, {N}_pc-{KNAME}
        s_subb_u32 s41, s41, 0
        s_mov_b32 s42, {N}_last-{KNAME}
        s_mov_b32 s43, 0x20000
        s_lshl_b32 s3, s6, 11
        v_lshlrev_b32 v{T0}, 4, v{vL}
        buffer_load_dwordx4 v[144:147], v{T0}, s[40:43], s3 offen
        buffer_load_dwordx4 v[148:151], v{T0}, s[40:43], s3 offen offset:1024
        """)
    if OPT['tlb']:
        a.I(f"""
        s_mul_i32 s3, s7, {2*QKB_PT}
        s_add_u32 s4, s3, {WS_OAB}
        s_mul_i32 s5, s7, 81920
        s_mul_i32 s10, s8, {VBT_NT*5//2}
        s_add_u32 s10, s10, {WS_VBT}
        s_mov_b32 s11, {WS_KVF}
        s_mov_b32 s12, 0x12c000
        s_mov_b32 s13, 0x250000
        s_waitcnt lgkmcnt(0)
        s_load_dword s97, s[18:19], 0
        s_load_dword s97, s[38:39], s11
        s_load_dword s97, s[18:19], 0xc0000
        s_load_dword s97, s[28:29], 0
        s_load_dword s97, s[28:29], s12
        s_load_dword s97, s[28:29], s13
        s_load_dword s97, s[38:39], s3
        s_load_dword s97, s[38:39], s10
        s_load_dword s97, s[38:39], s4
        s_load_dword s97, s[24:25], 0
        s_load_dword s97, s[24:25], 0xc0000
        s_load_dword s97, s[30:31], 0
        s_load_dword s97, s[30:31], 0xc0000
        s_load_dword s97, s[34:35], s5
        """)
    a.I(f"""
    s_barrier
    """)
    a.L(f'{N}_work')
    vXQ = 90
    xbases(vXQ)
    vW0, vW1 = 106, 107
    vCX = 16
    vWB_, vCW = 20, 21
    FACC = 24
    FX = 56
    FWf = 88
    CNT = 104
    def worksetup():
        a.I(f"""
        v_bfe_u32 v{T0}, v{vL}, 2, 2
        v_lshl_add_u32 v{vW0}, v{vH}, 3, v{T0}
        v_and_b32 v{T1}, 3, v{vL}
        v_bfe_u32 v{T2}, v{vL}, 4, 1
        v_lshl_add_u32 v{T1}, v{T2}, 2, v{T1}
        v_min_u32 v{T1}, 4, v{T1}
        v_lshlrev_b32 v{vW1}, 3, v{T1}
        v_mov_b32 v{vSY}, {SYNC}
        v_mov_b32 v{vOne}, 1
        """)
        zero(FACC, FACC+16)
        a.I('s_waitcnt lgkmcnt(0)')
        srd(a, 48, 38, WS_END)
        a.I(f"""
        s_mov_b32 s5, 0
        s_mov_b32 s10, 0
        """)
    worksetup()
    def cntwait(top, need, first='s_waitcnt lgkmcnt(0)', off=C_X, CNT=CNT):
        if first: a.I(first)
        a.L(top)
        a.I(f"""
        v_readfirstlane_b32 s3, v{CNT}
        v_readfirstlane_b32 s4, v{CNT+1}
        s_min_u32 s3, s3, s4
        s_cmp_ge_u32 s3, {need}
        s_cbranch_scc1 {top}_go
        ds_read_b64 {vr(CNT,2)}, v{vSY} offset:{off}
        s_add_u32 s5, s5, 1
        s_cmp_lt_u32 s5, {SPIN*8}
        s_waitcnt lgkmcnt(0)
        s_cbranch_scc1 {top}
        """)
        a.L(top + '_go')
    vK1a, vK2a, vVa, vG = 12, 13, 14, 15
    Q1, Q2 = 16, 32
    P = 40
    S = [48, 64]
    O = 80
    NB = OPT['NB']
    KVB = 144
    def K1(b): return KVB + 14 * b
    def V1(b): return KVB + 14 * b + 4
    def V2(b): return KVB + 14 * b + 8
    def K2(b): return KVB + 14 * b + 12
    KZ = K1(NB-1); KZ2 = K2(NB-1)
    SC = '' if OPT['nosc1'] else ' sc1'
    srd(a, 44, 38, WS_END)
    QC = 88
    QW = 56
    XR = list(range(240, 256, 4)) + list(range(144, 172, 4)) + list(range(96, 144, 4)) + list(range(172, 240, 4))
    assert len(XR) == 40
    a.I(f"""
    ds_read_b64 {vr(QC,2)}, v{vSY}
    v_bfe_u32 v{T0}, v{vL}, 2, 2
    v_add_u32 v{T0}, v{T0}, v{vW0}
    v_mul_u32_u24 v{T0}, 160, v{T0}
    s_setprio 2
    s_and_b32 s10, s9, 1
    s_lshr_b32 s11, s9, 1
    s_mul_i32 s3, s11, 80
    v_add3_u32 v{vWB_}, v{T0}, v{vW1}, s3
    v_lshlrev_b32 v{vK1a}, 4, v{vL}
    v_lshlrev_b32 v{vK2a}, 3, v{vL}
    v_min_u32 v{vK2a}, 256, v{vK2a}
    v_mul_u32_u24 v{vVa}, 336, v{vH}
    v_lshl_add_u32 v{vVa}, v{vP}, 4, v{vVa}
    v_mov_b32 v{T3}, 0x7fffff00
    v_cmp_gt_u32 vcc, 21, v{vP}
    s_mul_i32 s12, s11, {32*KVT}
    s_add_u32 s12, s12, {WS_KVF}
    v_cndmask_b32 v{vVa}, v{T3}, v{vVa}, vcc
    s_add_u32 s13, s12, {32*KVT}
    s_mul_i32 s14, s6, {KVT}
    s_add_u32 s14, s14, s12
    s_mov_b32 s15, {WS_KVF}
    s_lshl_b32 s3, s9, 12
    s_add_u32 s3, s3, {QX}
    v_add_u32 v{T0}, s3, v{vK1a}
    v_xor_b32 v{T1}, 8192, v{T0}
    s_lshl_b32 s3, s9, 2
    s_add_u32 s3, s3, {SYNC + C_A}
    v_mov_b32 v{T2}, s3
    s_xor_b32 s3, s96, s10
    s_and_b32 s3, s3, 5
    s_cselect_b32 s18, 10, 5
    s_lshl_b32 s19, s10, 12
    v_add_u32 v{vCW}, {SLOT[0]}, v{vWB_}
    s_waitcnt vmcnt(0)
    """)
    assert QX % 16384 == 0 and (SYNC + C_A) % 16 == 0
    a.I(f'''
    s_lshl_b32 s3, s7, 1
    s_add_u32 s20, s3, s10
    s_xor_b32 s3, s9, 2
    s_mul_i32 s3, s3, 6144
    s_add_u32 s29, s3, {EXA}
    s_mul_i32 s3, s9, 6144
    s_add_u32 s30, s3, {EXA}
    s_lshl_b32 s3, s10, 7
    s_add_u32 s3, s3, {GL}
    v_lshlrev_b32 v{vG}, 2, v{vP}
    v_add_u32 v{vG}, s3, v{vG}
    s_lshl_b32 s3, s9, 2
    s_add_u32 s31, s3, {SYNC + C_B}
    s_mul_i32 s36, s20, {OAB_PT}
    s_mul_i32 s3, s8, 5120
    s_add_u32 s36, s36, s3
    s_add_u32 s36, s36, {WS_OAB}
    s_xor_b32 s4, s11, 1
    s_lshl_b32 s3, s4, 11
    s_add_u32 s37, s36, s3
    s_lshl_b32 s3, s4, 9
    s_add_u32 s40, s36, s3
    s_add_u32 s40, s40, 4096
    s_mov_b32 s42, {f32hex(2.0**100)}
    ''')
    zero(FACC+16, FACC+32)
    def qreads(ks, tag):
        b = ks % 4
        for j in range(2):
            for h in range(2):
                a.LG(f'ds_read_b64_tr_b16 {vr(QW+b*8+j*4+2*h,2)}, v{vCW} offset:{(ks*16+h)*160 + 40*j}', tag)
    def loadK(r1, r2, so):
        a.I(f'buffer_load_dwordx4 {vr(r1,4)}, v{vK1a}, {W}, {so} offen{SC}')
        a.I(f'buffer_load_dwordx2 {vr(r2,2)}, v{vK2a}, {W}, {so} offen offset:{KV_K2}{SC}')
    def loadV(b, so):
        a.I(f'buffer_load_dwordx4 {vr(V1(b),4)}, v{vVa}, {W}, {so} offen offset:{KV_V1}{SC}')
        a.I(f'buffer_load_dwordx4 {vr(V2(b),4)}, v{vVa}, {W}, {so} offen offset:{KV_V2}{SC}')
    adv = [f's_add_u32 s14, s14, {KVT}', 's_cmp_eq_u32 s14, s13', 's_cselect_b32 s14, s12, s14']
    def ldtile(b):
        if b == 0: loadK(KZ, KZ2, 's15')
        loadK(K1(b), K2(b), 's14'); loadV(b, 's14')
        for i in adv: a.I(i)
    cntwait(f'{N}_qwx', 's18', CNT=QC)
    vstamp(24)
    for st in range(5):
        a.I(f"""
        s_lshl_b32 s3, s61, 14
        s_add_u32 s3, s3, s19
        s_add_u32 s61, s61, 1
        s_cmp_eq_u32 s61, 5
        s_cselect_b32 s61, 0, s61
        """)
        for k in range(4):
            a.I(f'v_add_u32 v{vCX+k}, s3, v{vXQ+k}')
        for ks in range(8):
            a.I(f'ds_read_b128 {vr(XR[st*8+ks],4)}, v{vCX+(ks&3)} offset:{(ks>>2)*8192}')
    def wwait(top, need, h, first=None):
        if first: a.I(first)
        a.L(top)
        a.I(f"""
        v_readfirstlane_b32 s3, v{QC+h}
        s_cmp_ge_u32 s3, {need}
        s_cbranch_scc1 {top}_go
        ds_read_b32 v{QC+h}, v{vSY} offset:{C_W + 4*h}
        s_add_u32 s5, s5, 1
        s_cmp_lt_u32 s5, {SPIN*8}
        s_waitcnt lgkmcnt(0)
        s_cbranch_scc1 {top}
        """)
        a.L(top + '_go')
    a.I(f'ds_read_b64 {vr(QC,2)}, v{vSY} offset:{C_W}')
    wwait(f'{N}_qw0', 1, 0, 's_waitcnt lgkmcnt(0)')
    vstamp(16)
    a.lg = []
    a.LG(f'ds_read_b32 v{QC+1}, v{vSY} offset:{C_W+4}', 'c')
    for ks in range(3): qreads(ks, ks)
    zl = [V1(NB-1) + 2*k for k in range(4)] + list(range(96, 144, 2))
    for g in range(40):
        st, u = divmod(g, 8)
        if u == 5 and st < 4:
            a.wait(lg=lambda t: t == 'c')
            wwait(f'{N}_qw{st+1}', st + 2, 0)
            a.I(f'v_add_u32 v{vCW}, {SLOT[(st+1)%3]}, v{vWB_}')
        if u == 1:
            a.wait(lg=lambda t: t == 'c')
            wwait(f'{N}_qv{st}', st + 1, 1)
        if u in (3, 7) and st < 4:
            a.LG(f'ds_read_b32 v{QC + u//4}, v{vSY} offset:{C_W + 4*(u//4)}', 'c')
        if g + 3 < 40: qreads((u + 3) % 8, g + 3)
        if u == 4 or (u == 0 and st < 2):
            a.I('s_mov_b64 exec, 1')
            a.LG(f'ds_add_u32 v{vSY}, v{vOne} offset:{(C_Q if u else C_QH) + 4*st}', g + 3.5)
            a.I('s_mov_b64 exec, -1')
        if g == OPT['kg'] - 1:
            a.LG(f'ds_read_b32 v{T3}, v{vSY} offset:{C_S1}', g + 1)
        if g == 38:
            a.LG(f'ds_read_b32 v{T4}, v{vSY} offset:{C_Q + 12}', 50)
        a.wait(lg=lambda t: t != 'c' and t <= g)
        b = g % 4
        for j in range(2):
            d = vr(FACC + j * 16, 16)
            a.I(f'{MF32} {d}, {vr(QW + b*8 + j*4, 4)}, {vr(XR[g], 4)}, {d}')
            if g >= 25 and zl:
                a.I(f'v_mov_b64 {vr(zl.pop(0),2)}, 0')
        if g == OPT['kg']:
            a.I(f'v_cmp_ne_u32 vcc, 0, v{T3}')
            a.I(f's_cbranch_vccz {N}_kv1')
            ldtile(0)
            a.L(f'{N}_kv1')
        if STAMPS and u == 6: a.I('s_memtime s[100:101]')
        if STAMPS and u == 1 and st: a.I(f'v_writelane_b32 v0, s100, {24+st}')
    assert not zl
    a.stamp(2)
    R0 = K1(6)
    zero(88, 96); zero(80, 88)
    a.I(f"""
    v_mov_b32 v{R0}, v{T1}
    v_xor_b32 v{R0+1}, 8, v{T2}
    s_waitcnt lgkmcnt(0)
    v_readfirstlane_b32 s18, v{T4}
    v_mov_b32 v{T4}, {f32hex(CSCALE)}
    s_nop 4
    """)
    for j in range(2):
        r = FACC + 16 * j
        for k in range(6):
            a.I(f'v_pk_mul_f32 {vr(r+2*k,2)}, {vr(r+2*k,2)}, {vr(T4,2)} op_sel_hi:[1,0]')
        for k in range(4):
            cv(Q1 + 4*j + k, r + 2 * k)
        cv(Q2 + 2*j, r + 8); cv(Q2 + 2*j + 1, r + 10)
    a.I(f"""
    s_mov_b32 exec_lo, 0
    v_mov_b64 {vr(Q2,2)}, 0
    v_mov_b64 {vr(Q2+2,2)}, 0
    s_mov_b32 exec_lo, -1
    s_cmp_ge_u32 s18, 4
    s_cbranch_scc1 {N}_q3ok
    """)
    ldswait(C_Q + 12, 4, T4, T5, sleep=0)
    a.L(f'{N}_q3ok')
    for j in range(2):
        a.I(f'ds_write_b128 v{T0}, {vr(Q1+4*j,4)} offset:{j*1024}')
    a.stamp(1)
    if STAMPS: a.I('v_writelane_b32 v0, vcc_lo, 23')
    a.I(f's_cbranch_vccnz {N}_kvok')
    ldswait(C_S1, 1, T4, T5, sleep=0)
    ldtile(0)
    a.L(f'{N}_kvok')
    NPRE = OPT['npre']
    vstamp(18)
    zero(P, P+8)
    a.I(f's_waitcnt vmcnt(4)')
    vstamp(19)
    def zmax(t, s):
        a.I(f'v_max3_f32 v{T5}, v{s}, v{s+1}, v{s+2}')
        for k in range(3, 15, 2):
            a.I(f'v_max3_f32 v{T5}, v{T5}, v{s+k}, v{s+k+1}')
        a.I(f'v_max_f32 v{T5}, v{T5}, v{s+15}')
        a.I('s_mov_b32 exec_lo, 0')
        a.I(f'v_cvt_pk_bf16_f32 v{Q2+2*t}, -v{T5}, 0')
        a.I('s_mov_b32 exec_lo, -1')
    def zqk(t, s):
        a.I(f'{MF32} {vr(s,16)}, {vr(KZ,4)}, {vr(Q1+4*t,4)}, 0')
        a.I(f'{MF32h} {vr(s,16)}, {vr(KZ2,2)}, {vr(Q2+2*t,2)}, {vr(s,16)}')
    zqk(0, S[0]); zqk(1, S[1])
    for b in range(1, NPRE): ldtile(b)
    a.I('s_nop 2')
    zmax(0, S[0])
    a.I(f's_waitcnt vmcnt({4*(NPRE-1)})')
    a.I(f'{MF32} {vr(S[0],16)}, {vr(K1(0),4)}, {vr(Q1,4)}, 0')
    a.I(f'{MF32h} {vr(S[0],16)}, {vr(K2(0),2)}, {vr(Q2,2)}, {vr(S[0],16)}')
    zmax(1, S[1])
    a.I(f"""
    ds_write_b128 v{T0}, {vr(Q2,4)} offset:2048
    ds_write_b32 v{T2}, v{T2}
    """)
    rcv = f"""ds_read_b32 v{R0+2}, v{R0+1}
    ds_read_b128 {vr(Q1+8,4)}, v{R0}
    ds_read_b128 {vr(Q1+12,4)}, v{R0} offset:1024
    ds_read_b128 {vr(Q2+4,4)}, v{R0} offset:2048"""
    def recv():
        a.I('s_mov_b32 s4, 0')
        a.L(f'{N}_qx1')
        a.I(f"""
        s_waitcnt lgkmcnt(0)
        v_readfirstlane_b32 s3, v{R0+2}
        s_add_u32 s4, s4, 1
        s_cmp_lg_u32 s3, 0
        s_cbranch_scc1 {N}_qx2
        {rcv}
        s_cmp_lt_u32 s4, {SPIN*8}
        s_cbranch_scc1 {N}_qx1
        """)
        a.L(f'{N}_qx2')
        arrive(C_H, R0, R0+1)
    assert OPT['peel'] and OPT['att2'] and NPRE <= 4
    PEEL = NB - 1 - NPRE if OPT['peel'] else 0
    for b in range(NPRE, NB - 1 - PEEL):
        loadK(K1(b), K2(b), 's14'); loadV(b, 's14')
        for i in adv: a.I(i)
    a.I('s_nop 3')
    a.I(f's_setprio {OPT["aprio"]}')
    a.I('s_mov_b32 s19, 0')
    a.stamp(4)
    if STAMPS:
        a.I('s_mov_b32 m0, 0')
    vq = [b for b in range(1, NPRE) for _ in range(4)]
    Ra, Rb, Rc, Rd, Re, Rf = range(K1(0), K1(0) + 6)
    for b in list(range(-PEEL, 0)) + list(range(NB + 1)):
        peeled = b < 0
        lastt = b == NB
        if lastt:
            a.I(f's_branch {N}_aloop')
            b = NB - 1
        if b == 0:
            if PEEL: a.I(f's_branch {N}_ab{PEEL}')
            a.raw('.p2align 6')
            a.L(f'{N}_aloop')
        if peeled: b += PEEL
        else: a.L(f'{N}_alast' if lastt else f'{N}_ab{b}')
        nb = (b + 1) % NB
        pb = (b - 1) % NB
        W2 = 's[44:47]'
        fill = {(0, 0): f'buffer_load_dwordx4 {vr(K1(pb),4)}, v{vK1a}, {W2}, s14 offen{SC}',
                (0, 2): f'buffer_load_dwordx2 {vr(K2(pb),2)}, v{vK2a}, {W2}, s14 offen offset:{KV_K2}{SC}',
                (1, 0): f'buffer_load_dwordx4 {vr(V1(pb),4)}, v{vVa}, {W2}, s14 offen offset:{KV_V1}{SC}',
                (1, 1): f'buffer_load_dwordx4 {vr(V2(pb),4)}, v{vVa}, {W2}, s14 offen offset:{KV_V2}{SC}',
                (1, 2): adv[0], (2, 0): adv[1], (2, 1): adv[2],
                (2, 2): f's_waitcnt vmcnt({4*(NB-2)})'}
        if OPT['kvtest'] == 1:
            del fill[(0,2)], fill[(1,0)], fill[(1,1)]
            fill[(2,2)] = f's_waitcnt vmcnt({NB-2})'
        if OPT['kvtest'] == 2:
            del fill[(0,0)], fill[(0,2)], fill[(1,0)], fill[(1,1)]
        if b == NB - 1:
            fill[(3, 0)] = 's_add_u32 s19, s19, 1'
        if b == NB - 2:
            fill[(3, 1)] = 's_cmp_eq_u32 s46, 0'
        if b == 0:
            fill[(3, 0)] = f's_cmp_eq_u32 s19, {32//NB - 1}'
            fill[(3, 1)] = 's_cselect_b32 s46, 0, s46'
        sk = (0, 1)
        if peeled:
            fill = {}
            sk = (3, 2)
            slots = [(t, i) for t in range(4) for i in range(3) if (t, i) != (2, 2)]
            for x in ((NPRE + 2*b) % NB, (NPRE + 2*b + 1) % NB):
                assert x != b and (x != pb or len(slots) <= 6)
                its = [f'buffer_load_dwordx4 {vr(K1(x),4)}, v{vK1a}, {W2}, s14 offen{SC}',
                       f'buffer_load_dwordx2 {vr(K2(x),2)}, v{vK2a}, {W2}, s14 offen offset:{KV_K2}{SC}',
                       f'buffer_load_dwordx4 {vr(V1(x),4)}, v{vVa}, {W2}, s14 offen offset:{KV_V1}{SC}',
                       f'buffer_load_dwordx4 {vr(V2(x),4)}, v{vVa}, {W2}, s14 offen offset:{KV_V2}{SC}\n' + adv[0],
                       adv[1] + '\n' + adv[2]]
                for n, it in enumerate(its):
                    sl = slots.pop(0)
                    if sl == (3, 0):
                        last = max(i for i, y in enumerate(vq) if y == nb)
                        fill[(2, 2)] = f's_waitcnt vmcnt({len(vq) - 1 - last})'
                        vq = vq[last + 1:]
                    fill[sl] = it
                    if n < 4: vq.append(x)
        if lastt:
            snd = lambda t: '\n'.join(f'ds_write_b128 v{Ra}, {vr(O+16*t+4*i,4)} offset:{t*3072+i*1024}' for i in range(3))
            fill = {(1, 0): 's_waitcnt vmcnt(0)',
                    (1, 1): f'v_add_u32 v{Ra}, s29, v{vK1a}\nv_add_u32 v{Rb}, s30, v{vK1a}\nv_mov_b32 v{Re}, {SYNC}',
                    (1, 2): f'v_mov_b32 v{Rc}, s31\nv_xor_b32 v{Rd}, 8, v{Rc}',
                    (2, 1): f'ds_read_b32 v{Rf}, v{Re} offset:{C_M}',
                    (3, 0): snd(0), (3, 1): f'ds_read_b32 v{vG}, v{vG}', (3, 2): snd(1) + f'\nds_write_b32 v{Rd}, v{Rd}'}
        if STAMPS and b % 4 == 0:
            fill[sk] = 's_memtime s[96:97]'
        if STAMPS and b % 4 == 1:
            fill[sk] = 's_waitcnt lgkmcnt(0)\nv_writelane_b32 v0, s96, m0\ns_add_u32 m0, m0, 1'
        for t in range(4):
            Sc, Sn = S[t & 1], S[1 - (t & 1)]
            tn, tp = (t + 1) & 3, (t - 1) & 3
            kb = b if t < 3 else nb
            vpb = b if t > 0 else pb
            def F(i):
                if (t, i) in fill: a.I(fill[(t, i)])
            if OPT['att2']:
                Pc, Pp = (4, P) if t % 2 == 0 else (P, 4)
                M = [f'{MF32} {vr(Sn,16)}, {vr(K1(kb),4)}, {vr(Q1+4*tn,4)}, 0',
                     f'{MF32} {vr(O+16*tp,16)}, {vr(V1(vpb),4)}, {vr(Pp,4)}, {vr(O+16*tp,16)}',
                     f'{MF32h} {vr(Sn,16)}, {vr(K2(kb),2)}, {vr(Q2+2*tn,2)}, {vr(Sn,16)}',
                     f'{MF32} {vr(O+16*tp,16)}, {vr(V2(vpb),4)}, {vr(Pp+4,4)}, {vr(O+16*tp,16)}']
                pat = {0: 'MeeeMeeeMeeeMe0ce1ce2cececeeccc',
                       1: 'M0eeeM1eeeMeeeM2eeeeeeecccccccc',
                       2: 'M0eeeeM1eeeeMeeeeM2eeeecccccccc',
                       3: 'M0eeeeM1eeeeMcccceeeeM2eeeecccc',
                       4: 'M0eeeM1eeeM2eeeMecececececeeccc',
                       5: 'M0eeeM1eeeMeeeM2cccceeeeeeecccc',
                       6: 'M0eeeM1eeeMccceeM2eeeeeeeeccccc'}[OPT['gp']]
                ne = nc = nm = 0
                if lastt and t == 3:
                    M[0] = M[2] = ''
                    a.I(f'''
                    s_waitcnt lgkmcnt(0)
                    v_readfirstlane_b32 s3, v{Rf}
                    s_cmp_ge_u32 s3, 4
                    s_cbranch_scc1 {N}_ceok
                    ''')
                    ldswait(C_M, 4, Rf, Re)
                    a.L(f'{N}_ceok')
                for ch in pat:
                    if ch == 'M':
                        a.I(M[nm]); nm += 1
                        if peeled and b == 0 and t == 0 and nm == 4: a.I(rcv)
                    elif ch == 'e': ex(Sc + ne); ne += 1
                    elif ch == 'c':
                        assert 2 * nc + 1 < ne
                        cv(Pc + nc, Sc + 2 * nc); nc += 1
                    else: F(int(ch))
                assert (ne, nc, nm) == (16, 8, 4), (ne, nc, nm)
                if peeled and b == 0 and t == 0: recv()
                if not peeled and b == NB - 2 and t == 3: a.I(f's_cbranch_scc1 {N}_alast')
                continue
            a.I(f'{MF32} {vr(Sn,16)}, {vr(K1(kb),4)}, {vr(Q1+4*tn,4)}, 0'); F(0)
            for k in range(4): ex(Sc + k)
            a.I(f'{MF32} {vr(O+16*tp,16)}, {vr(V2(vpb),4)}, {vr(P+4,4)}, {vr(O+16*tp,16)}'); F(1)
            for k in range(4, 8): ex(Sc + k)
            a.I(f'{MF32h} {vr(Sn,16)}, {vr(K2(kb),2)}, {vr(Q2+2*tn,2)}, {vr(Sn,16)}')
            for k in range(4): cv(P + k, Sc + 2 * k)
            for k in range(8, 12): ex(Sc + k)
            a.I(f'{MF32} {vr(O+16*t,16)}, {vr(V1(b),4)}, {vr(P,4)}, {vr(O+16*t,16)}'); F(2)
            for k in range(12, 16): ex(Sc + k)
            for k in range(4, 8): cv(P + k, Sc + 2 * k)
    a.I(f'''
    v_and_b32 v{vC}, 15, v{vL}
    v_lshrrev_b32 v{vG4}, 4, v{vL}
    {f'{MF32} {vr(O+48,16)}, {vr(V1(NB-1),4)}, {vr(P,4)}, {vr(O+48,16)}' if OPT['att2'] else ''}
    {MF32} {vr(O+48,16)}, {vr(V2(NB-1),4)}, {vr(P+4,4)}, {vr(O+48,16)}
    s_setprio 3
    ''')
    a.stamp(5)
    HDONE = 16
    a.stamp(6)
    a.I('s_mov_b32 s4, 0')
    a.L(f'{N}_bb1')
    a.I(f'ds_read_b32 v{T0}, v{Rc}')
    for k in range(6):
        a.I(f'ds_read_b128 {vr(O+4*k,4)}, v{Rb} offset:{k*1024}')
    a.I(f'''
    s_add_u32 s4, s4, 1
    s_waitcnt lgkmcnt(6)
    v_readfirstlane_b32 s3, v{T0}
    s_cmp_lg_u32 s3, 0
    s_cbranch_scc1 {N}_bb2
    s_sleep 1
    s_cmp_lt_u32 s4, {SPIN*8}
    s_cbranch_scc1 {N}_bb1
    ''')
    a.L(f'{N}_bb2')
    PKO = OK_ = O + 32
    assert OPT['ffin']
    a.I(f'v_mov_b64 {vr(T2,2)}, 0')
    for t in range(2):
        a.I(f's_waitcnt lgkmcnt({3-3*t})')
        for r in (8, 0, 2, 4, 6, 10):
            a.I(f'v_pk_add_f32 {vr(OK_+16*t+r,2)}, {vr(OK_+16*t+r,2)}, {vr(O+12*t+r,2)}')
        if OPT['ffin']:
            a.I(f'v_mov_b32 v{T0+4*t}, v{OK_+16*t+8}')
            a.I(f'v_mov_b32 v{T1+4*t}, v{OK_+16*t+8}')
            for r in range(0, 12, 2):
                a.I(f'v_pk_fma_f32 {vr(T2,2)}, {vr(OK_+16*t+r,2)}, 0, {vr(T2,2)}')
                if r == 2: a.I(f'v_permlane32_swap_b32 v{T0+4*t}, v{T1+4*t}')
                if r == 6: a.I(f'v_rcp_f32 v{T0+4*t}, v{T1+4*t}')
    a.I('s_mov_b32 s41, 0')
    if OPT['ffin']:
        a.I(f'''
        v_add_f32 v{T2}, v{T2}, v{T3}
        v_mul_f32 v{T0}, v{T0}, v{vG}
        v_add_f32 v{T1}, v{T2}, v{T1}
        v_add_f32 v{T5}, v{T2}, v{T5}
        v_mul_f32 v{T4}, v{T4}, v{vG}
        v_cmp_nlt_f32 vcc, {f32hex(2.0**-60)}, v{T1}
        v_cmp_ngt_f32 s[4:5], s42, v{T1}
        s_or_b64 s[4:5], s[4:5], vcc
        v_cmp_nlt_f32 vcc, {f32hex(2.0**-60)}, v{T5}
        v_cmp_ngt_f32 s[18:19], s42, v{T5}
        s_or_b64 s[4:5], s[4:5], vcc
        s_or_b64 s[4:5], s[4:5], s[18:19]
        s_cbranch_scc1 {N}_finm
        ''')
        for t in range(2):
            for r in range(0, 12, 2):
                a.I(f'v_pk_mul_f32 {vr(OK_+16*t+r,2)}, {vr(OK_+16*t+r,2)}, {vr(T0+4*t,2)} op_sel_hi:[1,0]')
            for k in range(4):
                cv(PKO + 4*t + k, OK_ + 16*t + 2 * k)
            for k in range(4):
                a.I(f'v_min_u32 v{PKO+4*t+k}, -2, v{PKO+4*t+k}')
            a.I(f'buffer_store_dwordx4 {vr(PKO+4*t,4)}, v{vK1a}, {W}, s37 offen offset:{1024*t} sc1')
            cv(PKO + 8 + 2*t, OK_ + 16*t + 8); cv(PKO + 9 + 2*t, OK_ + 16*t + 10)
        for k in range(8, 12):
            a.I(f'v_min_u32 v{PKO+k}, -2, v{PKO+k}')
        a.I(f's_branch {N}_fin2')
    a.L(f'{N}_finm')
    for r in range(0, 12, 2):
        a.I(f'v_mov_b64 {vr(O+r,2)}, {vr(O+32+r,2)}')
        a.I(f'v_mov_b64 {vr(O+16+r,2)}, {vr(O+48+r,2)}')
    for r in range(0, 8, 2):
        a.I(f'v_mov_b64 {vr(Q1+r,2)}, {vr(Q1+8+r,2)}')
    for r in range(0, 4, 2):
        a.I(f'v_mov_b64 {vr(Q2+r,2)}, {vr(Q2+4+r,2)}')
    a.L(f'{N}_fin0')
    a.I('s_mov_b32 s43, 0')
    a.L(f'{N}_final')
    a.I(f'''
    v_mov_b32 v{T0}, v{O+8}
    v_mov_b32 v{T1}, v{O+8}
    v_mov_b32 v{T2}, 0
    v_mov_b32 v{T3}, 0
    v_permlane32_swap_b32 v{T0}, v{T1}
    ''')
    for r in range(12):
        a.I(f'v_fma_f32 v{T2}, v{O+r}, v{T3}, v{T2}')
    a.I(f'''
    v_add_f32 v{T2}, v{T2}, v{T1}
    v_cmp_nlt_f32 vcc, {f32hex(2.0**-60)}, v{T2}
    v_cmp_ngt_f32 s[4:5], s42, v{T2}
    s_or_b64 s[4:5], s[4:5], vcc
    s_cmp_eq_u64 s[4:5], 0
    s_cbranch_scc1 {N}_norm
    s_cmp_lg_u32 s43, 0
    s_cbranch_scc0 {N}_slow
    ''')
    a.L(f'{N}_norm')
    a.I(f'''
    v_rcp_f32 v{T1}, v{T1}
    s_nop 0
    v_mul_f32 v{T1}, v{T1}, v{vG}
    ''')
    for r in range(12):
        a.I(f'v_mul_f32 v{O+r}, v{T1}, v{O+r}')
    a.I(f's_cmp_lg_u32 s41, 0')
    a.I(f's_cbranch_scc1 {N}_fin1')
    for k in range(4):
        cv(PKO + k, O + 2 * k)
    cv(PKO + 8, O + 8); cv(PKO + 9, O + 10)
    for k in (0, 1, 2, 3, 8, 9): a.I(f'v_min_u32 v{PKO+k}, -2, v{PKO+k}')
    a.I(f'buffer_store_dwordx4 {vr(PKO,4)}, v{vK1a}, {W}, s37 offen sc1')
    for r in range(12):
        a.I(f'v_mov_b32 v{O+r}, v{O+16+r}')
    for r in range(4):
        a.I(f'v_mov_b32 v{Q1+r}, v{Q1+4+r}')
    for r in range(2):
        a.I(f'v_mov_b32 v{Q2+r}, v{Q2+2+r}')
    a.I('s_mov_b32 s41, 1')
    a.I(f's_branch {N}_fin0')
    a.L(f'{N}_fin1')
    for k in range(4):
        cv(PKO + 4 + k, O + 2 * k)
    cv(PKO + 10, O + 8); cv(PKO + 11, O + 10)
    for k in (4, 5, 6, 7, 10, 11): a.I(f'v_min_u32 v{PKO+k}, -2, v{PKO+k}')
    a.I(f'buffer_store_dwordx4 {vr(PKO+4,4)}, v{vK1a}, {W}, s37 offen offset:1024 sc1')
    a.L(f'{N}_fin2')
    a.I(f'''
    s_mov_b32 exec_hi, 0
    buffer_store_dwordx4 {vr(PKO+8,4)}, v{vK1a}, {W}, s40 offen sc1
    s_mov_b32 exec_hi, -1
    ''')
    a.stamp(7)
    vR = 249
    vA = 254
    CACC = 24
    AF = 44
    WF = 84
    if OPT['ct'] == 1: arrive(C_T, T4, T5)
    a.I(f'''
    s_mov_b32 s100, {RB}
    s_call_b64 {RET}, {N}_gsetup
    s_and_b32 s3, s8, {OPT['par']}
    s_mul_i32 s3, s3, 20480
    s_add_u32 s22, s21, s3
    ''')
    zero(CACC, CACC+20)
    ldswait(C_E, 4, T4, T5)
    if OPT['ct'] == 2: arrive(C_T, T4, T5)
    a.stamp(8)
    if OPT['cl']: a.I(f"""
    s_add_u32 s23, s22, 4096
    s_add_u32 s26, s22, 8192
    s_add_u32 s27, s22, 12288
    s_add_u32 s28, s22, 16384
    s_mov_b32 s19, 0
    s_call_b64 {RET}, {N}_cl0
    """)
    a.I(f's_call_b64 {RET}, {N}_wpre')
    if OPT['ct'] == 0: arrive(C_T, T4, T5)
    a.stamp(9)
    a.I(f's_branch {N}_phaseC{OPT["cl"]}')

    a.L(f'{N}_slow')
    a.I(f'''
    s_mov_b32 s43, 1
    s_mov_b32 exec_lo, 0
    v_mov_b32 v{Q2}, 0
    v_mov_b32 v{Q2+1}, 0
    s_mov_b32 exec_lo, -1
    v_mov_b32 v{T4}, 0xff800000
    s_mov_b32 s14, {WS_KVF}
    ''')
    a.L(f'{N}_sl1')
    loadK(K1(0), K2(0), 's14')
    a.I(f'''
    s_waitcnt vmcnt(0)
    {MF32} {vr(S[0],16)}, {vr(K1(0),4)}, {vr(Q1,4)}, 0
    {MF32h} {vr(S[0],16)}, {vr(K2(0),2)}, {vr(Q2,2)}, {vr(S[0],16)}
    s_nop 7
    s_nop 7
    ''')
    for k in range(0, 16, 2):
        a.I(f'v_max3_f32 v{T4}, v{T4}, v{S[0]+k}, v{S[0]+k+1}')
    a.I(f'''
    s_add_u32 s14, s14, {KVT}
    s_cmp_lt_u32 s14, {WS_KVF+64*KVT}
    s_cbranch_scc1 {N}_sl1
    v_mov_b32 v{T5}, v{T4}
    s_nop 1
    v_permlane32_swap_b32 v{T4}, v{T5}
    s_nop 1
    v_max_f32 v{T4}, v{T4}, v{T5}
    v_sub_f32 v{T4}, 0, v{T4}
    v_and_b32 v{T0}, 0xffff0000, v{T4}
    v_sub_f32 v{T4}, v{T4}, v{T0}
    v_and_b32 v{T1}, 0xffff0000, v{T4}
    v_sub_f32 v{T4}, v{T4}, v{T1}
    s_mov_b32 exec_lo, 0
    v_lshrrev_b32 v{T0}, 16, v{T0}
    v_or_b32 v{Q2}, v{T0}, v{T1}
    v_lshrrev_b32 v{Q2+1}, 16, v{T4}
    s_mov_b32 exec_lo, -1
    s_mov_b32 s14, {WS_KVF}
    ''')
    for r in range(16):
        a.I(f'v_mov_b32 v{O+r}, 0')
    a.L(f'{N}_sl2')
    loadK(K1(0), K2(0), 's14'); loadV(0, 's14')
    a.I(f'''
    s_waitcnt vmcnt(0)
    {MF32} {vr(S[0],16)}, {vr(K1(0),4)}, {vr(Q1,4)}, 0
    {MF32h} {vr(S[0],16)}, {vr(K2(0),2)}, {vr(Q2,2)}, {vr(S[0],16)}
    s_nop 7
    s_nop 7
    ''')
    for k in range(16): ex(S[0] + k)
    a.I('s_nop 0')
    for k in range(8): cv(P + k, S[0] + 2 * k)
    a.I(f'''
    s_nop 1
    {MF32} {vr(O,16)}, {vr(V1(0),4)}, {vr(P,4)}, {vr(O,16)}
    {MF32} {vr(O,16)}, {vr(V2(0),4)}, {vr(P+4,4)}, {vr(O,16)}
    s_add_u32 s14, s14, {KVT}
    s_cmp_lt_u32 s14, {WS_KVF+64*KVT}
    s_cbranch_scc1 {N}_sl2
    s_nop 7
    s_nop 7
    s_branch {N}_final
    ''')

    HACC = 172
    vHW = 236
    vHR = 240
    vF2, vF3 = 242, 243
    VWO = 244
    LA, LB, ONES, vOB = 148, 156, 168, 153
    a.L(f'{N}_hsetup')
    xbases()
    a.I(f"""
    s_sub_u32 s5, s9, 4
    s_lshl_b32 s3, s8, 9
    s_lshl_b32 s4, s5, 7
    s_add_u32 s3, s3, s4
    v_lshrrev_b32 v{T0}, 3, v{vL}
    v_and_b32 v{T1}, 7, v{vL}
    v_lshlrev_b32 v{vF3}, 7, v{T1}
    v_lshlrev_b32 v{T2}, 1, v{T0}
    v_and_b32 v{T2}, 4, v{T2}
    v_xor_b32 v{T1}, v{T1}, v{T2}
    v_mul_u32_u24 v{T0}, 3840, v{T0}
    v_lshl_add_u32 v{T0}, v{T1}, 4, v{T0}
    v_add_u32 v{vHW}, s3, v{T0}
    v_add_u32 v{vHW+1}, {8*3840}, v{vHW}
    v_add_u32 v{vHW+2}, {16*3840}, v{vHW}
    v_add_u32 v{vHW+3}, {24*3840}, v{vHW}
    s_lshl_b32 s3, s5, 13
    s_add_u32 s3, s3, {HR}
    v_bfe_u32 v{T0}, v{vL}, 2, 2
    v_lshl_add_u32 v{T1}, v{vH}, 3, v{T0}
    v_lshlrev_b32 v{T1}, 7, v{T1}
    v_and_b32 v{T2}, 3, v{vL}
    v_lshl_add_u32 v{T1}, v{T2}, 3, v{T1}
    v_bfe_u32 v{T2}, v{vL}, 4, 1
    v_lshl_add_u32 v{T1}, v{T2}, 5, v{T1}
    v_add_u32 v{T1}, s3, v{T1}
    v_lshrrev_b32 v{T0}, 1, v{T0}
    v_lshlrev_b32 v{T0}, 6, v{T0}
    v_add_u32 v{vHR}, v{T1}, v{T0}
    v_xor_b32 v{T0}, 64, v{T0}
    v_add_u32 v{vHR+1}, v{T1}, v{T0}
    v_lshlrev_b32 v{vOB}, 4, v{vC}
    v_lshl_add_u32 v{vOB+1}, v{T2}, 9, v{vOB}
    v_lshl_add_u32 v{vOB+1}, v{vH}, 8, v{vOB+1}
    s_cmp_eq_u32 s7, 0
    s_cselect_b32 s3, 0, {FG}
    v_mul_u32_u24 v{T1}, s3, v{vH}
    v_add_u32 v{vF2}, v{vF3}, v{T1}
    """)
    zero(HACC, HACC+64)
    a.I(f's_setpc_b64 {RET}')
    a.L(f'{N}_hsetup2')
    a.I(f"""
    s_sub_u32 s5, s9, 4
    s_mul_i32 s3, s8, 160
    s_lshl_b32 s4, s5, 6
    """)
    for j in range(5):
        a.I(f"""
        v_add_u32 v{T0}, s4, v{vL}
        v_add_u32 v{T0}, {j*256}, v{T0}
        v_mul_u32_u24 v{T1}, 6554, v{T0}
        v_lshrrev_b32 v{T1}, 16, v{T1}
        v_mul_u32_u24 v{T1}, {1280-160}, v{T1}
        v_lshl_add_u32 v{T1}, v{T0}, 4, v{T1}
        v_add_u32 v{VWO+j}, s3, v{T1}
        """)
    a.I(f"""
    s_lshl_b32 s100, s8, 2
    s_add_u32 s100, s100, s5
    s_mul_i32 s3, s100, 5
    s_lshr_b32 s4, s3, 2
    s_lshl_b32 s4, s4, 10
    s_and_b32 s3, s3, 3
    v_lshl_add_u32 v{T1}, v{vG4}, 9, s4
    v_lshl_add_u32 v{LA}, v{vC}, 4, v{T1}
    v_and_b32 v{T0}, 1, v{vG4}
    v_lshl_add_u32 v{T0}, v{vH}, 2, v{T0}
    v_subrev_u32 v{T0}, s3, v{T0}
    v_cmp_gt_u32 vcc, 5, v{T0}
    v_add_u32 v{T0}, 2, v{T0}
    v_cmp_gt_u32 s[4:5], 5, v{T0}
    v_cndmask_b32 v{LA+1}, 0, -1, vcc
    s_nop 0
    v_cndmask_b32 v155, 0, -1, s[4:5]
    s_mul_i32 s3, s100, 20
    v_and_b32 v{T4}, 1, v{vG4}
    v_lshlrev_b32 v{T4}, 9, v{T4}
    v_lshl_add_u32 v{T4}, v{vH}, 3, v{T4}
    """)
    for d in range(2):
        a.I(f"""
        v_add_u32 v{T1}, s3, v{vC}
        v_add_u32 v{T1}, {16*d}, v{T1}
        v_min_u32 v{T1}, 639, v{T1}
        v_lshrrev_b32 v{T2}, 5, v{T1}
        v_lshlrev_b32 v{T2}, 17, v{T2}
        v_and_b32 v{T1}, 31, v{T1}
        v_lshl_add_u32 v{T2}, v{T1}, 4, v{T2}
        v_add_u32 v{LA+2+d}, v{T2}, v{T4}
        """)
    a.I(f"""
    v_cmp_gt_u32 vcc, 4, v{vC}
    v_mov_b32 v{T1}, 0x7fffff00
    s_nop 0
    v_cndmask_b32 v{LA+3}, v{T1}, v{LA+3}, vcc
    """)
    a.I(f"""
    v_lshlrev_b32 v{LA+4}, 2, v{vC}
    v_lshlrev_b32 v{T1}, 2, v{vG4}
    v_sub_u32 v{T1}, v{vC}, v{T1}
    v_mov_b32 v{T3}, 0xff800000
    s_cmp_eq_u32 s7, 0
    s_cselect_b64 s[4:5], 0, -1
    """)
    for k in range(8):
        r, pv = k % 4, k // 4
        a.I(f"""
        v_add_u32 v{T2}, {16*pv - r}, v{T1}
        v_and_b32 v{T2}, 0xfffffff1, v{T2}
        v_cmp_eq_u32 vcc, 0, v{T2}
        v_mov_b32 v{ONES+r}, 0x3f803f80
        s_nop 0
        v_cndmask_b32 v{LB+k}, v{T3}, 0, vcc
        """)
        if pv:
            a.I(f'v_cndmask_b32 v{LB+4+k}, v{T3}, v{LB+k}, s[4:5]')
    a.I(f's_mov_b32 s100, {RA}')
    a.L(f'{N}_gsetup')
    a.I(f"""
    v_and_b32 v{T0}, 1, v{vG4}
    v_lshrrev_b32 v{T2}, 2, v{vC}
    v_mul_u32_u24 v{T2}, 160, v{T2}
    v_and_b32 v{T3}, 3, v{vC}
    v_lshl_add_u32 v{T2}, v{T3}, 3, v{T2}
    v_add_u32 v{T2}, s100, v{T2}
    v_mul_u32_u24 v{T3}, {4*160}, v{T0}
    v_add_u32 v{T3}, v{T3}, v{T2}
    v_mul_u32_u24 v{T0}, {40*160}, v{T0}
    v_add_u32 v{T0}, v{T0}, v{T2}
    v_mul_u32_u24 v{T1}, {20*160}, v{vH}
    v_add_u32 v{vR}, v{T1}, v{T3}
    v_cmp_eq_u32 vcc, 1, v{vH}
    """)
    for h in range(2):
        a.I(f"""
        v_add_u32 v{T1}, {(16+20*h)*160}, v{T0}
        v_add_u32 v{T2}, {(80+8*h)*160}, v{T3}
        v_cndmask_b32 v{vR+1+h}, v{T1}, v{T2}, vcc
        v_add_u32 v{T1}, {(140+8*h)*160}, v{T3}
        v_add_u32 v{T2}, {(96+20*h)*160}, v{T0}
        v_cndmask_b32 v{vR+3+h}, v{T1}, v{T2}, vcc
        """)
    a.I(f"""
    s_and_b32 s3, s9, 1
    s_lshl_b32 s3, s3, 8
    v_lshlrev_b32 v{vA}, 4, v{vC}
    v_lshl_add_u32 v{vA}, v{vG4}, 9, v{vA}
    v_add_u32 v{vA}, s3, v{vA}
    s_bfe_u32 s3, s9, 0x10001
    s_lshl_b32 s4, s7, 1
    s_add_u32 s3, s3, s4
    s_mul_i32 s21, s3, {OAB_PT}
    s_add_u32 s21, s21, {WS_OAB}
    s_setpc_b64 {RET}
    """)
    def waddr(k5, h):
        if k5 == 2: return vR + 1 + h, 0
        if k5 == 4: return vR + 3 + h, 0
        return vR, ({0: 0, 1: 40, 3: 100}[k5] + 8 * h) * 160
    def wread(s, base):
        st, k5 = divmod(s, 5)
        for t in range(5):
            for h in range(2):
                r, o = waddr(k5, h)
                yield f'ds_read_b64_tr_b16 {vr(base+t*4+2*h,2)}, v{r} offset:{(st&1)*25600 + o + t*32}'
    a.L(f'{N}_wpre')
    for s in range(8):
        for i in wread(s, WF + s*20): a.I(i)
    a.I(f's_setpc_b64 {RET}')


    a.L(f'{N}_wpf')
    a.I(f"""
    v_lshlrev_b32 v92, 4, v{vL}
    s_mov_b32 exec_hi, 0xff
    """)
    for r in range(10):
        a.I(f'buffer_load_dwordx4 v[96:99], v92, s[52:55], s15 offen offset:{(r%3)*1280}')
        if r % 3 == 2: a.I('s_add_u32 s15, s15, 3840')
    a.I(f"""
    s_mov_b32 exec_hi, -1
    s_setpc_b64 {RET}
    """)
    a.L(f'{N}_wob')
    a.I(f"""
    s_cmp_ge_u32 s15, s14
    s_cbranch_scc1 {N}_wob9
    s_setprio {OPT['hprio']}
    s_cmp_ge_u32 s15, 5
    s_cbranch_scc1 {N}_wobA
    s_add_u32 s3, s15, s13
    s_cmp_ge_u32 s3, 5
    s_cselect_b32 s4, 5, 0
    s_sub_u32 s3, s3, s4
    s_mul_i32 s4, s3, {128*1280}
    s_mul_i32 s5, s3, 20480
    s_add_u32 s5, s5, {RA}
    s_mov_b32 s3, 0
    s_branch {N}_wob1
    """)
    a.L(f'{N}_wobA')
    a.I(f"""
    s_mov_b32 s44, s24
    s_mov_b32 s45, s25
    s_add_u32 s3, s15, s13
    s_mul_i32 s4, s3, 86
    s_lshr_b32 s4, s4, 8
    s_mul_i32 s4, s4, 3
    s_sub_u32 s3, s3, s4
    s_mul_i32 s4, s3, {128*1280}
    s_mul_i32 s5, s3, 20480
    s_cmp_ge_u32 s15, 8
    s_cselect_b32 s20, 1, 0
    {'s_xor_b32 s20, s20, s8' if OPT['par'] else ''}
    s_and_b32 s20, s20, 1
    s_mul_i32 s20, s20, {320*1280}
    s_add_u32 s4, s4, s20
    s_cmp_ge_u32 s15, 8
    s_cselect_b32 s20, 0, {RB-RA}
    s_add_u32 s5, s5, s20
    s_lshr_b32 s3, s3, 1
    s_lshr_b32 s20, s10, 1
    s_mul_i32 s20, s20, s3
    s_add_u32 s3, s3, s20
    """)
    a.L(f'{N}_wob1')
    a.I('s_add_u32 s5, s5, s12')
    a.I('s_add_u32 s15, s15, 1')
    for j in range(5):
        if j == 2:
            a.I('s_cmp_eq_u32 s3, 2')
            a.I(f's_cbranch_scc1 {N}_wob8')
        if j == 3:
            a.I('s_cmp_eq_u32 s3, 1')
            a.I(f's_cbranch_scc1 {N}_wob8')
        a.I(f's_add_u32 m0, s5, {j*4096}')
        a.I('s_nop 0' if OPT['wsub'] < 0 else f's_waitcnt vmcnt({OPT["wsub"]})')
        a.I(f'buffer_load_dwordx4 v{VWO+j}, s[44:47], s4 offen lds')
    a.L(f'{N}_wob8')
    a.I(f's_setprio {OPT["cprio"]}')
    a.L(f'{N}_wob9')
    a.I(f's_setpc_b64 {RET}')

    a.L(f'{N}_extra')
    worksetup()
    EXX, EXW = 40, 72
    a.I(f'''
    ds_read_b64 {vr(CNT,2)}, v{vSY}
    v_mul_u32_u24 v{T0}, 40, v{vW0}
    v_add_u32 v{vWB_}, v{T0}, v{vW1}
    v_add_u32 v{vWB_}, {EXB}, v{vWB_}
    s_mov_b32 s12, 5120
    s_setprio 3
    s_sub_u32 s11, s9, 4
    s_and_b32 s3, s96, 1
    s_add_u32 s11, s11, s3
    s_lshl_b32 s15, s11, 12
    s_lshl_b32 s3, s7, 1
    s_add_u32 s3, s3, s11
    s_mul_i32 s3, s3, {KVT}
    s_add_u32 s13, s3, {WS_KVF}
    s_cmp_eq_u32 s96, 4
    s_cbranch_scc1 {N}_exG
    s_cmp_ge_u32 s96, 2
    s_cbranch_scc1 {N}_exV
    ''')
    def exloop(orient, gate=False):
        l = lab()
        def addr():
            a.I(f"""
            s_lshl_b32 s3, s60, 14
            s_add_u32 s3, s3, s15
            s_mul_i32 s4, s60, s12
            s_add_u32 s60, s60, 1
            s_cmp_eq_u32 s60, 5
            s_cselect_b32 s60, 0, s60
            s_add_u32 s10, s10, 1
            s_cmp_eq_u32 s10, 6
            s_cselect_b32 s10, 0, s10
            """)
            for k in range(4):
                a.I(f'v_add_u32 v{vCX+k}, s3, v{vXB+k}')
            a.I(f'v_add_u32 v{vCW}, s4, v{vWB_}')
        def reads(ks, tag):
            a.LG(f'ds_read_b128 {vr(EXX+ks*4,4)}, v{vCX+(ks&3)} offset:{(ks>>2)*8192}', tag)
            if gate:
                a.LG(f'ds_read_b128 {vr(EXW+ks*4,4)}, v{vCW} offset:{ks*32}', tag)
            else:
                for h in range(2):
                    a.LG(f'ds_read_b64_tr_b16 {vr(EXW+ks*4+2*h,2)}, v{vCW} offset:{(ks*16+4*h)*40}', tag)
        addr()
        vstamp(16)
        cntwait(l + 'w0', 10 if gate else 's10')
        vstamp(17)
        a.lg = []
        for ks in range(4): reads(ks, ks)
        q0 = list(a.lg)
        a.L(l)
        for u in range(8):
            if u == 4:
                addr()
                a.wait(lg=lambda t: t == 'c')
                cntwait(l + 'w', 's10', first=None)
            reads((u + 4) % 8, u + 4)
            if STAMPS and u == 5: a.I('s_memtime s[100:101]')
            if STAMPS and u == 3: a.I('s_add_u32 m0, s10, 24\nv_writelane_b32 v0, s100, m0')
            if u == 1:
                a.LG(f'ds_read_b64 {vr(CNT,2)}, v{vSY}', 'c')
            a.wait(lg=lambda t: t != 'c' and t <= u)
            d = vr(FACC, 16)
            x, w = vr(EXX + u * 4, 4), vr(EXW + u * 4, 4)
            if orient == 'T':
                a.I(f'{MF32} {d}, {w}, {x}, {d}')
            else:
                a.I(f'{MF32} {d}, {x}, {w}, {d}')
        assert a.lg == [t + 8 for t in q0], a.lg
        a.I(f"""
        s_cmp_lg_u32 s10, 0
        s_cbranch_scc1 {l}
        s_waitcnt lgkmcnt(0)
        s_mov_b64 exec, 1
        ds_add_u32 v{vSY}, v{vOne} offset:{C_F}
        s_mov_b64 exec, -1
        s_nop 7
        s_nop 3
        """)
        vstamp(18)
    exloop('T')
    r = FACC
    a.I(f'''
    v_lshlrev_b32 v{T0}, 4, v{vL}
    v_lshlrev_b32 v{T1}, 3, v{vL}
    ''')
    for k in range(6):
        cv(r + k, r + 2 * k)
    a.I(f'''
    s_mov_b32 exec_lo, 0
    v_mov_b32 v{r+4}, 0x3f803f80
    v_mov_b32 v{r+5}, 0x3f80
    s_mov_b32 exec_lo, -1
    buffer_store_dwordx4 {vr(r,4)}, v{T0}, {W}, s13 offen sc1
    s_mov_b32 exec_hi, 1
    buffer_store_dwordx2 {vr(r+4,2)}, v{T1}, {W}, s13 offen offset:{KV_K2} sc1
    s_mov_b32 exec_hi, -1
    ''')
    a.L(f'{N}_exflag')
    a.stamp(1)
    getnonce(T2, T4)
    a.I(f'''
    s_lshl_b32 s3, s7, 1
    s_lshr_b32 s4, s96, 1
    s_add_u32 s3, s3, s4
    s_lshl_b32 s3, s3, 7
    s_lshl_b32 s4, s11, 3
    s_add_u32 s3, s3, s4
    s_add_u32 s3, s3, {WS_FLG}
    v_mov_b32 v{T0}, 0
    s_waitcnt vmcnt(0)
    s_mov_b64 exec, 1
    buffer_store_dwordx2 {vr(T2,2)}, v{T0}, {W}, s3 offen sc1
    s_mov_b64 exec, -1
    ''')
    a.stamp(2)
    a.I(f's_branch {N}_hpre2')
    a.L(f'{N}_exV')
    exloop('N')
    a.I(f'''
    v_mul_u32_u24 v{T0}, 336, v{vH}
    v_lshl_add_u32 v{T0}, v{vP}, 4, v{T0}
    v_mov_b32 v{T1}, 0x3f803f80
    v_cmp_eq_u32 vcc, 20, v{vP}
    s_mov_b32 s4, 0x1fffff
    s_mov_b32 s5, 0x1fffff
    ''')
    for k in range(8):
        cv(r + k, r + 2 * k)
    for k in range(8):
        a.I(f'v_cndmask_b32 v{r+k}, v{r+k}, v{T1}, vcc')
    a.I(f'''
    s_mov_b64 exec, s[4:5]
    buffer_store_dwordx4 {vr(r,4)}, v{T0}, {W}, s13 offen offset:{KV_V1} sc1
    buffer_store_dwordx4 {vr(r+4,4)}, v{T0}, {W}, s13 offen offset:{KV_V2} sc1
    s_mov_b64 exec, -1
    ''')
    a.I(f's_branch {N}_exflag')
    a.L(f'{N}_exG')
    a.I(f'''
    v_lshlrev_b32 v{vWB_}, 4, v{vH}
    v_add_u32 v{vWB_}, {GV}, v{vWB_}
    s_setprio 0
    s_mov_b32 s12, 256
    ''')
    exloop('T', True)
    a.I(f'''
    s_lshl_b32 s3, s7, 8
    s_lshl_b32 s4, s11, 7
    s_add_u32 s3, s3, s4
    s_add_u32 s3, s3, {WS_G}
    v_mul_f32 v{T0}, {f32hex(-math.log2(math.e))}, v{FACC}
    v_exp_f32 v{T0}, v{T0}
    v_lshlrev_b32 v{T1}, 2, v{vP}
    v_add_f32 v{T0}, 1.0, v{T0}
    v_rcp_f32 v{T0}, v{T0}
    s_mov_b32 exec_hi, 0
    buffer_store_dword v{T0}, v{T1}, {W}, s3 offen sc1
    s_mov_b32 exec_hi, -1
    ''')
    a.L(f'{N}_hpre2')
    a.I('s_setprio 0')
    a.I(f's_call_b64 {RET}, {N}_hsetup2')
    a.L(f'{N}_hpre')
    PD = OPT['PD']
    HX = 28
    HWf = 60
    srd(a, 48, 38, WS_END)
    srd(a, 44, 28, 2457600)
    a.I(f'''
    s_sub_u32 s10, s9, 4
    s_lshl_b32 s3, s8, 9
    s_lshl_b32 s4, s10, 7
    s_add_u32 s11, s3, s4
    s_lshl_b32 s12, s10, 13
    s_add_u32 s12, s12, {HR}
    ''')
    if not OPT['map2']:
        a.I('s_and_b32 s3, s7, 3\ns_mul_i32 s3, s3, 5\ns_lshr_b32 s13, s3, 1')
    else:
        a.I('s_and_b32 s3, s7, 7\ns_mul_i32 s3, s3, 5\ns_lshr_b32 s13, s3, 2')
    a.I(f'''
    s_mul_i32 s14, s13, {64*3840}
    s_lshl_b32 s13, s13, 13
    s_mov_b32 s19, 0
    s_cmp_ge_u32 s11, 3840
    s_cselect_b32 s46, 0, s46
    ''')
    for k in range(4):
        a.I(f'v_add_u32 v{vCX+k}, s13, v{vXB+k}')
    getnonce(T2, T1)
    def p1check(first):
        a.I(f'''
        s_add_u32 s4, s4, 1
        s_waitcnt vmcnt({first})
        v_cmp_eq_u64 vcc, s[62:63], v[92:93]
        v_cmp_eq_u64 s[56:57], s[62:63], v[94:95]
        s_and_b64 vcc, vcc, s[56:57]
        s_cmp_eq_u64 vcc, -1
        s_cbranch_scc1 {N}_p1g
        ''')
    p1ld = f'buffer_load_dwordx4 v[92:95], v{T4}, {W}, s3 offen sc1'
    def p1rest():
        a.L(f'{N}_p1')
        a.I(p1ld)
        p1check(0)
        a.I(f'''
        s_cmp_lt_u32 s4, {SPIN}
        s_cbranch_scc1 {N}_p1
        ''')
        a.L(f'{N}_p1g')
        a.I(f'''
        v_mov_b32 v{T0}, {SYNC}
        v_mov_b32 v{T1}, 64
        ds_write_b32 v{T0}, v{T1} offset:{C_S1}
        ''')
        if OPT['kvpf']:
            a.I(f'''
            v_lshlrev_b32 v{T4}, 4, v{vL}
            s_mul_i32 s3, s6, {2*KVT}
            s_add_u32 s3, s3, {WS_KVF}
            s_add_u32 s5, s3, 4096
            ''')
            for k in range(4): a.I(f'buffer_load_dwordx4 v[92:95], v{T4}, {W}, s3 offen offset:{k*1024} sc1')
            a.I(f'buffer_load_dwordx4 v[92:95], v{T4}, {W}, s5 offen sc1')
            a.I(f'buffer_load_dwordx4 v[92:95], v{T4}, {W}, s5 offen offset:512 sc1')
        if STAMPS: a.I(f'v_writelane_b32 v0, s4, 25')
        vstamp(23)
        a.L(f'{N}_p1ok')
    if not OPT['p1m']:
        a.I(f'''
        s_cmp_lg_u32 s9, 5
        s_cbranch_scc1 {N}_p1ok
        ''')
        ldswait(C_Q + 4*OPT['p1start'], 4, T0, T1, sleep=1)
    a.I(f'v_lshlrev_b32 v{T4}, 7, v{vL}')
    if not OPT['p1m']:
        a.I(f's_mov_b32 s3, {WS_FLG}\ns_mov_b32 s4, 0')
        vstamp(22)
        p1rest()
    if OPT['hstart'] <= 4: ldswait(C_Q + 4*OPT['hstart'], 4, T0, T1, sleep=1)
    else: ldswait(C_H, 4, T0, T1, sleep=1)
    a.stamp(3)
    if OPT['p1m']:
        a.I(f'''
        s_mov_b32 s3, {WS_FLG}
        s_mov_b32 s4, 0
        s_cmp_lg_u32 s9, 5
        s_cbranch_scc1 {N}_p1a
        {p1ld}
        ''')
        a.L(f'{N}_p1a')
    a.I(f's_setprio {OPT["hprio"]}')
    hadv = [f's_add_u32 s14, s14, {32*3840}', f's_cmp_eq_u32 s14, {640*3840}', 's_cselect_b32 s14, 0, s14',
            's_add_u32 s19, s19, 1', 's_cmp_ge_u32 s19, 20', 's_cselect_b32 s46, 0, s46']
    def hm0(q, e): return f's_add_u32 m0, s12, {q*2048 + e*1024}'
    def hld(q, e): return f'buffer_load_dwordx4 v{vHW+(q&1)*2+e}, s[44:47], s14 offen lds'
    def hxr(q): return [f'ds_read_b128 {vr(HX+(q&1)*8+pt*4,4)}, v{vCX+q} offset:{pt*4096}' for pt in range(2)]
    def hwr(q): return [f'ds_read_b64_tr_b16 {vr(HWf+(q&1)*8+j*4+2*h,2)}, v{vHR+j} offset:{q*2048 + h*512}' for j in range(2) for h in range(2)]
    if OPT['hpf']:
        a.I(f'''
        s_bfe_u32 s5, s7, 0x10002
        s_mul_i32 s5, s5, {320*3840}
        s_and_b32 s20, s7, 3
        s_mul_i32 s20, s20, {16*3840}
        s_add_u32 s5, s5, s20
        s_add_u32 s5, s5, {256*3840}
        buffer_load_dwordx4 v[96:99], v{vHW}, s[44:47], s5 offen
        buffer_load_dwordx4 v[96:99], v{vHW+1}, s[44:47], s5 offen
        ''')
    for q_ in range(4):
        for e in range(2):
            a.I(hm0(q_, e)); a.I('s_nop 0'); a.I(hld(q_, e))
        if q_ & 1:
            for i in hadv: a.I(i)
    if OPT['p1m']:
        a.I(f's_cmp_lg_u32 s9, 5\ns_cbranch_scc1 {N}_p1ok')
        p1check(8 + 2*OPT['hpf'])
        p1rest()
    a.I('s_waitcnt vmcnt(6)')
    for i in hxr(0) + hwr(0): a.I(i)
    a.I(f"""
    s_cmp_ge_u32 s6, 16
    s_cselect_b32 s52, s24, s30
    s_cselect_b32 s53, s25, s31
    s_mov_b32 s54, 819200
    s_mov_b32 s55, 0x20000
    s_and_b32 s3, s6, 15
    s_lshl_b32 s3, s3, 2
    s_add_u32 s3, s3, s10
    s_mul_i32 s15, s3, 12800
    s_lshr_b32 s3, s8, 2
    s_mul_i32 s3, s3, 640
    s_add_u32 s15, s15, s3
    s_mov_b32 s20, 0
    v_mov_b32 v95, {SYNC}
    s_cmp_lt_u32 s96, 4
    s_cselect_b32 s5, {OPT['bj'] % 10}, {OPT['bj'] // 10}
    v_lshlrev_b32 v92, 4, v{vL}
    v_mov_b32 v93, 0x7fffff00
    v_cmp_gt_u32 vcc, 40, v{vL}
    s_sub_u32 s15, s15, {2560*OPT['pf0'] if OPT['pf'] == 20 else 0}
    v_cndmask_b32 v92, v93, v92, vcc
    s_cmp_ge_u32 s8, 5
    s_cbranch_scc1 {N}_h1N
    """)
    def h1loop(orient):
        l = lab()
        a.L(l)
        if STAMPS:
            a.I('s_memtime s[96:97]\ns_mov_b32 m0, s20\ns_waitcnt lgkmcnt(0)\nv_writelane_b32 v0, s96, m0')
        if OPT['pf'] and OPT['pf'] <= 10:
            a.I(f's_cmp_lg_u32 s20, {OPT["pf"]-1}')
            a.I(f's_cbranch_scc1 {l}npf')
            a.I(f's_call_b64 {RET}, {N}_wpf')
            a.L(l + 'npf')
        for q in range(4):
            qn = (q + 1) & 3
            a.I(f's_waitcnt vmcnt({6 if OPT["pf"] == 20 and q else 4}) lgkmcnt(0)')
            fl = [hwr(qn), [hm0(q, 0)] + hxr(qn), [hld(q, 0), hm0(q, 1)], [hld(q, 1)]]
            if q & 1: fl[3] += hadv
            if OPT['boost'] and q % 2 == 0:
                fl[1] += [f'ds_read_b32 v94, v95 offset:{C_H}']
            if OPT['boost'] and q % 2 == 1:
                fl[0] += ['v_readfirstlane_b32 s3, v94', 's_cmp_lt_u32 s3, 5', f's_cbranch_scc1 {l}b{q}', 's_setprio 3', f'{l}b{q}:']
            if OPT['bj'] and q == 0:
                fl[0] += ['s_add_u32 s3, s20, s5', f's_cmp_lt_u32 s3, 10', f's_cbranch_scc1 {l}c', 's_setprio 3', f'{l}c:']
            if q == 0 and OPT['pf'] == 20:
                fl[2] += [f's_sub_u32 s3, s20, {OPT["pf0"]}', 's_cmp_lt_u32 s3, 5', 's_cselect_b32 s54, 819200, 0']
                fl[3] += ['buffer_load_dwordx4 v[96:99], v92, s[52:55], s15 offen',
                          'buffer_load_dwordx4 v[96:99], v92, s[52:55], s15 offen offset:1280', 's_add_u32 s15, s15, 2560']
            if q == 0:
                fl[3] += ['s_add_u32 s13, s13, 8192', 's_cmp_eq_u32 s13, 81920', 's_cselect_b32 s13, 0, s13', 's_add_u32 s20, s20, 1']
            if q == 2:
                fl[3] += [f's_setprio {OPT["xprio"]}'] + [f'v_add_u32 v{vCX+k}, s13, v{vXB+k}' for k in range(4)] + [f's_setprio {OPT["hprio"]}']
            if q == 3:
                fl[3] += ['s_cmp_lt_u32 s20, 10']
            m = 0
            for pt in range(2):
                for j in range(2):
                    d = vr(HACC + (pt * 2 + j) * 16, 16)
                    x, w = vr(HX + (q&1)*8 + pt*4, 4), vr(HWf + (q&1)*8 + j*4, 4)
                    if OPT['mprio'] != OPT['hprio']: a.I(f's_setprio {OPT["mprio"]}')
                    if orient == 'T':
                        a.I(f'{MF32} {d}, {w}, {x}, {d}')
                    else:
                        a.I(f'{MF32} {d}, {x}, {w}, {d}')
                    if m == 3 and q == 2:
                        for i in fl[m][1:]: a.I(i)
                        fl[m] = fl[m][:1]
                    if OPT['mprio'] != OPT['hprio']: a.I(f's_setprio {OPT["hprio"]}')
                    for i in fl[m]: a.I(i)
                    m += 1
        a.I(f"""
        s_cbranch_scc1 {l}
        s_waitcnt vmcnt(0) lgkmcnt(0)
        s_setprio {OPT['eprio']}
        """)
        arrive(C_H)
        if OPT['pf'] == 11:
            a.I(f's_setprio {OPT["hprio"]}')
            a.I(f's_call_b64 {RET}, {N}_wpf')
            a.I(f's_setprio {OPT["vprio"]}')
        a.I(f"""
        v_lshlrev_b32 v104, 4, v{vL}
        s_mul_i32 s3, s7, {2*OAB_PT}
        s_mul_i32 s4, s8, 5120
        s_add_u32 s3, s3, s4
        v_mov_b64 v[100:101], -1
        v_mov_b64 v[102:103], -1
        s_and_b32 s4, s10, 1
        s_mul_i32 s4, s4, {OAB_PT}
        s_add_u32 s3, s3, s4
        s_lshr_b32 s4, s10, 1
        s_lshl_b32 s4, s4, 11
        s_add_u32 s3, s3, {WS_OAB}
        s_add_u32 s42, s4, s3
        s_add_u32 s43, s42, 40960
        """)
        for r in range(HACC, HACC + 64, 16):
            for k in range(8):
                cv(r + k, r + 2 * k)
        a.I(f's_setprio {OPT["sprio"]}')
        if STAMPS:
            a.I('s_memtime s[96:97]\ns_mov_b32 m0, s20\ns_waitcnt lgkmcnt(0)\nv_writelane_b32 v0, s96, m0')
    h1loop('T')
    a.I(f'''
    s_lshl_b32 s3, s7, 1
    s_mul_i32 s3, s3, {QKB_PT}
    s_lshl_b32 s4, s11, 5
    s_add_u32 s3, s3, s4
    s_add_u32 s4, s3, {QKB_PT}
    ''')
    for pt in range(2):
        for j in range(2):
            r = HACC + (pt * 2 + j) * 16
            for b in range(2):
                a.I(f'buffer_store_dwordx4 {vr(r+4*b,4)}, v104, {W}, s{3+pt} offen offset:{(2*j+b)*1024} sc1')
    a.I(f's_branch {N}_h1done')
    a.L(f'{N}_h1N')
    h1loop('N')
    a.I(f'''
    s_cmp_ge_u32 s11, 3840
    s_cbranch_scc1 {N}_h1done
    s_sub_u32 s3, s11, 2560
    s_lshl_b32 s3, s3, 11
    s_lshl_b32 s4, s7, 12
    s_add_u32 s3, s3, s4
    s_add_u32 s3, s3, {WS_VBT}
    s_add_u32 s4, s3, {VBT_NT}
    ''')
    for pt in range(2):
        for j in range(2):
            r = HACC + (pt * 2 + j) * 16
            for b in range(2):
                a.I(f'buffer_store_dwordx4 {vr(r+4*b,4)}, v104, {W}, s{3+j} offen offset:{(2*pt+b)*1024} sc1')
    a.L(f'{N}_h1done')
    for k in range(3): a.I(f'buffer_store_dwordx4 v[100:103], v104, {W}, s43 offen offset:{k*1024} sc1')
    a.I(f's_setprio {OPT["cprio"]}')
    a.stamp(4)
    def setflag(word, cw):
        l = lab()
        a.I(f'''
        v_mov_b32 v{T0}, {SYNC}
        v_mov_b32 v{T1}, 1
        s_mov_b64 exec, 1
        ds_add_rtn_u32 v{T1}, v{T0}, v{T1} offset:{cw}
        v_mov_b32 v{T0}, 0
        v_mov_b32 v{T2}, s62
        v_mov_b32 v{T3}, s63
        s_waitcnt lgkmcnt(0)
        v_cmp_eq_u32 vcc, 3, v{T1}
        s_cbranch_vccz {l}
        buffer_store_dwordx2 {vr(T2,2)}, v{T0}, {W}, s23 offen offset:{word*1024} sc1
        ''')
        a.L(l)
        a.I('s_mov_b64 exec, -1')
    def pollflag(soff, va, minb=None, sleep=OPT['psleep']):
        l = lab()
        a.I('s_mov_b32 s19, 0')
        a.L(l)
        if minb is not None:
            a.I(f's_call_b64 {RET}, {N}_wob')
        a.I(f'''
        buffer_load_dwordx2 {vr(T2,2)}, v{va}, {W}, {soff} offen sc1
        s_add_u32 s19, s19, 1
        s_waitcnt vmcnt(0)
        v_cmp_ne_u64 vcc, s[62:63], {vr(T2,2)}
        ''')
        if minb:
            a.I(f's_cmp_lt_u32 s15, {minb}')
            a.I(f's_cbranch_scc1 {l}')
        a.I(f's_cbranch_vccz {l}_ok')
        if sleep: a.I(f's_sleep {sleep}')
        a.I(f'''
        s_cmp_lt_u32 s19, {SPIN}
        s_cbranch_scc1 {l}
        ''')
        a.L(l + '_ok')
    def stream(lim):
        l = lab()
        a.L(l)
        a.I(f'''
        s_call_b64 {RET}, {N}_wob
        s_cmp_lt_u32 s15, {lim}
        s_cbranch_scc1 {l}
        ''')
    def pollshare(soff, va, pw, cw):
        l = lab()
        a.I(f's_cmp_lg_u32 s9, {pw}')
        a.I(f's_cbranch_scc1 {l}')
        pollflag(soff, va)
        arrive(cw)
        a.I(f's_branch {l}_ok')
        a.L(l)
        a.I(f'v_mov_b32 v{T3}, {SYNC}')
        a.I('s_mov_b32 s19, 0')
        a.I('s_waitcnt vmcnt(0)')
        a.L(l + '_w')
        a.I(f'''
        ds_read_b32 v{T2}, v{T3} offset:{cw}
        s_add_u32 s19, s19, 1
        s_waitcnt lgkmcnt(0)
        v_readfirstlane_b32 s3, v{T2}
        s_cmp_lg_u32 s3, 0
        s_cbranch_scc1 {l}_ok
        s_setprio {OPT['wprio']}
        s_sleep {OPT['wsleep']}
        s_cmp_lt_u32 s19, {SPIN*8}
        s_cbranch_scc1 {l}_w
        ''')
        a.L(l + '_ok')
    srd(a, 44, 30, 819200)
    LQ, LK, LV, LG = 28, 44, 64, 84
    LS, LP, M, LO, LL = 88, 120, 136, 172, 204
    a.I(f'''
    s_lshl_b32 s12, s10, 10
    s_mul_i32 s22, s7, {FG}
    s_add_u32 s22, s22, {WS_FG}
    s_lshl_b32 s3, s8, 7
    s_add_u32 s23, s22, s3
    s_and_b32 s13, s7, {7 if OPT['map2'] else 3}
    s_cmp_ge_u32 s13, 5
    s_cselect_b32 s3, 5, 0
    s_sub_u32 s13, s13, s3
    s_mov_b32 s14, {OPT['st2']}
    s_mov_b32 s15, 0
    s_lshl_b32 s3, s7, 1
    s_mul_i32 s29, s3, {QKB_PT}
    s_add_u32 s30, s29, {QKB_PT}
    s_add_u32 s31, s29, 40960
    s_add_u32 s32, s30, 40960
    s_sub_u32 s33, s31, {QKB_PT}
    s_lshl_b32 s26, s7, 12
    s_add_u32 s26, s26, {WS_VBT}
    s_sub_u32 s27, s26, 1024
    s_sub_u32 s28, s22, {FG}
    s_cmp_eq_u32 s7, 0
    s_cselect_b32 s33, s31, s33
    s_cselect_b32 s27, s26, s27
    s_cselect_b32 s28, s22, s28
    s_lshl_b32 s18, s7, 8
    s_add_u32 s18, s18, {WS_G}
    ''')
    a.I('s_waitcnt vmcnt(0)')
    vstamp(19)
    setflag(0, C_2)
    ldswait(C_H, 8, T2, T3, hp=OPT['cprio'])
    vstamp(20)
    stream(OPT['st2'])
    a.I(f's_setprio {OPT["hprio"]}')
    for k in range(3): a.I(f'buffer_store_dwordx4 v[100:103], v104, {W}, s42 offen offset:{k*1024} sc1')
    a.I(f's_setprio {OPT["cprio"]}')
    vstamp(21)
    pollshare('s28', vF2, 4, C_S2)
    if STAMPS: a.I('v_writelane_b32 v0, s19, 27')
    a.stamp(5)
    if STAMPS: a.I('v_writelane_b32 v0, s15, 31')
    a.I(f's_setprio {OPT["hprio"]}')
    for u in range(4):
        a.I(f'buffer_load_dwordx4 {vr(LQ+4*u,4)}, v{LA}, {W}, s{29+(u>>1)} offen offset:{256*(u&1)} sc1')
    for kt, (so, off) in enumerate([('s33', 256), ('s31', 0), ('s31', 256), ('s32', 0), ('s32', 256)]):
        a.I(f'buffer_load_dwordx4 {vr(LK+4*kt,4)}, v{LA}, {W}, {so} offen offset:{off} sc1')
    for d in range(2):
        for kt in range(5):
            so, off = ('s27', 0) if kt == 0 else ('s26', (kt - 1) * 1024)
            a.I(f'buffer_load_dwordx2 {vr(LV+10*d+2*kt,2)}, v{LA+2+d}, {W}, {so} offen offset:{off} sc1')
    for u in range(4):
        a.I(f'buffer_load_dword v{LG+u}, v{LA+4}, {W}, s18 offen offset:{64*u} sc1')
    a.I(f's_setprio {OPT["h2prio"]}')
    a.I(f'''
    s_lshl_b32 s3, s7, 1
    s_mul_i32 s36, s3, {OAB_PT}
    s_mul_i32 s3, s8, 5120
    s_add_u32 s36, s36, s3
    s_add_u32 s36, s36, {WS_OAB + 40960}
    s_lshl_b32 s3, s10, 10
    s_add_u32 s37, s36, s3
    s_add_u32 s38, s37, {OAB_PT}
    s_lshr_b32 s3, s10, 1
    s_lshl_b32 s3, s3, 9
    s_and_b32 s4, s10, 1
    s_lshl_b32 s4, s4, 3
    s_add_u32 s3, s3, s4
    s_add_u32 s40, s36, s3
    s_add_u32 s40, s40, 4096
    s_add_u32 s41, s40, {OAB_PT}
    v_mov_b32 v{T4}, {f32hex(CSCALE)}
    v_mov_b32 v{T5}, {f32hex(-CSCALE)}
    ''')
    a.I(f'''
    s_add_u32 s3, s15, s13
    s_cmp_ge_u32 s3, 5
    s_cselect_b32 s4, 5, 0
    s_sub_u32 s3, s3, s4
    s_mul_i32 s42, s3, {128*1280}
    s_mul_i32 s43, s3, 20480
    s_add_u32 s43, s43, s12
    s_add_u32 s15, s15, {OPT['h2d']}
    s_mov_b32 s14, 5
    ''')
    nd = [0]
    def hd():
        if not OPT['h2d']: return
        j = nd[0]; nd[0] += 1
        a.I(f's_add_u32 m0, s43, {RA + j*4096}')
        a.I(f's_setprio {OPT["hprio"]}')
        a.I(f'buffer_load_dwordx4 v{VWO+j}, s[44:47], s42 offen lds')
        a.I(f's_setprio {OPT["h2prio"]}')
    vstamp(22)
    a.I('s_waitcnt vmcnt(19)')
    for u in range(4):
        for k in range(4):
            a.I(f'v_and_b32 v{LQ+4*u+k}, v{LA+1 if k < 2 else 155}, v{LQ+4*u+k}')
    a.I('s_waitcnt vmcnt(14)')
    vstamp(24)
    a.I(f's_setprio {OPT["h2m"]}')
    for u in range(4):
        bp = LB + 8 if u == 0 else LB + 4
        a.I(f'{MF16} {vr(LS+8*u,4)}, {vr(LK+4*u,4)}, {vr(LQ+4*u,4)}, {vr(bp,4)}')
        a.I(f'{MF16} {vr(LS+8*u+4,4)}, {vr(LK+4*u+4,4)}, {vr(LQ+4*u,4)}, {vr(LB,4)}')
    hd()
    a.I('s_nop 3')
    for u in range(4):
        s = LS + 8 * u
        m = M + 2 * u
        a.I(f'''
        v_max3_f32 v{m}, v{s}, v{s+1}, v{s+2}
        v_max3_f32 v{m}, v{m}, v{s+3}, v{s+4}
        v_max3_f32 v{m}, v{m}, v{s+5}, v{s+6}
        v_max_f32 v{m}, v{m}, v{s+7}
        v_mov_b32 v{m+1}, v{m}
        ''')
    a.I('s_nop 1')
    for u in range(4):
        a.I(f'v_permlane16_swap_b32 v{M+2*u}, v{M+2*u+1}')
    for u in range(4):
        a.I(f'v_max_f32 v{M+2*u}, v{M+2*u}, v{M+2*u+1}')
    for u in range(4):
        a.I(f'v_mov_b32 v{M+2*u+1}, v{M+2*u}')
    a.I('s_nop 1')
    for u in range(4):
        a.I(f'v_permlane32_swap_b32 v{M+2*u}, v{M+2*u+1}')
    for u in range(4):
        a.I(f'v_max_f32 v{M+2*u}, v{M+2*u}, v{M+2*u+1}')
    for u in range(4):
        a.I(f'v_mul_f32 v{M+2*u}, v{T5}, v{M+2*u}')
    for u in range(4):
        s = LS + 8 * u
        for k in range(0, 8, 2):
            a.I(f'v_pk_fma_f32 {vr(s+k,2)}, {vr(s+k,2)}, {vr(T4,2)}, {vr(M+2*u,2)} op_sel_hi:[1,0,0]')
        for k in range(8):
            ex(s + k)
        if u % 2 == 0: hd()
    a.I('s_nop 0')
    for u in range(4):
        for k in range(4):
            cv(LP + 4 * u + k, LS + 8 * u + 2 * k)
    a.I(f's_waitcnt vmcnt({nd[0]})')
    a.I(f'v_add_u32 v{T2}, {GL}, v{LA+4}')
    a.I(f's_setprio {OPT["h2m"]}')
    for u in range(4):
        a.I(f'{MF16} {vr(LL+4*u,4)}, {vr(ONES,4)}, {vr(LP+4*u,4)}, 0')
        a.I(f'{MF16} {vr(LO+8*u,4)}, {vr(LV+2*u,4)}, {vr(LP+4*u,4)}, 0')
        a.I(f'{MF16} {vr(LO+8*u+4,4)}, {vr(LV+10+2*u,4)}, {vr(LP+4*u,4)}, 0')
        a.I(f'ds_write_b32 v{T2}, v{LG+u} offset:{64*u}')
    a.I(f's_setprio {OPT["h2prio"]}')
    a.I('s_nop 3')
    for u in range(4):
        o = LO + 8 * u
        a.I(f'''
        v_rcp_f32 v{T2}, v{LL+4*u}
        v_sub_f32 v{T3}, 1.0, v{LG+u}
        v_mul_f32 v{T2}, v{T2}, v{T3}
        ''')
        for k in range(0, 8, 2):
            a.I(f'v_pk_mul_f32 {vr(o+k,2)}, {vr(o+k,2)}, {vr(T2,2)} op_sel_hi:[1,0]')
        p = LS + 4 * (u >> 1) + 2 * (u & 1)
        cv(p, o); cv(p + 1, o + 2)
        cv(o, o + 4); cv(o + 1, o + 6)
        for r in (p, p + 1, o, o + 1): a.I(f'v_min_u32 v{r}, -2, v{r}')
        if u % 2 == 0: hd()
    a.I('s_nop 1')
    for pp in range(2):
        p = LS + 4 * pp
        a.I(f'v_permlane32_swap_b32 v{p}, v{p+2}')
        a.I(f'v_permlane32_swap_b32 v{p+1}, v{p+3}')
        a.I(f'buffer_store_dwordx4 {vr(p,4)}, v{vOB+1}, {W}, s{37+pp} offen sc1')
    a.I('s_mov_b64 exec, 0xffff')
    for u in range(4):
        a.I(f'buffer_store_dwordx2 {vr(LO+8*u,2)}, v{vOB}, {W}, s{40+(u>>1)} offen offset:{256*(u&1)} sc1')
    a.I('s_mov_b64 exec, -1')
    a.stamp(6)
    stream(5)
    dma = [(bi, j) for bi in range(3) for j in range(5 if bi < 2 else 3)]
    dma1 = list(dma)
    a.I('s_mov_b32 s44, s24\ns_mov_b32 s45, s25')
    a.I(f's_setprio {OPT["hprio"]}')
    for _ in range(OPT['pre1']):
        bi, j = dma1.pop(0)
        a.I(f's_add_u32 m0, s12, {RB + bi*20480 + j*4096}')
        a.I(f's_mov_b32 s4, {128*bi*1280}')
        a.I(f's_waitcnt vmcnt({OPT["wsub"]})')
        a.I(f'buffer_load_dwordx4 v{VWO+j}, s[44:47], s4 offen lds')
    a.I(f's_setprio {OPT["cprio"]}')
    a.I('s_waitcnt vmcnt(0)')
    arrive(C_H)
    a.stamp(7)
    HWR = 124
    NR = 6
    AW = OPT['AW']
    a.vm = []; a.lg = []
    def w3(s):
        for n, i in enumerate(wread(s, HWR + (s % NR) * 20)):
            a.LG(i, (s, n))
    def a3(s):
        a.VM(f'buffer_load_dwordx4 {vr(AF+4*s,4)}, v{vA}, {W}, s19 offen offset:{(s%2)*2048} sc1', s)
        if s % 2 == 1:
            a.I('s_add_u32 s19, s19, 4096')
    def check(s, nm):
        r = AF + 4 * s
        a.L(f'{N}_{nm}ck{s}')
        a.I(f"""
        s_setprio 3
        v_max3_u32 v{T0}, v{r}, v{r+1}, v{r+2}
        v_max3_u32 v{T1}, v{r+3}, v{r+4}, v{r+5}
        v_max3_u32 v{T0}, v{T0}, v{r+6}, v{r+7}
        v_max_u32 v{T0}, v{T0}, v{T1}
        v_cmp_eq_u32 vcc, -1, v{T0}
        s_setprio {OPT['h3prio'] if s < OPT['h3sw'] else 3}
        s_cbranch_vccnz {N}_{nm}rt{s}
        """)
        a.L(f'{N}_{nm}go{s}')
    a.I('s_add_u32 s19, s21, 40960')
    a.I('s_mov_b32 s18, 0')
    a.I(f's_setprio {OPT["hprio"]}')
    for s in range(AW): a3(s)
    a.I(f's_setprio {OPT["h3prio"]}')
    a.I('s_setprio 3')
    a.I(f'v_mov_b32 v{T4}, {SYNC}\nv_mov_b32 v{T5}, 1')
    ldswait(C_H, 12, T2, T3, hp=OPT['h3prio'])
    vstamp(11)
    if STAMPS: a.I('v_writelane_b32 v0, s15, 30')
    for s in range(NR - 1): w3(s)
    DS = OPT['dstart']
    for s in range(20):
        sn = s + NR - 1
        if s == OPT['h3sw']: OPT['h3prio'] = 3; a.I('s_setprio 3')
        if sn == 10:
            a.I('s_setprio 3')
            for k in range(5):
                a.I(f'v_add_u32 v{vR+k}, 51200, v{vR+k}')
            a.I(f's_setprio {OPT["h3prio"]}')
        if s == DS:
            a.wait(vm=lambda tg: tg < 100)
            for u in range(s + (s & 1), 20, 2): check(u, 'h')
            a.I('s_setprio 3')
            ldswait(C_M, 4, T2, T3, sleep=0, hp=OPT['h3prio'])
            a.lg = []
        if sn < 20: w3(sn)
        if s in (10, 15):
            if s == 15: a.wait(vm=lambda tg: tg <= 1000)
            a.I('s_mov_b64 exec, 1')
            a.LG(f'ds_add_u32 v{T4}, v{T5} offset:{C_M if s == 10 else C_E}', (s + 3, 99))
            a.I('s_mov_b64 exec, -1')
        a.wait(vm=lambda tg: tg <= s + 1 - (s & 1), lg=lambda tg: tg[0] <= s)
        if s % 2 == 0 and s < DS: check(s, 'h')
        for t in range(5):
            d = vr(CACC + 4 * t, 4)
            a.I(f'{MF16} {d}, {vr(HWR+(s%NR)*20+t*4,4)}, {vr(AF+4*s,4)}, {d if s else 0}')
            if t == 0 and s + AW < 20: a3(s + AW)
            if s >= OPT['d1'] and t in (1, 3) and dma1:
                bi, j = dma1.pop(0)
                a.I(f's_add_u32 m0, s12, {RB + bi*20480 + j*4096}')
                a.I(f's_mov_b32 s4, {128*bi*1280}')
                a.I(f's_setprio {OPT["hprio"]}')
                a.VM(f'buffer_load_dwordx4 v{VWO+j}, s[44:47], s4 offen lds', 1000)
                a.I(f's_setprio {OPT["h3prio"]}')
            elif s >= DS and t in (1, 3) and dma:
                bi, j = dma.pop(0)
                a.I(f's_add_u32 m0, s12, {RA + bi*20480 + j*4096}')
                a.I(f's_mov_b32 s4, {(320 + 128*bi)*1280}')
                if (bi, j) == (2, 2):
                    a.I(f's_cmp_ge_u32 s10, 2\ns_cbranch_scc1 {N}_nodma')
                a.I(f's_setprio {OPT["hprio"]}')
                a.VM(f'buffer_load_dwordx4 v{VWO+j}, s[44:47], s4 offen lds', 2000)
                a.I(f's_setprio {OPT["h3prio"]}')
                if (bi, j) == (2, 2):
                    assert s > 15
                    a.L(f'{N}_nodma')
    assert not dma and DS + AW >= 20 and DS > 10
    a.I('s_setprio 3')
    vstamp(12)
    if STAMPS: a.I('v_writelane_b32 v0, s18, 28')
    for k in range(5):
        a.I(f'v_subrev_u32 v{vR+k}, 51200, v{vR+k}')
    a.I('s_add_u32 s22, s21, 20480')
    a.I('s_waitcnt vmcnt(0)')
    arrive(C_H)
    a.stamp(8)
    a.I('s_setprio 0')
    ldswait(C_H, HDONE, T2, T3)
    vstamp(13)
    a.I(f's_call_b64 {RET}, {N}_wpre')
    vstamp(14)
    ldswait(C_T, 4, T2, T3)

    a.stamp(9)
    a.L(f'{N}_phaseC0')
    CS = [22, 23, 26, 27, 28]
    a.I(f"""
    s_add_u32 s23, s22, 4096
    s_add_u32 s26, s22, 8192
    s_add_u32 s27, s22, 12288
    s_add_u32 s28, s22, 16384
    s_mov_b32 s19, 0
    s_call_b64 {RET}, {N}_cl0
    """)
    a.L(f'{N}_phaseC1')
    a.stamp(10)
    a.vm = []; a.lg = []
    srd(a, 52, 34, 2048 * 1280)
    vPa = 12
    a.I(f'''
    s_and_b32 s5, s9, 3
    s_mul_i32 s3, s5, 6144
    s_add_u32 s3, s3, {EXA}
    v_lshlrev_b32 v{vPa}, 4, v{vL}
    v_add_u32 v{vPa}, s3, v{vPa}
    s_lshl_b32 s3, s5, 2
    s_add_u32 s3, s3, {SYNC + C_P}
    v_mov_b32 v{vPa+1}, s3
    v_mul_u32_u24 v{vPa+2}, 1280, v{vC}
    v_and_b32 v{vPa+4}, 1, v{vG4}
    v_lshl_add_u32 v{vPa+4}, v{vPa+4}, 5, v{vPa+2}
    v_lshl_add_u32 v{vPa+4}, v{vH}, 4, v{vPa+4}
    v_lshl_add_u32 v{vPa+2}, v{vG4}, 3, v{vPa+2}
    s_lshl_b32 s3, s7, 6
    s_lshl_b32 s4, s5, 4
    s_add_u32 s3, s3, s4
    s_mul_i32 s13, s3, 1280
    s_mul_i32 s5, s8, 160
    s_add_u32 s13, s13, s5
    v_mov_b32 v{vPa+3}, 1
    ''')
    a.I('s_waitcnt lgkmcnt(0)')
    for s in range(10):
        if s == 8: a.I('s_waitcnt lgkmcnt(10)')
        if s == 9: a.I('s_waitcnt lgkmcnt(0)')
        if s % 2 == 0:
            r = AF + 4 * s
            a.L(f'{N}_ck{s}')
            a.I(f"""
            s_waitcnt vmcnt({8-s})
            v_max3_u32 v{T0}, v{r}, v{r+1}, v{r+2}
            v_max3_u32 v{T1}, v{r+3}, v{r+4}, v{r+5}
            v_max3_u32 v{T0}, v{T0}, v{r+6}, v{r+7}
            v_max_u32 v{T0}, v{T0}, v{T1}
            v_cmp_eq_u32 vcc, -1, v{T0}
            s_cbranch_vccnz {N}_rt{s}
            """)
            a.L(f'{N}_go{s}')
        for t in range(5):
            d = vr(CACC + 4 * t, 4)
            a.I(f'{MF16} {d}, {vr(WF+(s%8)*20+t*4,4)}, {vr(AF+4*s,4)}, {d}')
        if s in (1, 2):
            for i in wread(7 + s, WF + (s - 1)*20): a.I(i)
    if STAMPS: a.I('v_writelane_b32 v0, s19, 29')
    a.stamp(11)
    a.I(f'''
    s_cmp_ge_u32 s9, 4
    s_cbranch_scc1 {N}_red
    s_nop 3
    ''')
    for t in range(5):
        a.I(f'ds_write_b128 v{vPa}, {vr(CACC+4*t,4)} offset:{t*1024}')
    a.I(f'''
    s_waitcnt lgkmcnt(0)
    ds_write_b32 v{vPa+1}, v{vPa+3}
    s_waitcnt lgkmcnt(0)
    s_branch {N}_fin
    ''')
    a.L(f'{N}_red')
    a.I('s_mov_b32 s4, 0')
    a.L(f'{N}_red1')
    a.I(f'ds_read_b32 v{T0}, v{vPa+1}')
    for t in range(5):
        a.I(f'ds_read_b128 {vr(AF+4*t,4)}, v{vPa} offset:{t*1024}')
    a.I(f'''
    s_add_u32 s4, s4, 1
    s_waitcnt lgkmcnt(5)
    v_readfirstlane_b32 s3, v{T0}
    s_cmp_lg_u32 s3, 0
    s_cbranch_scc1 {N}_red2
    s_cmp_lt_u32 s4, {SPIN*8}
    s_cbranch_scc1 {N}_red1
    ''')
    a.L(f'{N}_red2')
    for t in range(5):
        c, b = CACC + 4 * t, AF + 4 * t
        a.I(f's_waitcnt lgkmcnt({4-t})')
        a.I(f'v_pk_add_f32 {vr(c,2)}, {vr(c,2)}, {vr(b,2)}')
        a.I(f'v_pk_add_f32 {vr(c+2,2)}, {vr(c+2,2)}, {vr(b+2,2)}')
        d = CACC + 8 * (t >> 1) + 2 * (t & 1)
        cv(d, c); cv(d + 1, c + 2)
        if t == 4:
            a.I(f'buffer_store_dwordx2 {vr(d,2)}, v{vPa+2}, s[52:55], s13 offen offset:{t*32}')
        if t in (2, 4):
            d = CACC + 4 * (t - 2)
            a.I(f'v_permlane16_swap_b32 v{d}, v{d+2}')
            a.I(f'v_permlane16_swap_b32 v{d+1}, v{d+3}')
            a.I(f'buffer_store_dwordx4 {vr(d,4)}, v{vPa+4}, s[52:55], s13 offen offset:{(t-2)*32}')
    a.L(f'{N}_fin')
    if STAMPS:
        a.stamp(12)
        a.I('s_waitcnt vmcnt(0)')
        a.stamp(13)
        if OPT['dbg']:
            a.I('s_memrealtime s[94:95]')
            a.I('s_load_dwordx2 s[36:37], s[0:1], 80')
            a.I('s_waitcnt lgkmcnt(0)')
            srd(a, 56, 36, 256)
            a.I(f's_cmp_lg_u32 s2, {OPT["dbg"]-1}')
            a.I(f's_cbranch_scc1 {N}_end')
            a.I(f's_and_b32 s3, s9, 3')
            a.I(f's_cmp_lg_u32 s3, 0')
            a.I(f's_cbranch_scc1 {N}_end')
            a.I('s_mov_b64 exec, 1')
            a.I(f'v_mov_b32 v{T0}, 0')
            a.I('s_lshr_b32 s5, s9, 2')
            a.I('s_mul_i32 s5, s5, 28')
            sel = [2,4,5,8,10,13,15]
            selh = [3,4,5,7,8,10,13]
            a.I('s_sub_u32 s94, s94, s92')
            a.I('s_add_u32 s94, s94, s64')
            for k in range(7):
                a.I(f's_cmp_eq_u32 s9, 0')
                a.I(f's_cselect_b32 s3, s{64+2*sel[k]}, s{64+2*selh[k]}')
                a.I(f's_sub_u32 s3, s3, s64')
                a.I(f'v_mov_b32 v{T1}, s3')
                a.I(f'buffer_store_dword v{T1}, v{T0}, s[56:59], s5 offen offset:{8+4*k}')
            a.I(f's_branch {N}_end')
        a.dump_stamps(14, 48, WS_STAMP, 9, T0, T1)
        a.I(f'''
        v_lshlrev_b32 v{T0}, 2, v{vL}
        s_getreg_b32 s4, hwreg(HW_REG_HW_ID)
        v_writelane_b32 v0, s4, 15
        s_lshl_b32 s3, s2, 3
        s_add_u32 s3, s3, s9
        s_lshl_b32 s3, s3, 7
        s_add_u32 s3, s3, {WS_STAMP + 262144}
        s_mov_b32 exec_hi, 0
        buffer_store_dword v0, v{T0}, {W}, s3 offen
        ''')
    a.L(f'{N}_end')
    a.I('s_endpgm')
    for s in range(0, 10, 2):
        a.L(f'{N}_rt{s}')
        a.I(f"""
        s_add_u32 s19, s19, 1
        s_cmp_gt_u32 s19, {SPIN}
        s_cbranch_scc1 {N}_go{s}
        """)
        if OPT['rl']:
            for u in range(s, min(s + OPT['rl'], 10)):
                a.I(f'buffer_load_dwordx4 {vr(AF+4*u,4)}, v{vA}, {W}, s{CS[u//2]} offen offset:{(u%2)*2048} sc1')
            a.I('s_waitcnt vmcnt(0)')
        else:
            a.I(f's_call_b64 {RET}, {N}_cl{s}')
        a.I(f's_branch {N}_ck{s}')
    for s in range(0, 20, 2):
        a.L(f'{N}_hrt{s}')
        a.I(f"""
        s_add_u32 s18, s18, 1
        s_cmp_gt_u32 s18, {SPIN}
        s_cbranch_scc1 {N}_hgo{s}
        s_add_u32 s3, s21, {40960 + s*2048}
        s_add_u32 s4, s3, 4096
        """)
        for u in range(s, min(s + 4, 20)):
            a.I(f'buffer_load_dwordx4 {vr(AF+4*u,4)}, v{vA}, {W}, s{3+(u-s)//2} offen offset:{(u%2)*2048} sc1')
        a.I(f's_waitcnt vmcnt(0)')
        a.I(f's_branch {N}_hck{s}')
    for s in range(10):
        a.L(f'{N}_cl{s}')
        a.I(f'buffer_load_dwordx4 {vr(AF+4*s,4)}, v{vA}, {W}, s{CS[s//2]} offen offset:{(s%2)*2048} sc1')
    a.I(f's_setpc_b64 {RET}')
    a.L(f'{N}_last')
    return a.text()

def build(path):
    hdr = open('gated_mix__grouped_kv_mqa__sliding_local_dilated__prompt.s.ref').read().split('\n')
    head = [l for l in hdr if l.startswith(';') and '@launch' not in l]
    s = '\n'.join(head) + '\n'
    s += f'; @launch grid=(256,1,1) block=(512,1,1) lds={LDS}\n'
    s += '.amdgcn_target "amdgcn-amd-amdhsa--gfx950"\n.text\n'
    s += gen()
    s += '.section .rodata,"a"\n'
    s += kernel_desc(KNAME, 256, 0, 102)
    open(path, 'w').write(s)

if __name__ == '__main__':
    for arg in sys.argv[2:]:
        if arg == 'stamps': STAMPS = True
        elif '=' in arg:
            k, v = arg.split('='); OPT[k] = int(v)
    build(sys.argv[1])
```

```python
import math, sys
from asmlib import *

WS_QKB = 0
QKB_PT = 81920
WS_VBT = 64 * QKB_PT
VBT_NT = 131072
WS_KVF = WS_VBT + 20 * VBT_NT
KVT = 2816
KV_K2, KV_C, KV_V1, KV_V2 = 1024, 1280, 1408, 2080
WS_G = WS_KVF + 64 * KVT
WS_FLG = WS_G + 8192
WS_FG = WS_FLG + 8192
FG = 48 * 128
WS_OAB = WS_FG + 32 * FG
OAB_PT = 81920
WS_STAMP = WS_OAB + 64 * OAB_PT
WS_END = WS_STAMP + 524288
STAMPS = False
CSCALE = math.log2(math.e) / math.sqrt(20.0)
QBSCALE = 1.0
MF16 = 'v_mfma_f32_16x16x32_bf16'
MF32 = 'v_mfma_f32_32x32x16_bf16'
MF32h = 'v_mfma_f32_32x32x8_bf16'
KNAME = 'gated_mix__grouped_kv_mqa__sliding_local_dilated__prompt_kernel'

XT = 0
SLOT = [81920, 102400, 122880]
EXB = 122880
QX = 81920
SYNC = 161792
C_X, C_W, C_Q, C_H, C_N, C_2, C_3, C_F, C_R, C_S2, C_S3 = 0, 8, 16, 36, 40, 48, 52, 56, 60, 64, 68
C_T, C_M, C_P, C_B, C_E, C_S1, C_A, C_QH = 72, 76, 80, 96, 112, 116, 128, 120
GV = 162048
GL = 163328
LDS = 163840
HR = 122880
RA = 0
RB = 102400
EXA = 51200
PART = 51200
SPIN = 200000

OPT = dict(b0x=1, n5=1, subs=1, cpe=1, h2l=0, cin=0, rl=4, h2m=3, xpub=10, w2e=0, wprio=1, wsleep=1, boost=0, xprio=3, cprio=3, bj=0, kg=39, swapx=0, hpf=0, jeven=1, peel=1, kvpf=0, lk=4, eprio=3, pre1=0, p1m=1, cl=0, s3b=8, dstart=12, att2=1, gp=3, par=0, par3=0, ffin=1, ct=0, wqpf=0, tlb=0, dbg=0, st2=2, d1=4, h3prio=1, h3sw=99, h2prio=3, h2d=1, AW=12, w0early=0, cpf=1, npre=2, hstart=2, wsub=3, psleep=2, PD=1, aprio=2, hprio=0, p1start=2, wstart=5, NB=8, nosc1=0, noatt=0, map2=1, pf=8, sprio=0, pf0=3, mprio=0, p1sleep=2, kvtest=0, vprio=1)

def srd(a, d, base, size):
    a.I(f's_mov_b32 s{d}, s{base}')
    a.I(f's_mov_b32 s{d+1}, s{base+1}')
    a.I(f's_mov_b32 s{d+2}, {size}')
    a.I(f's_mov_b32 s{d+3}, 0x20000')

def gen():
    a = Asm()
    a.stamps = STAMPS
    N = 'F'
    W = 's[48:51]'
    vL, vH, vP = 1, 2, 3
    T0, T1, T2, T3, T4, T5 = 4, 5, 6, 7, 8, 9
    vC, vG4 = 10, 11
    RET = 's[98:99]'
    ex = lambda r: a.I(f'v_exp_f32 v{r}, v{r}')
    cv = lambda d, s: a.I(f'v_cvt_pk_bf16_f32 v{d}, v{s}, v{s+1}')
    def lab():
        a.nlabel += 1
        return f'{N}_l{a.nlabel}'
    def ldswait(word, target, vt, va, sleep=1, hp=None):
        l = lab()
        a.I(f'v_mov_b32 v{va}, {SYNC}')
        a.I('s_mov_b32 s4, 0')
        a.L(l)
        a.I(f'''
        ds_read_b32 v{vt}, v{va} offset:{word}
        s_add_u32 s4, s4, 1
        s_waitcnt lgkmcnt(0)
        v_readfirstlane_b32 s3, v{vt}
        s_cmp_ge_u32 s3, {target}
        s_cbranch_scc1 {l}_ok
        ''')
        if hp is not None: a.I(f's_setprio {OPT["vprio"]}')
        if sleep: a.I(f's_sleep {sleep}')
        a.I(f'''
        s_cmp_lt_u32 s4, {SPIN*8}
        s_cbranch_scc1 {l}
        ''')
        a.L(l + '_ok')
        if hp is not None: a.I(f's_setprio {hp}')
    def arrive(word, va=T0, vd=T1):
        a.I(f'''
        v_mov_b32 v{va}, {SYNC}
        v_mov_b32 v{vd}, 1
        s_mov_b64 exec, 1
        ds_add_u32 v{va}, v{vd} offset:{word}
        s_mov_b64 exec, -1
        ''')

    def zero(r0, r1):
        assert r0 % 2 == 0 and r1 % 2 == 0
        for r in range(r0, r1, 2):
            a.I(f'v_mov_b64 {vr(r,2)}, 0')
    def vstamp(lane):
        if STAMPS:
            a.I(f's_memtime s[100:101]\ns_waitcnt lgkmcnt(0)\nv_writelane_b32 v0, s100, {lane}')
    def getnonce(vt, va):
        l = lab()
        a.I(f'v_mov_b32 v{va}, {SYNC}')
        a.I('s_mov_b32 s4, 0')
        a.L(l)
        a.I(f'''
        ds_read_b64 {vr(vt,2)}, v{va} offset:{C_N}
        s_add_u32 s4, s4, 1
        s_waitcnt lgkmcnt(0)
        v_readfirstlane_b32 s62, v{vt}
        v_readfirstlane_b32 s63, v{vt+1}
        s_cmp_lg_u32 s62, 0
        s_cbranch_scc1 {l}_ok
        s_cmp_lt_u32 s4, {SPIN*8}
        s_cbranch_scc1 {l}
        ''')
        a.L(l + '_ok')
    def npoll(top, done):
        a.I('s_mov_b32 s4, 0')
        a.L(f'{N}_{top}')
        a.I(f"""
        buffer_load_dwordx2 {vr(T2,2)}, v{T1}, s[56:59], 0 offen sc1
        s_add_u32 s4, s4, 1
        s_waitcnt vmcnt(0)
        v_readfirstlane_b32 s3, v{T2}
        s_cmp_lg_u32 s3, 0
        s_cbranch_scc1 {N}_{done}
        s_sleep 4
        s_cmp_lt_u32 s4, {SPIN}
        s_cbranch_scc1 {N}_{top}
        """)
    def cpf():
        a.I(f"""
        s_getpc_b64 s[40:41]
        {N}_pc:
        s_sub_u32 s40, s40, {N}_pc-{KNAME}
        s_subb_u32 s41, s41, 0
        s_mov_b32 s42, {N}_last-{KNAME}
        s_mov_b32 s43, 0x20000
        s_lshl_b32 s3, s6, 11
        v_lshlrev_b32 v{T0}, 4, v{vL}
        buffer_load_dwordx4 v[144:147], v{T0}, s[40:43], s3 offen
        buffer_load_dwordx4 v[148:151], v{T0}, s[40:43], s3 offen offset:1024
        """)
    a.raw(kernel_header(KNAME))
    a.I('s_cmp_ge_u32 s2, 256')
    a.I(f's_cbranch_scc1 {N}_end')
    a.stamp(0)
    a.I('s_load_dwordx16 s[16:31], s[0:1], 0')
    a.I('s_load_dwordx8 s[32:39], s[0:1], 64')
    a.I(f'''
    v_and_b32 v{vL}, 63, v0
    v_lshrrev_b32 v{T0}, 6, v0
    v_lshrrev_b32 v{vH}, 5, v{vL}
    v_readfirstlane_b32 s9, v{T0}
    v_and_b32 v{vP}, 31, v{vL}
    v_and_b32 v{vC}, 15, v{vL}
    v_lshrrev_b32 v{vG4}, 4, v{vL}
    s_and_b32 s3, s2, 7
    s_lshr_b32 s6, s2, 3
    ''')
    if OPT['cpe']:
        a.I(f's_cmp_lg_u32 s9, 1\ns_cbranch_scc1 {N}_nocp')
        cpf()
        a.I('s_and_b32 s3, s2, 7')
        a.L(f'{N}_nocp')
    if not OPT['map2']:
        a.I(f'''
        s_lshl_b32 s3, s3, 2
        s_lshr_b32 s5, s6, 3
        s_add_u32 s7, s3, s5
        s_and_b32 s8, s6, 7
        s_cmp_ge_u32 s8, 5
        s_cselect_b32 s3, 5, 0
        s_sub_u32 s60, s8, s3
        s_and_b32 s61, s7, 3
        s_lshl_b32 s3, s61, 1
        s_sub_u32 s96, s8, s3
        s_and_b32 s96, s96, 7
        ''')
    else:
        a.I(f'''
        s_lshr_b32 s4, s3, 1
        s_lshl_b32 s4, s4, 3
        s_lshr_b32 s5, s6, 2
        s_add_u32 s7, s4, s5
        {'s_not_b32 s3, s3' if OPT['swapx'] else ''}
        s_and_b32 s3, s3, 1
        s_lshl_b32 s3, s3, 2
        s_and_b32 s60, s6, 3
        s_add_u32 s8, s3, s60
        s_cmp_ge_u32 s5, 5
        s_cselect_b32 s3, 5, 0
        s_sub_u32 s61, s5, s3
        s_sub_u32 s96, s8, s5
        s_and_b32 s96, s96, {3 if OPT['jeven'] else 7}
        ''')
        if OPT['jeven']: a.I('s_and_b32 s3, s8, 4\ns_or_b32 s96, s96, s3')
    vSY, vOne = 22, 23
    vXa, vWa, vEa = 16, 24, 18
    a.I(f"""
    s_and_b32 s10, s9, 1
    s_cmp_ge_u32 s9, 4
    s_cbranch_scc1 {N}_hi
    s_cmp_lt_u32 s9, 2
    s_cbranch_scc1 {N}_lo
    """)
    a.I(f"""
    s_lshl_b32 s3, s7, 6
    s_lshl_b32 s4, s10, 4
    s_add_u32 s3, s3, s4
    v_lshrrev_b32 v{T0}, 3, v{vL}
    v_and_b32 v{T1}, 7, v{vL}
    v_xor_b32 v{T3}, v{vG4}, v{T1}
    v_add_u32 v{T2}, s3, v{T0}
    v_mul_u32_u24 v{T2}, 1280, v{T2}
    v_lshl_add_u32 v{vXa}, v{T3}, 4, v{T2}
    v_xor_b32 v{T3}, 4, v{T3}
    v_lshl_add_u32 v{vXa+1}, v{T3}, 4, v{T2}
    v_add_u32 v{vXa+1}, {8*1280}, v{vXa+1}
    s_lshl_b32 s11, s10, 10
    v_lshlrev_b32 v{vEa}, 4, v{vL}
    s_and_b32 s3, s96, 1
    s_mul_i32 s13, s3, 40960
    s_lshl_b32 s12, s3, 12
    s_lshl_b32 s4, s10, 11
    s_add_u32 s12, s12, s4
    s_lshl_b32 s3, s10, 2
    s_add_u32 s3, s3, {SYNC + C_X}
    v_mov_b32 v{vSY}, s3
    s_waitcnt lgkmcnt(0)
    """)
    srd(a, 40, 16, 2048 * 1280)
    q = []
    def issue(kind, slot=None):
        if kind == 'X':
            a.I(f's_call_b64 {RET}, {N}_xissue'); q.append(4)
        elif kind == 'E':
            a.I(f's_call_b64 {RET}, {N}_eissue'); q.append(7)
        else:
            a.I(f's_mov_b32 s15, {SLOT[slot]}')
            a.I(f's_call_b64 {RET}, {N}_wissue'); q.append(10)
    npub = [0]
    def pub(val=None, nowait=False):
        if val is None:
            q.pop(0)
            npub[0] += 1
            val = npub[0]
        else:
            q.clear()
        a.I(f'v_mov_b32 v{vOne}, {val}')
        if not nowait: a.I(f's_waitcnt vmcnt({sum(q)})')
        a.I(f'ds_write_b32 v{vSY}, v{vOne}')
        vstamp(16 + min(val, 6))
    flip = f"""
    s_xor_b32 s13, s13, 40960
    s_xor_b32 s12, s12, 4096
    """
    def xsubs():
        a.L(f'{N}_eissue')
        a.I(f"""
        s_mul_i32 s14, s60, 5120
        s_add_u32 s4, s14, s11
        s_add_u32 m0, s4, {EXB}
        s_add_u32 s14, s14, 4096
        buffer_load_dwordx4 v{vEa}, s[52:55], s4 offen lds
        buffer_load_dwordx4 v{vEa}, s[52:55], s4 offen offset:2048 lds
        s_add_u32 m0, s14, {EXB}
        s_nop 0
        buffer_load_dwordx4 v{vEa}, s[52:55], s14 offen lds
        """)
        a.L(f'{N}_xissue')
        a.I(f"""
        s_lshl_b32 s14, s60, 8
        s_add_u32 s14, s14, s13
        s_lshl_b32 s15, s60, 14
        s_add_u32 s15, s15, s12
        """)
        for c in range(2):
            for n in range(2):
                a.I(f's_add_u32 m0, s15, {c*8192 + n*1024}')
                a.I(f's_add_u32 s4, s14, {c*128}')
                a.I(f'buffer_load_dwordx4 v{vXa+n}, s[40:43], s4 offen lds')
        a.I(f"""
        s_add_u32 s60, s60, 1
        s_cmp_eq_u32 s60, 5
        s_cselect_b32 s60, 0, s60
        s_setpc_b64 {RET}
        """)
    if OPT['subs']:
        a.I(f's_branch {N}_xmain')
        xsubs()
        a.L(f'{N}_xmain')
    if not OPT['b0x']: a.I('s_barrier')
    a.I(f"""
    s_cmp_ge_u32 s96, 4
    s_cbranch_scc1 {N}_noex
    s_cmp_lt_u32 s96, 2
    s_cselect_b32 s52, s20, s22
    s_cselect_b32 s53, s21, s23
    s_mov_b32 s54, 25600
    s_mov_b32 s55, 0x20000
    """)
    for n in range(4):
        issue('E')
        if n + 1 == OPT['b0x']: a.I('s_barrier')
    pub(); issue('E'); a.I(flip)
    for _ in range(4):
        pub(); issue('X')
    issue('X')
    a.I(f's_branch {N}_xdone')
    a.L(f'{N}_noex')
    a.I(f"""
    s_cmp_lg_u32 s96, 4
    s_cbranch_scc1 {N}_nog
    """)
    srd(a, 52, 32, 1280)
    a.I(f"""
    s_add_u32 m0, s11, {GV}
    s_cmp_eq_u32 s10, 0
    s_cselect_b32 exec_lo, -1, 0xffff
    s_cselect_b32 exec_hi, -1, 0
    buffer_load_dwordx4 v{vEa}, s[52:55], s11 offen lds
    s_mov_b64 exec, -1
    """)
    a.L(f'{N}_nog')
    for n in range(10):
        if n == 5: a.I(flip)
        issue('X')
        if n + 1 == OPT['b0x']: a.I('s_barrier')
        if n + 1 == OPT['xpub']: pub(5, nowait=True)
    a.L(f'{N}_xdone')
    pub(10)
    a.I(f's_branch {N}_work')
    a.L(f'{N}_hi')
    a.I(f"""
    s_barrier
    s_waitcnt lgkmcnt(0)
    """)
    def wqpf():
        srd(a, 52, 18, 819200)
        a.I(f"""
        s_lshl_b32 s3, s6, 1
        s_add_u32 s3, s3, s10
        s_mul_i32 s15, s3, 12800
        s_lshr_b32 s3, s8, 2
        s_mul_i32 s3, s3, 640
        s_add_u32 s15, s15, s3
        s_call_b64 {RET}, {N}_wpf
        """)
    if OPT['wqpf'] == 1:
        a.I(f's_cmp_lt_u32 s9, 6\ns_cbranch_scc1 {N}_nopf')
        wqpf()
        a.L(f'{N}_nopf')
    a.I(f"""
    {'' if OPT['w0early'] else f's_call_b64 {RET}, {N}_hsetup'}
    s_cmp_ge_u32 s9, 6
    s_cbranch_scc1 {N}_wload
    {f's_call_b64 {RET}, {N}_hsetup' if OPT['w0early'] else ''}
    """)
    if OPT['n5']:
        a.I(f's_cmp_lg_u32 s9, 5\ns_cbranch_scc1 {N}_n6')
        srd(a, 56, 36, 256)
        a.I(f'v_mov_b32 v{T1}, 0')
        npoll('n4', 'n5')
        a.L(f'{N}_n5')
        a.I(f'v_mov_b32 v{T0}, {SYNC}\nds_write_b64 v{T0}, {vr(T2,2)} offset:{C_N}')
        vstamp(22)
        a.L(f'{N}_n6')
    a.I(f"""
    s_cmp_eq_u32 s96, 4
    s_cbranch_scc1 {N}_extra
    s_cmp_gt_u32 s96, 4
    s_cbranch_scc1 {N}_hpre2
    s_cmp_eq_u32 s9, 5
    s_cbranch_scc1 {N}_hpre2
    s_branch {N}_extra
    """)
    a.L(f'{N}_wload')
    if OPT['wqpf'] == 2: wqpf()
    a.I(f's_mul_i32 s3, s8, 160')
    for n in range(5):
        a.I(f"""
        v_add_u32 v{T0}, {n*64}, v{vL}
        v_mul_u32_u24 v{T1}, 6554, v{T0}
        v_lshrrev_b32 v{T1}, 16, v{T1}
        v_mul_u32_u24 v{T2}, 160, v{T1}
        v_lshlrev_b32 v{T0}, 4, v{T0}
        v_sub_u32 v{T0}, v{T0}, v{T2}
        v_bfe_u32 v{T2}, v{T1}, 1, 2
        v_and_b32 v{T3}, 1, v{T1}
        v_lshl_add_u32 v{T2}, v{T3}, 2, v{T2}
        v_and_b32 v{T1}, 24, v{T1}
        v_add_u32 v{T1}, v{T1}, v{T2}
        v_mul_u32_u24 v{T1}, 1280, v{T1}
        v_add3_u32 v{vWa+n}, v{T1}, v{T0}, s3
        """)
    srd(a, 44, 18, 819200)
    a.I(f"""
    s_lshl_b32 s3, s10, 2
    s_add_u32 s3, s3, {SYNC + C_W}
    v_mov_b32 v{vSY}, s3
    s_mul_i32 s11, s10, {64*1280}
    s_mul_i32 s13, s10, 10240
    """)
    if OPT['w0early']:
        a.I(f's_cmp_lt_u32 s96, 4')
        a.I(f's_cbranch_scc1 {N}_w0a')
        issue('W', 0); q.clear()
        a.L(f'{N}_w0a')
        a.I(f's_call_b64 {RET}, {N}_hsetup')
    if not OPT['h2l']: a.I(f's_call_b64 {RET}, {N}_hsetup2')
    if OPT['wqpf'] == 3: wqpf()
    vstamp(16)
    npub[0] = 0
    ldswait(C_X, OPT['wstart'], T0, T1, sleep=1)
    if OPT['w0early']:
        a.I(f's_cmp_ge_u32 s96, 4')
        a.I(f's_cbranch_scc1 {N}_w0b')
    issue('W', 0)
    a.L(f'{N}_w0b')
    issue('W', 1)
    if OPT['h2l']: a.I(f's_call_b64 {RET}, {N}_hsetup2')
    if OPT['w2e']:
        a.I(f's_cmp_lt_u32 s96, 4')
        a.I(f's_cbranch_scc1 {N}_jw')
        q0, n0 = list(q), npub[0]
        issue('W', 2); pub()
        a.I(f's_branch {N}_nof2')
        a.L(f'{N}_jw')
        q[:] = q0; npub[0] = n0
    pub()
    a.I(f's_cmp_ge_u32 s96, 4')
    a.I(f's_cbranch_scc1 {N}_nof')
    ldswait(C_F, 1, T0, T1, sleep=1)
    a.L(f'{N}_nof')
    issue('W', 2)
    a.L(f'{N}_nof2')
    pub()
    a.I(f"""
    s_cmp_eq_u32 s10, 0
    s_cselect_b32 s3, {SYNC + C_QH}, {SYNC + C_Q}
    v_mov_b32 v{T1}, s3
    """.replace(f's_cselect_b32 s3, {SYNC + C_QH}, {SYNC + C_Q}', f's_cselect_b32 s3, {C_QH - C_Q}, 0\ns_add_u32 s3, s3, {SYNC + C_Q}'))
    for st in (3, 4):
        a.I('s_mov_b32 s4, 0')
        a.L(f'{N}_wq{st}')
        a.I(f"""
        ds_read_b32 v{T0}, v{T1} offset:{4*(st-3)}
        s_add_u32 s4, s4, 1
        s_waitcnt lgkmcnt(0)
        v_readfirstlane_b32 s3, v{T0}
        s_cmp_ge_u32 s3, 4
        s_cbranch_scc1 {N}_wq{st}_ok
        s_cmp_lt_u32 s4, {SPIN*8}
        s_cbranch_scc1 {N}_wq{st}
        """)
        a.L(f'{N}_wq{st}_ok')
        issue('W', st - 3); pub()
    pub()
    a.stamp(1)
    a.I(f's_branch {N}_hpre')
    if not OPT['subs']: xsubs()
    a.L(f'{N}_wissue')
    a.I(f"""
    s_mul_i32 s14, s61, {128*1280}
    s_add_u32 s14, s14, s11
    s_add_u32 s15, s15, s13
    """)
    for g in range(2):
        for n in range(5):
            a.I(f's_add_u32 m0, s15, {g*5120 + n*1024}')
            a.I('s_nop 0' if (g, n) != (1, 0) else f's_add_u32 s14, s14, {32*1280}')
            a.I(f'buffer_load_dwordx4 v{vWa+n}, s[44:47], s14 offen lds')
    a.I(f"""
    s_add_u32 s61, s61, 1
    s_cmp_eq_u32 s61, 5
    s_cselect_b32 s61, 0, s61
    s_setpc_b64 {RET}
    """)

    a.L(f'{N}_lo')
    vXB = 12
    def xbases(vXB=12):
        a.I(f"""
        v_lshrrev_b32 v{T0}, 1, v{vP}
        v_and_b32 v{T0}, 7, v{T0}
        v_xor_b32 v{T0}, v{T0}, v{vH}
        v_lshlrev_b32 v{T1}, 7, v{vP}
        """)
        for ks in range(4):
            a.I(f'v_xor_b32 v{T2}, {2*ks}, v{T0}')
            a.I(f'v_lshl_add_u32 v{vXB+ks}, v{T2}, 4, v{T1}')
    a.I(f"""
    s_cmp_lg_u32 s9, 0
    s_cbranch_scc1 {N}_notpoll
    v_lshlrev_b32 v{T0}, 2, v{vL}
    v_add_u32 v{T0}, {SYNC}, v{T0}
    v_mov_b32 v{T1}, 0
    ds_write_b32 v{T0}, v{T1}
    s_waitcnt lgkmcnt(0)
    """)
    srd(a, 56, 36, 256)
    a.I(f"""
    s_cmp_lg_u32 s2, 0
    s_cbranch_scc1 {N}_n1
    s_memrealtime s[62:63]
    s_waitcnt lgkmcnt(0)
    s_or_b32 s62, s62, 1
    v_mov_b32 v{T2}, s62
    v_mov_b32 v{T3}, s63
    s_mov_b64 exec, 1
    buffer_store_dwordx2 {vr(T2,2)}, v{T1}, s[56:59], 0 offen sc1
    s_mov_b64 exec, -1
    s_barrier
    s_branch {N}_n2
    """)
    a.L(f'{N}_n1')
    a.I('s_barrier')
    if OPT['n5']: a.I(f's_branch {N}_work')
    else: npoll('n3', 'n2')
    a.L(f'{N}_n2')
    a.I(f"""
    v_mov_b32 v{T0}, {SYNC}
    ds_write_b64 v{T0}, {vr(T2,2)} offset:{C_N}
    """)
    vstamp(22)
    a.I(f's_branch {N}_work')
    a.L(f'{N}_notpoll')
    if OPT['cpf'] and not OPT['cpe']: cpf()
    if OPT['tlb']:
        a.I(f"""
        s_mul_i32 s3, s7, {2*QKB_PT}
        s_add_u32 s4, s3, {WS_OAB}
        s_mul_i32 s5, s7, 81920
        s_mul_i32 s10, s8, {VBT_NT*5//2}
        s_add_u32 s10, s10, {WS_VBT}
        s_mov_b32 s11, {WS_KVF}
        s_mov_b32 s12, 0x12c000
        s_mov_b32 s13, 0x250000
        s_waitcnt lgkmcnt(0)
        s_load_dword s97, s[18:19], 0
        s_load_dword s97, s[38:39], s11
        s_load_dword s97, s[18:19], 0xc0000
        s_load_dword s97, s[28:29], 0
        s_load_dword s97, s[28:29], s12
        s_load_dword s97, s[28:29], s13
        s_load_dword s97, s[38:39], s3
        s_load_dword s97, s[38:39], s10
        s_load_dword s97, s[38:39], s4
        s_load_dword s97, s[24:25], 0
        s_load_dword s97, s[24:25], 0xc0000
        s_load_dword s97, s[30:31], 0
        s_load_dword s97, s[30:31], 0xc0000
        s_load_dword s97, s[34:35], s5
        """)
    a.I(f"""
    s_barrier
    """)
    a.L(f'{N}_work')
    vXQ = 90
    xbases(vXQ)
    vW0, vW1 = 106, 107
    vCX = 16
    vWB_, vCW = 20, 21
    FACC = 24
    FX = 56
    FWf = 88
    CNT = 104
    def worksetup():
        a.I(f"""
        v_bfe_u32 v{T0}, v{vL}, 2, 2
        v_lshl_add_u32 v{vW0}, v{vH}, 3, v{T0}
        v_and_b32 v{T1}, 3, v{vL}
        v_bfe_u32 v{T2}, v{vL}, 4, 1
        v_lshl_add_u32 v{T1}, v{T2}, 2, v{T1}
        v_min_u32 v{T1}, 4, v{T1}
        v_lshlrev_b32 v{vW1}, 3, v{T1}
        v_mov_b32 v{vSY}, {SYNC}
        v_mov_b32 v{vOne}, 1
        """)
        zero(FACC, FACC+16)
        a.I('s_waitcnt lgkmcnt(0)')
        srd(a, 48, 38, WS_END)
        a.I(f"""
        s_mov_b32 s5, 0
        s_mov_b32 s10, 0
        """)
    worksetup()
    def cntwait(top, need, first='s_waitcnt lgkmcnt(0)', off=C_X, CNT=CNT):
        if first: a.I(first)
        a.L(top)
        a.I(f"""
        v_readfirstlane_b32 s3, v{CNT}
        v_readfirstlane_b32 s4, v{CNT+1}
        s_min_u32 s3, s3, s4
        s_cmp_ge_u32 s3, {need}
        s_cbranch_scc1 {top}_go
        ds_read_b64 {vr(CNT,2)}, v{vSY} offset:{off}
        s_add_u32 s5, s5, 1
        s_cmp_lt_u32 s5, {SPIN*8}
        s_waitcnt lgkmcnt(0)
        s_cbranch_scc1 {top}
        """)
        a.L(top + '_go')
    vK1a, vK2a, vVa, vG = 12, 13, 14, 15
    Q1, Q2 = 16, 32
    P = 40
    S = [48, 64]
    O = 80
    NB = OPT['NB']
    KVB = 144
    def K1(b): return KVB + 14 * b
    def V1(b): return KVB + 14 * b + 4
    def V2(b): return KVB + 14 * b + 8
    def K2(b): return KVB + 14 * b + 12
    KZ = K1(NB-1); KZ2 = K2(NB-1)
    SC = '' if OPT['nosc1'] else ' sc1'
    srd(a, 44, 38, WS_END)
    QC = 88
    QW = 56
    XR = list(range(240, 256, 4)) + list(range(144, 172, 4)) + list(range(96, 144, 4)) + list(range(172, 240, 4))
    assert len(XR) == 40
    a.I(f"""
    ds_read_b64 {vr(QC,2)}, v{vSY}
    v_bfe_u32 v{T0}, v{vL}, 2, 2
    v_add_u32 v{T0}, v{T0}, v{vW0}
    v_mul_u32_u24 v{T0}, 160, v{T0}
    s_setprio 2
    s_and_b32 s10, s9, 1
    s_lshr_b32 s11, s9, 1
    s_mul_i32 s3, s11, 80
    v_add3_u32 v{vWB_}, v{T0}, v{vW1}, s3
    v_lshlrev_b32 v{vK1a}, 4, v{vL}
    v_lshlrev_b32 v{vK2a}, 3, v{vL}
    v_min_u32 v{vK2a}, 256, v{vK2a}
    v_mul_u32_u24 v{vVa}, 336, v{vH}
    v_lshl_add_u32 v{vVa}, v{vP}, 4, v{vVa}
    v_mov_b32 v{T3}, 0x7fffff00
    v_cmp_gt_u32 vcc, 21, v{vP}
    s_mul_i32 s12, s11, {32*KVT}
    s_add_u32 s12, s12, {WS_KVF}
    v_cndmask_b32 v{vVa}, v{T3}, v{vVa}, vcc
    s_add_u32 s13, s12, {32*KVT}
    s_mul_i32 s14, s6, {KVT}
    s_add_u32 s14, s14, s12
    s_mov_b32 s15, {WS_KVF}
    s_lshl_b32 s3, s9, 12
    s_add_u32 s3, s3, {QX}
    v_add_u32 v{T0}, s3, v{vK1a}
    v_xor_b32 v{T1}, 8192, v{T0}
    s_lshl_b32 s3, s9, 2
    s_add_u32 s3, s3, {SYNC + C_A}
    v_mov_b32 v{T2}, s3
    s_xor_b32 s3, s96, s10
    s_and_b32 s3, s3, 5
    s_cselect_b32 s18, 10, 5
    s_lshl_b32 s19, s10, 12
    v_add_u32 v{vCW}, {SLOT[0]}, v{vWB_}
    s_waitcnt vmcnt(0)
    """)
    assert QX % 16384 == 0 and (SYNC + C_A) % 16 == 0
    a.I(f'''
    s_lshl_b32 s3, s7, 1
    s_add_u32 s20, s3, s10
    s_xor_b32 s3, s9, 2
    s_mul_i32 s3, s3, 6144
    s_add_u32 s29, s3, {EXA}
    s_mul_i32 s3, s9, 6144
    s_add_u32 s30, s3, {EXA}
    s_lshl_b32 s3, s10, 7
    s_add_u32 s3, s3, {GL}
    v_lshlrev_b32 v{vG}, 2, v{vP}
    v_add_u32 v{vG}, s3, v{vG}
    s_lshl_b32 s3, s9, 2
    s_add_u32 s31, s3, {SYNC + C_B}
    s_mul_i32 s36, s20, {OAB_PT}
    s_mul_i32 s3, s8, 5120
    s_add_u32 s36, s36, s3
    s_add_u32 s36, s36, {WS_OAB}
    s_xor_b32 s4, s11, 1
    s_lshl_b32 s3, s4, 11
    s_add_u32 s37, s36, s3
    s_lshl_b32 s3, s4, 9
    s_add_u32 s40, s36, s3
    s_add_u32 s40, s40, 4096
    s_mov_b32 s42, {f32hex(2.0**100)}
    ''')
    zero(FACC+16, FACC+32)
    def qreads(ks, tag):
        b = ks % 4
        for j in range(2):
            for h in range(2):
                a.LG(f'ds_read_b64_tr_b16 {vr(QW+b*8+j*4+2*h,2)}, v{vCW} offset:{(ks*16+h)*160 + 40*j}', tag)
    def loadK(r1, r2, so):
        a.I(f'buffer_load_dwordx4 {vr(r1,4)}, v{vK1a}, {W}, {so} offen{SC}')
        a.I(f'buffer_load_dwordx2 {vr(r2,2)}, v{vK2a}, {W}, {so} offen offset:{KV_K2}{SC}')
    def loadV(b, so):
        a.I(f'buffer_load_dwordx4 {vr(V1(b),4)}, v{vVa}, {W}, {so} offen offset:{KV_V1}{SC}')
        a.I(f'buffer_load_dwordx4 {vr(V2(b),4)}, v{vVa}, {W}, {so} offen offset:{KV_V2}{SC}')
    adv = [f's_add_u32 s14, s14, {KVT}', 's_cmp_eq_u32 s14, s13', 's_cselect_b32 s14, s12, s14']
    def ldtile(b):
        if b == 0: loadK(KZ, KZ2, 's15')
        loadK(K1(b), K2(b), 's14'); loadV(b, 's14')
        for i in adv: a.I(i)
    cntwait(f'{N}_qwx', 's18', CNT=QC)
    vstamp(24)
    for st in range(5):
        a.I(f"""
        s_lshl_b32 s3, s61, 14
        s_add_u32 s3, s3, s19
        s_add_u32 s61, s61, 1
        s_cmp_eq_u32 s61, 5
        s_cselect_b32 s61, 0, s61
        """)
        for k in range(4):
            a.I(f'v_add_u32 v{vCX+k}, s3, v{vXQ+k}')
        for ks in range(8):
            a.I(f'ds_read_b128 {vr(XR[st*8+ks],4)}, v{vCX+(ks&3)} offset:{(ks>>2)*8192}')
    def wwait(top, need, h, first=None):
        if first: a.I(first)
        a.L(top)
        a.I(f"""
        v_readfirstlane_b32 s3, v{QC+h}
        s_cmp_ge_u32 s3, {need}
        s_cbranch_scc1 {top}_go
        ds_read_b32 v{QC+h}, v{vSY} offset:{C_W + 4*h}
        s_add_u32 s5, s5, 1
        s_cmp_lt_u32 s5, {SPIN*8}
        s_waitcnt lgkmcnt(0)
        s_cbranch_scc1 {top}
        """)
        a.L(top + '_go')
    a.I(f'ds_read_b64 {vr(QC,2)}, v{vSY} offset:{C_W}')
    wwait(f'{N}_qw0', 1, 0, 's_waitcnt lgkmcnt(0)')
    vstamp(16)
    a.lg = []
    a.LG(f'ds_read_b32 v{QC+1}, v{vSY} offset:{C_W+4}', 'c')
    for ks in range(3): qreads(ks, ks)
    zl = [V1(NB-1) + 2*k for k in range(4)] + list(range(96, 144, 2))
    for g in range(40):
        st, u = divmod(g, 8)
        if u == 5 and st < 4:
            a.wait(lg=lambda t: t == 'c')
            wwait(f'{N}_qw{st+1}', st + 2, 0)
            a.I(f'v_add_u32 v{vCW}, {SLOT[(st+1)%3]}, v{vWB_}')
        if u == 1:
            a.wait(lg=lambda t: t == 'c')
            wwait(f'{N}_qv{st}', st + 1, 1)
        if u in (3, 7) and st < 4:
            a.LG(f'ds_read_b32 v{QC + u//4}, v{vSY} offset:{C_W + 4*(u//4)}', 'c')
        if g + 3 < 40: qreads((u + 3) % 8, g + 3)
        if u == 4 or (u == 0 and st < 2):
            a.I('s_mov_b64 exec, 1')
            a.LG(f'ds_add_u32 v{vSY}, v{vOne} offset:{(C_Q if u else C_QH) + 4*st}', g + 3.5)
            a.I('s_mov_b64 exec, -1')
        if g == OPT['kg'] - 1:
            a.LG(f'ds_read_b32 v{T3}, v{vSY} offset:{C_S1}', g + 1)
        if g == 38:
            a.LG(f'ds_read_b32 v{T4}, v{vSY} offset:{C_Q + 12}', 50)
        a.wait(lg=lambda t: t != 'c' and t <= g)
        b = g % 4
        for j in range(2):
            d = vr(FACC + j * 16, 16)
            a.I(f'{MF32} {d}, {vr(QW + b*8 + j*4, 4)}, {vr(XR[g], 4)}, {d}')
            if g >= 25 and zl:
                a.I(f'v_mov_b64 {vr(zl.pop(0),2)}, 0')
        if g == OPT['kg']:
            a.I(f'v_cmp_ne_u32 vcc, 0, v{T3}')
            a.I(f's_cbranch_vccz {N}_kv1')
            ldtile(0)
            a.L(f'{N}_kv1')
        if STAMPS and u == 6: a.I('s_memtime s[100:101]')
        if STAMPS and u == 1 and st: a.I(f'v_writelane_b32 v0, s100, {24+st}')
    assert not zl
    a.stamp(2)
    R0 = K1(6)
    zero(88, 96); zero(80, 88)
    a.I(f"""
    v_mov_b32 v{R0}, v{T1}
    v_xor_b32 v{R0+1}, 8, v{T2}
    s_waitcnt lgkmcnt(0)
    v_readfirstlane_b32 s18, v{T4}
    v_mov_b32 v{T4}, {f32hex(CSCALE)}
    s_nop 4
    """)
    for j in range(2):
        r = FACC + 16 * j
        for k in range(6):
            a.I(f'v_pk_mul_f32 {vr(r+2*k,2)}, {vr(r+2*k,2)}, {vr(T4,2)} op_sel_hi:[1,0]')
        for k in range(4):
            cv(Q1 + 4*j + k, r + 2 * k)
        cv(Q2 + 2*j, r + 8); cv(Q2 + 2*j + 1, r + 10)
    a.I(f"""
    s_mov_b32 exec_lo, 0
    v_mov_b64 {vr(Q2,2)}, 0
    v_mov_b64 {vr(Q2+2,2)}, 0
    s_mov_b32 exec_lo, -1
    s_cmp_ge_u32 s18, 4
    s_cbranch_scc1 {N}_q3ok
    """)
    ldswait(C_Q + 12, 4, T4, T5, sleep=0)
    a.L(f'{N}_q3ok')
    for j in range(2):
        a.I(f'ds_write_b128 v{T0}, {vr(Q1+4*j,4)} offset:{j*1024}')
    a.stamp(1)
    if STAMPS: a.I('v_writelane_b32 v0, vcc_lo, 23')
    a.I(f's_cbranch_vccnz {N}_kvok')
    ldswait(C_S1, 1, T4, T5, sleep=0)
    ldtile(0)
    a.L(f'{N}_kvok')
    NPRE = OPT['npre']
    vstamp(18)
    zero(P, P+8)
    a.I(f's_waitcnt vmcnt(4)')
    vstamp(19)
    def zmax(t, s):
        a.I(f'v_max3_f32 v{T5}, v{s}, v{s+1}, v{s+2}')
        for k in range(3, 15, 2):
            a.I(f'v_max3_f32 v{T5}, v{T5}, v{s+k}, v{s+k+1}')
        a.I(f'v_max_f32 v{T5}, v{T5}, v{s+15}')
        a.I('s_mov_b32 exec_lo, 0')
        a.I(f'v_cvt_pk_bf16_f32 v{Q2+2*t}, -v{T5}, 0')
        a.I('s_mov_b32 exec_lo, -1')
    def zqk(t, s):
        a.I(f'{MF32} {vr(s,16)}, {vr(KZ,4)}, {vr(Q1+4*t,4)}, 0')
        a.I(f'{MF32h} {vr(s,16)}, {vr(KZ2,2)}, {vr(Q2+2*t,2)}, {vr(s,16)}')
    zqk(0, S[0]); zqk(1, S[1])
    for b in range(1, NPRE): ldtile(b)
    a.I('s_nop 2')
    zmax(0, S[0])
    a.I(f's_waitcnt vmcnt({4*(NPRE-1)})')
    a.I(f'{MF32} {vr(S[0],16)}, {vr(K1(0),4)}, {vr(Q1,4)}, 0')
    a.I(f'{MF32h} {vr(S[0],16)}, {vr(K2(0),2)}, {vr(Q2,2)}, {vr(S[0],16)}')
    zmax(1, S[1])
    a.I(f"""
    ds_write_b128 v{T0}, {vr(Q2,4)} offset:2048
    ds_write_b32 v{T2}, v{T2}
    """)
    rcv = f"""ds_read_b32 v{R0+2}, v{R0+1}
    ds_read_b128 {vr(Q1+8,4)}, v{R0}
    ds_read_b128 {vr(Q1+12,4)}, v{R0} offset:1024
    ds_read_b128 {vr(Q2+4,4)}, v{R0} offset:2048"""
    def recv():
        a.I('s_mov_b32 s4, 0')
        a.L(f'{N}_qx1')
        a.I(f"""
        s_waitcnt lgkmcnt(0)
        v_readfirstlane_b32 s3, v{R0+2}
        s_add_u32 s4, s4, 1
        s_cmp_lg_u32 s3, 0
        s_cbranch_scc1 {N}_qx2
        {rcv}
        s_cmp_lt_u32 s4, {SPIN*8}
        s_cbranch_scc1 {N}_qx1
        """)
        a.L(f'{N}_qx2')
        arrive(C_H, R0, R0+1)
    assert OPT['peel'] and OPT['att2'] and NPRE <= 4
    PEEL = NB - 1 - NPRE if OPT['peel'] else 0
    for b in range(NPRE, NB - 1 - PEEL):
        loadK(K1(b), K2(b), 's14'); loadV(b, 's14')
        for i in adv: a.I(i)
    a.I('s_nop 3')
    a.I(f's_setprio {OPT["aprio"]}')
    a.I('s_mov_b32 s19, 0')
    a.stamp(4)
    if STAMPS:
        a.I('s_mov_b32 m0, 0')
    vq = [b for b in range(1, NPRE) for _ in range(4)]
    Ra, Rb, Rc, Rd, Re, Rf = range(K1(0), K1(0) + 6)
    for b in list(range(-PEEL, 0)) + list(range(NB + 1)):
        peeled = b < 0
        lastt = b == NB
        if lastt:
            a.I(f's_branch {N}_aloop')
            b = NB - 1
        if b == 0:
            if PEEL: a.I(f's_branch {N}_ab{PEEL}')
            a.raw('.p2align 6')
            a.L(f'{N}_aloop')
        if peeled: b += PEEL
        else: a.L(f'{N}_alast' if lastt else f'{N}_ab{b}')
        nb = (b + 1) % NB
        pb = (b - 1) % NB
        W2 = 's[44:47]'
        fill = {(0, 0): f'buffer_load_dwordx4 {vr(K1(pb),4)}, v{vK1a}, {W2}, s14 offen{SC}',
                (0, 2): f'buffer_load_dwordx2 {vr(K2(pb),2)}, v{vK2a}, {W2}, s14 offen offset:{KV_K2}{SC}',
                (1, 0): f'buffer_load_dwordx4 {vr(V1(pb),4)}, v{vVa}, {W2}, s14 offen offset:{KV_V1}{SC}',
                (1, 1): f'buffer_load_dwordx4 {vr(V2(pb),4)}, v{vVa}, {W2}, s14 offen offset:{KV_V2}{SC}',
                (1, 2): adv[0], (2, 0): adv[1], (2, 1): adv[2],
                (2, 2): f's_waitcnt vmcnt({4*(NB-2)})'}
        if OPT['kvtest'] == 1:
            del fill[(0,2)], fill[(1,0)], fill[(1,1)]
            fill[(2,2)] = f's_waitcnt vmcnt({NB-2})'
        if OPT['kvtest'] == 2:
            del fill[(0,0)], fill[(0,2)], fill[(1,0)], fill[(1,1)]
        if b == NB - 1:
            fill[(3, 0)] = 's_add_u32 s19, s19, 1'
        if b == NB - 2:
            fill[(3, 1)] = 's_cmp_eq_u32 s46, 0'
        if b == 0:
            fill[(3, 0)] = f's_cmp_eq_u32 s19, {32//NB - 1}'
            fill[(3, 1)] = 's_cselect_b32 s46, 0, s46'
        sk = (0, 1)
        if peeled:
            fill = {}
            sk = (3, 2)
            slots = [(t, i) for t in range(4) for i in range(3) if (t, i) != (2, 2)]
            for x in ((NPRE + 2*b) % NB, (NPRE + 2*b + 1) % NB):
                assert x != b and (x != pb or len(slots) <= 6)
                its = [f'buffer_load_dwordx4 {vr(K1(x),4)}, v{vK1a}, {W2}, s14 offen{SC}',
                       f'buffer_load_dwordx2 {vr(K2(x),2)}, v{vK2a}, {W2}, s14 offen offset:{KV_K2}{SC}',
                       f'buffer_load_dwordx4 {vr(V1(x),4)}, v{vVa}, {W2}, s14 offen offset:{KV_V1}{SC}',
                       f'buffer_load_dwordx4 {vr(V2(x),4)}, v{vVa}, {W2}, s14 offen offset:{KV_V2}{SC}\n' + adv[0],
                       adv[1] + '\n' + adv[2]]
                for n, it in enumerate(its):
                    sl = slots.pop(0)
                    if sl == (3, 0):
                        last = max(i for i, y in enumerate(vq) if y == nb)
                        fill[(2, 2)] = f's_waitcnt vmcnt({len(vq) - 1 - last})'
                        vq = vq[last + 1:]
                    fill[sl] = it
                    if n < 4: vq.append(x)
        if lastt:
            snd = lambda t: '\n'.join(f'ds_write_b128 v{Ra}, {vr(O+16*t+4*i,4)} offset:{t*3072+i*1024}' for i in range(3))
            fill = {(1, 0): 's_waitcnt vmcnt(0)',
                    (1, 1): f'v_add_u32 v{Ra}, s29, v{vK1a}\nv_add_u32 v{Rb}, s30, v{vK1a}\nv_mov_b32 v{Re}, {SYNC}',
                    (1, 2): f'v_mov_b32 v{Rc}, s31\nv_xor_b32 v{Rd}, 8, v{Rc}',
                    (2, 1): f'ds_read_b32 v{Rf}, v{Re} offset:{C_M}',
                    (3, 0): snd(0), (3, 1): f'ds_read_b32 v{vG}, v{vG}', (3, 2): snd(1) + f'\nds_write_b32 v{Rd}, v{Rd}'}
        if STAMPS and b % 4 == 0:
            fill[sk] = 's_memtime s[96:97]'
        if STAMPS and b % 4 == 1:
            fill[sk] = 's_waitcnt lgkmcnt(0)\nv_writelane_b32 v0, s96, m0\ns_add_u32 m0, m0, 1'
        for t in range(4):
            Sc, Sn = S[t & 1], S[1 - (t & 1)]
            tn, tp = (t + 1) & 3, (t - 1) & 3
            kb = b if t < 3 else nb
            vpb = b if t > 0 else pb
            def F(i):
                if (t, i) in fill: a.I(fill[(t, i)])
            if OPT['att2']:
                Pc, Pp = (4, P) if t % 2 == 0 else (P, 4)
                M = [f'{MF32} {vr(Sn,16)}, {vr(K1(kb),4)}, {vr(Q1+4*tn,4)}, 0',
                     f'{MF32} {vr(O+16*tp,16)}, {vr(V1(vpb),4)}, {vr(Pp,4)}, {vr(O+16*tp,16)}',
                     f'{MF32h} {vr(Sn,16)}, {vr(K2(kb),2)}, {vr(Q2+2*tn,2)}, {vr(Sn,16)}',
                     f'{MF32} {vr(O+16*tp,16)}, {vr(V2(vpb),4)}, {vr(Pp+4,4)}, {vr(O+16*tp,16)}']
                pat = {0: 'MeeeMeeeMeeeMe0ce1ce2cececeeccc',
                       1: 'M0eeeM1eeeMeeeM2eeeeeeecccccccc',
                       2: 'M0eeeeM1eeeeMeeeeM2eeeecccccccc',
                       3: 'M0eeeeM1eeeeMcccceeeeM2eeeecccc',
                       4: 'M0eeeM1eeeM2eeeMecececececeeccc',
                       5: 'M0eeeM1eeeMeeeM2cccceeeeeeecccc',
                       6: 'M0eeeM1eeeMccceeM2eeeeeeeeccccc'}[OPT['gp']]
                ne = nc = nm = 0
                if lastt and t == 3:
                    M[0] = M[2] = ''
                    a.I(f'''
                    s_waitcnt lgkmcnt(0)
                    v_readfirstlane_b32 s3, v{Rf}
                    s_cmp_ge_u32 s3, 4
                    s_cbranch_scc1 {N}_ceok
                    ''')
                    ldswait(C_M, 4, Rf, Re)
                    a.L(f'{N}_ceok')
                for ch in pat:
                    if ch == 'M':
                        a.I(M[nm]); nm += 1
                        if peeled and b == 0 and t == 0 and nm == 4: a.I(rcv)
                    elif ch == 'e': ex(Sc + ne); ne += 1
                    elif ch == 'c':
                        assert 2 * nc + 1 < ne
                        cv(Pc + nc, Sc + 2 * nc); nc += 1
                    else: F(int(ch))
                assert (ne, nc, nm) == (16, 8, 4), (ne, nc, nm)
                if peeled and b == 0 and t == 0: recv()
                if not peeled and b == NB - 2 and t == 3: a.I(f's_cbranch_scc1 {N}_alast')
                continue
            a.I(f'{MF32} {vr(Sn,16)}, {vr(K1(kb),4)}, {vr(Q1+4*tn,4)}, 0'); F(0)
            for k in range(4): ex(Sc + k)
            a.I(f'{MF32} {vr(O+16*tp,16)}, {vr(V2(vpb),4)}, {vr(P+4,4)}, {vr(O+16*tp,16)}'); F(1)
            for k in range(4, 8): ex(Sc + k)
            a.I(f'{MF32h} {vr(Sn,16)}, {vr(K2(kb),2)}, {vr(Q2+2*tn,2)}, {vr(Sn,16)}')
            for k in range(4): cv(P + k, Sc + 2 * k)
            for k in range(8, 12): ex(Sc + k)
            a.I(f'{MF32} {vr(O+16*t,16)}, {vr(V1(b),4)}, {vr(P,4)}, {vr(O+16*t,16)}'); F(2)
            for k in range(12, 16): ex(Sc + k)
            for k in range(4, 8): cv(P + k, Sc + 2 * k)
    a.I(f'''
    v_and_b32 v{vC}, 15, v{vL}
    v_lshrrev_b32 v{vG4}, 4, v{vL}
    {f'{MF32} {vr(O+48,16)}, {vr(V1(NB-1),4)}, {vr(P,4)}, {vr(O+48,16)}' if OPT['att2'] else ''}
    {MF32} {vr(O+48,16)}, {vr(V2(NB-1),4)}, {vr(P+4,4)}, {vr(O+48,16)}
    s_setprio 3
    ''')
    a.stamp(5)
    HDONE = 16
    a.stamp(6)
    a.I('s_mov_b32 s4, 0')
    a.L(f'{N}_bb1')
    a.I(f'ds_read_b32 v{T0}, v{Rc}')
    for k in range(6):
        a.I(f'ds_read_b128 {vr(O+4*k,4)}, v{Rb} offset:{k*1024}')
    a.I(f'''
    s_add_u32 s4, s4, 1
    s_waitcnt lgkmcnt(6)
    v_readfirstlane_b32 s3, v{T0}
    s_cmp_lg_u32 s3, 0
    s_cbranch_scc1 {N}_bb2
    s_sleep 1
    s_cmp_lt_u32 s4, {SPIN*8}
    s_cbranch_scc1 {N}_bb1
    ''')
    a.L(f'{N}_bb2')
    PKO = OK_ = O + 32
    assert OPT['ffin']
    a.I(f'v_mov_b64 {vr(T2,2)}, 0')
    for t in range(2):
        a.I(f's_waitcnt lgkmcnt({3-3*t})')
        for r in (8, 0, 2, 4, 6, 10):
            a.I(f'v_pk_add_f32 {vr(OK_+16*t+r,2)}, {vr(OK_+16*t+r,2)}, {vr(O+12*t+r,2)}')
        if OPT['ffin']:
            a.I(f'v_mov_b32 v{T0+4*t}, v{OK_+16*t+8}')
            a.I(f'v_mov_b32 v{T1+4*t}, v{OK_+16*t+8}')
            for r in range(0, 12, 2):
                a.I(f'v_pk_fma_f32 {vr(T2,2)}, {vr(OK_+16*t+r,2)}, 0, {vr(T2,2)}')
                if r == 2: a.I(f'v_permlane32_swap_b32 v{T0+4*t}, v{T1+4*t}')
                if r == 6: a.I(f'v_rcp_f32 v{T0+4*t}, v{T1+4*t}')
    a.I('s_mov_b32 s41, 0')
    if OPT['ffin']:
        a.I(f'''
        v_add_f32 v{T2}, v{T2}, v{T3}
        v_mul_f32 v{T0}, v{T0}, v{vG}
        v_add_f32 v{T1}, v{T2}, v{T1}
        v_add_f32 v{T5}, v{T2}, v{T5}
        v_mul_f32 v{T4}, v{T4}, v{vG}
        v_cmp_nlt_f32 vcc, {f32hex(2.0**-60)}, v{T1}
        v_cmp_ngt_f32 s[4:5], s42, v{T1}
        s_or_b64 s[4:5], s[4:5], vcc
        v_cmp_nlt_f32 vcc, {f32hex(2.0**-60)}, v{T5}
        v_cmp_ngt_f32 s[18:19], s42, v{T5}
        s_or_b64 s[4:5], s[4:5], vcc
        s_or_b64 s[4:5], s[4:5], s[18:19]
        s_cbranch_scc1 {N}_finm
        ''')
        for t in range(2):
            for r in range(0, 12, 2):
                a.I(f'v_pk_mul_f32 {vr(OK_+16*t+r,2)}, {vr(OK_+16*t+r,2)}, {vr(T0+4*t,2)} op_sel_hi:[1,0]')
            for k in range(4):
                cv(PKO + 4*t + k, OK_ + 16*t + 2 * k)
            for k in range(4):
                a.I(f'v_min_u32 v{PKO+4*t+k}, -2, v{PKO+4*t+k}')
            a.I(f'buffer_store_dwordx4 {vr(PKO+4*t,4)}, v{vK1a}, {W}, s37 offen offset:{1024*t} sc1')
            cv(PKO + 8 + 2*t, OK_ + 16*t + 8); cv(PKO + 9 + 2*t, OK_ + 16*t + 10)
        for k in range(8, 12):
            a.I(f'v_min_u32 v{PKO+k}, -2, v{PKO+k}')
        a.I(f's_branch {N}_fin2')
    a.L(f'{N}_finm')
    for r in range(0, 12, 2):
        a.I(f'v_mov_b64 {vr(O+r,2)}, {vr(O+32+r,2)}')
        a.I(f'v_mov_b64 {vr(O+16+r,2)}, {vr(O+48+r,2)}')
    for r in range(0, 8, 2):
        a.I(f'v_mov_b64 {vr(Q1+r,2)}, {vr(Q1+8+r,2)}')
    for r in range(0, 4, 2):
        a.I(f'v_mov_b64 {vr(Q2+r,2)}, {vr(Q2+4+r,2)}')
    a.L(f'{N}_fin0')
    a.I('s_mov_b32 s43, 0')
    a.L(f'{N}_final')
    a.I(f'''
    v_mov_b32 v{T0}, v{O+8}
    v_mov_b32 v{T1}, v{O+8}
    v_mov_b32 v{T2}, 0
    v_mov_b32 v{T3}, 0
    v_permlane32_swap_b32 v{T0}, v{T1}
    ''')
    for r in range(12):
        a.I(f'v_fma_f32 v{T2}, v{O+r}, v{T3}, v{T2}')
    a.I(f'''
    v_add_f32 v{T2}, v{T2}, v{T1}
    v_cmp_nlt_f32 vcc, {f32hex(2.0**-60)}, v{T2}
    v_cmp_ngt_f32 s[4:5], s42, v{T2}
    s_or_b64 s[4:5], s[4:5], vcc
    s_cmp_eq_u64 s[4:5], 0
    s_cbranch_scc1 {N}_norm
    s_cmp_lg_u32 s43, 0
    s_cbranch_scc0 {N}_slow
    ''')
    a.L(f'{N}_norm')
    a.I(f'''
    v_rcp_f32 v{T1}, v{T1}
    s_nop 0
    v_mul_f32 v{T1}, v{T1}, v{vG}
    ''')
    for r in range(12):
        a.I(f'v_mul_f32 v{O+r}, v{T1}, v{O+r}')
    a.I(f's_cmp_lg_u32 s41, 0')
    a.I(f's_cbranch_scc1 {N}_fin1')
    for k in range(4):
        cv(PKO + k, O + 2 * k)
    cv(PKO + 8, O + 8); cv(PKO + 9, O + 10)
    for k in (0, 1, 2, 3, 8, 9): a.I(f'v_min_u32 v{PKO+k}, -2, v{PKO+k}')
    a.I(f'buffer_store_dwordx4 {vr(PKO,4)}, v{vK1a}, {W}, s37 offen sc1')
    for r in range(12):
        a.I(f'v_mov_b32 v{O+r}, v{O+16+r}')
    for r in range(4):
        a.I(f'v_mov_b32 v{Q1+r}, v{Q1+4+r}')
    for r in range(2):
        a.I(f'v_mov_b32 v{Q2+r}, v{Q2+2+r}')
    a.I('s_mov_b32 s41, 1')
    a.I(f's_branch {N}_fin0')
    a.L(f'{N}_fin1')
    for k in range(4):
        cv(PKO + 4 + k, O + 2 * k)
    cv(PKO + 10, O + 8); cv(PKO + 11, O + 10)
    for k in (4, 5, 6, 7, 10, 11): a.I(f'v_min_u32 v{PKO+k}, -2, v{PKO+k}')
    a.I(f'buffer_store_dwordx4 {vr(PKO+4,4)}, v{vK1a}, {W}, s37 offen offset:1024 sc1')
    a.L(f'{N}_fin2')
    a.I(f'''
    s_mov_b32 exec_hi, 0
    buffer_store_dwordx4 {vr(PKO+8,4)}, v{vK1a}, {W}, s40 offen sc1
    s_mov_b32 exec_hi, -1
    ''')
    a.stamp(7)
    vR = 249
    vA = 254
    CACC = 24
    AF = 44
    WF = 84
    if OPT['ct'] == 1: arrive(C_T, T4, T5)
    a.I(f'''
    s_mov_b32 s100, {RB}
    s_call_b64 {RET}, {N}_gsetup
    s_and_b32 s3, s8, {OPT['par']}
    s_mul_i32 s3, s3, 20480
    s_add_u32 s22, s21, s3
    ''')
    zero(CACC, CACC+20)
    ldswait(C_E, 4, T4, T5)
    if OPT['ct'] == 2: arrive(C_T, T4, T5)
    a.stamp(8)
    if OPT['cl']: a.I(f"""
    s_add_u32 s23, s22, 4096
    s_add_u32 s26, s22, 8192
    s_add_u32 s27, s22, 12288
    s_add_u32 s28, s22, 16384
    s_mov_b32 s19, 0
    s_call_b64 {RET}, {N}_cl0
    """)
    a.I(f's_call_b64 {RET}, {N}_wpre')
    if OPT['ct'] == 0: arrive(C_T, T4, T5)
    a.stamp(9)
    a.I(f's_branch {N}_phaseC{OPT["cl"]}')

    a.L(f'{N}_slow')
    a.I(f'''
    s_mov_b32 s43, 1
    s_mov_b32 exec_lo, 0
    v_mov_b32 v{Q2}, 0
    v_mov_b32 v{Q2+1}, 0
    s_mov_b32 exec_lo, -1
    v_mov_b32 v{T4}, 0xff800000
    s_mov_b32 s14, {WS_KVF}
    ''')
    a.L(f'{N}_sl1')
    loadK(K1(0), K2(0), 's14')
    a.I(f'''
    s_waitcnt vmcnt(0)
    {MF32} {vr(S[0],16)}, {vr(K1(0),4)}, {vr(Q1,4)}, 0
    {MF32h} {vr(S[0],16)}, {vr(K2(0),2)}, {vr(Q2,2)}, {vr(S[0],16)}
    s_nop 7
    s_nop 7
    ''')
    for k in range(0, 16, 2):
        a.I(f'v_max3_f32 v{T4}, v{T4}, v{S[0]+k}, v{S[0]+k+1}')
    a.I(f'''
    s_add_u32 s14, s14, {KVT}
    s_cmp_lt_u32 s14, {WS_KVF+64*KVT}
    s_cbranch_scc1 {N}_sl1
    v_mov_b32 v{T5}, v{T4}
    s_nop 1
    v_permlane32_swap_b32 v{T4}, v{T5}
    s_nop 1
    v_max_f32 v{T4}, v{T4}, v{T5}
    v_sub_f32 v{T4}, 0, v{T4}
    v_and_b32 v{T0}, 0xffff0000, v{T4}
    v_sub_f32 v{T4}, v{T4}, v{T0}
    v_and_b32 v{T1}, 0xffff0000, v{T4}
    v_sub_f32 v{T4}, v{T4}, v{T1}
    s_mov_b32 exec_lo, 0
    v_lshrrev_b32 v{T0}, 16, v{T0}
    v_or_b32 v{Q2}, v{T0}, v{T1}
    v_lshrrev_b32 v{Q2+1}, 16, v{T4}
    s_mov_b32 exec_lo, -1
    s_mov_b32 s14, {WS_KVF}
    ''')
    for r in range(16):
        a.I(f'v_mov_b32 v{O+r}, 0')
    a.L(f'{N}_sl2')
    loadK(K1(0), K2(0), 's14'); loadV(0, 's14')
    a.I(f'''
    s_waitcnt vmcnt(0)
    {MF32} {vr(S[0],16)}, {vr(K1(0),4)}, {vr(Q1,4)}, 0
    {MF32h} {vr(S[0],16)}, {vr(K2(0),2)}, {vr(Q2,2)}, {vr(S[0],16)}
    s_nop 7
    s_nop 7
    ''')
    for k in range(16): ex(S[0] + k)
    a.I('s_nop 0')
    for k in range(8): cv(P + k, S[0] + 2 * k)
    a.I(f'''
    s_nop 1
    {MF32} {vr(O,16)}, {vr(V1(0),4)}, {vr(P,4)}, {vr(O,16)}
    {MF32} {vr(O,16)}, {vr(V2(0),4)}, {vr(P+4,4)}, {vr(O,16)}
    s_add_u32 s14, s14, {KVT}
    s_cmp_lt_u32 s14, {WS_KVF+64*KVT}
    s_cbranch_scc1 {N}_sl2
    s_nop 7
    s_nop 7
    s_branch {N}_final
    ''')

    HACC = 172
    vHW = 236
    vHR = 240
    vF2, vF3 = 242, 243
    VWO = 244
    LA, LB, ONES, vOB = 148, 156, 168, 153
    a.L(f'{N}_hsetup')
    xbases()
    a.I(f"""
    s_sub_u32 s5, s9, 4
    s_lshl_b32 s3, s8, 9
    s_lshl_b32 s4, s5, 7
    s_add_u32 s3, s3, s4
    v_lshrrev_b32 v{T0}, 3, v{vL}
    v_and_b32 v{T1}, 7, v{vL}
    v_lshlrev_b32 v{vF3}, 7, v{T1}
    v_lshlrev_b32 v{T2}, 1, v{T0}
    v_and_b32 v{T2}, 4, v{T2}
    v_xor_b32 v{T1}, v{T1}, v{T2}
    v_mul_u32_u24 v{T0}, 3840, v{T0}
    v_lshl_add_u32 v{T0}, v{T1}, 4, v{T0}
    v_add_u32 v{vHW}, s3, v{T0}
    v_add_u32 v{vHW+1}, {8*3840}, v{vHW}
    v_add_u32 v{vHW+2}, {16*3840}, v{vHW}
    v_add_u32 v{vHW+3}, {24*3840}, v{vHW}
    s_lshl_b32 s3, s5, 13
    s_add_u32 s3, s3, {HR}
    v_bfe_u32 v{T0}, v{vL}, 2, 2
    v_lshl_add_u32 v{T1}, v{vH}, 3, v{T0}
    v_lshlrev_b32 v{T1}, 7, v{T1}
    v_and_b32 v{T2}, 3, v{vL}
    v_lshl_add_u32 v{T1}, v{T2}, 3, v{T1}
    v_bfe_u32 v{T2}, v{vL}, 4, 1
    v_lshl_add_u32 v{T1}, v{T2}, 5, v{T1}
    v_add_u32 v{T1}, s3, v{T1}
    v_lshrrev_b32 v{T0}, 1, v{T0}
    v_lshlrev_b32 v{T0}, 6, v{T0}
    v_add_u32 v{vHR}, v{T1}, v{T0}
    v_xor_b32 v{T0}, 64, v{T0}
    v_add_u32 v{vHR+1}, v{T1}, v{T0}
    v_lshlrev_b32 v{vOB}, 4, v{vC}
    v_lshl_add_u32 v{vOB+1}, v{T2}, 9, v{vOB}
    v_lshl_add_u32 v{vOB+1}, v{vH}, 8, v{vOB+1}
    s_cmp_eq_u32 s7, 0
    s_cselect_b32 s3, 0, {FG}
    v_mul_u32_u24 v{T1}, s3, v{vH}
    v_add_u32 v{vF2}, v{vF3}, v{T1}
    """)
    zero(HACC, HACC+64)
    a.I(f's_setpc_b64 {RET}')
    a.L(f'{N}_hsetup2')
    a.I(f"""
    s_sub_u32 s5, s9, 4
    s_mul_i32 s3, s8, 160
    s_lshl_b32 s4, s5, 6
    """)
    for j in range(5):
        a.I(f"""
        v_add_u32 v{T0}, s4, v{vL}
        v_add_u32 v{T0}, {j*256}, v{T0}
        v_mul_u32_u24 v{T1}, 6554, v{T0}
        v_lshrrev_b32 v{T1}, 16, v{T1}
        v_mul_u32_u24 v{T1}, {1280-160}, v{T1}
        v_lshl_add_u32 v{T1}, v{T0}, 4, v{T1}
        v_add_u32 v{VWO+j}, s3, v{T1}
        """)
    a.I(f"""
    s_lshl_b32 s100, s8, 2
    s_add_u32 s100, s100, s5
    s_mul_i32 s3, s100, 5
    s_lshr_b32 s4, s3, 2
    s_lshl_b32 s4, s4, 10
    s_and_b32 s3, s3, 3
    v_lshl_add_u32 v{T1}, v{vG4}, 9, s4
    v_lshl_add_u32 v{LA}, v{vC}, 4, v{T1}
    v_and_b32 v{T0}, 1, v{vG4}
    v_lshl_add_u32 v{T0}, v{vH}, 2, v{T0}
    v_subrev_u32 v{T0}, s3, v{T0}
    v_cmp_gt_u32 vcc, 5, v{T0}
    v_add_u32 v{T0}, 2, v{T0}
    v_cmp_gt_u32 s[4:5], 5, v{T0}
    v_cndmask_b32 v{LA+1}, 0, -1, vcc
    s_nop 0
    v_cndmask_b32 v155, 0, -1, s[4:5]
    s_mul_i32 s3, s100, 20
    v_and_b32 v{T4}, 1, v{vG4}
    v_lshlrev_b32 v{T4}, 9, v{T4}
    v_lshl_add_u32 v{T4}, v{vH}, 3, v{T4}
    """)
    for d in range(2):
        a.I(f"""
        v_add_u32 v{T1}, s3, v{vC}
        v_add_u32 v{T1}, {16*d}, v{T1}
        v_min_u32 v{T1}, 639, v{T1}
        v_lshrrev_b32 v{T2}, 5, v{T1}
        v_lshlrev_b32 v{T2}, 17, v{T2}
        v_and_b32 v{T1}, 31, v{T1}
        v_lshl_add_u32 v{T2}, v{T1}, 4, v{T2}
        v_add_u32 v{LA+2+d}, v{T2}, v{T4}
        """)
    a.I(f"""
    v_cmp_gt_u32 vcc, 4, v{vC}
    v_mov_b32 v{T1}, 0x7fffff00
    s_nop 0
    v_cndmask_b32 v{LA+3}, v{T1}, v{LA+3}, vcc
    """)
    a.I(f"""
    v_lshlrev_b32 v{LA+4}, 2, v{vC}
    v_lshlrev_b32 v{T1}, 2, v{vG4}
    v_sub_u32 v{T1}, v{vC}, v{T1}
    v_mov_b32 v{T3}, 0xff800000
    s_cmp_eq_u32 s7, 0
    s_cselect_b64 s[4:5], 0, -1
    """)
    for k in range(8):
        r, pv = k % 4, k // 4
        a.I(f"""
        v_add_u32 v{T2}, {16*pv - r}, v{T1}
        v_and_b32 v{T2}, 0xfffffff1, v{T2}
        v_cmp_eq_u32 vcc, 0, v{T2}
        v_mov_b32 v{ONES+r}, 0x3f803f80
        s_nop 0
        v_cndmask_b32 v{LB+k}, v{T3}, 0, vcc
        """)
        if pv:
            a.I(f'v_cndmask_b32 v{LB+4+k}, v{T3}, v{LB+k}, s[4:5]')
    a.I(f's_mov_b32 s100, {RA}')
    a.L(f'{N}_gsetup')
    a.I(f"""
    v_and_b32 v{T0}, 1, v{vG4}
    v_lshrrev_b32 v{T2}, 2, v{vC}
    v_mul_u32_u24 v{T2}, 160, v{T2}
    v_and_b32 v{T3}, 3, v{vC}
    v_lshl_add_u32 v{T2}, v{T3}, 3, v{T2}
    v_add_u32 v{T2}, s100, v{T2}
    v_mul_u32_u24 v{T3}, {4*160}, v{T0}
    v_add_u32 v{T3}, v{T3}, v{T2}
    v_mul_u32_u24 v{T0}, {40*160}, v{T0}
    v_add_u32 v{T0}, v{T0}, v{T2}
    v_mul_u32_u24 v{T1}, {20*160}, v{vH}
    v_add_u32 v{vR}, v{T1}, v{T3}
    v_cmp_eq_u32 vcc, 1, v{vH}
    """)
    for h in range(2):
        a.I(f"""
        v_add_u32 v{T1}, {(16+20*h)*160}, v{T0}
        v_add_u32 v{T2}, {(80+8*h)*160}, v{T3}
        v_cndmask_b32 v{vR+1+h}, v{T1}, v{T2}, vcc
        v_add_u32 v{T1}, {(140+8*h)*160}, v{T3}
        v_add_u32 v{T2}, {(96+20*h)*160}, v{T0}
        v_cndmask_b32 v{vR+3+h}, v{T1}, v{T2}, vcc
        """)
    a.I(f"""
    s_and_b32 s3, s9, 1
    s_lshl_b32 s3, s3, 8
    v_lshlrev_b32 v{vA}, 4, v{vC}
    v_lshl_add_u32 v{vA}, v{vG4}, 9, v{vA}
    v_add_u32 v{vA}, s3, v{vA}
    s_bfe_u32 s3, s9, 0x10001
    s_lshl_b32 s4, s7, 1
    s_add_u32 s3, s3, s4
    s_mul_i32 s21, s3, {OAB_PT}
    s_add_u32 s21, s21, {WS_OAB}
    s_setpc_b64 {RET}
    """)
    def waddr(k5, h):
        if k5 == 2: return vR + 1 + h, 0
        if k5 == 4: return vR + 3 + h, 0
        return vR, ({0: 0, 1: 40, 3: 100}[k5] + 8 * h) * 160
    def wread(s, base):
        st, k5 = divmod(s, 5)
        for t in range(5):
            for h in range(2):
                r, o = waddr(k5, h)
                yield f'ds_read_b64_tr_b16 {vr(base+t*4+2*h,2)}, v{r} offset:{(st&1)*25600 + o + t*32}'
    a.L(f'{N}_wpre')
    for s in range(8):
        for i in wread(s, WF + s*20): a.I(i)
    a.I(f's_setpc_b64 {RET}')


    a.L(f'{N}_wpf')
    a.I(f"""
    v_lshlrev_b32 v92, 4, v{vL}
    s_mov_b32 exec_hi, 0xff
    """)
    for r in range(10):
        a.I(f'buffer_load_dwordx4 v[96:99], v92, s[52:55], s15 offen offset:{(r%3)*1280}')
        if r % 3 == 2: a.I('s_add_u32 s15, s15, 3840')
    a.I(f"""
    s_mov_b32 exec_hi, -1
    s_setpc_b64 {RET}
    """)
    a.L(f'{N}_wob')
    a.I(f"""
    s_cmp_ge_u32 s15, s14
    s_cbranch_scc1 {N}_wob9
    s_setprio {OPT['hprio']}
    s_cmp_ge_u32 s15, 5
    s_cbranch_scc1 {N}_wobA
    s_add_u32 s3, s15, s13
    s_cmp_ge_u32 s3, 5
    s_cselect_b32 s4, 5, 0
    s_sub_u32 s3, s3, s4
    s_mul_i32 s4, s3, {128*1280}
    s_mul_i32 s5, s3, 20480
    s_add_u32 s5, s5, {RA}
    s_mov_b32 s3, 0
    s_branch {N}_wob1
    """)
    a.L(f'{N}_wobA')
    a.I(f"""
    s_mov_b32 s44, s24
    s_mov_b32 s45, s25
    s_add_u32 s3, s15, s13
    s_mul_i32 s4, s3, 86
    s_lshr_b32 s4, s4, 8
    s_mul_i32 s4, s4, 3
    s_sub_u32 s3, s3, s4
    s_mul_i32 s4, s3, {128*1280}
    s_mul_i32 s5, s3, 20480
    s_cmp_ge_u32 s15, 8
    s_cselect_b32 s20, 1, 0
    {'s_xor_b32 s20, s20, s8' if OPT['par'] else ''}
    s_and_b32 s20, s20, 1
    s_mul_i32 s20, s20, {320*1280}
    s_add_u32 s4, s4, s20
    s_cmp_ge_u32 s15, 8
    s_cselect_b32 s20, 0, {RB-RA}
    s_add_u32 s5, s5, s20
    s_lshr_b32 s3, s3, 1
    s_lshr_b32 s20, s10, 1
    s_mul_i32 s20, s20, s3
    s_add_u32 s3, s3, s20
    """)
    a.L(f'{N}_wob1')
    a.I('s_add_u32 s5, s5, s12')
    a.I('s_add_u32 s15, s15, 1')
    for j in range(5):
        if j == 2:
            a.I('s_cmp_eq_u32 s3, 2')
            a.I(f's_cbranch_scc1 {N}_wob8')
        if j == 3:
            a.I('s_cmp_eq_u32 s3, 1')
            a.I(f's_cbranch_scc1 {N}_wob8')
        a.I(f's_add_u32 m0, s5, {j*4096}')
        a.I('s_nop 0' if OPT['wsub'] < 0 else f's_waitcnt vmcnt({OPT["wsub"]})')
        a.I(f'buffer_load_dwordx4 v{VWO+j}, s[44:47], s4 offen lds')
    a.L(f'{N}_wob8')
    a.I(f's_setprio {OPT["cprio"]}')
    a.L(f'{N}_wob9')
    a.I(f's_setpc_b64 {RET}')

    a.L(f'{N}_extra')
    worksetup()
    EXX, EXW = 40, 72
    a.I(f'''
    ds_read_b64 {vr(CNT,2)}, v{vSY}
    v_mul_u32_u24 v{T0}, 40, v{vW0}
    v_add_u32 v{vWB_}, v{T0}, v{vW1}
    v_add_u32 v{vWB_}, {EXB}, v{vWB_}
    s_mov_b32 s12, 5120
    s_setprio 3
    s_sub_u32 s11, s9, 4
    s_and_b32 s3, s96, 1
    s_add_u32 s11, s11, s3
    s_lshl_b32 s15, s11, 12
    s_lshl_b32 s3, s7, 1
    s_add_u32 s3, s3, s11
    s_mul_i32 s3, s3, {KVT}
    s_add_u32 s13, s3, {WS_KVF}
    s_cmp_eq_u32 s96, 4
    s_cbranch_scc1 {N}_exG
    s_cmp_ge_u32 s96, 2
    s_cbranch_scc1 {N}_exV
    ''')
    def exloop(orient, gate=False):
        l = lab()
        def addr():
            a.I(f"""
            s_lshl_b32 s3, s60, 14
            s_add_u32 s3, s3, s15
            s_mul_i32 s4, s60, s12
            s_add_u32 s60, s60, 1
            s_cmp_eq_u32 s60, 5
            s_cselect_b32 s60, 0, s60
            s_add_u32 s10, s10, 1
            s_cmp_eq_u32 s10, 6
            s_cselect_b32 s10, 0, s10
            """)
            for k in range(4):
                a.I(f'v_add_u32 v{vCX+k}, s3, v{vXB+k}')
            a.I(f'v_add_u32 v{vCW}, s4, v{vWB_}')
        def reads(ks, tag):
            a.LG(f'ds_read_b128 {vr(EXX+ks*4,4)}, v{vCX+(ks&3)} offset:{(ks>>2)*8192}', tag)
            if gate:
                a.LG(f'ds_read_b128 {vr(EXW+ks*4,4)}, v{vCW} offset:{ks*32}', tag)
            else:
                for h in range(2):
                    a.LG(f'ds_read_b64_tr_b16 {vr(EXW+ks*4+2*h,2)}, v{vCW} offset:{(ks*16+4*h)*40}', tag)
        addr()
        vstamp(16)
        cntwait(l + 'w0', 10 if gate else 's10')
        vstamp(17)
        a.lg = []
        for ks in range(4): reads(ks, ks)
        q0 = list(a.lg)
        a.L(l)
        for u in range(8):
            if u == 4:
                addr()
                a.wait(lg=lambda t: t == 'c')
                cntwait(l + 'w', 's10', first=None)
            reads((u + 4) % 8, u + 4)
            if STAMPS and u == 5: a.I('s_memtime s[100:101]')
            if STAMPS and u == 3: a.I('s_add_u32 m0, s10, 24\nv_writelane_b32 v0, s100, m0')
            if u == 1:
                a.LG(f'ds_read_b64 {vr(CNT,2)}, v{vSY}', 'c')
            a.wait(lg=lambda t: t != 'c' and t <= u)
            d = vr(FACC, 16)
            x, w = vr(EXX + u * 4, 4), vr(EXW + u * 4, 4)
            if orient == 'T':
                a.I(f'{MF32} {d}, {w}, {x}, {d}')
            else:
                a.I(f'{MF32} {d}, {x}, {w}, {d}')
        assert a.lg == [t + 8 for t in q0], a.lg
        a.I(f"""
        s_cmp_lg_u32 s10, 0
        s_cbranch_scc1 {l}
        s_waitcnt lgkmcnt(0)
        s_mov_b64 exec, 1
        ds_add_u32 v{vSY}, v{vOne} offset:{C_F}
        s_mov_b64 exec, -1
        s_nop 7
        s_nop 3
        """)
        vstamp(18)
    exloop('T')
    r = FACC
    a.I(f'''
    v_lshlrev_b32 v{T0}, 4, v{vL}
    v_lshlrev_b32 v{T1}, 3, v{vL}
    ''')
    for k in range(6):
        cv(r + k, r + 2 * k)
    a.I(f'''
    s_mov_b32 exec_lo, 0
    v_mov_b32 v{r+4}, 0x3f803f80
    v_mov_b32 v{r+5}, 0x3f80
    s_mov_b32 exec_lo, -1
    buffer_store_dwordx4 {vr(r,4)}, v{T0}, {W}, s13 offen sc1
    s_mov_b32 exec_hi, 1
    buffer_store_dwordx2 {vr(r+4,2)}, v{T1}, {W}, s13 offen offset:{KV_K2} sc1
    s_mov_b32 exec_hi, -1
    ''')
    a.L(f'{N}_exflag')
    a.stamp(1)
    getnonce(T2, T4)
    a.I(f'''
    s_lshl_b32 s3, s7, 1
    s_lshr_b32 s4, s96, 1
    s_add_u32 s3, s3, s4
    s_lshl_b32 s3, s3, 7
    s_lshl_b32 s4, s11, 3
    s_add_u32 s3, s3, s4
    s_add_u32 s3, s3, {WS_FLG}
    v_mov_b32 v{T0}, 0
    s_waitcnt vmcnt(0)
    s_mov_b64 exec, 1
    buffer_store_dwordx2 {vr(T2,2)}, v{T0}, {W}, s3 offen sc1
    s_mov_b64 exec, -1
    ''')
    a.stamp(2)
    a.I(f's_branch {N}_hpre2')
    a.L(f'{N}_exV')
    exloop('N')
    a.I(f'''
    v_mul_u32_u24 v{T0}, 336, v{vH}
    v_lshl_add_u32 v{T0}, v{vP}, 4, v{T0}
    v_mov_b32 v{T1}, 0x3f803f80
    v_cmp_eq_u32 vcc, 20, v{vP}
    s_mov_b32 s4, 0x1fffff
    s_mov_b32 s5, 0x1fffff
    ''')
    for k in range(8):
        cv(r + k, r + 2 * k)
    for k in range(8):
        a.I(f'v_cndmask_b32 v{r+k}, v{r+k}, v{T1}, vcc')
    a.I(f'''
    s_mov_b64 exec, s[4:5]
    buffer_store_dwordx4 {vr(r,4)}, v{T0}, {W}, s13 offen offset:{KV_V1} sc1
    buffer_store_dwordx4 {vr(r+4,4)}, v{T0}, {W}, s13 offen offset:{KV_V2} sc1
    s_mov_b64 exec, -1
    ''')
    a.I(f's_branch {N}_exflag')
    a.L(f'{N}_exG')
    a.I(f'''
    v_lshlrev_b32 v{vWB_}, 4, v{vH}
    v_add_u32 v{vWB_}, {GV}, v{vWB_}
    s_setprio 0
    s_mov_b32 s12, 256
    ''')
    exloop('T', True)
    a.I(f'''
    s_lshl_b32 s3, s7, 8
    s_lshl_b32 s4, s11, 7
    s_add_u32 s3, s3, s4
    s_add_u32 s3, s3, {WS_G}
    v_mul_f32 v{T0}, {f32hex(-math.log2(math.e))}, v{FACC}
    v_exp_f32 v{T0}, v{T0}
    v_lshlrev_b32 v{T1}, 2, v{vP}
    v_add_f32 v{T0}, 1.0, v{T0}
    v_rcp_f32 v{T0}, v{T0}
    s_mov_b32 exec_hi, 0
    buffer_store_dword v{T0}, v{T1}, {W}, s3 offen sc1
    s_mov_b32 exec_hi, -1
    ''')
    a.L(f'{N}_hpre2')
    a.I('s_setprio 0')
    a.I(f's_call_b64 {RET}, {N}_hsetup2')
    a.L(f'{N}_hpre')
    PD = OPT['PD']
    HX = 28
    HWf = 60
    srd(a, 48, 38, WS_END)
    srd(a, 44, 28, 2457600)
    a.I(f'''
    s_sub_u32 s10, s9, 4
    s_lshl_b32 s3, s8, 9
    s_lshl_b32 s4, s10, 7
    s_add_u32 s11, s3, s4
    s_lshl_b32 s12, s10, 13
    s_add_u32 s12, s12, {HR}
    ''')
    if not OPT['map2']:
        a.I('s_and_b32 s3, s7, 3\ns_mul_i32 s3, s3, 5\ns_lshr_b32 s13, s3, 1')
    else:
        a.I('s_and_b32 s3, s7, 7\ns_mul_i32 s3, s3, 5\ns_lshr_b32 s13, s3, 2')
    a.I(f'''
    s_mul_i32 s14, s13, {64*3840}
    s_lshl_b32 s13, s13, 13
    s_mov_b32 s19, 0
    s_cmp_ge_u32 s11, 3840
    s_cselect_b32 s46, 0, s46
    ''')
    for k in range(4):
        a.I(f'v_add_u32 v{vCX+k}, s13, v{vXB+k}')
    getnonce(T2, T1)
    def p1check(first):
        a.I(f'''
        s_add_u32 s4, s4, 1
        s_waitcnt vmcnt({first})
        v_cmp_eq_u64 vcc, s[62:63], v[92:93]
        v_cmp_eq_u64 s[56:57], s[62:63], v[94:95]
        s_and_b64 vcc, vcc, s[56:57]
        s_cmp_eq_u64 vcc, -1
        s_cbranch_scc1 {N}_p1g
        ''')
    p1ld = f'buffer_load_dwordx4 v[92:95], v{T4}, {W}, s3 offen sc1'
    def p1rest():
        a.L(f'{N}_p1')
        a.I(p1ld)
        p1check(0)
        a.I(f'''
        s_cmp_lt_u32 s4, {SPIN}
        s_cbranch_scc1 {N}_p1
        ''')
        a.L(f'{N}_p1g')
        a.I(f'''
        v_mov_b32 v{T0}, {SYNC}
        v_mov_b32 v{T1}, 64
        ds_write_b32 v{T0}, v{T1} offset:{C_S1}
        ''')
        if OPT['kvpf']:
            a.I(f'''
            v_lshlrev_b32 v{T4}, 4, v{vL}
            s_mul_i32 s3, s6, {2*KVT}
            s_add_u32 s3, s3, {WS_KVF}
            s_add_u32 s5, s3, 4096
            ''')
            for k in range(4): a.I(f'buffer_load_dwordx4 v[92:95], v{T4}, {W}, s3 offen offset:{k*1024} sc1')
            a.I(f'buffer_load_dwordx4 v[92:95], v{T4}, {W}, s5 offen sc1')
            a.I(f'buffer_load_dwordx4 v[92:95], v{T4}, {W}, s5 offen offset:512 sc1')
        if STAMPS: a.I(f'v_writelane_b32 v0, s4, 25')
        vstamp(23)
        a.L(f'{N}_p1ok')
    if not OPT['p1m']:
        a.I(f'''
        s_cmp_lg_u32 s9, 5
        s_cbranch_scc1 {N}_p1ok
        ''')
        ldswait(C_Q + 4*OPT['p1start'], 4, T0, T1, sleep=1)
    a.I(f'v_lshlrev_b32 v{T4}, 7, v{vL}')
    if not OPT['p1m']:
        a.I(f's_mov_b32 s3, {WS_FLG}\ns_mov_b32 s4, 0')
        vstamp(22)
        p1rest()
    if OPT['hstart'] <= 4: ldswait(C_Q + 4*OPT['hstart'], 4, T0, T1, sleep=1)
    else: ldswait(C_H, 4, T0, T1, sleep=1)
    a.stamp(3)
    if OPT['p1m']:
        a.I(f'''
        s_mov_b32 s3, {WS_FLG}
        s_mov_b32 s4, 0
        s_cmp_lg_u32 s9, 5
        s_cbranch_scc1 {N}_p1a
        {p1ld}
        ''')
        a.L(f'{N}_p1a')
    a.I(f's_setprio {OPT["hprio"]}')
    hadv = [f's_add_u32 s14, s14, {32*3840}', f's_cmp_eq_u32 s14, {640*3840}', 's_cselect_b32 s14, 0, s14',
            's_add_u32 s19, s19, 1', 's_cmp_ge_u32 s19, 20', 's_cselect_b32 s46, 0, s46']
    def hm0(q, e): return f's_add_u32 m0, s12, {q*2048 + e*1024}'
    def hld(q, e): return f'buffer_load_dwordx4 v{vHW+(q&1)*2+e}, s[44:47], s14 offen lds'
    def hxr(q): return [f'ds_read_b128 {vr(HX+(q&1)*8+pt*4,4)}, v{vCX+q} offset:{pt*4096}' for pt in range(2)]
    def hwr(q): return [f'ds_read_b64_tr_b16 {vr(HWf+(q&1)*8+j*4+2*h,2)}, v{vHR+j} offset:{q*2048 + h*512}' for j in range(2) for h in range(2)]
    if OPT['hpf']:
        a.I(f'''
        s_bfe_u32 s5, s7, 0x10002
        s_mul_i32 s5, s5, {320*3840}
        s_and_b32 s20, s7, 3
        s_mul_i32 s20, s20, {16*3840}
        s_add_u32 s5, s5, s20
        s_add_u32 s5, s5, {256*3840}
        buffer_load_dwordx4 v[96:99], v{vHW}, s[44:47], s5 offen
        buffer_load_dwordx4 v[96:99], v{vHW+1}, s[44:47], s5 offen
        ''')
    for q_ in range(4):
        for e in range(2):
            a.I(hm0(q_, e)); a.I('s_nop 0'); a.I(hld(q_, e))
        if q_ & 1:
            for i in hadv: a.I(i)
    if OPT['p1m']:
        a.I(f's_cmp_lg_u32 s9, 5\ns_cbranch_scc1 {N}_p1ok')
        p1check(8 + 2*OPT['hpf'])
        p1rest()
    a.I('s_waitcnt vmcnt(6)')
    for i in hxr(0) + hwr(0): a.I(i)
    a.I(f"""
    s_cmp_ge_u32 s6, 16
    s_cselect_b32 s52, s24, s30
    s_cselect_b32 s53, s25, s31
    s_mov_b32 s54, 819200
    s_mov_b32 s55, 0x20000
    s_and_b32 s3, s6, 15
    s_lshl_b32 s3, s3, 2
    s_add_u32 s3, s3, s10
    s_mul_i32 s15, s3, 12800
    s_lshr_b32 s3, s8, 2
    s_mul_i32 s3, s3, 640
    s_add_u32 s15, s15, s3
    s_mov_b32 s20, 0
    v_mov_b32 v95, {SYNC}
    s_cmp_lt_u32 s96, 4
    s_cselect_b32 s5, {OPT['bj'] % 10}, {OPT['bj'] // 10}
    v_lshlrev_b32 v92, 4, v{vL}
    v_mov_b32 v93, 0x7fffff00
    v_cmp_gt_u32 vcc, 40, v{vL}
    s_sub_u32 s15, s15, {2560*OPT['pf0'] if OPT['pf'] == 20 else 0}
    v_cndmask_b32 v92, v93, v92, vcc
    s_cmp_ge_u32 s8, 5
    s_cbranch_scc1 {N}_h1N
    """)
    def h1loop(orient):
        l = lab()
        a.L(l)
        if STAMPS:
            a.I('s_memtime s[96:97]\ns_mov_b32 m0, s20\ns_waitcnt lgkmcnt(0)\nv_writelane_b32 v0, s96, m0')
        if OPT['pf'] and OPT['pf'] <= 10:
            a.I(f's_cmp_lg_u32 s20, {OPT["pf"]-1}')
            a.I(f's_cbranch_scc1 {l}npf')
            a.I(f's_call_b64 {RET}, {N}_wpf')
            a.L(l + 'npf')
        for q in range(4):
            qn = (q + 1) & 3
            a.I(f's_waitcnt vmcnt({6 if OPT["pf"] == 20 and q else 4}) lgkmcnt(0)')
            fl = [hwr(qn), [hm0(q, 0)] + hxr(qn), [hld(q, 0), hm0(q, 1)], [hld(q, 1)]]
            if q & 1: fl[3] += hadv
            if OPT['boost'] and q % 2 == 0:
                fl[1] += [f'ds_read_b32 v94, v95 offset:{C_H}']
            if OPT['boost'] and q % 2 == 1:
                fl[0] += ['v_readfirstlane_b32 s3, v94', 's_cmp_lt_u32 s3, 5', f's_cbranch_scc1 {l}b{q}', 's_setprio 3', f'{l}b{q}:']
            if OPT['bj'] and q == 0:
                fl[0] += ['s_add_u32 s3, s20, s5', f's_cmp_lt_u32 s3, 10', f's_cbranch_scc1 {l}c', 's_setprio 3', f'{l}c:']
            if q == 0 and OPT['pf'] == 20:
                fl[2] += [f's_sub_u32 s3, s20, {OPT["pf0"]}', 's_cmp_lt_u32 s3, 5', 's_cselect_b32 s54, 819200, 0']
                fl[3] += ['buffer_load_dwordx4 v[96:99], v92, s[52:55], s15 offen',
                          'buffer_load_dwordx4 v[96:99], v92, s[52:55], s15 offen offset:1280', 's_add_u32 s15, s15, 2560']
            if q == 0:
                fl[3] += ['s_add_u32 s13, s13, 8192', 's_cmp_eq_u32 s13, 81920', 's_cselect_b32 s13, 0, s13', 's_add_u32 s20, s20, 1']
            if q == 2:
                fl[3] += [f's_setprio {OPT["xprio"]}'] + [f'v_add_u32 v{vCX+k}, s13, v{vXB+k}' for k in range(4)] + [f's_setprio {OPT["hprio"]}']
            if q == 3:
                fl[3] += ['s_cmp_lt_u32 s20, 10']
            m = 0
            for pt in range(2):
                for j in range(2):
                    d = vr(HACC + (pt * 2 + j) * 16, 16)
                    x, w = vr(HX + (q&1)*8 + pt*4, 4), vr(HWf + (q&1)*8 + j*4, 4)
                    if OPT['mprio'] != OPT['hprio']: a.I(f's_setprio {OPT["mprio"]}')
                    if orient == 'T':
                        a.I(f'{MF32} {d}, {w}, {x}, {d}')
                    else:
                        a.I(f'{MF32} {d}, {x}, {w}, {d}')
                    if m == 3 and q == 2:
                        for i in fl[m][1:]: a.I(i)
                        fl[m] = fl[m][:1]
                    if OPT['mprio'] != OPT['hprio']: a.I(f's_setprio {OPT["hprio"]}')
                    for i in fl[m]: a.I(i)
                    m += 1
        a.I(f"""
        s_cbranch_scc1 {l}
        s_waitcnt vmcnt(0) lgkmcnt(0)
        s_setprio {OPT['eprio']}
        """)
        arrive(C_H)
        if OPT['pf'] == 11:
            a.I(f's_setprio {OPT["hprio"]}')
            a.I(f's_call_b64 {RET}, {N}_wpf')
            a.I(f's_setprio {OPT["vprio"]}')
        a.I(f"""
        v_lshlrev_b32 v104, 4, v{vL}
        s_mul_i32 s3, s7, {2*OAB_PT}
        s_mul_i32 s4, s8, 5120
        s_add_u32 s3, s3, s4
        v_mov_b64 v[100:101], -1
        v_mov_b64 v[102:103], -1
        s_and_b32 s4, s10, 1
        s_mul_i32 s4, s4, {OAB_PT}
        s_add_u32 s3, s3, s4
        s_lshr_b32 s4, s10, 1
        s_lshl_b32 s4, s4, 11
        s_add_u32 s3, s3, {WS_OAB}
        s_add_u32 s42, s4, s3
        s_add_u32 s43, s42, 40960
        """)
        for r in range(HACC, HACC + 64, 16):
            for k in range(8):
                cv(r + k, r + 2 * k)
        a.I(f's_setprio {OPT["sprio"]}')
        if STAMPS:
            a.I('s_memtime s[96:97]\ns_mov_b32 m0, s20\ns_waitcnt lgkmcnt(0)\nv_writelane_b32 v0, s96, m0')
    h1loop('T')
    a.I(f'''
    s_lshl_b32 s3, s7, 1
    s_mul_i32 s3, s3, {QKB_PT}
    s_lshl_b32 s4, s11, 5
    s_add_u32 s3, s3, s4
    s_add_u32 s4, s3, {QKB_PT}
    ''')
    for pt in range(2):
        for j in range(2):
            r = HACC + (pt * 2 + j) * 16
            for b in range(2):
                a.I(f'buffer_store_dwordx4 {vr(r+4*b,4)}, v104, {W}, s{3+pt} offen offset:{(2*j+b)*1024} sc1')
    a.I(f's_branch {N}_h1done')
    a.L(f'{N}_h1N')
    h1loop('N')
    a.I(f'''
    s_cmp_ge_u32 s11, 3840
    s_cbranch_scc1 {N}_h1done
    s_sub_u32 s3, s11, 2560
    s_lshl_b32 s3, s3, 11
    s_lshl_b32 s4, s7, 12
    s_add_u32 s3, s3, s4
    s_add_u32 s3, s3, {WS_VBT}
    s_add_u32 s4, s3, {VBT_NT}
    ''')
    for pt in range(2):
        for j in range(2):
            r = HACC + (pt * 2 + j) * 16
            for b in range(2):
                a.I(f'buffer_store_dwordx4 {vr(r+4*b,4)}, v104, {W}, s{3+j} offen offset:{(2*pt+b)*1024} sc1')
    a.L(f'{N}_h1done')
    for k in range(3): a.I(f'buffer_store_dwordx4 v[100:103], v104, {W}, s43 offen offset:{k*1024} sc1')
    a.I(f's_setprio {OPT["cprio"]}')
    a.stamp(4)
    def setflag(word, cw):
        l = lab()
        a.I(f'''
        v_mov_b32 v{T0}, {SYNC}
        v_mov_b32 v{T1}, 1
        s_mov_b64 exec, 1
        ds_add_rtn_u32 v{T1}, v{T0}, v{T1} offset:{cw}
        v_mov_b32 v{T0}, 0
        v_mov_b32 v{T2}, s62
        v_mov_b32 v{T3}, s63
        s_waitcnt lgkmcnt(0)
        v_cmp_eq_u32 vcc, 3, v{T1}
        s_cbranch_vccz {l}
        buffer_store_dwordx2 {vr(T2,2)}, v{T0}, {W}, s23 offen offset:{word*1024} sc1
        ''')
        a.L(l)
        a.I('s_mov_b64 exec, -1')
    def pollflag(soff, va, minb=None, sleep=OPT['psleep']):
        l = lab()
        a.I('s_mov_b32 s19, 0')
        a.L(l)
        if minb is not None:
            a.I(f's_call_b64 {RET}, {N}_wob')
        a.I(f'''
        buffer_load_dwordx2 {vr(T2,2)}, v{va}, {W}, {soff} offen sc1
        s_add_u32 s19, s19, 1
        s_waitcnt vmcnt(0)
        v_cmp_ne_u64 vcc, s[62:63], {vr(T2,2)}
        ''')
        if minb:
            a.I(f's_cmp_lt_u32 s15, {minb}')
            a.I(f's_cbranch_scc1 {l}')
        a.I(f's_cbranch_vccz {l}_ok')
        if sleep: a.I(f's_sleep {sleep}')
        a.I(f'''
        s_cmp_lt_u32 s19, {SPIN}
        s_cbranch_scc1 {l}
        ''')
        a.L(l + '_ok')
    def stream(lim):
        l = lab()
        a.L(l)
        a.I(f'''
        s_call_b64 {RET}, {N}_wob
        s_cmp_lt_u32 s15, {lim}
        s_cbranch_scc1 {l}
        ''')
    def pollshare(soff, va, pw, cw):
        l = lab()
        a.I(f's_cmp_lg_u32 s9, {pw}')
        a.I(f's_cbranch_scc1 {l}')
        pollflag(soff, va)
        arrive(cw)
        a.I(f's_branch {l}_ok')
        a.L(l)
        a.I(f'v_mov_b32 v{T3}, {SYNC}')
        a.I('s_mov_b32 s19, 0')
        a.I('s_waitcnt vmcnt(0)')
        a.L(l + '_w')
        a.I(f'''
        ds_read_b32 v{T2}, v{T3} offset:{cw}
        s_add_u32 s19, s19, 1
        s_waitcnt lgkmcnt(0)
        v_readfirstlane_b32 s3, v{T2}
        s_cmp_lg_u32 s3, 0
        s_cbranch_scc1 {l}_ok
        s_setprio {OPT['wprio']}
        s_sleep {OPT['wsleep']}
        s_cmp_lt_u32 s19, {SPIN*8}
        s_cbranch_scc1 {l}_w
        ''')
        a.L(l + '_ok')
    srd(a, 44, 30, 819200)
    LQ, LK, LV, LG = 28, 44, 64, 84
    LS, LP, M, LO, LL = 88, 120, 136, 172, 204
    a.I(f'''
    s_lshl_b32 s12, s10, 10
    s_mul_i32 s22, s7, {FG}
    s_add_u32 s22, s22, {WS_FG}
    s_lshl_b32 s3, s8, 7
    s_add_u32 s23, s22, s3
    s_and_b32 s13, s7, {7 if OPT['map2'] else 3}
    s_cmp_ge_u32 s13, 5
    s_cselect_b32 s3, 5, 0
    s_sub_u32 s13, s13, s3
    s_mov_b32 s14, {OPT['st2']}
    s_mov_b32 s15, 0
    s_lshl_b32 s3, s7, 1
    s_mul_i32 s29, s3, {QKB_PT}
    s_add_u32 s30, s29, {QKB_PT}
    s_add_u32 s31, s29, 40960
    s_add_u32 s32, s30, 40960
    s_sub_u32 s33, s31, {QKB_PT}
    s_lshl_b32 s26, s7, 12
    s_add_u32 s26, s26, {WS_VBT}
    s_sub_u32 s27, s26, 1024
    s_sub_u32 s28, s22, {FG}
    s_cmp_eq_u32 s7, 0
    s_cselect_b32 s33, s31, s33
    s_cselect_b32 s27, s26, s27
    s_cselect_b32 s28, s22, s28
    s_lshl_b32 s18, s7, 8
    s_add_u32 s18, s18, {WS_G}
    ''')
    a.I('s_waitcnt vmcnt(0)')
    vstamp(19)
    setflag(0, C_2)
    ldswait(C_H, 8, T2, T3, hp=OPT['cprio'])
    vstamp(20)
    stream(OPT['st2'])
    a.I(f's_setprio {OPT["hprio"]}')
    for k in range(3): a.I(f'buffer_store_dwordx4 v[100:103], v104, {W}, s42 offen offset:{k*1024} sc1')
    a.I(f's_setprio {OPT["cprio"]}')
    vstamp(21)
    pollshare('s28', vF2, 4, C_S2)
    if STAMPS: a.I('v_writelane_b32 v0, s19, 27')
    a.stamp(5)
    if STAMPS: a.I('v_writelane_b32 v0, s15, 31')
    a.I(f's_setprio {OPT["hprio"]}')
    for u in range(4):
        a.I(f'buffer_load_dwordx4 {vr(LQ+4*u,4)}, v{LA}, {W}, s{29+(u>>1)} offen offset:{256*(u&1)} sc1')
    for kt, (so, off) in enumerate([('s33', 256), ('s31', 0), ('s31', 256), ('s32', 0), ('s32', 256)]):
        a.I(f'buffer_load_dwordx4 {vr(LK+4*kt,4)}, v{LA}, {W}, {so} offen offset:{off} sc1')
    for d in range(2):
        for kt in range(5):
            so, off = ('s27', 0) if kt == 0 else ('s26', (kt - 1) * 1024)
            a.I(f'buffer_load_dwordx2 {vr(LV+10*d+2*kt,2)}, v{LA+2+d}, {W}, {so} offen offset:{off} sc1')
    for u in range(4):
        a.I(f'buffer_load_dword v{LG+u}, v{LA+4}, {W}, s18 offen offset:{64*u} sc1')
    a.I(f's_setprio {OPT["h2prio"]}')
    a.I(f'''
    s_lshl_b32 s3, s7, 1
    s_mul_i32 s36, s3, {OAB_PT}
    s_mul_i32 s3, s8, 5120
    s_add_u32 s36, s36, s3
    s_add_u32 s36, s36, {WS_OAB + 40960}
    s_lshl_b32 s3, s10, 10
    s_add_u32 s37, s36, s3
    s_add_u32 s38, s37, {OAB_PT}
    s_lshr_b32 s3, s10, 1
    s_lshl_b32 s3, s3, 9
    s_and_b32 s4, s10, 1
    s_lshl_b32 s4, s4, 3
    s_add_u32 s3, s3, s4
    s_add_u32 s40, s36, s3
    s_add_u32 s40, s40, 4096
    s_add_u32 s41, s40, {OAB_PT}
    v_mov_b32 v{T4}, {f32hex(CSCALE)}
    v_mov_b32 v{T5}, {f32hex(-CSCALE)}
    ''')
    a.I(f'''
    s_add_u32 s3, s15, s13
    s_cmp_ge_u32 s3, 5
    s_cselect_b32 s4, 5, 0
    s_sub_u32 s3, s3, s4
    s_mul_i32 s42, s3, {128*1280}
    s_mul_i32 s43, s3, 20480
    s_add_u32 s43, s43, s12
    s_add_u32 s15, s15, {OPT['h2d']}
    s_mov_b32 s14, 5
    ''')
    nd = [0]
    def hd():
        if not OPT['h2d']: return
        j = nd[0]; nd[0] += 1
        a.I(f's_add_u32 m0, s43, {RA + j*4096}')
        a.I(f's_setprio {OPT["hprio"]}')
        a.I(f'buffer_load_dwordx4 v{VWO+j}, s[44:47], s42 offen lds')
        a.I(f's_setprio {OPT["h2prio"]}')
    vstamp(22)
    a.I('s_waitcnt vmcnt(19)')
    for u in range(4):
        for k in range(4):
            a.I(f'v_and_b32 v{LQ+4*u+k}, v{LA+1 if k < 2 else 155}, v{LQ+4*u+k}')
    a.I('s_waitcnt vmcnt(14)')
    vstamp(24)
    a.I(f's_setprio {OPT["h2m"]}')
    for u in range(4):
        bp = LB + 8 if u == 0 else LB + 4
        a.I(f'{MF16} {vr(LS+8*u,4)}, {vr(LK+4*u,4)}, {vr(LQ+4*u,4)}, {vr(bp,4)}')
        a.I(f'{MF16} {vr(LS+8*u+4,4)}, {vr(LK+4*u+4,4)}, {vr(LQ+4*u,4)}, {vr(LB,4)}')
    hd()
    a.I('s_nop 3')
    for u in range(4):
        s = LS + 8 * u
        m = M + 2 * u
        a.I(f'''
        v_max3_f32 v{m}, v{s}, v{s+1}, v{s+2}
        v_max3_f32 v{m}, v{m}, v{s+3}, v{s+4}
        v_max3_f32 v{m}, v{m}, v{s+5}, v{s+6}
        v_max_f32 v{m}, v{m}, v{s+7}
        v_mov_b32 v{m+1}, v{m}
        ''')
    a.I('s_nop 1')
    for u in range(4):
        a.I(f'v_permlane16_swap_b32 v{M+2*u}, v{M+2*u+1}')
    for u in range(4):
        a.I(f'v_max_f32 v{M+2*u}, v{M+2*u}, v{M+2*u+1}')
    for u in range(4):
        a.I(f'v_mov_b32 v{M+2*u+1}, v{M+2*u}')
    a.I('s_nop 1')
    for u in range(4):
        a.I(f'v_permlane32_swap_b32 v{M+2*u}, v{M+2*u+1}')
    for u in range(4):
        a.I(f'v_max_f32 v{M+2*u}, v{M+2*u}, v{M+2*u+1}')
    for u in range(4):
        a.I(f'v_mul_f32 v{M+2*u}, v{T5}, v{M+2*u}')
    for u in range(4):
        s = LS + 8 * u
        for k in range(0, 8, 2):
            a.I(f'v_pk_fma_f32 {vr(s+k,2)}, {vr(s+k,2)}, {vr(T4,2)}, {vr(M+2*u,2)} op_sel_hi:[1,0,0]')
        for k in range(8):
            ex(s + k)
        if u % 2 == 0: hd()
    a.I('s_nop 0')
    for u in range(4):
        for k in range(4):
            cv(LP + 4 * u + k, LS + 8 * u + 2 * k)
    a.I(f's_waitcnt vmcnt({nd[0]})')
    a.I(f'v_add_u32 v{T2}, {GL}, v{LA+4}')
    a.I(f's_setprio {OPT["h2m"]}')
    for u in range(4):
        a.I(f'{MF16} {vr(LL+4*u,4)}, {vr(ONES,4)}, {vr(LP+4*u,4)}, 0')
        a.I(f'{MF16} {vr(LO+8*u,4)}, {vr(LV+2*u,4)}, {vr(LP+4*u,4)}, 0')
        a.I(f'{MF16} {vr(LO+8*u+4,4)}, {vr(LV+10+2*u,4)}, {vr(LP+4*u,4)}, 0')
        a.I(f'ds_write_b32 v{T2}, v{LG+u} offset:{64*u}')
    a.I(f's_setprio {OPT["h2prio"]}')
    a.I('s_nop 3')
    for u in range(4):
        o = LO + 8 * u
        a.I(f'''
        v_rcp_f32 v{T2}, v{LL+4*u}
        v_sub_f32 v{T3}, 1.0, v{LG+u}
        v_mul_f32 v{T2}, v{T2}, v{T3}
        ''')
        for k in range(0, 8, 2):
            a.I(f'v_pk_mul_f32 {vr(o+k,2)}, {vr(o+k,2)}, {vr(T2,2)} op_sel_hi:[1,0]')
        p = LS + 4 * (u >> 1) + 2 * (u & 1)
        cv(p, o); cv(p + 1, o + 2)
        cv(o, o + 4); cv(o + 1, o + 6)
        for r in (p, p + 1, o, o + 1): a.I(f'v_min_u32 v{r}, -2, v{r}')
        if u % 2 == 0: hd()
    a.I('s_nop 1')
    for pp in range(2):
        p = LS + 4 * pp
        a.I(f'v_permlane32_swap_b32 v{p}, v{p+2}')
        a.I(f'v_permlane32_swap_b32 v{p+1}, v{p+3}')
        a.I(f'buffer_store_dwordx4 {vr(p,4)}, v{vOB+1}, {W}, s{37+pp} offen sc1')
    a.I('s_mov_b64 exec, 0xffff')
    for u in range(4):
        a.I(f'buffer_store_dwordx2 {vr(LO+8*u,2)}, v{vOB}, {W}, s{40+(u>>1)} offen offset:{256*(u&1)} sc1')
    a.I('s_mov_b64 exec, -1')
    a.stamp(6)
    stream(5)
    dma = [(bi, j) for bi in range(3) for j in range(5 if bi < 2 else 3)]
    dma1 = list(dma)
    a.I('s_mov_b32 s44, s24\ns_mov_b32 s45, s25')
    a.I(f's_setprio {OPT["hprio"]}')
    for _ in range(OPT['pre1']):
        bi, j = dma1.pop(0)
        a.I(f's_add_u32 m0, s12, {RB + bi*20480 + j*4096}')
        a.I(f's_mov_b32 s4, {128*bi*1280}')
        a.I(f's_waitcnt vmcnt({OPT["wsub"]})')
        a.I(f'buffer_load_dwordx4 v{VWO+j}, s[44:47], s4 offen lds')
    a.I(f's_setprio {OPT["cprio"]}')
    a.I('s_waitcnt vmcnt(0)')
    arrive(C_H)
    a.stamp(7)
    HWR = 124
    NR = 6
    AW = OPT['AW']
    a.vm = []; a.lg = []
    def w3(s):
        for n, i in enumerate(wread(s, HWR + (s % NR) * 20)):
            a.LG(i, (s, n))
    def a3(s):
        a.VM(f'buffer_load_dwordx4 {vr(AF+4*s,4)}, v{vA}, {W}, s19 offen offset:{(s%2)*2048} sc1', s)
        if s % 2 == 1:
            a.I('s_add_u32 s19, s19, 4096')
    def check(s, nm):
        r = AF + 4 * s
        a.L(f'{N}_{nm}ck{s}')
        a.I(f"""
        s_setprio 3
        v_max3_u32 v{T0}, v{r}, v{r+1}, v{r+2}
        v_max3_u32 v{T1}, v{r+3}, v{r+4}, v{r+5}
        v_max3_u32 v{T0}, v{T0}, v{r+6}, v{r+7}
        v_max_u32 v{T0}, v{T0}, v{T1}
        v_cmp_eq_u32 vcc, -1, v{T0}
        s_setprio {OPT['h3prio'] if s < OPT['h3sw'] else 3}
        s_cbranch_vccnz {N}_{nm}rt{s}
        """)
        a.L(f'{N}_{nm}go{s}')
    a.I('s_add_u32 s19, s21, 40960')
    a.I('s_mov_b32 s18, 0')
    a.I(f's_setprio {OPT["hprio"]}')
    for s in range(AW): a3(s)
    a.I(f's_setprio {OPT["h3prio"]}')
    a.I('s_setprio 3')
    a.I(f'v_mov_b32 v{T4}, {SYNC}\nv_mov_b32 v{T5}, 1')
    ldswait(C_H, 12, T2, T3, hp=OPT['h3prio'])
    vstamp(11)
    if STAMPS: a.I('v_writelane_b32 v0, s15, 30')
    for s in range(NR - 1): w3(s)
    DS = OPT['dstart']
    for s in range(20):
        sn = s + NR - 1
        if s == OPT['h3sw']: OPT['h3prio'] = 3; a.I('s_setprio 3')
        if sn == 10:
            a.I('s_setprio 3')
            for k in range(5):
                a.I(f'v_add_u32 v{vR+k}, 51200, v{vR+k}')
            a.I(f's_setprio {OPT["h3prio"]}')
        if s == DS:
            a.wait(vm=lambda tg: tg < 100)
            for u in range(s + (s & 1), 20, 2): check(u, 'h')
            a.I('s_setprio 3')
            ldswait(C_M, 4, T2, T3, sleep=0, hp=OPT['h3prio'])
            a.lg = []
        if sn < 20: w3(sn)
        if s in (10, 15):
            if s == 15: a.wait(vm=lambda tg: tg <= 1000)
            a.I('s_mov_b64 exec, 1')
            a.LG(f'ds_add_u32 v{T4}, v{T5} offset:{C_M if s == 10 else C_E}', (s + 3, 99))
            a.I('s_mov_b64 exec, -1')
        a.wait(vm=lambda tg: tg <= s + 1 - (s & 1), lg=lambda tg: tg[0] <= s)
        if s % 2 == 0 and s < DS: check(s, 'h')
        for t in range(5):
            d = vr(CACC + 4 * t, 4)
            a.I(f'{MF16} {d}, {vr(HWR+(s%NR)*20+t*4,4)}, {vr(AF+4*s,4)}, {d if s else 0}')
            if t == 0 and s + AW < 20: a3(s + AW)
            if s >= OPT['d1'] and t in (1, 3) and dma1:
                bi, j = dma1.pop(0)
                a.I(f's_add_u32 m0, s12, {RB + bi*20480 + j*4096}')
                a.I(f's_mov_b32 s4, {128*bi*1280}')
                a.I(f's_setprio {OPT["hprio"]}')
                a.VM(f'buffer_load_dwordx4 v{VWO+j}, s[44:47], s4 offen lds', 1000)
                a.I(f's_setprio {OPT["h3prio"]}')
            elif s >= DS and t in (1, 3) and dma:
                bi, j = dma.pop(0)
                a.I(f's_add_u32 m0, s12, {RA + bi*20480 + j*4096}')
                a.I(f's_mov_b32 s4, {(320 + 128*bi)*1280}')
                if (bi, j) == (2, 2):
                    a.I(f's_cmp_ge_u32 s10, 2\ns_cbranch_scc1 {N}_nodma')
                a.I(f's_setprio {OPT["hprio"]}')
                a.VM(f'buffer_load_dwordx4 v{VWO+j}, s[44:47], s4 offen lds', 2000)
                a.I(f's_setprio {OPT["h3prio"]}')
                if (bi, j) == (2, 2):
                    assert s > 15
                    a.L(f'{N}_nodma')
    assert not dma and DS + AW >= 20 and DS > 10
    a.I('s_setprio 3')
    vstamp(12)
    if STAMPS: a.I('v_writelane_b32 v0, s18, 28')
    for k in range(5):
        a.I(f'v_subrev_u32 v{vR+k}, 51200, v{vR+k}')
    a.I('s_add_u32 s22, s21, 20480')
    a.I('s_waitcnt vmcnt(0)')
    arrive(C_H)
    a.stamp(8)
    a.I('s_setprio 0')
    ldswait(C_H, HDONE, T2, T3)
    vstamp(13)
    a.I(f's_call_b64 {RET}, {N}_wpre')
    vstamp(14)
    ldswait(C_T, 4, T2, T3)

    a.stamp(9)
    a.L(f'{N}_phaseC0')
    CS = [22, 23, 26, 27, 28]
    a.I(f"""
    s_add_u32 s23, s22, 4096
    s_add_u32 s26, s22, 8192
    s_add_u32 s27, s22, 12288
    s_add_u32 s28, s22, 16384
    s_mov_b32 s19, 0
    """)
    if OPT['cin']:
        for s in range(10):
            a.I(f'buffer_load_dwordx4 {vr(AF+4*s,4)}, v{vA}, {W}, s{CS[s//2]} offen offset:{(s%2)*2048} sc1')
    else: a.I(f's_call_b64 {RET}, {N}_cl0')
    a.L(f'{N}_phaseC1')
    a.stamp(10)
    a.vm = []; a.lg = []
    srd(a, 52, 34, 2048 * 1280)
    vPa = 12
    a.I(f'''
    s_and_b32 s5, s9, 3
    s_mul_i32 s3, s5, 6144
    s_add_u32 s3, s3, {EXA}
    v_lshlrev_b32 v{vPa}, 4, v{vL}
    v_add_u32 v{vPa}, s3, v{vPa}
    s_lshl_b32 s3, s5, 2
    s_add_u32 s3, s3, {SYNC + C_P}
    v_mov_b32 v{vPa+1}, s3
    v_mul_u32_u24 v{vPa+2}, 1280, v{vC}
    v_and_b32 v{vPa+4}, 1, v{vG4}
    v_lshl_add_u32 v{vPa+4}, v{vPa+4}, 5, v{vPa+2}
    v_lshl_add_u32 v{vPa+4}, v{vH}, 4, v{vPa+4}
    v_lshl_add_u32 v{vPa+2}, v{vG4}, 3, v{vPa+2}
    s_lshl_b32 s3, s7, 6
    s_lshl_b32 s4, s5, 4
    s_add_u32 s3, s3, s4
    s_mul_i32 s13, s3, 1280
    s_mul_i32 s5, s8, 160
    s_add_u32 s13, s13, s5
    v_mov_b32 v{vPa+3}, 1
    ''')
    a.I('s_waitcnt lgkmcnt(0)')
    for s in range(10):
        if s == 8: a.I('s_waitcnt lgkmcnt(10)')
        if s == 9: a.I('s_waitcnt lgkmcnt(0)')
        if s % 2 == 0:
            r = AF + 4 * s
            a.L(f'{N}_ck{s}')
            a.I(f"""
            s_waitcnt vmcnt({8-s})
            v_max3_u32 v{T0}, v{r}, v{r+1}, v{r+2}
            v_max3_u32 v{T1}, v{r+3}, v{r+4}, v{r+5}
            v_max3_u32 v{T0}, v{T0}, v{r+6}, v{r+7}
            v_max_u32 v{T0}, v{T0}, v{T1}
            v_cmp_eq_u32 vcc, -1, v{T0}
            s_cbranch_vccnz {N}_rt{s}
            """)
            a.L(f'{N}_go{s}')
        for t in range(5):
            d = vr(CACC + 4 * t, 4)
            a.I(f'{MF16} {d}, {vr(WF+(s%8)*20+t*4,4)}, {vr(AF+4*s,4)}, {d}')
        if s in (1, 2):
            for i in wread(7 + s, WF + (s - 1)*20): a.I(i)
    if STAMPS: a.I('v_writelane_b32 v0, s19, 29')
    a.stamp(11)
    a.I(f'''
    s_cmp_ge_u32 s9, 4
    s_cbranch_scc1 {N}_red
    s_nop 3
    ''')
    for t in range(5):
        a.I(f'ds_write_b128 v{vPa}, {vr(CACC+4*t,4)} offset:{t*1024}')
    a.I(f'''
    s_waitcnt lgkmcnt(0)
    ds_write_b32 v{vPa+1}, v{vPa+3}
    s_waitcnt lgkmcnt(0)
    s_branch {N}_fin
    ''')
    a.L(f'{N}_red')
    a.I('s_mov_b32 s4, 0')
    a.L(f'{N}_red1')
    a.I(f'ds_read_b32 v{T0}, v{vPa+1}')
    for t in range(5):
        a.I(f'ds_read_b128 {vr(AF+4*t,4)}, v{vPa} offset:{t*1024}')
    a.I(f'''
    s_add_u32 s4, s4, 1
    s_waitcnt lgkmcnt(5)
    v_readfirstlane_b32 s3, v{T0}
    s_cmp_lg_u32 s3, 0
    s_cbranch_scc1 {N}_red2
    s_cmp_lt_u32 s4, {SPIN*8}
    s_cbranch_scc1 {N}_red1
    ''')
    a.L(f'{N}_red2')
    for t in range(5):
        c, b = CACC + 4 * t, AF + 4 * t
        a.I(f's_waitcnt lgkmcnt({4-t})')
        a.I(f'v_pk_add_f32 {vr(c,2)}, {vr(c,2)}, {vr(b,2)}')
        a.I(f'v_pk_add_f32 {vr(c+2,2)}, {vr(c+2,2)}, {vr(b+2,2)}')
        d = CACC + 8 * (t >> 1) + 2 * (t & 1)
        cv(d, c); cv(d + 1, c + 2)
        if t == 4:
            a.I(f'buffer_store_dwordx2 {vr(d,2)}, v{vPa+2}, s[52:55], s13 offen offset:{t*32}')
        if t in (2, 4):
            d = CACC + 4 * (t - 2)
            a.I(f'v_permlane16_swap_b32 v{d}, v{d+2}')
            a.I(f'v_permlane16_swap_b32 v{d+1}, v{d+3}')
            a.I(f'buffer_store_dwordx4 {vr(d,4)}, v{vPa+4}, s[52:55], s13 offen offset:{(t-2)*32}')
    a.L(f'{N}_fin')
    if STAMPS:
        a.stamp(12)
        a.I('s_waitcnt vmcnt(0)')
        a.stamp(13)
        if OPT['dbg']:
            a.I('s_memrealtime s[94:95]')
            a.I('s_load_dwordx2 s[36:37], s[0:1], 80')
            a.I('s_waitcnt lgkmcnt(0)')
            srd(a, 56, 36, 256)
            a.I(f's_cmp_lg_u32 s2, {OPT["dbg"]-1}')
            a.I(f's_cbranch_scc1 {N}_end')
            a.I(f's_and_b32 s3, s9, 3')
            a.I(f's_cmp_lg_u32 s3, 0')
            a.I(f's_cbranch_scc1 {N}_end')
            a.I('s_mov_b64 exec, 1')
            a.I(f'v_mov_b32 v{T0}, 0')
            a.I('s_lshr_b32 s5, s9, 2')
            a.I('s_mul_i32 s5, s5, 28')
            sel = [2,4,5,8,10,13,15]
            selh = [3,4,5,7,8,10,13]
            a.I('s_sub_u32 s94, s94, s92')
            a.I('s_add_u32 s94, s94, s64')
            for k in range(7):
                a.I(f's_cmp_eq_u32 s9, 0')
                a.I(f's_cselect_b32 s3, s{64+2*sel[k]}, s{64+2*selh[k]}')
                a.I(f's_sub_u32 s3, s3, s64')
                a.I(f'v_mov_b32 v{T1}, s3')
                a.I(f'buffer_store_dword v{T1}, v{T0}, s[56:59], s5 offen offset:{8+4*k}')
            a.I(f's_branch {N}_end')
        a.dump_stamps(14, 48, WS_STAMP, 9, T0, T1)
        a.I(f'''
        v_lshlrev_b32 v{T0}, 2, v{vL}
        s_getreg_b32 s4, hwreg(HW_REG_HW_ID)
        v_writelane_b32 v0, s4, 15
        s_lshl_b32 s3, s2, 3
        s_add_u32 s3, s3, s9
        s_lshl_b32 s3, s3, 7
        s_add_u32 s3, s3, {WS_STAMP + 262144}
        s_mov_b32 exec_hi, 0
        buffer_store_dword v0, v{T0}, {W}, s3 offen
        ''')
    a.L(f'{N}_end')
    a.I('s_endpgm')
    for s in range(0, 10, 2):
        a.L(f'{N}_rt{s}')
        a.I(f"""
        s_add_u32 s19, s19, 1
        s_cmp_gt_u32 s19, {SPIN}
        s_cbranch_scc1 {N}_go{s}
        """)
        if OPT['rl']:
            for u in range(s, min(s + OPT['rl'], 10)):
                a.I(f'buffer_load_dwordx4 {vr(AF+4*u,4)}, v{vA}, {W}, s{CS[u//2]} offen offset:{(u%2)*2048} sc1')
            a.I('s_waitcnt vmcnt(0)')
        else:
            a.I(f's_call_b64 {RET}, {N}_cl{s}')
        a.I(f's_branch {N}_ck{s}')
    for s in range(0, 20, 2):
        a.L(f'{N}_hrt{s}')
        a.I(f"""
        s_add_u32 s18, s18, 1
        s_cmp_gt_u32 s18, {SPIN}
        s_cbranch_scc1 {N}_hgo{s}
        s_add_u32 s3, s21, {40960 + s*2048}
        s_add_u32 s4, s3, 4096
        """)
        for u in range(s, min(s + 4, 20)):
            a.I(f'buffer_load_dwordx4 {vr(AF+4*u,4)}, v{vA}, {W}, s{3+(u-s)//2} offen offset:{(u%2)*2048} sc1')
        a.I(f's_waitcnt vmcnt(0)')
        a.I(f's_branch {N}_hck{s}')
    for s in range(10):
        a.L(f'{N}_cl{s}')
        a.I(f'buffer_load_dwordx4 {vr(AF+4*s,4)}, v{vA}, {W}, s{CS[s//2]} offen offset:{(s%2)*2048} sc1')
    a.I(f's_setpc_b64 {RET}')
    a.L(f'{N}_last')
    return a.text()

def build(path):
    hdr = open('gated_mix__grouped_kv_mqa__sliding_local_dilated__prompt.s.ref').read().split('\n')
    head = [l for l in hdr if l.startswith(';') and '@launch' not in l]
    s = '\n'.join(head) + '\n'
    s += f'; @launch grid=(256,1,1) block=(512,1,1) lds={LDS}\n'
    s += '.amdgcn_target "amdgcn-amd-amdhsa--gfx950"\n.text\n'
    s += gen()
    s += '.section .rodata,"a"\n'
    s += kernel_desc(KNAME, 256, 0, 102)
    open(path, 'w').write(s)

if __name__ == '__main__':
    for arg in sys.argv[2:]:
        if arg == 'stamps': STAMPS = True
        elif '=' in arg:
            k, v = arg.split('='); OPT[k] = int(v)
    build(sys.argv[1])
```

```python
import math, sys
from asmlib import *

WS_QKB = 0
QKB_PT = 81920
WS_VBT = 64 * QKB_PT
VBT_NT = 131072
WS_KVF = WS_VBT + 20 * VBT_NT
KVT = 2816
KV_K2, KV_C, KV_V1, KV_V2 = 1024, 1280, 1408, 2080
WS_G = WS_KVF + 64 * KVT
WS_FLG = WS_G + 8192
WS_FG = WS_FLG + 8192
FG = 48 * 128
WS_OAB = WS_FG + 32 * FG
OAB_PT = 81920
WS_STAMP = WS_OAB + 64 * OAB_PT
WS_END = WS_STAMP + 524288
STAMPS = False
CSCALE = math.log2(math.e) / math.sqrt(20.0)
QBSCALE = 1.0
MF16 = 'v_mfma_f32_16x16x32_bf16'
MF32 = 'v_mfma_f32_32x32x16_bf16'
MF32h = 'v_mfma_f32_32x32x8_bf16'
KNAME = 'gated_mix__grouped_kv_mqa__sliding_local_dilated__prompt_kernel'

XT = 0
SLOT = [81920, 102400, 122880]
EXB = 122880
QX = 81920
SYNC = 161792
C_X, C_W, C_Q, C_H, C_N, C_2, C_3, C_F, C_R, C_S2, C_S3 = 0, 8, 16, 36, 40, 48, 52, 56, 60, 64, 68
C_T, C_M, C_P, C_B, C_E, C_S1, C_A, C_QH = 72, 76, 80, 96, 112, 116, 128, 120
GV = 162048
GL = 163328
LDS = 163840
HR = 122880
RA = 0
RB = 102400
EXA = 51200
PART = 51200
SPIN = 200000

OPT = dict(l01=0, b0x=1, n5=1, subs=1, cpe=1, h2l=0, cin=0, rl=4, h2m=1, fs=0, xpub=10, w2e=0, wprio=1, wsleep=1, boost=0, xprio=3, cprio=1, bj=0, kg=39, swapx=0, hpf=0, jeven=1, peel=1, kvpf=0, lk=4, eprio=3, pre1=0, p1m=1, cl=0, s3b=8, dstart=12, att2=1, gp=3, par=0, par3=0, ffin=1, ct=0, wqpf=0, tlb=0, dbg=0, st2=2, d1=4, h3prio=1, h3sw=99, h2prio=3, h2d=1, AW=12, w0early=0, cpf=1, npre=2, hstart=2, wsub=3, psleep=2, PD=1, aprio=2, hprio=0, p1start=2, wstart=5, NB=8, nosc1=0, noatt=0, map2=1, pf=8, sprio=0, pf0=3, mprio=0, p1sleep=2, kvtest=0, vprio=1)

def srd(a, d, base, size):
    a.I(f's_mov_b32 s{d}, s{base}')
    a.I(f's_mov_b32 s{d+1}, s{base+1}')
    a.I(f's_mov_b32 s{d+2}, {size}')
    a.I(f's_mov_b32 s{d+3}, 0x20000')

def gen():
    a = Asm()
    a.stamps = STAMPS
    N = 'F'
    W = 's[48:51]'
    vL, vH, vP = 1, 2, 3
    T0, T1, T2, T3, T4, T5 = 4, 5, 6, 7, 8, 9
    vC, vG4 = 10, 11
    RET = 's[98:99]'
    ex = lambda r: a.I(f'v_exp_f32 v{r}, v{r}')
    cv = lambda d, s: a.I(f'v_cvt_pk_bf16_f32 v{d}, v{s}, v{s+1}')
    def lab():
        a.nlabel += 1
        return f'{N}_l{a.nlabel}'
    def ldswait(word, target, vt, va, sleep=1, hp=None):
        l = lab()
        a.I(f'v_mov_b32 v{va}, {SYNC}')
        a.I('s_mov_b32 s4, 0')
        a.L(l)
        a.I(f'''
        ds_read_b32 v{vt}, v{va} offset:{word}
        s_add_u32 s4, s4, 1
        s_waitcnt lgkmcnt(0)
        v_readfirstlane_b32 s3, v{vt}
        s_cmp_ge_u32 s3, {target}
        s_cbranch_scc1 {l}_ok
        ''')
        if hp is not None: a.I(f's_setprio {OPT["vprio"]}')
        if sleep: a.I(f's_sleep {sleep}')
        a.I(f'''
        s_cmp_lt_u32 s4, {SPIN*8}
        s_cbranch_scc1 {l}
        ''')
        a.L(l + '_ok')
        if hp is not None: a.I(f's_setprio {hp}')
    def arrive(word, va=T0, vd=T1):
        a.I(f'''
        v_mov_b32 v{va}, {SYNC}
        v_mov_b32 v{vd}, 1
        s_mov_b64 exec, 1
        ds_add_u32 v{va}, v{vd} offset:{word}
        s_mov_b64 exec, -1
        ''')

    def zero(r0, r1):
        assert r0 % 2 == 0 and r1 % 2 == 0
        for r in range(r0, r1, 2):
            a.I(f'v_mov_b64 {vr(r,2)}, 0')
    def vstamp(lane):
        if STAMPS:
            a.I(f's_memtime s[100:101]\ns_waitcnt lgkmcnt(0)\nv_writelane_b32 v0, s100, {lane}')
    def getnonce(vt, va):
        l = lab()
        a.I(f'v_mov_b32 v{va}, {SYNC}')
        a.I('s_mov_b32 s4, 0')
        a.L(l)
        a.I(f'''
        ds_read_b64 {vr(vt,2)}, v{va} offset:{C_N}
        s_add_u32 s4, s4, 1
        s_waitcnt lgkmcnt(0)
        v_readfirstlane_b32 s62, v{vt}
        v_readfirstlane_b32 s63, v{vt+1}
        s_cmp_lg_u32 s62, 0
        s_cbranch_scc1 {l}_ok
        s_cmp_lt_u32 s4, {SPIN*8}
        s_cbranch_scc1 {l}
        ''')
        a.L(l + '_ok')
    def npoll(top, done):
        a.I('s_mov_b32 s4, 0')
        a.L(f'{N}_{top}')
        a.I(f"""
        buffer_load_dwordx2 {vr(T2,2)}, v{T1}, s[56:59], 0 offen sc1
        s_add_u32 s4, s4, 1
        s_waitcnt vmcnt(0)
        v_readfirstlane_b32 s3, v{T2}
        s_cmp_lg_u32 s3, 0
        s_cbranch_scc1 {N}_{done}
        s_sleep 4
        s_cmp_lt_u32 s4, {SPIN}
        s_cbranch_scc1 {N}_{top}
        """)
    def cpf():
        a.I(f"""
        s_getpc_b64 s[40:41]
        {N}_pc:
        s_sub_u32 s40, s40, {N}_pc-{KNAME}
        s_subb_u32 s41, s41, 0
        s_mov_b32 s42, {N}_last-{KNAME}
        s_mov_b32 s43, 0x20000
        s_lshl_b32 s3, s6, 11
        v_lshlrev_b32 v{T0}, 4, v{vL}
        buffer_load_dwordx4 v[144:147], v{T0}, s[40:43], s3 offen
        buffer_load_dwordx4 v[148:151], v{T0}, s[40:43], s3 offen offset:1024
        """)
    a.raw(kernel_header(KNAME))
    a.I('s_cmp_ge_u32 s2, 256')
    a.I(f's_cbranch_scc1 {N}_end')
    a.stamp(0)
    a.I('s_load_dwordx16 s[16:31], s[0:1], 0')
    a.I('s_load_dwordx8 s[32:39], s[0:1], 64')
    a.I(f'''
    v_and_b32 v{vL}, 63, v0
    v_lshrrev_b32 v{T0}, 6, v0
    v_lshrrev_b32 v{vH}, 5, v{vL}
    v_readfirstlane_b32 s9, v{T0}
    v_and_b32 v{vP}, 31, v{vL}
    v_and_b32 v{vC}, 15, v{vL}
    v_lshrrev_b32 v{vG4}, 4, v{vL}
    s_and_b32 s3, s2, 7
    s_lshr_b32 s6, s2, 3
    ''')
    if OPT['cpe']:
        a.I(f's_cmp_lg_u32 s9, {2 if OPT["l01"] else 1}\ns_cbranch_scc1 {N}_nocp')
        cpf()
        a.I('s_and_b32 s3, s2, 7')
        a.L(f'{N}_nocp')
    if not OPT['map2']:
        a.I(f'''
        s_lshl_b32 s3, s3, 2
        s_lshr_b32 s5, s6, 3
        s_add_u32 s7, s3, s5
        s_and_b32 s8, s6, 7
        s_cmp_ge_u32 s8, 5
        s_cselect_b32 s3, 5, 0
        s_sub_u32 s60, s8, s3
        s_and_b32 s61, s7, 3
        s_lshl_b32 s3, s61, 1
        s_sub_u32 s96, s8, s3
        s_and_b32 s96, s96, 7
        ''')
    else:
        a.I(f'''
        s_lshr_b32 s4, s3, 1
        s_lshl_b32 s4, s4, 3
        s_lshr_b32 s5, s6, 2
        s_add_u32 s7, s4, s5
        {'s_not_b32 s3, s3' if OPT['swapx'] else ''}
        s_and_b32 s3, s3, 1
        s_lshl_b32 s3, s3, 2
        s_and_b32 s60, s6, 3
        s_add_u32 s8, s3, s60
        s_cmp_ge_u32 s5, 5
        s_cselect_b32 s3, 5, 0
        s_sub_u32 s61, s5, s3
        s_sub_u32 s96, s8, s5
        s_and_b32 s96, s96, {3 if OPT['jeven'] else 7}
        ''')
        if OPT['jeven']: a.I('s_and_b32 s3, s8, 4\ns_or_b32 s96, s96, s3')
    vSY, vOne = 22, 23
    vXa, vWa, vEa = 16, 24, 18
    a.I(f"""
    s_and_b32 s10, s9, 1
    s_cmp_ge_u32 s9, 4
    s_cbranch_scc1 {N}_hi
    s_cmp_{'ge' if OPT['l01'] else 'lt'}_u32 s9, 2
    s_cbranch_scc1 {N}_lo
    """)
    a.I(f"""
    s_lshl_b32 s3, s7, 6
    s_lshl_b32 s4, s10, 4
    s_add_u32 s3, s3, s4
    v_lshrrev_b32 v{T0}, 3, v{vL}
    v_and_b32 v{T1}, 7, v{vL}
    v_xor_b32 v{T3}, v{vG4}, v{T1}
    v_add_u32 v{T2}, s3, v{T0}
    v_mul_u32_u24 v{T2}, 1280, v{T2}
    v_lshl_add_u32 v{vXa}, v{T3}, 4, v{T2}
    v_xor_b32 v{T3}, 4, v{T3}
    v_lshl_add_u32 v{vXa+1}, v{T3}, 4, v{T2}
    v_add_u32 v{vXa+1}, {8*1280}, v{vXa+1}
    s_lshl_b32 s11, s10, 10
    v_lshlrev_b32 v{vEa}, 4, v{vL}
    s_and_b32 s3, s96, 1
    s_mul_i32 s13, s3, 40960
    s_lshl_b32 s12, s3, 12
    s_lshl_b32 s4, s10, 11
    s_add_u32 s12, s12, s4
    s_lshl_b32 s3, s10, 2
    s_add_u32 s3, s3, {SYNC + C_X}
    v_mov_b32 v{vSY}, s3
    s_waitcnt lgkmcnt(0)
    """)
    srd(a, 40, 16, 2048 * 1280)
    q = []
    def issue(kind, slot=None):
        if kind == 'X':
            a.I(f's_call_b64 {RET}, {N}_xissue'); q.append(4)
        elif kind == 'E':
            a.I(f's_call_b64 {RET}, {N}_eissue'); q.append(7)
        else:
            a.I(f's_mov_b32 s15, {SLOT[slot]}')
            a.I(f's_call_b64 {RET}, {N}_wissue'); q.append(10)
    npub = [0]
    def pub(val=None, nowait=False):
        if val is None:
            q.pop(0)
            npub[0] += 1
            val = npub[0]
        else:
            q.clear()
        a.I(f'v_mov_b32 v{vOne}, {val}')
        if not nowait: a.I(f's_waitcnt vmcnt({sum(q)})')
        a.I(f'ds_write_b32 v{vSY}, v{vOne}')
        vstamp(16 + min(val, 6))
    flip = f"""
    s_xor_b32 s13, s13, 40960
    s_xor_b32 s12, s12, 4096
    """
    def xsubs():
        a.L(f'{N}_eissue')
        a.I(f"""
        s_mul_i32 s14, s60, 5120
        s_add_u32 s4, s14, s11
        s_add_u32 m0, s4, {EXB}
        s_add_u32 s14, s14, 4096
        buffer_load_dwordx4 v{vEa}, s[52:55], s4 offen lds
        buffer_load_dwordx4 v{vEa}, s[52:55], s4 offen offset:2048 lds
        s_add_u32 m0, s14, {EXB}
        s_nop 0
        buffer_load_dwordx4 v{vEa}, s[52:55], s14 offen lds
        """)
        a.L(f'{N}_xissue')
        a.I(f"""
        s_lshl_b32 s14, s60, 8
        s_add_u32 s14, s14, s13
        s_lshl_b32 s15, s60, 14
        s_add_u32 s15, s15, s12
        """)
        for c in range(2):
            for n in range(2):
                a.I(f's_add_u32 m0, s15, {c*8192 + n*1024}')
                a.I(f's_add_u32 s4, s14, {c*128}')
                a.I(f'buffer_load_dwordx4 v{vXa+n}, s[40:43], s4 offen lds')
        a.I(f"""
        s_add_u32 s60, s60, 1
        s_cmp_eq_u32 s60, 5
        s_cselect_b32 s60, 0, s60
        s_setpc_b64 {RET}
        """)
    if OPT['subs']:
        a.I(f's_branch {N}_xmain')
        xsubs()
        a.L(f'{N}_xmain')
    if not OPT['b0x']: a.I('s_barrier')
    a.I(f"""
    s_cmp_ge_u32 s96, 4
    s_cbranch_scc1 {N}_noex
    s_cmp_lt_u32 s96, 2
    s_cselect_b32 s52, s20, s22
    s_cselect_b32 s53, s21, s23
    s_mov_b32 s54, 25600
    s_mov_b32 s55, 0x20000
    """)
    for n in range(4):
        issue('E')
        if n + 1 == OPT['b0x']: a.I('s_barrier')
    pub(); issue('E'); a.I(flip)
    for _ in range(4):
        pub(); issue('X')
    issue('X')
    a.I(f's_branch {N}_xdone')
    a.L(f'{N}_noex')
    a.I(f"""
    s_cmp_lg_u32 s96, 4
    s_cbranch_scc1 {N}_nog
    """)
    srd(a, 52, 32, 1280)
    a.I(f"""
    s_add_u32 m0, s11, {GV}
    s_cmp_eq_u32 s10, 0
    s_cselect_b32 exec_lo, -1, 0xffff
    s_cselect_b32 exec_hi, -1, 0
    buffer_load_dwordx4 v{vEa}, s[52:55], s11 offen lds
    s_mov_b64 exec, -1
    """)
    a.L(f'{N}_nog')
    for n in range(10):
        if n == 5: a.I(flip)
        issue('X')
        if n + 1 == OPT['b0x']: a.I('s_barrier')
        if n + 1 == OPT['xpub']: pub(5, nowait=True)
    a.L(f'{N}_xdone')
    pub(10)
    a.I(f's_branch {N}_work')
    a.L(f'{N}_hi')
    a.I(f"""
    s_barrier
    s_waitcnt lgkmcnt(0)
    """)
    def wqpf():
        srd(a, 52, 18, 819200)
        a.I(f"""
        s_lshl_b32 s3, s6, 1
        s_add_u32 s3, s3, s10
        s_mul_i32 s15, s3, 12800
        s_lshr_b32 s3, s8, 2
        s_mul_i32 s3, s3, 640
        s_add_u32 s15, s15, s3
        s_call_b64 {RET}, {N}_wpf
        """)
    if OPT['wqpf'] == 1:
        a.I(f's_cmp_lt_u32 s9, 6\ns_cbranch_scc1 {N}_nopf')
        wqpf()
        a.L(f'{N}_nopf')
    a.I(f"""
    {'' if OPT['w0early'] else f's_call_b64 {RET}, {N}_hsetup'}
    s_cmp_ge_u32 s9, 6
    s_cbranch_scc1 {N}_wload
    {f's_call_b64 {RET}, {N}_hsetup' if OPT['w0early'] else ''}
    """)
    if OPT['n5']:
        a.I(f's_cmp_lg_u32 s9, 5\ns_cbranch_scc1 {N}_n6')
        srd(a, 56, 36, 256)
        a.I(f'v_mov_b32 v{T1}, 0')
        npoll('n4', 'n5')
        a.L(f'{N}_n5')
        a.I(f'v_mov_b32 v{T0}, {SYNC}\nds_write_b64 v{T0}, {vr(T2,2)} offset:{C_N}')
        vstamp(22)
        a.L(f'{N}_n6')
    a.I(f"""
    s_cmp_eq_u32 s96, 4
    s_cbranch_scc1 {N}_extra
    s_cmp_gt_u32 s96, 4
    s_cbranch_scc1 {N}_hpre2
    s_cmp_eq_u32 s9, 5
    s_cbranch_scc1 {N}_hpre2
    s_branch {N}_extra
    """)
    a.L(f'{N}_wload')
    if OPT['wqpf'] == 2: wqpf()
    a.I(f's_mul_i32 s3, s8, 160')
    for n in range(5):
        a.I(f"""
        v_add_u32 v{T0}, {n*64}, v{vL}
        v_mul_u32_u24 v{T1}, 6554, v{T0}
        v_lshrrev_b32 v{T1}, 16, v{T1}
        v_mul_u32_u24 v{T2}, 160, v{T1}
        v_lshlrev_b32 v{T0}, 4, v{T0}
        v_sub_u32 v{T0}, v{T0}, v{T2}
        v_bfe_u32 v{T2}, v{T1}, 1, 2
        v_and_b32 v{T3}, 1, v{T1}
        v_lshl_add_u32 v{T2}, v{T3}, 2, v{T2}
        v_and_b32 v{T1}, 24, v{T1}
        v_add_u32 v{T1}, v{T1}, v{T2}
        v_mul_u32_u24 v{T1}, 1280, v{T1}
        v_add3_u32 v{vWa+n}, v{T1}, v{T0}, s3
        """)
    srd(a, 44, 18, 819200)
    a.I(f"""
    s_lshl_b32 s3, s10, 2
    s_add_u32 s3, s3, {SYNC + C_W}
    v_mov_b32 v{vSY}, s3
    s_mul_i32 s11, s10, {64*1280}
    s_mul_i32 s13, s10, 10240
    """)
    if OPT['w0early']:
        a.I(f's_cmp_lt_u32 s96, 4')
        a.I(f's_cbranch_scc1 {N}_w0a')
        issue('W', 0); q.clear()
        a.L(f'{N}_w0a')
        a.I(f's_call_b64 {RET}, {N}_hsetup')
    if not OPT['h2l']: a.I(f's_call_b64 {RET}, {N}_hsetup2')
    if OPT['wqpf'] == 3: wqpf()
    if OPT['wqpf'] == 4:
        a.I(f's_cmp_ge_u32 s96, 4\ns_cbranch_scc1 {N}_nopf')
        wqpf()
        a.L(f'{N}_nopf')
    vstamp(16)
    npub[0] = 0
    ldswait(C_X, OPT['wstart'], T0, T1, sleep=1)
    if OPT['w0early']:
        a.I(f's_cmp_ge_u32 s96, 4')
        a.I(f's_cbranch_scc1 {N}_w0b')
    issue('W', 0)
    a.L(f'{N}_w0b')
    issue('W', 1)
    if OPT['h2l']: a.I(f's_call_b64 {RET}, {N}_hsetup2')
    if OPT['w2e']:
        a.I(f's_cmp_lt_u32 s96, 4')
        a.I(f's_cbranch_scc1 {N}_jw')
        q0, n0 = list(q), npub[0]
        issue('W', 2); pub()
        a.I(f's_branch {N}_nof2')
        a.L(f'{N}_jw')
        q[:] = q0; npub[0] = n0
    pub()
    a.I(f's_cmp_ge_u32 s96, 4')
    a.I(f's_cbranch_scc1 {N}_nof')
    ldswait(C_F, 1, T0, T1, sleep=1)
    a.L(f'{N}_nof')
    issue('W', 2)
    a.L(f'{N}_nof2')
    pub()
    a.I(f"""
    s_cmp_eq_u32 s10, 0
    s_cselect_b32 s3, {SYNC + C_QH}, {SYNC + C_Q}
    v_mov_b32 v{T1}, s3
    """.replace(f's_cselect_b32 s3, {SYNC + C_QH}, {SYNC + C_Q}', f's_cselect_b32 s3, {C_QH - C_Q}, 0\ns_add_u32 s3, s3, {SYNC + C_Q}'))
    for st in (3, 4):
        a.I('s_mov_b32 s4, 0')
        a.L(f'{N}_wq{st}')
        a.I(f"""
        ds_read_b32 v{T0}, v{T1} offset:{4*(st-3)}
        s_add_u32 s4, s4, 1
        s_waitcnt lgkmcnt(0)
        v_readfirstlane_b32 s3, v{T0}
        s_cmp_ge_u32 s3, 4
        s_cbranch_scc1 {N}_wq{st}_ok
        s_cmp_lt_u32 s4, {SPIN*8}
        s_cbranch_scc1 {N}_wq{st}
        """)
        a.L(f'{N}_wq{st}_ok')
        issue('W', st - 3); pub()
    pub()
    a.stamp(1)
    a.I(f's_branch {N}_hpre')
    if not OPT['subs']: xsubs()
    a.L(f'{N}_wissue')
    a.I(f"""
    s_mul_i32 s14, s61, {128*1280}
    s_add_u32 s14, s14, s11
    s_add_u32 s15, s15, s13
    """)
    for g in range(2):
        for n in range(5):
            a.I(f's_add_u32 m0, s15, {g*5120 + n*1024}')
            a.I('s_nop 0' if (g, n) != (1, 0) else f's_add_u32 s14, s14, {32*1280}')
            a.I(f'buffer_load_dwordx4 v{vWa+n}, s[44:47], s14 offen lds')
    a.I(f"""
    s_add_u32 s61, s61, 1
    s_cmp_eq_u32 s61, 5
    s_cselect_b32 s61, 0, s61
    s_setpc_b64 {RET}
    """)

    a.L(f'{N}_lo')
    vXB = 12
    def xbases(vXB=12):
        a.I(f"""
        v_lshrrev_b32 v{T0}, 1, v{vP}
        v_and_b32 v{T0}, 7, v{T0}
        v_xor_b32 v{T0}, v{T0}, v{vH}
        v_lshlrev_b32 v{T1}, 7, v{vP}
        """)
        for ks in range(4):
            a.I(f'v_xor_b32 v{T2}, {2*ks}, v{T0}')
            a.I(f'v_lshl_add_u32 v{vXB+ks}, v{T2}, 4, v{T1}')
    a.I(f"""
    s_cmp_lg_u32 s9, {3 if OPT['l01'] else 0}
    s_cbranch_scc1 {N}_notpoll
    v_lshlrev_b32 v{T0}, 2, v{vL}
    v_add_u32 v{T0}, {SYNC}, v{T0}
    v_mov_b32 v{T1}, 0
    ds_write_b32 v{T0}, v{T1}
    s_waitcnt lgkmcnt(0)
    """)
    srd(a, 56, 36, 256)
    a.I(f"""
    s_cmp_lg_u32 s2, 0
    s_cbranch_scc1 {N}_n1
    s_memrealtime s[62:63]
    s_waitcnt lgkmcnt(0)
    s_or_b32 s62, s62, 1
    v_mov_b32 v{T2}, s62
    v_mov_b32 v{T3}, s63
    s_mov_b64 exec, 1
    buffer_store_dwordx2 {vr(T2,2)}, v{T1}, s[56:59], 0 offen sc1
    s_mov_b64 exec, -1
    s_barrier
    s_branch {N}_n2
    """)
    a.L(f'{N}_n1')
    a.I('s_barrier')
    if OPT['n5']: a.I(f's_branch {N}_work')
    else: npoll('n3', 'n2')
    a.L(f'{N}_n2')
    a.I(f"""
    v_mov_b32 v{T0}, {SYNC}
    ds_write_b64 v{T0}, {vr(T2,2)} offset:{C_N}
    """)
    vstamp(22)
    a.I(f's_branch {N}_work')
    a.L(f'{N}_notpoll')
    if OPT['cpf'] and not OPT['cpe']: cpf()
    if OPT['tlb']:
        a.I(f"""
        s_mul_i32 s3, s7, {2*QKB_PT}
        s_add_u32 s4, s3, {WS_OAB}
        s_mul_i32 s5, s7, 81920
        s_mul_i32 s10, s8, {VBT_NT*5//2}
        s_add_u32 s10, s10, {WS_VBT}
        s_mov_b32 s11, {WS_KVF}
        s_mov_b32 s12, 0x12c000
        s_mov_b32 s13, 0x250000
        s_waitcnt lgkmcnt(0)
        s_load_dword s97, s[18:19], 0
        s_load_dword s97, s[38:39], s11
        s_load_dword s97, s[18:19], 0xc0000
        s_load_dword s97, s[28:29], 0
        s_load_dword s97, s[28:29], s12
        s_load_dword s97, s[28:29], s13
        s_load_dword s97, s[38:39], s3
        s_load_dword s97, s[38:39], s10
        s_load_dword s97, s[38:39], s4
        s_load_dword s97, s[24:25], 0
        s_load_dword s97, s[24:25], 0xc0000
        s_load_dword s97, s[30:31], 0
        s_load_dword s97, s[30:31], 0xc0000
        s_load_dword s97, s[34:35], s5
        """)
    a.I(f"""
    s_barrier
    """)
    a.L(f'{N}_work')
    vXQ = 90
    xbases(vXQ)
    vW0, vW1 = 106, 107
    vCX = 16
    vWB_, vCW = 20, 21
    FACC = 24
    FX = 56
    FWf = 88
    CNT = 104
    def worksetup():
        a.I(f"""
        v_bfe_u32 v{T0}, v{vL}, 2, 2
        v_lshl_add_u32 v{vW0}, v{vH}, 3, v{T0}
        v_and_b32 v{T1}, 3, v{vL}
        v_bfe_u32 v{T2}, v{vL}, 4, 1
        v_lshl_add_u32 v{T1}, v{T2}, 2, v{T1}
        v_min_u32 v{T1}, 4, v{T1}
        v_lshlrev_b32 v{vW1}, 3, v{T1}
        v_mov_b32 v{vSY}, {SYNC}
        v_mov_b32 v{vOne}, 1
        """)
        zero(FACC, FACC+16)
        a.I('s_waitcnt lgkmcnt(0)')
        srd(a, 48, 38, WS_END)
        a.I(f"""
        s_mov_b32 s5, 0
        s_mov_b32 s10, 0
        """)
    worksetup()
    def cntwait(top, need, first='s_waitcnt lgkmcnt(0)', off=C_X, CNT=CNT):
        if first: a.I(first)
        a.L(top)
        a.I(f"""
        v_readfirstlane_b32 s3, v{CNT}
        v_readfirstlane_b32 s4, v{CNT+1}
        s_min_u32 s3, s3, s4
        s_cmp_ge_u32 s3, {need}
        s_cbranch_scc1 {top}_go
        {f's_sleep {OPT["fs"]}' if OPT['fs'] and CNT != 104 else ''}
        ds_read_b64 {vr(CNT,2)}, v{vSY} offset:{off}
        s_add_u32 s5, s5, 1
        s_cmp_lt_u32 s5, {SPIN*8}
        s_waitcnt lgkmcnt(0)
        s_cbranch_scc1 {top}
        """)
        a.L(top + '_go')
    vK1a, vK2a, vVa, vG = 12, 13, 14, 15
    Q1, Q2 = 16, 32
    P = 40
    S = [48, 64]
    O = 80
    NB = OPT['NB']
    KVB = 144
    def K1(b): return KVB + 14 * b
    def V1(b): return KVB + 14 * b + 4
    def V2(b): return KVB + 14 * b + 8
    def K2(b): return KVB + 14 * b + 12
    KZ = K1(NB-1); KZ2 = K2(NB-1)
    SC = '' if OPT['nosc1'] else ' sc1'
    srd(a, 44, 38, WS_END)
    QC = 88
    QW = 56
    XR = list(range(240, 256, 4)) + list(range(144, 172, 4)) + list(range(96, 144, 4)) + list(range(172, 240, 4))
    assert len(XR) == 40
    a.I(f"""
    ds_read_b64 {vr(QC,2)}, v{vSY}
    v_bfe_u32 v{T0}, v{vL}, 2, 2
    v_add_u32 v{T0}, v{T0}, v{vW0}
    v_mul_u32_u24 v{T0}, 160, v{T0}
    s_setprio 2
    s_and_b32 s10, s9, 1
    s_lshr_b32 s11, s9, 1
    s_mul_i32 s3, s11, 80
    v_add3_u32 v{vWB_}, v{T0}, v{vW1}, s3
    v_lshlrev_b32 v{vK1a}, 4, v{vL}
    v_lshlrev_b32 v{vK2a}, 3, v{vL}
    v_min_u32 v{vK2a}, 256, v{vK2a}
    v_mul_u32_u24 v{vVa}, 336, v{vH}
    v_lshl_add_u32 v{vVa}, v{vP}, 4, v{vVa}
    v_mov_b32 v{T3}, 0x7fffff00
    v_cmp_gt_u32 vcc, 21, v{vP}
    s_mul_i32 s12, s11, {32*KVT}
    s_add_u32 s12, s12, {WS_KVF}
    v_cndmask_b32 v{vVa}, v{T3}, v{vVa}, vcc
    s_add_u32 s13, s12, {32*KVT}
    s_mul_i32 s14, s6, {KVT}
    s_add_u32 s14, s14, s12
    s_mov_b32 s15, {WS_KVF}
    s_lshl_b32 s3, s9, 12
    s_add_u32 s3, s3, {QX}
    v_add_u32 v{T0}, s3, v{vK1a}
    v_xor_b32 v{T1}, 8192, v{T0}
    s_lshl_b32 s3, s9, 2
    s_add_u32 s3, s3, {SYNC + C_A}
    v_mov_b32 v{T2}, s3
    s_xor_b32 s3, s96, s10
    s_and_b32 s3, s3, 5
    s_cselect_b32 s18, 10, 5
    s_lshl_b32 s19, s10, 12
    v_add_u32 v{vCW}, {SLOT[0]}, v{vWB_}
    s_waitcnt vmcnt(0)
    """)
    assert QX % 16384 == 0 and (SYNC + C_A) % 16 == 0
    a.I(f'''
    s_lshl_b32 s3, s7, 1
    s_add_u32 s20, s3, s10
    s_xor_b32 s3, s9, 2
    s_mul_i32 s3, s3, 6144
    s_add_u32 s29, s3, {EXA}
    s_mul_i32 s3, s9, 6144
    s_add_u32 s30, s3, {EXA}
    s_lshl_b32 s3, s10, 7
    s_add_u32 s3, s3, {GL}
    v_lshlrev_b32 v{vG}, 2, v{vP}
    v_add_u32 v{vG}, s3, v{vG}
    s_lshl_b32 s3, s9, 2
    s_add_u32 s31, s3, {SYNC + C_B}
    s_mul_i32 s36, s20, {OAB_PT}
    s_mul_i32 s3, s8, 5120
    s_add_u32 s36, s36, s3
    s_add_u32 s36, s36, {WS_OAB}
    s_xor_b32 s4, s11, 1
    s_lshl_b32 s3, s4, 11
    s_add_u32 s37, s36, s3
    s_lshl_b32 s3, s4, 9
    s_add_u32 s40, s36, s3
    s_add_u32 s40, s40, 4096
    s_mov_b32 s42, {f32hex(2.0**100)}
    ''')
    zero(FACC+16, FACC+32)
    def qreads(ks, tag):
        b = ks % 4
        for j in range(2):
            for h in range(2):
                a.LG(f'ds_read_b64_tr_b16 {vr(QW+b*8+j*4+2*h,2)}, v{vCW} offset:{(ks*16+h)*160 + 40*j}', tag)
    def loadK(r1, r2, so):
        a.I(f'buffer_load_dwordx4 {vr(r1,4)}, v{vK1a}, {W}, {so} offen{SC}')
        a.I(f'buffer_load_dwordx2 {vr(r2,2)}, v{vK2a}, {W}, {so} offen offset:{KV_K2}{SC}')
    def loadV(b, so):
        a.I(f'buffer_load_dwordx4 {vr(V1(b),4)}, v{vVa}, {W}, {so} offen offset:{KV_V1}{SC}')
        a.I(f'buffer_load_dwordx4 {vr(V2(b),4)}, v{vVa}, {W}, {so} offen offset:{KV_V2}{SC}')
    adv = [f's_add_u32 s14, s14, {KVT}', 's_cmp_eq_u32 s14, s13', 's_cselect_b32 s14, s12, s14']
    def ldtile(b):
        if b == 0: loadK(KZ, KZ2, 's15')
        loadK(K1(b), K2(b), 's14'); loadV(b, 's14')
        for i in adv: a.I(i)
    cntwait(f'{N}_qwx', 's18', CNT=QC)
    vstamp(24)
    for st in range(5):
        a.I(f"""
        s_lshl_b32 s3, s61, 14
        s_add_u32 s3, s3, s19
        s_add_u32 s61, s61, 1
        s_cmp_eq_u32 s61, 5
        s_cselect_b32 s61, 0, s61
        """)
        for k in range(4):
            a.I(f'v_add_u32 v{vCX+k}, s3, v{vXQ+k}')
        for ks in range(8):
            a.I(f'ds_read_b128 {vr(XR[st*8+ks],4)}, v{vCX+(ks&3)} offset:{(ks>>2)*8192}')
    def wwait(top, need, h, first=None):
        if first: a.I(first)
        a.L(top)
        a.I(f"""
        v_readfirstlane_b32 s3, v{QC+h}
        s_cmp_ge_u32 s3, {need}
        s_cbranch_scc1 {top}_go
        {'s_sleep 1' if OPT['fs'] and first else ''}
        ds_read_b32 v{QC+h}, v{vSY} offset:{C_W + 4*h}
        s_add_u32 s5, s5, 1
        s_cmp_lt_u32 s5, {SPIN*8}
        s_waitcnt lgkmcnt(0)
        s_cbranch_scc1 {top}
        """)
        a.L(top + '_go')
    a.I(f'ds_read_b64 {vr(QC,2)}, v{vSY} offset:{C_W}')
    wwait(f'{N}_qw0', 1, 0, 's_waitcnt lgkmcnt(0)')
    vstamp(16)
    a.lg = []
    a.LG(f'ds_read_b32 v{QC+1}, v{vSY} offset:{C_W+4}', 'c')
    for ks in range(3): qreads(ks, ks)
    zl = [V1(NB-1) + 2*k for k in range(4)] + list(range(96, 144, 2))
    for g in range(40):
        st, u = divmod(g, 8)
        if u == 5 and st < 4:
            a.wait(lg=lambda t: t == 'c')
            wwait(f'{N}_qw{st+1}', st + 2, 0)
            a.I(f'v_add_u32 v{vCW}, {SLOT[(st+1)%3]}, v{vWB_}')
        if u == 1:
            a.wait(lg=lambda t: t == 'c')
            wwait(f'{N}_qv{st}', st + 1, 1)
        if u in (3, 7) and st < 4:
            a.LG(f'ds_read_b32 v{QC + u//4}, v{vSY} offset:{C_W + 4*(u//4)}', 'c')
        if g + 3 < 40: qreads((u + 3) % 8, g + 3)
        if u == 4 or (u == 0 and st < 2):
            a.I('s_mov_b64 exec, 1')
            a.LG(f'ds_add_u32 v{vSY}, v{vOne} offset:{(C_Q if u else C_QH) + 4*st}', g + 3.5)
            a.I('s_mov_b64 exec, -1')
        if g == OPT['kg'] - 1:
            a.LG(f'ds_read_b32 v{T3}, v{vSY} offset:{C_S1}', g + 1)
        if g == 38:
            a.LG(f'ds_read_b32 v{T4}, v{vSY} offset:{C_Q + 12}', 50)
        a.wait(lg=lambda t: t != 'c' and t <= g)
        b = g % 4
        for j in range(2):
            d = vr(FACC + j * 16, 16)
            a.I(f'{MF32} {d}, {vr(QW + b*8 + j*4, 4)}, {vr(XR[g], 4)}, {d}')
            if g >= 25 and zl:
                a.I(f'v_mov_b64 {vr(zl.pop(0),2)}, 0')
        if g == OPT['kg']:
            a.I(f'v_cmp_ne_u32 vcc, 0, v{T3}')
            a.I(f's_cbranch_vccz {N}_kv1')
            ldtile(0)
            a.L(f'{N}_kv1')
        if STAMPS and u == 6: a.I('s_memtime s[100:101]')
        if STAMPS and u == 1 and st: a.I(f'v_writelane_b32 v0, s100, {24+st}')
    assert not zl
    a.stamp(2)
    R0 = K1(6)
    zero(88, 96); zero(80, 88)
    a.I(f"""
    v_mov_b32 v{R0}, v{T1}
    v_xor_b32 v{R0+1}, 8, v{T2}
    s_waitcnt lgkmcnt(0)
    v_readfirstlane_b32 s18, v{T4}
    v_mov_b32 v{T4}, {f32hex(CSCALE)}
    s_nop 4
    """)
    for j in range(2):
        r = FACC + 16 * j
        for k in range(6):
            a.I(f'v_pk_mul_f32 {vr(r+2*k,2)}, {vr(r+2*k,2)}, {vr(T4,2)} op_sel_hi:[1,0]')
        for k in range(4):
            cv(Q1 + 4*j + k, r + 2 * k)
        cv(Q2 + 2*j, r + 8); cv(Q2 + 2*j + 1, r + 10)
    a.I(f"""
    s_mov_b32 exec_lo, 0
    v_mov_b64 {vr(Q2,2)}, 0
    v_mov_b64 {vr(Q2+2,2)}, 0
    s_mov_b32 exec_lo, -1
    s_cmp_ge_u32 s18, 4
    s_cbranch_scc1 {N}_q3ok
    """)
    ldswait(C_Q + 12, 4, T4, T5, sleep=0)
    a.L(f'{N}_q3ok')
    for j in range(2):
        a.I(f'ds_write_b128 v{T0}, {vr(Q1+4*j,4)} offset:{j*1024}')
    a.stamp(1)
    if STAMPS: a.I('v_writelane_b32 v0, vcc_lo, 23')
    a.I(f's_cbranch_vccnz {N}_kvok')
    ldswait(C_S1, 1, T4, T5, sleep=0)
    ldtile(0)
    a.L(f'{N}_kvok')
    NPRE = OPT['npre']
    vstamp(18)
    zero(P, P+8)
    a.I(f's_waitcnt vmcnt(4)')
    vstamp(19)
    def zmax(t, s):
        a.I(f'v_max3_f32 v{T5}, v{s}, v{s+1}, v{s+2}')
        for k in range(3, 15, 2):
            a.I(f'v_max3_f32 v{T5}, v{T5}, v{s+k}, v{s+k+1}')
        a.I(f'v_max_f32 v{T5}, v{T5}, v{s+15}')
        a.I('s_mov_b32 exec_lo, 0')
        a.I(f'v_cvt_pk_bf16_f32 v{Q2+2*t}, -v{T5}, 0')
        a.I('s_mov_b32 exec_lo, -1')
    def zqk(t, s):
        a.I(f'{MF32} {vr(s,16)}, {vr(KZ,4)}, {vr(Q1+4*t,4)}, 0')
        a.I(f'{MF32h} {vr(s,16)}, {vr(KZ2,2)}, {vr(Q2+2*t,2)}, {vr(s,16)}')
    zqk(0, S[0]); zqk(1, S[1])
    for b in range(1, NPRE): ldtile(b)
    a.I('s_nop 2')
    zmax(0, S[0])
    a.I(f's_waitcnt vmcnt({4*(NPRE-1)})')
    a.I(f'{MF32} {vr(S[0],16)}, {vr(K1(0),4)}, {vr(Q1,4)}, 0')
    a.I(f'{MF32h} {vr(S[0],16)}, {vr(K2(0),2)}, {vr(Q2,2)}, {vr(S[0],16)}')
    zmax(1, S[1])
    a.I(f"""
    ds_write_b128 v{T0}, {vr(Q2,4)} offset:2048
    ds_write_b32 v{T2}, v{T2}
    """)
    rcv = f"""ds_read_b32 v{R0+2}, v{R0+1}
    ds_read_b128 {vr(Q1+8,4)}, v{R0}
    ds_read_b128 {vr(Q1+12,4)}, v{R0} offset:1024
    ds_read_b128 {vr(Q2+4,4)}, v{R0} offset:2048"""
    def recv():
        a.I('s_mov_b32 s4, 0')
        a.L(f'{N}_qx1')
        a.I(f"""
        s_waitcnt lgkmcnt(0)
        v_readfirstlane_b32 s3, v{R0+2}
        s_add_u32 s4, s4, 1
        s_cmp_lg_u32 s3, 0
        s_cbranch_scc1 {N}_qx2
        {rcv}
        s_cmp_lt_u32 s4, {SPIN*8}
        s_cbranch_scc1 {N}_qx1
        """)
        a.L(f'{N}_qx2')
        arrive(C_H, R0, R0+1)
    assert OPT['peel'] and OPT['att2'] and NPRE <= 4
    PEEL = NB - 1 - NPRE if OPT['peel'] else 0
    for b in range(NPRE, NB - 1 - PEEL):
        loadK(K1(b), K2(b), 's14'); loadV(b, 's14')
        for i in adv: a.I(i)
    a.I('s_nop 3')
    a.I(f's_setprio {OPT["aprio"]}')
    a.I('s_mov_b32 s19, 0')
    a.stamp(4)
    if STAMPS:
        a.I('s_mov_b32 m0, 0')
    vq = [b for b in range(1, NPRE) for _ in range(4)]
    Ra, Rb, Rc, Rd, Re, Rf = range(K1(0), K1(0) + 6)
    for b in list(range(-PEEL, 0)) + list(range(NB + 1)):
        peeled = b < 0
        lastt = b == NB
        if lastt:
            a.I(f's_branch {N}_aloop')
            b = NB - 1
        if b == 0:
            if PEEL: a.I(f's_branch {N}_ab{PEEL}')
            a.raw('.p2align 6')
            a.L(f'{N}_aloop')
        if peeled: b += PEEL
        else: a.L(f'{N}_alast' if lastt else f'{N}_ab{b}')
        nb = (b + 1) % NB
        pb = (b - 1) % NB
        W2 = 's[44:47]'
        fill = {(0, 0): f'buffer_load_dwordx4 {vr(K1(pb),4)}, v{vK1a}, {W2}, s14 offen{SC}',
                (0, 2): f'buffer_load_dwordx2 {vr(K2(pb),2)}, v{vK2a}, {W2}, s14 offen offset:{KV_K2}{SC}',
                (1, 0): f'buffer_load_dwordx4 {vr(V1(pb),4)}, v{vVa}, {W2}, s14 offen offset:{KV_V1}{SC}',
                (1, 1): f'buffer_load_dwordx4 {vr(V2(pb),4)}, v{vVa}, {W2}, s14 offen offset:{KV_V2}{SC}',
                (1, 2): adv[0], (2, 0): adv[1], (2, 1): adv[2],
                (2, 2): f's_waitcnt vmcnt({4*(NB-2)})'}
        if OPT['kvtest'] == 1:
            del fill[(0,2)], fill[(1,0)], fill[(1,1)]
            fill[(2,2)] = f's_waitcnt vmcnt({NB-2})'
        if OPT['kvtest'] == 2:
            del fill[(0,0)], fill[(0,2)], fill[(1,0)], fill[(1,1)]
        if b == NB - 1:
            fill[(3, 0)] = 's_add_u32 s19, s19, 1'
        if b == NB - 2:
            fill[(3, 1)] = 's_cmp_eq_u32 s46, 0'
        if b == 0:
            fill[(3, 0)] = f's_cmp_eq_u32 s19, {32//NB - 1}'
            fill[(3, 1)] = 's_cselect_b32 s46, 0, s46'
        sk = (0, 1)
        if peeled:
            fill = {}
            sk = (3, 2)
            slots = [(t, i) for t in range(4) for i in range(3) if (t, i) != (2, 2)]
            for x in ((NPRE + 2*b) % NB, (NPRE + 2*b + 1) % NB):
                assert x != b and (x != pb or len(slots) <= 6)
                its = [f'buffer_load_dwordx4 {vr(K1(x),4)}, v{vK1a}, {W2}, s14 offen{SC}',
                       f'buffer_load_dwordx2 {vr(K2(x),2)}, v{vK2a}, {W2}, s14 offen offset:{KV_K2}{SC}',
                       f'buffer_load_dwordx4 {vr(V1(x),4)}, v{vVa}, {W2}, s14 offen offset:{KV_V1}{SC}',
                       f'buffer_load_dwordx4 {vr(V2(x),4)}, v{vVa}, {W2}, s14 offen offset:{KV_V2}{SC}\n' + adv[0],
                       adv[1] + '\n' + adv[2]]
                for n, it in enumerate(its):
                    sl = slots.pop(0)
                    if sl == (3, 0):
                        last = max(i for i, y in enumerate(vq) if y == nb)
                        fill[(2, 2)] = f's_waitcnt vmcnt({len(vq) - 1 - last})'
                        vq = vq[last + 1:]
                    fill[sl] = it
                    if n < 4: vq.append(x)
        if lastt:
            snd = lambda t: '\n'.join(f'ds_write_b128 v{Ra}, {vr(O+16*t+4*i,4)} offset:{t*3072+i*1024}' for i in range(3))
            fill = {(1, 0): 's_waitcnt vmcnt(0)',
                    (1, 1): f'v_add_u32 v{Ra}, s29, v{vK1a}\nv_add_u32 v{Rb}, s30, v{vK1a}\nv_mov_b32 v{Re}, {SYNC}',
                    (1, 2): f'v_mov_b32 v{Rc}, s31\nv_xor_b32 v{Rd}, 8, v{Rc}',
                    (2, 1): f'ds_read_b32 v{Rf}, v{Re} offset:{C_M}',
                    (3, 0): snd(0), (3, 1): f'ds_read_b32 v{vG}, v{vG}', (3, 2): snd(1) + f'\nds_write_b32 v{Rd}, v{Rd}'}
        if STAMPS and b % 4 == 0:
            fill[sk] = 's_memtime s[96:97]'
        if STAMPS and b % 4 == 1:
            fill[sk] = 's_waitcnt lgkmcnt(0)\nv_writelane_b32 v0, s96, m0\ns_add_u32 m0, m0, 1'
        for t in range(4):
            Sc, Sn = S[t & 1], S[1 - (t & 1)]
            tn, tp = (t + 1) & 3, (t - 1) & 3
            kb = b if t < 3 else nb
            vpb = b if t > 0 else pb
            def F(i):
                if (t, i) in fill: a.I(fill[(t, i)])
            if OPT['att2']:
                Pc, Pp = (4, P) if t % 2 == 0 else (P, 4)
                M = [f'{MF32} {vr(Sn,16)}, {vr(K1(kb),4)}, {vr(Q1+4*tn,4)}, 0',
                     f'{MF32} {vr(O+16*tp,16)}, {vr(V1(vpb),4)}, {vr(Pp,4)}, {vr(O+16*tp,16)}',
                     f'{MF32h} {vr(Sn,16)}, {vr(K2(kb),2)}, {vr(Q2+2*tn,2)}, {vr(Sn,16)}',
                     f'{MF32} {vr(O+16*tp,16)}, {vr(V2(vpb),4)}, {vr(Pp+4,4)}, {vr(O+16*tp,16)}']
                pat = {0: 'MeeeMeeeMeeeMe0ce1ce2cececeeccc',
                       1: 'M0eeeM1eeeMeeeM2eeeeeeecccccccc',
                       2: 'M0eeeeM1eeeeMeeeeM2eeeecccccccc',
                       3: 'M0eeeeM1eeeeMcccceeeeM2eeeecccc',
                       4: 'M0eeeM1eeeM2eeeMecececececeeccc',
                       5: 'M0eeeM1eeeMeeeM2cccceeeeeeecccc',
                       6: 'M0eeeM1eeeMccceeM2eeeeeeeeccccc'}[OPT['gp']]
                ne = nc = nm = 0
                if lastt and t == 3:
                    M[0] = M[2] = ''
                    a.I(f'''
                    s_waitcnt lgkmcnt(0)
                    v_readfirstlane_b32 s3, v{Rf}
                    s_cmp_ge_u32 s3, 4
                    s_cbranch_scc1 {N}_ceok
                    ''')
                    ldswait(C_M, 4, Rf, Re)
                    a.L(f'{N}_ceok')
                for ch in pat:
                    if ch == 'M':
                        a.I(M[nm]); nm += 1
                        if peeled and b == 0 and t == 0 and nm == 4: a.I(rcv)
                    elif ch == 'e': ex(Sc + ne); ne += 1
                    elif ch == 'c':
                        assert 2 * nc + 1 < ne
                        cv(Pc + nc, Sc + 2 * nc); nc += 1
                    else: F(int(ch))
                assert (ne, nc, nm) == (16, 8, 4), (ne, nc, nm)
                if peeled and b == 0 and t == 0: recv()
                if not peeled and b == NB - 2 and t == 3: a.I(f's_cbranch_scc1 {N}_alast')
                continue
            a.I(f'{MF32} {vr(Sn,16)}, {vr(K1(kb),4)}, {vr(Q1+4*tn,4)}, 0'); F(0)
            for k in range(4): ex(Sc + k)
            a.I(f'{MF32} {vr(O+16*tp,16)}, {vr(V2(vpb),4)}, {vr(P+4,4)}, {vr(O+16*tp,16)}'); F(1)
            for k in range(4, 8): ex(Sc + k)
            a.I(f'{MF32h} {vr(Sn,16)}, {vr(K2(kb),2)}, {vr(Q2+2*tn,2)}, {vr(Sn,16)}')
            for k in range(4): cv(P + k, Sc + 2 * k)
            for k in range(8, 12): ex(Sc + k)
            a.I(f'{MF32} {vr(O+16*t,16)}, {vr(V1(b),4)}, {vr(P,4)}, {vr(O+16*t,16)}'); F(2)
            for k in range(12, 16): ex(Sc + k)
            for k in range(4, 8): cv(P + k, Sc + 2 * k)
    a.I(f'''
    v_and_b32 v{vC}, 15, v{vL}
    v_lshrrev_b32 v{vG4}, 4, v{vL}
    {f'{MF32} {vr(O+48,16)}, {vr(V1(NB-1),4)}, {vr(P,4)}, {vr(O+48,16)}' if OPT['att2'] else ''}
    {MF32} {vr(O+48,16)}, {vr(V2(NB-1),4)}, {vr(P+4,4)}, {vr(O+48,16)}
    s_setprio 3
    ''')
    a.stamp(5)
    HDONE = 16
    a.stamp(6)
    a.I('s_mov_b32 s4, 0')
    a.L(f'{N}_bb1')
    a.I(f'ds_read_b32 v{T0}, v{Rc}')
    for k in range(6):
        a.I(f'ds_read_b128 {vr(O+4*k,4)}, v{Rb} offset:{k*1024}')
    a.I(f'''
    s_add_u32 s4, s4, 1
    s_waitcnt lgkmcnt(6)
    v_readfirstlane_b32 s3, v{T0}
    s_cmp_lg_u32 s3, 0
    s_cbranch_scc1 {N}_bb2
    s_sleep 1
    s_cmp_lt_u32 s4, {SPIN*8}
    s_cbranch_scc1 {N}_bb1
    ''')
    a.L(f'{N}_bb2')
    PKO = OK_ = O + 32
    assert OPT['ffin']
    a.I(f'v_mov_b64 {vr(T2,2)}, 0')
    for t in range(2):
        a.I(f's_waitcnt lgkmcnt({3-3*t})')
        for r in (8, 0, 2, 4, 6, 10):
            a.I(f'v_pk_add_f32 {vr(OK_+16*t+r,2)}, {vr(OK_+16*t+r,2)}, {vr(O+12*t+r,2)}')
        if OPT['ffin']:
            a.I(f'v_mov_b32 v{T0+4*t}, v{OK_+16*t+8}')
            a.I(f'v_mov_b32 v{T1+4*t}, v{OK_+16*t+8}')
            for r in range(0, 12, 2):
                a.I(f'v_pk_fma_f32 {vr(T2,2)}, {vr(OK_+16*t+r,2)}, 0, {vr(T2,2)}')
                if r == 2: a.I(f'v_permlane32_swap_b32 v{T0+4*t}, v{T1+4*t}')
                if r == 6: a.I(f'v_rcp_f32 v{T0+4*t}, v{T1+4*t}')
    a.I('s_mov_b32 s41, 0')
    if OPT['ffin']:
        a.I(f'''
        v_add_f32 v{T2}, v{T2}, v{T3}
        v_mul_f32 v{T0}, v{T0}, v{vG}
        v_add_f32 v{T1}, v{T2}, v{T1}
        v_add_f32 v{T5}, v{T2}, v{T5}
        v_mul_f32 v{T4}, v{T4}, v{vG}
        v_cmp_nlt_f32 vcc, {f32hex(2.0**-60)}, v{T1}
        v_cmp_ngt_f32 s[4:5], s42, v{T1}
        s_or_b64 s[4:5], s[4:5], vcc
        v_cmp_nlt_f32 vcc, {f32hex(2.0**-60)}, v{T5}
        v_cmp_ngt_f32 s[18:19], s42, v{T5}
        s_or_b64 s[4:5], s[4:5], vcc
        s_or_b64 s[4:5], s[4:5], s[18:19]
        s_cbranch_scc1 {N}_finm
        ''')
        for t in range(2):
            for r in range(0, 12, 2):
                a.I(f'v_pk_mul_f32 {vr(OK_+16*t+r,2)}, {vr(OK_+16*t+r,2)}, {vr(T0+4*t,2)} op_sel_hi:[1,0]')
            for k in range(4):
                cv(PKO + 4*t + k, OK_ + 16*t + 2 * k)
            for k in range(4):
                a.I(f'v_min_u32 v{PKO+4*t+k}, -2, v{PKO+4*t+k}')
            a.I(f'buffer_store_dwordx4 {vr(PKO+4*t,4)}, v{vK1a}, {W}, s37 offen offset:{1024*t} sc1')
            cv(PKO + 8 + 2*t, OK_ + 16*t + 8); cv(PKO + 9 + 2*t, OK_ + 16*t + 10)
        for k in range(8, 12):
            a.I(f'v_min_u32 v{PKO+k}, -2, v{PKO+k}')
        a.I(f's_branch {N}_fin2')
    a.L(f'{N}_finm')
    for r in range(0, 12, 2):
        a.I(f'v_mov_b64 {vr(O+r,2)}, {vr(O+32+r,2)}')
        a.I(f'v_mov_b64 {vr(O+16+r,2)}, {vr(O+48+r,2)}')
    for r in range(0, 8, 2):
        a.I(f'v_mov_b64 {vr(Q1+r,2)}, {vr(Q1+8+r,2)}')
    for r in range(0, 4, 2):
        a.I(f'v_mov_b64 {vr(Q2+r,2)}, {vr(Q2+4+r,2)}')
    a.L(f'{N}_fin0')
    a.I('s_mov_b32 s43, 0')
    a.L(f'{N}_final')
    a.I(f'''
    v_mov_b32 v{T0}, v{O+8}
    v_mov_b32 v{T1}, v{O+8}
    v_mov_b32 v{T2}, 0
    v_mov_b32 v{T3}, 0
    v_permlane32_swap_b32 v{T0}, v{T1}
    ''')
    for r in range(12):
        a.I(f'v_fma_f32 v{T2}, v{O+r}, v{T3}, v{T2}')
    a.I(f'''
    v_add_f32 v{T2}, v{T2}, v{T1}
    v_cmp_nlt_f32 vcc, {f32hex(2.0**-60)}, v{T2}
    v_cmp_ngt_f32 s[4:5], s42, v{T2}
    s_or_b64 s[4:5], s[4:5], vcc
    s_cmp_eq_u64 s[4:5], 0
    s_cbranch_scc1 {N}_norm
    s_cmp_lg_u32 s43, 0
    s_cbranch_scc0 {N}_slow
    ''')
    a.L(f'{N}_norm')
    a.I(f'''
    v_rcp_f32 v{T1}, v{T1}
    s_nop 0
    v_mul_f32 v{T1}, v{T1}, v{vG}
    ''')
    for r in range(12):
        a.I(f'v_mul_f32 v{O+r}, v{T1}, v{O+r}')
    a.I(f's_cmp_lg_u32 s41, 0')
    a.I(f's_cbranch_scc1 {N}_fin1')
    for k in range(4):
        cv(PKO + k, O + 2 * k)
    cv(PKO + 8, O + 8); cv(PKO + 9, O + 10)
    for k in (0, 1, 2, 3, 8, 9): a.I(f'v_min_u32 v{PKO+k}, -2, v{PKO+k}')
    a.I(f'buffer_store_dwordx4 {vr(PKO,4)}, v{vK1a}, {W}, s37 offen sc1')
    for r in range(12):
        a.I(f'v_mov_b32 v{O+r}, v{O+16+r}')
    for r in range(4):
        a.I(f'v_mov_b32 v{Q1+r}, v{Q1+4+r}')
    for r in range(2):
        a.I(f'v_mov_b32 v{Q2+r}, v{Q2+2+r}')
    a.I('s_mov_b32 s41, 1')
    a.I(f's_branch {N}_fin0')
    a.L(f'{N}_fin1')
    for k in range(4):
        cv(PKO + 4 + k, O + 2 * k)
    cv(PKO + 10, O + 8); cv(PKO + 11, O + 10)
    for k in (4, 5, 6, 7, 10, 11): a.I(f'v_min_u32 v{PKO+k}, -2, v{PKO+k}')
    a.I(f'buffer_store_dwordx4 {vr(PKO+4,4)}, v{vK1a}, {W}, s37 offen offset:1024 sc1')
    a.L(f'{N}_fin2')
    a.I(f'''
    s_mov_b32 exec_hi, 0
    buffer_store_dwordx4 {vr(PKO+8,4)}, v{vK1a}, {W}, s40 offen sc1
    s_mov_b32 exec_hi, -1
    ''')
    a.stamp(7)
    vR = 249
    vA = 254
    CACC = 24
    AF = 44
    WF = 84
    if OPT['ct'] == 1: arrive(C_T, T4, T5)
    a.I(f'''
    s_mov_b32 s100, {RB}
    s_call_b64 {RET}, {N}_gsetup
    s_and_b32 s3, s8, {OPT['par']}
    s_mul_i32 s3, s3, 20480
    s_add_u32 s22, s21, s3
    ''')
    zero(CACC, CACC+20)
    ldswait(C_E, 4, T4, T5)
    if OPT['ct'] == 2: arrive(C_T, T4, T5)
    a.stamp(8)
    if OPT['cl']: a.I(f"""
    s_add_u32 s23, s22, 4096
    s_add_u32 s26, s22, 8192
    s_add_u32 s27, s22, 12288
    s_add_u32 s28, s22, 16384
    s_mov_b32 s19, 0
    s_call_b64 {RET}, {N}_cl0
    """)
    a.I(f's_call_b64 {RET}, {N}_wpre')
    if OPT['ct'] == 0: arrive(C_T, T4, T5)
    a.stamp(9)
    a.I(f's_branch {N}_phaseC{OPT["cl"]}')

    a.L(f'{N}_slow')
    a.I(f'''
    s_mov_b32 s43, 1
    s_mov_b32 exec_lo, 0
    v_mov_b32 v{Q2}, 0
    v_mov_b32 v{Q2+1}, 0
    s_mov_b32 exec_lo, -1
    v_mov_b32 v{T4}, 0xff800000
    s_mov_b32 s14, {WS_KVF}
    ''')
    a.L(f'{N}_sl1')
    loadK(K1(0), K2(0), 's14')
    a.I(f'''
    s_waitcnt vmcnt(0)
    {MF32} {vr(S[0],16)}, {vr(K1(0),4)}, {vr(Q1,4)}, 0
    {MF32h} {vr(S[0],16)}, {vr(K2(0),2)}, {vr(Q2,2)}, {vr(S[0],16)}
    s_nop 7
    s_nop 7
    ''')
    for k in range(0, 16, 2):
        a.I(f'v_max3_f32 v{T4}, v{T4}, v{S[0]+k}, v{S[0]+k+1}')
    a.I(f'''
    s_add_u32 s14, s14, {KVT}
    s_cmp_lt_u32 s14, {WS_KVF+64*KVT}
    s_cbranch_scc1 {N}_sl1
    v_mov_b32 v{T5}, v{T4}
    s_nop 1
    v_permlane32_swap_b32 v{T4}, v{T5}
    s_nop 1
    v_max_f32 v{T4}, v{T4}, v{T5}
    v_sub_f32 v{T4}, 0, v{T4}
    v_and_b32 v{T0}, 0xffff0000, v{T4}
    v_sub_f32 v{T4}, v{T4}, v{T0}
    v_and_b32 v{T1}, 0xffff0000, v{T4}
    v_sub_f32 v{T4}, v{T4}, v{T1}
    s_mov_b32 exec_lo, 0
    v_lshrrev_b32 v{T0}, 16, v{T0}
    v_or_b32 v{Q2}, v{T0}, v{T1}
    v_lshrrev_b32 v{Q2+1}, 16, v{T4}
    s_mov_b32 exec_lo, -1
    s_mov_b32 s14, {WS_KVF}
    ''')
    for r in range(16):
        a.I(f'v_mov_b32 v{O+r}, 0')
    a.L(f'{N}_sl2')
    loadK(K1(0), K2(0), 's14'); loadV(0, 's14')
    a.I(f'''
    s_waitcnt vmcnt(0)
    {MF32} {vr(S[0],16)}, {vr(K1(0),4)}, {vr(Q1,4)}, 0
    {MF32h} {vr(S[0],16)}, {vr(K2(0),2)}, {vr(Q2,2)}, {vr(S[0],16)}
    s_nop 7
    s_nop 7
    ''')
    for k in range(16): ex(S[0] + k)
    a.I('s_nop 0')
    for k in range(8): cv(P + k, S[0] + 2 * k)
    a.I(f'''
    s_nop 1
    {MF32} {vr(O,16)}, {vr(V1(0),4)}, {vr(P,4)}, {vr(O,16)}
    {MF32} {vr(O,16)}, {vr(V2(0),4)}, {vr(P+4,4)}, {vr(O,16)}
    s_add_u32 s14, s14, {KVT}
    s_cmp_lt_u32 s14, {WS_KVF+64*KVT}
    s_cbranch_scc1 {N}_sl2
    s_nop 7
    s_nop 7
    s_branch {N}_final
    ''')

    HACC = 172
    vHW = 236
    vHR = 240
    vF2, vF3 = 242, 243
    VWO = 244
    LA, LB, ONES, vOB = 148, 156, 168, 153
    a.L(f'{N}_hsetup')
    xbases()
    a.I(f"""
    s_sub_u32 s5, s9, 4
    s_lshl_b32 s3, s8, 9
    s_lshl_b32 s4, s5, 7
    s_add_u32 s3, s3, s4
    v_lshrrev_b32 v{T0}, 3, v{vL}
    v_and_b32 v{T1}, 7, v{vL}
    v_lshlrev_b32 v{vF3}, 7, v{T1}
    v_lshlrev_b32 v{T2}, 1, v{T0}
    v_and_b32 v{T2}, 4, v{T2}
    v_xor_b32 v{T1}, v{T1}, v{T2}
    v_mul_u32_u24 v{T0}, 3840, v{T0}
    v_lshl_add_u32 v{T0}, v{T1}, 4, v{T0}
    v_add_u32 v{vHW}, s3, v{T0}
    v_add_u32 v{vHW+1}, {8*3840}, v{vHW}
    v_add_u32 v{vHW+2}, {16*3840}, v{vHW}
    v_add_u32 v{vHW+3}, {24*3840}, v{vHW}
    s_lshl_b32 s3, s5, 13
    s_add_u32 s3, s3, {HR}
    v_bfe_u32 v{T0}, v{vL}, 2, 2
    v_lshl_add_u32 v{T1}, v{vH}, 3, v{T0}
    v_lshlrev_b32 v{T1}, 7, v{T1}
    v_and_b32 v{T2}, 3, v{vL}
    v_lshl_add_u32 v{T1}, v{T2}, 3, v{T1}
    v_bfe_u32 v{T2}, v{vL}, 4, 1
    v_lshl_add_u32 v{T1}, v{T2}, 5, v{T1}
    v_add_u32 v{T1}, s3, v{T1}
    v_lshrrev_b32 v{T0}, 1, v{T0}
    v_lshlrev_b32 v{T0}, 6, v{T0}
    v_add_u32 v{vHR}, v{T1}, v{T0}
    v_xor_b32 v{T0}, 64, v{T0}
    v_add_u32 v{vHR+1}, v{T1}, v{T0}
    v_lshlrev_b32 v{vOB}, 4, v{vC}
    v_lshl_add_u32 v{vOB+1}, v{T2}, 9, v{vOB}
    v_lshl_add_u32 v{vOB+1}, v{vH}, 8, v{vOB+1}
    s_cmp_eq_u32 s7, 0
    s_cselect_b32 s3, 0, {FG}
    v_mul_u32_u24 v{T1}, s3, v{vH}
    v_add_u32 v{vF2}, v{vF3}, v{T1}
    """)
    zero(HACC, HACC+64)
    a.I(f's_setpc_b64 {RET}')
    a.L(f'{N}_hsetup2')
    a.I(f"""
    s_sub_u32 s5, s9, 4
    s_mul_i32 s3, s8, 160
    s_lshl_b32 s4, s5, 6
    """)
    for j in range(5):
        a.I(f"""
        v_add_u32 v{T0}, s4, v{vL}
        v_add_u32 v{T0}, {j*256}, v{T0}
        v_mul_u32_u24 v{T1}, 6554, v{T0}
        v_lshrrev_b32 v{T1}, 16, v{T1}
        v_mul_u32_u24 v{T1}, {1280-160}, v{T1}
        v_lshl_add_u32 v{T1}, v{T0}, 4, v{T1}
        v_add_u32 v{VWO+j}, s3, v{T1}
        """)
    a.I(f"""
    s_lshl_b32 s100, s8, 2
    s_add_u32 s100, s100, s5
    s_mul_i32 s3, s100, 5
    s_lshr_b32 s4, s3, 2
    s_lshl_b32 s4, s4, 10
    s_and_b32 s3, s3, 3
    v_lshl_add_u32 v{T1}, v{vG4}, 9, s4
    v_lshl_add_u32 v{LA}, v{vC}, 4, v{T1}
    v_and_b32 v{T0}, 1, v{vG4}
    v_lshl_add_u32 v{T0}, v{vH}, 2, v{T0}
    v_subrev_u32 v{T0}, s3, v{T0}
    v_cmp_gt_u32 vcc, 5, v{T0}
    v_add_u32 v{T0}, 2, v{T0}
    v_cmp_gt_u32 s[4:5], 5, v{T0}
    v_cndmask_b32 v{LA+1}, 0, -1, vcc
    s_nop 0
    v_cndmask_b32 v155, 0, -1, s[4:5]
    s_mul_i32 s3, s100, 20
    v_and_b32 v{T4}, 1, v{vG4}
    v_lshlrev_b32 v{T4}, 9, v{T4}
    v_lshl_add_u32 v{T4}, v{vH}, 3, v{T4}
    """)
    for d in range(2):
        a.I(f"""
        v_add_u32 v{T1}, s3, v{vC}
        v_add_u32 v{T1}, {16*d}, v{T1}
        v_min_u32 v{T1}, 639, v{T1}
        v_lshrrev_b32 v{T2}, 5, v{T1}
        v_lshlrev_b32 v{T2}, 17, v{T2}
        v_and_b32 v{T1}, 31, v{T1}
        v_lshl_add_u32 v{T2}, v{T1}, 4, v{T2}
        v_add_u32 v{LA+2+d}, v{T2}, v{T4}
        """)
    a.I(f"""
    v_cmp_gt_u32 vcc, 4, v{vC}
    v_mov_b32 v{T1}, 0x7fffff00
    s_nop 0
    v_cndmask_b32 v{LA+3}, v{T1}, v{LA+3}, vcc
    """)
    a.I(f"""
    v_lshlrev_b32 v{LA+4}, 2, v{vC}
    v_lshlrev_b32 v{T1}, 2, v{vG4}
    v_sub_u32 v{T1}, v{vC}, v{T1}
    v_mov_b32 v{T3}, 0xff800000
    s_cmp_eq_u32 s7, 0
    s_cselect_b64 s[4:5], 0, -1
    """)
    for k in range(8):
        r, pv = k % 4, k // 4
        a.I(f"""
        v_add_u32 v{T2}, {16*pv - r}, v{T1}
        v_and_b32 v{T2}, 0xfffffff1, v{T2}
        v_cmp_eq_u32 vcc, 0, v{T2}
        v_mov_b32 v{ONES+r}, 0x3f803f80
        s_nop 0
        v_cndmask_b32 v{LB+k}, v{T3}, 0, vcc
        """)
        if pv:
            a.I(f'v_cndmask_b32 v{LB+4+k}, v{T3}, v{LB+k}, s[4:5]')
    a.I(f's_mov_b32 s100, {RA}')
    a.L(f'{N}_gsetup')
    a.I(f"""
    v_and_b32 v{T0}, 1, v{vG4}
    v_lshrrev_b32 v{T2}, 2, v{vC}
    v_mul_u32_u24 v{T2}, 160, v{T2}
    v_and_b32 v{T3}, 3, v{vC}
    v_lshl_add_u32 v{T2}, v{T3}, 3, v{T2}
    v_add_u32 v{T2}, s100, v{T2}
    v_mul_u32_u24 v{T3}, {4*160}, v{T0}
    v_add_u32 v{T3}, v{T3}, v{T2}
    v_mul_u32_u24 v{T0}, {40*160}, v{T0}
    v_add_u32 v{T0}, v{T0}, v{T2}
    v_mul_u32_u24 v{T1}, {20*160}, v{vH}
    v_add_u32 v{vR}, v{T1}, v{T3}
    v_cmp_eq_u32 vcc, 1, v{vH}
    """)
    for h in range(2):
        a.I(f"""
        v_add_u32 v{T1}, {(16+20*h)*160}, v{T0}
        v_add_u32 v{T2}, {(80+8*h)*160}, v{T3}
        v_cndmask_b32 v{vR+1+h}, v{T1}, v{T2}, vcc
        v_add_u32 v{T1}, {(140+8*h)*160}, v{T3}
        v_add_u32 v{T2}, {(96+20*h)*160}, v{T0}
        v_cndmask_b32 v{vR+3+h}, v{T1}, v{T2}, vcc
        """)
    a.I(f"""
    s_and_b32 s3, s9, 1
    s_lshl_b32 s3, s3, 8
    v_lshlrev_b32 v{vA}, 4, v{vC}
    v_lshl_add_u32 v{vA}, v{vG4}, 9, v{vA}
    v_add_u32 v{vA}, s3, v{vA}
    s_bfe_u32 s3, s9, 0x10001
    s_lshl_b32 s4, s7, 1
    s_add_u32 s3, s3, s4
    s_mul_i32 s21, s3, {OAB_PT}
    s_add_u32 s21, s21, {WS_OAB}
    s_setpc_b64 {RET}
    """)
    def waddr(k5, h):
        if k5 == 2: return vR + 1 + h, 0
        if k5 == 4: return vR + 3 + h, 0
        return vR, ({0: 0, 1: 40, 3: 100}[k5] + 8 * h) * 160
    def wread(s, base):
        st, k5 = divmod(s, 5)
        for t in range(5):
            for h in range(2):
                r, o = waddr(k5, h)
                yield f'ds_read_b64_tr_b16 {vr(base+t*4+2*h,2)}, v{r} offset:{(st&1)*25600 + o + t*32}'
    a.L(f'{N}_wpre')
    for s in range(8):
        for i in wread(s, WF + s*20): a.I(i)
    a.I(f's_setpc_b64 {RET}')


    a.L(f'{N}_wpf')
    a.I(f"""
    v_lshlrev_b32 v92, 4, v{vL}
    s_mov_b32 exec_hi, 0xff
    """)
    for r in range(10):
        a.I(f'buffer_load_dwordx4 v[96:99], v92, s[52:55], s15 offen offset:{(r%3)*1280}')
        if r % 3 == 2: a.I('s_add_u32 s15, s15, 3840')
    a.I(f"""
    s_mov_b32 exec_hi, -1
    s_setpc_b64 {RET}
    """)
    a.L(f'{N}_wob')
    a.I(f"""
    s_cmp_ge_u32 s15, s14
    s_cbranch_scc1 {N}_wob9
    s_setprio {OPT['hprio']}
    s_cmp_ge_u32 s15, 5
    s_cbranch_scc1 {N}_wobA
    s_add_u32 s3, s15, s13
    s_cmp_ge_u32 s3, 5
    s_cselect_b32 s4, 5, 0
    s_sub_u32 s3, s3, s4
    s_mul_i32 s4, s3, {128*1280}
    s_mul_i32 s5, s3, 20480
    s_add_u32 s5, s5, {RA}
    s_mov_b32 s3, 0
    s_branch {N}_wob1
    """)
    a.L(f'{N}_wobA')
    a.I(f"""
    s_mov_b32 s44, s24
    s_mov_b32 s45, s25
    s_add_u32 s3, s15, s13
    s_mul_i32 s4, s3, 86
    s_lshr_b32 s4, s4, 8
    s_mul_i32 s4, s4, 3
    s_sub_u32 s3, s3, s4
    s_mul_i32 s4, s3, {128*1280}
    s_mul_i32 s5, s3, 20480
    s_cmp_ge_u32 s15, 8
    s_cselect_b32 s20, 1, 0
    {'s_xor_b32 s20, s20, s8' if OPT['par'] else ''}
    s_and_b32 s20, s20, 1
    s_mul_i32 s20, s20, {320*1280}
    s_add_u32 s4, s4, s20
    s_cmp_ge_u32 s15, 8
    s_cselect_b32 s20, 0, {RB-RA}
    s_add_u32 s5, s5, s20
    s_lshr_b32 s3, s3, 1
    s_lshr_b32 s20, s10, 1
    s_mul_i32 s20, s20, s3
    s_add_u32 s3, s3, s20
    """)
    a.L(f'{N}_wob1')
    a.I('s_add_u32 s5, s5, s12')
    a.I('s_add_u32 s15, s15, 1')
    for j in range(5):
        if j == 2:
            a.I('s_cmp_eq_u32 s3, 2')
            a.I(f's_cbranch_scc1 {N}_wob8')
        if j == 3:
            a.I('s_cmp_eq_u32 s3, 1')
            a.I(f's_cbranch_scc1 {N}_wob8')
        a.I(f's_add_u32 m0, s5, {j*4096}')
        a.I('s_nop 0' if OPT['wsub'] < 0 else f's_waitcnt vmcnt({OPT["wsub"]})')
        a.I(f'buffer_load_dwordx4 v{VWO+j}, s[44:47], s4 offen lds')
    a.L(f'{N}_wob8')
    a.I(f's_setprio {OPT["cprio"]}')
    a.L(f'{N}_wob9')
    a.I(f's_setpc_b64 {RET}')

    a.L(f'{N}_extra')
    worksetup()
    EXX, EXW = 40, 72
    a.I(f'''
    ds_read_b64 {vr(CNT,2)}, v{vSY}
    v_mul_u32_u24 v{T0}, 40, v{vW0}
    v_add_u32 v{vWB_}, v{T0}, v{vW1}
    v_add_u32 v{vWB_}, {EXB}, v{vWB_}
    s_mov_b32 s12, 5120
    s_setprio 3
    s_sub_u32 s11, s9, 4
    s_and_b32 s3, s96, 1
    s_add_u32 s11, s11, s3
    s_lshl_b32 s15, s11, 12
    s_lshl_b32 s3, s7, 1
    s_add_u32 s3, s3, s11
    s_mul_i32 s3, s3, {KVT}
    s_add_u32 s13, s3, {WS_KVF}
    s_cmp_eq_u32 s96, 4
    s_cbranch_scc1 {N}_exG
    s_cmp_ge_u32 s96, 2
    s_cbranch_scc1 {N}_exV
    ''')
    def exloop(orient, gate=False):
        l = lab()
        def addr():
            a.I(f"""
            s_lshl_b32 s3, s60, 14
            s_add_u32 s3, s3, s15
            s_mul_i32 s4, s60, s12
            s_add_u32 s60, s60, 1
            s_cmp_eq_u32 s60, 5
            s_cselect_b32 s60, 0, s60
            s_add_u32 s10, s10, 1
            s_cmp_eq_u32 s10, 6
            s_cselect_b32 s10, 0, s10
            """)
            for k in range(4):
                a.I(f'v_add_u32 v{vCX+k}, s3, v{vXB+k}')
            a.I(f'v_add_u32 v{vCW}, s4, v{vWB_}')
        def reads(ks, tag):
            a.LG(f'ds_read_b128 {vr(EXX+ks*4,4)}, v{vCX+(ks&3)} offset:{(ks>>2)*8192}', tag)
            if gate:
                a.LG(f'ds_read_b128 {vr(EXW+ks*4,4)}, v{vCW} offset:{ks*32}', tag)
            else:
                for h in range(2):
                    a.LG(f'ds_read_b64_tr_b16 {vr(EXW+ks*4+2*h,2)}, v{vCW} offset:{(ks*16+4*h)*40}', tag)
        addr()
        vstamp(16)
        cntwait(l + 'w0', 10 if gate else 's10')
        vstamp(17)
        a.lg = []
        for ks in range(4): reads(ks, ks)
        q0 = list(a.lg)
        a.L(l)
        for u in range(8):
            if u == 4:
                addr()
                a.wait(lg=lambda t: t == 'c')
                cntwait(l + 'w', 's10', first=None)
            reads((u + 4) % 8, u + 4)
            if STAMPS and u == 5: a.I('s_memtime s[100:101]')
            if STAMPS and u == 3: a.I('s_add_u32 m0, s10, 24\nv_writelane_b32 v0, s100, m0')
            if u == 1:
                a.LG(f'ds_read_b64 {vr(CNT,2)}, v{vSY}', 'c')
            a.wait(lg=lambda t: t != 'c' and t <= u)
            d = vr(FACC, 16)
            x, w = vr(EXX + u * 4, 4), vr(EXW + u * 4, 4)
            if orient == 'T':
                a.I(f'{MF32} {d}, {w}, {x}, {d}')
            else:
                a.I(f'{MF32} {d}, {x}, {w}, {d}')
        assert a.lg == [t + 8 for t in q0], a.lg
        a.I(f"""
        s_cmp_lg_u32 s10, 0
        s_cbranch_scc1 {l}
        s_waitcnt lgkmcnt(0)
        s_mov_b64 exec, 1
        ds_add_u32 v{vSY}, v{vOne} offset:{C_F}
        s_mov_b64 exec, -1
        s_nop 7
        s_nop 3
        """)
        vstamp(18)
    exloop('T')
    r = FACC
    a.I(f'''
    v_lshlrev_b32 v{T0}, 4, v{vL}
    v_lshlrev_b32 v{T1}, 3, v{vL}
    ''')
    for k in range(6):
        cv(r + k, r + 2 * k)
    a.I(f'''
    s_mov_b32 exec_lo, 0
    v_mov_b32 v{r+4}, 0x3f803f80
    v_mov_b32 v{r+5}, 0x3f80
    s_mov_b32 exec_lo, -1
    buffer_store_dwordx4 {vr(r,4)}, v{T0}, {W}, s13 offen sc1
    s_mov_b32 exec_hi, 1
    buffer_store_dwordx2 {vr(r+4,2)}, v{T1}, {W}, s13 offen offset:{KV_K2} sc1
    s_mov_b32 exec_hi, -1
    ''')
    a.L(f'{N}_exflag')
    a.stamp(1)
    getnonce(T2, T4)
    a.I(f'''
    s_lshl_b32 s3, s7, 1
    s_lshr_b32 s4, s96, 1
    s_add_u32 s3, s3, s4
    s_lshl_b32 s3, s3, 7
    s_lshl_b32 s4, s11, 3
    s_add_u32 s3, s3, s4
    s_add_u32 s3, s3, {WS_FLG}
    v_mov_b32 v{T0}, 0
    s_waitcnt vmcnt(0)
    s_mov_b64 exec, 1
    buffer_store_dwordx2 {vr(T2,2)}, v{T0}, {W}, s3 offen sc1
    s_mov_b64 exec, -1
    ''')
    a.stamp(2)
    a.I(f's_branch {N}_hpre2')
    a.L(f'{N}_exV')
    exloop('N')
    a.I(f'''
    v_mul_u32_u24 v{T0}, 336, v{vH}
    v_lshl_add_u32 v{T0}, v{vP}, 4, v{T0}
    v_mov_b32 v{T1}, 0x3f803f80
    v_cmp_eq_u32 vcc, 20, v{vP}
    s_mov_b32 s4, 0x1fffff
    s_mov_b32 s5, 0x1fffff
    ''')
    for k in range(8):
        cv(r + k, r + 2 * k)
    for k in range(8):
        a.I(f'v_cndmask_b32 v{r+k}, v{r+k}, v{T1}, vcc')
    a.I(f'''
    s_mov_b64 exec, s[4:5]
    buffer_store_dwordx4 {vr(r,4)}, v{T0}, {W}, s13 offen offset:{KV_V1} sc1
    buffer_store_dwordx4 {vr(r+4,4)}, v{T0}, {W}, s13 offen offset:{KV_V2} sc1
    s_mov_b64 exec, -1
    ''')
    a.I(f's_branch {N}_exflag')
    a.L(f'{N}_exG')
    a.I(f'''
    v_lshlrev_b32 v{vWB_}, 4, v{vH}
    v_add_u32 v{vWB_}, {GV}, v{vWB_}
    s_setprio 0
    s_mov_b32 s12, 256
    ''')
    exloop('T', True)
    a.I(f'''
    s_lshl_b32 s3, s7, 8
    s_lshl_b32 s4, s11, 7
    s_add_u32 s3, s3, s4
    s_add_u32 s3, s3, {WS_G}
    v_mul_f32 v{T0}, {f32hex(-math.log2(math.e))}, v{FACC}
    v_exp_f32 v{T0}, v{T0}
    v_lshlrev_b32 v{T1}, 2, v{vP}
    v_add_f32 v{T0}, 1.0, v{T0}
    v_rcp_f32 v{T0}, v{T0}
    s_mov_b32 exec_hi, 0
    buffer_store_dword v{T0}, v{T1}, {W}, s3 offen sc1
    s_mov_b32 exec_hi, -1
    ''')
    a.L(f'{N}_hpre2')
    a.I('s_setprio 0')
    a.I(f's_call_b64 {RET}, {N}_hsetup2')
    a.L(f'{N}_hpre')
    PD = OPT['PD']
    HX = 28
    HWf = 60
    srd(a, 48, 38, WS_END)
    srd(a, 44, 28, 2457600)
    a.I(f'''
    s_sub_u32 s10, s9, 4
    s_lshl_b32 s3, s8, 9
    s_lshl_b32 s4, s10, 7
    s_add_u32 s11, s3, s4
    s_lshl_b32 s12, s10, 13
    s_add_u32 s12, s12, {HR}
    ''')
    if not OPT['map2']:
        a.I('s_and_b32 s3, s7, 3\ns_mul_i32 s3, s3, 5\ns_lshr_b32 s13, s3, 1')
    else:
        a.I('s_and_b32 s3, s7, 7\ns_mul_i32 s3, s3, 5\ns_lshr_b32 s13, s3, 2')
    a.I(f'''
    s_mul_i32 s14, s13, {64*3840}
    s_lshl_b32 s13, s13, 13
    s_mov_b32 s19, 0
    s_cmp_ge_u32 s11, 3840
    s_cselect_b32 s46, 0, s46
    ''')
    for k in range(4):
        a.I(f'v_add_u32 v{vCX+k}, s13, v{vXB+k}')
    getnonce(T2, T1)
    def p1check(first):
        a.I(f'''
        s_add_u32 s4, s4, 1
        s_waitcnt vmcnt({first})
        v_cmp_eq_u64 vcc, s[62:63], v[92:93]
        v_cmp_eq_u64 s[56:57], s[62:63], v[94:95]
        s_and_b64 vcc, vcc, s[56:57]
        s_cmp_eq_u64 vcc, -1
        s_cbranch_scc1 {N}_p1g
        ''')
    p1ld = f'buffer_load_dwordx4 v[92:95], v{T4}, {W}, s3 offen sc1'
    def p1rest():
        a.L(f'{N}_p1')
        a.I(p1ld)
        p1check(0)
        a.I(f'''
        s_cmp_lt_u32 s4, {SPIN}
        s_cbranch_scc1 {N}_p1
        ''')
        a.L(f'{N}_p1g')
        a.I(f'''
        v_mov_b32 v{T0}, {SYNC}
        v_mov_b32 v{T1}, 64
        ds_write_b32 v{T0}, v{T1} offset:{C_S1}
        ''')
        if OPT['kvpf']:
            a.I(f'''
            v_lshlrev_b32 v{T4}, 4, v{vL}
            s_mul_i32 s3, s6, {2*KVT}
            s_add_u32 s3, s3, {WS_KVF}
            s_add_u32 s5, s3, 4096
            ''')
            for k in range(4): a.I(f'buffer_load_dwordx4 v[92:95], v{T4}, {W}, s3 offen offset:{k*1024} sc1')
            a.I(f'buffer_load_dwordx4 v[92:95], v{T4}, {W}, s5 offen sc1')
            a.I(f'buffer_load_dwordx4 v[92:95], v{T4}, {W}, s5 offen offset:512 sc1')
        if STAMPS: a.I(f'v_writelane_b32 v0, s4, 25')
        vstamp(23)
        a.L(f'{N}_p1ok')
    if not OPT['p1m']:
        a.I(f'''
        s_cmp_lg_u32 s9, 5
        s_cbranch_scc1 {N}_p1ok
        ''')
        ldswait(C_Q + 4*OPT['p1start'], 4, T0, T1, sleep=1)
    a.I(f'v_lshlrev_b32 v{T4}, 7, v{vL}')
    if not OPT['p1m']:
        a.I(f's_mov_b32 s3, {WS_FLG}\ns_mov_b32 s4, 0')
        vstamp(22)
        p1rest()
    if OPT['hstart'] <= 4: ldswait(C_Q + 4*OPT['hstart'], 4, T0, T1, sleep=1)
    else: ldswait(C_H, 4, T0, T1, sleep=1)
    a.stamp(3)
    if OPT['p1m']:
        a.I(f'''
        s_mov_b32 s3, {WS_FLG}
        s_mov_b32 s4, 0
        s_cmp_lg_u32 s9, 5
        s_cbranch_scc1 {N}_p1a
        {p1ld}
        ''')
        a.L(f'{N}_p1a')
    a.I(f's_setprio {OPT["hprio"]}')
    hadv = [f's_add_u32 s14, s14, {32*3840}', f's_cmp_eq_u32 s14, {640*3840}', 's_cselect_b32 s14, 0, s14',
            's_add_u32 s19, s19, 1', 's_cmp_ge_u32 s19, 20', 's_cselect_b32 s46, 0, s46']
    def hm0(q, e): return f's_add_u32 m0, s12, {q*2048 + e*1024}'
    def hld(q, e): return f'buffer_load_dwordx4 v{vHW+(q&1)*2+e}, s[44:47], s14 offen lds'
    def hxr(q): return [f'ds_read_b128 {vr(HX+(q&1)*8+pt*4,4)}, v{vCX+q} offset:{pt*4096}' for pt in range(2)]
    def hwr(q): return [f'ds_read_b64_tr_b16 {vr(HWf+(q&1)*8+j*4+2*h,2)}, v{vHR+j} offset:{q*2048 + h*512}' for j in range(2) for h in range(2)]
    if OPT['hpf']:
        a.I(f'''
        s_bfe_u32 s5, s7, 0x10002
        s_mul_i32 s5, s5, {320*3840}
        s_and_b32 s20, s7, 3
        s_mul_i32 s20, s20, {16*3840}
        s_add_u32 s5, s5, s20
        s_add_u32 s5, s5, {256*3840}
        buffer_load_dwordx4 v[96:99], v{vHW}, s[44:47], s5 offen
        buffer_load_dwordx4 v[96:99], v{vHW+1}, s[44:47], s5 offen
        ''')
    for q_ in range(4):
        for e in range(2):
            a.I(hm0(q_, e)); a.I('s_nop 0'); a.I(hld(q_, e))
        if q_ & 1:
            for i in hadv: a.I(i)
    if OPT['p1m']:
        a.I(f's_cmp_lg_u32 s9, 5\ns_cbranch_scc1 {N}_p1ok')
        p1check(8 + 2*OPT['hpf'])
        p1rest()
    a.I('s_waitcnt vmcnt(6)')
    for i in hxr(0) + hwr(0): a.I(i)
    a.I(f"""
    s_cmp_ge_u32 s6, 16
    s_cselect_b32 s52, s24, s30
    s_cselect_b32 s53, s25, s31
    s_mov_b32 s54, 819200
    s_mov_b32 s55, 0x20000
    s_and_b32 s3, s6, 15
    s_lshl_b32 s3, s3, 2
    s_add_u32 s3, s3, s10
    s_mul_i32 s15, s3, 12800
    s_lshr_b32 s3, s8, 2
    s_mul_i32 s3, s3, 640
    s_add_u32 s15, s15, s3
    s_mov_b32 s20, 0
    v_mov_b32 v95, {SYNC}
    s_cmp_lt_u32 s96, 4
    s_cselect_b32 s5, {OPT['bj'] % 10}, {OPT['bj'] // 10}
    v_lshlrev_b32 v92, 4, v{vL}
    v_mov_b32 v93, 0x7fffff00
    v_cmp_gt_u32 vcc, 40, v{vL}
    s_sub_u32 s15, s15, {2560*OPT['pf0'] if OPT['pf'] == 20 else 0}
    v_cndmask_b32 v92, v93, v92, vcc
    s_cmp_ge_u32 s8, 5
    s_cbranch_scc1 {N}_h1N
    """)
    def h1loop(orient):
        l = lab()
        a.L(l)
        if STAMPS:
            a.I('s_memtime s[96:97]\ns_mov_b32 m0, s20\ns_waitcnt lgkmcnt(0)\nv_writelane_b32 v0, s96, m0')
        if OPT['pf'] and OPT['pf'] <= 10:
            a.I(f's_cmp_lg_u32 s20, {OPT["pf"]-1}')
            a.I(f's_cbranch_scc1 {l}npf')
            a.I(f's_call_b64 {RET}, {N}_wpf')
            a.L(l + 'npf')
        for q in range(4):
            qn = (q + 1) & 3
            a.I(f's_waitcnt vmcnt({6 if OPT["pf"] == 20 and q else 4}) lgkmcnt(0)')
            fl = [hwr(qn), [hm0(q, 0)] + hxr(qn), [hld(q, 0), hm0(q, 1)], [hld(q, 1)]]
            if q & 1: fl[3] += hadv
            if OPT['boost'] and q % 2 == 0:
                fl[1] += [f'ds_read_b32 v94, v95 offset:{C_H}']
            if OPT['boost'] and q % 2 == 1:
                fl[0] += ['v_readfirstlane_b32 s3, v94', 's_cmp_lt_u32 s3, 5', f's_cbranch_scc1 {l}b{q}', 's_setprio 3', f'{l}b{q}:']
            if OPT['bj'] and q == 0:
                fl[0] += ['s_add_u32 s3, s20, s5', f's_cmp_lt_u32 s3, 10', f's_cbranch_scc1 {l}c', 's_setprio 3', f'{l}c:']
            if q == 0 and OPT['pf'] == 20:
                fl[2] += [f's_sub_u32 s3, s20, {OPT["pf0"]}', 's_cmp_lt_u32 s3, 5', 's_cselect_b32 s54, 819200, 0']
                fl[3] += ['buffer_load_dwordx4 v[96:99], v92, s[52:55], s15 offen',
                          'buffer_load_dwordx4 v[96:99], v92, s[52:55], s15 offen offset:1280', 's_add_u32 s15, s15, 2560']
            if q == 0:
                fl[3] += ['s_add_u32 s13, s13, 8192', 's_cmp_eq_u32 s13, 81920', 's_cselect_b32 s13, 0, s13', 's_add_u32 s20, s20, 1']
            if q == 2:
                fl[3] += [f's_setprio {OPT["xprio"]}'] + [f'v_add_u32 v{vCX+k}, s13, v{vXB+k}' for k in range(4)] + [f's_setprio {OPT["hprio"]}']
            if q == 3:
                fl[3] += ['s_cmp_lt_u32 s20, 10']
            m = 0
            for pt in range(2):
                for j in range(2):
                    d = vr(HACC + (pt * 2 + j) * 16, 16)
                    x, w = vr(HX + (q&1)*8 + pt*4, 4), vr(HWf + (q&1)*8 + j*4, 4)
                    if OPT['mprio'] != OPT['hprio']: a.I(f's_setprio {OPT["mprio"]}')
                    if orient == 'T':
                        a.I(f'{MF32} {d}, {w}, {x}, {d}')
                    else:
                        a.I(f'{MF32} {d}, {x}, {w}, {d}')
                    if m == 3 and q == 2:
                        for i in fl[m][1:]: a.I(i)
                        fl[m] = fl[m][:1]
                    if OPT['mprio'] != OPT['hprio']: a.I(f's_setprio {OPT["hprio"]}')
                    for i in fl[m]: a.I(i)
                    m += 1
        a.I(f"""
        s_cbranch_scc1 {l}
        s_waitcnt vmcnt(0) lgkmcnt(0)
        s_setprio {OPT['eprio']}
        """)
        arrive(C_H)
        if OPT['pf'] == 11:
            a.I(f's_setprio {OPT["hprio"]}')
            a.I(f's_call_b64 {RET}, {N}_wpf')
            a.I(f's_setprio {OPT["vprio"]}')
        a.I(f"""
        v_lshlrev_b32 v104, 4, v{vL}
        s_mul_i32 s3, s7, {2*OAB_PT}
        s_mul_i32 s4, s8, 5120
        s_add_u32 s3, s3, s4
        v_mov_b64 v[100:101], -1
        v_mov_b64 v[102:103], -1
        s_and_b32 s4, s10, 1
        s_mul_i32 s4, s4, {OAB_PT}
        s_add_u32 s3, s3, s4
        s_lshr_b32 s4, s10, 1
        s_lshl_b32 s4, s4, 11
        s_add_u32 s3, s3, {WS_OAB}
        s_add_u32 s42, s4, s3
        s_add_u32 s43, s42, 40960
        """)
        for r in range(HACC, HACC + 64, 16):
            for k in range(8):
                cv(r + k, r + 2 * k)
        a.I(f's_setprio {OPT["sprio"]}')
        if STAMPS:
            a.I('s_memtime s[96:97]\ns_mov_b32 m0, s20\ns_waitcnt lgkmcnt(0)\nv_writelane_b32 v0, s96, m0')
    h1loop('T')
    a.I(f'''
    s_lshl_b32 s3, s7, 1
    s_mul_i32 s3, s3, {QKB_PT}
    s_lshl_b32 s4, s11, 5
    s_add_u32 s3, s3, s4
    s_add_u32 s4, s3, {QKB_PT}
    ''')
    for pt in range(2):
        for j in range(2):
            r = HACC + (pt * 2 + j) * 16
            for b in range(2):
                a.I(f'buffer_store_dwordx4 {vr(r+4*b,4)}, v104, {W}, s{3+pt} offen offset:{(2*j+b)*1024} sc1')
    a.I(f's_branch {N}_h1done')
    a.L(f'{N}_h1N')
    h1loop('N')
    a.I(f'''
    s_cmp_ge_u32 s11, 3840
    s_cbranch_scc1 {N}_h1done
    s_sub_u32 s3, s11, 2560
    s_lshl_b32 s3, s3, 11
    s_lshl_b32 s4, s7, 12
    s_add_u32 s3, s3, s4
    s_add_u32 s3, s3, {WS_VBT}
    s_add_u32 s4, s3, {VBT_NT}
    ''')
    for pt in range(2):
        for j in range(2):
            r = HACC + (pt * 2 + j) * 16
            for b in range(2):
                a.I(f'buffer_store_dwordx4 {vr(r+4*b,4)}, v104, {W}, s{3+j} offen offset:{(2*pt+b)*1024} sc1')
    a.L(f'{N}_h1done')
    for k in range(3): a.I(f'buffer_store_dwordx4 v[100:103], v104, {W}, s43 offen offset:{k*1024} sc1')
    a.I(f's_setprio {OPT["cprio"]}')
    a.stamp(4)
    def setflag(word, cw):
        l = lab()
        a.I(f'''
        v_mov_b32 v{T0}, {SYNC}
        v_mov_b32 v{T1}, 1
        s_mov_b64 exec, 1
        ds_add_rtn_u32 v{T1}, v{T0}, v{T1} offset:{cw}
        v_mov_b32 v{T0}, 0
        v_mov_b32 v{T2}, s62
        v_mov_b32 v{T3}, s63
        s_waitcnt lgkmcnt(0)
        v_cmp_eq_u32 vcc, 3, v{T1}
        s_cbranch_vccz {l}
        buffer_store_dwordx2 {vr(T2,2)}, v{T0}, {W}, s23 offen offset:{word*1024} sc1
        ''')
        a.L(l)
        a.I('s_mov_b64 exec, -1')
    def pollflag(soff, va, minb=None, sleep=OPT['psleep']):
        l = lab()
        a.I('s_mov_b32 s19, 0')
        a.L(l)
        if minb is not None:
            a.I(f's_call_b64 {RET}, {N}_wob')
        a.I(f'''
        buffer_load_dwordx2 {vr(T2,2)}, v{va}, {W}, {soff} offen sc1
        s_add_u32 s19, s19, 1
        s_waitcnt vmcnt(0)
        v_cmp_ne_u64 vcc, s[62:63], {vr(T2,2)}
        ''')
        if minb:
            a.I(f's_cmp_lt_u32 s15, {minb}')
            a.I(f's_cbranch_scc1 {l}')
        a.I(f's_cbranch_vccz {l}_ok')
        if sleep: a.I(f's_sleep {sleep}')
        a.I(f'''
        s_cmp_lt_u32 s19, {SPIN}
        s_cbranch_scc1 {l}
        ''')
        a.L(l + '_ok')
    def stream(lim):
        l = lab()
        a.L(l)
        a.I(f'''
        s_call_b64 {RET}, {N}_wob
        s_cmp_lt_u32 s15, {lim}
        s_cbranch_scc1 {l}
        ''')
    def pollshare(soff, va, pw, cw):
        l = lab()
        a.I(f's_cmp_lg_u32 s9, {pw}')
        a.I(f's_cbranch_scc1 {l}')
        pollflag(soff, va)
        arrive(cw)
        a.I(f's_branch {l}_ok')
        a.L(l)
        a.I(f'v_mov_b32 v{T3}, {SYNC}')
        a.I('s_mov_b32 s19, 0')
        a.I('s_waitcnt vmcnt(0)')
        a.L(l + '_w')
        a.I(f'''
        ds_read_b32 v{T2}, v{T3} offset:{cw}
        s_add_u32 s19, s19, 1
        s_waitcnt lgkmcnt(0)
        v_readfirstlane_b32 s3, v{T2}
        s_cmp_lg_u32 s3, 0
        s_cbranch_scc1 {l}_ok
        s_setprio {OPT['wprio']}
        s_sleep {OPT['wsleep']}
        s_cmp_lt_u32 s19, {SPIN*8}
        s_cbranch_scc1 {l}_w
        ''')
        a.L(l + '_ok')
    srd(a, 44, 30, 819200)
    LQ, LK, LV, LG = 28, 44, 64, 84
    LS, LP, M, LO, LL = 88, 120, 136, 172, 204
    a.I(f'''
    s_lshl_b32 s12, s10, 10
    s_mul_i32 s22, s7, {FG}
    s_add_u32 s22, s22, {WS_FG}
    s_lshl_b32 s3, s8, 7
    s_add_u32 s23, s22, s3
    s_and_b32 s13, s7, {7 if OPT['map2'] else 3}
    s_cmp_ge_u32 s13, 5
    s_cselect_b32 s3, 5, 0
    s_sub_u32 s13, s13, s3
    s_mov_b32 s14, {OPT['st2']}
    s_mov_b32 s15, 0
    s_lshl_b32 s3, s7, 1
    s_mul_i32 s29, s3, {QKB_PT}
    s_add_u32 s30, s29, {QKB_PT}
    s_add_u32 s31, s29, 40960
    s_add_u32 s32, s30, 40960
    s_sub_u32 s33, s31, {QKB_PT}
    s_lshl_b32 s26, s7, 12
    s_add_u32 s26, s26, {WS_VBT}
    s_sub_u32 s27, s26, 1024
    s_sub_u32 s28, s22, {FG}
    s_cmp_eq_u32 s7, 0
    s_cselect_b32 s33, s31, s33
    s_cselect_b32 s27, s26, s27
    s_cselect_b32 s28, s22, s28
    s_lshl_b32 s18, s7, 8
    s_add_u32 s18, s18, {WS_G}
    ''')
    a.I('s_waitcnt vmcnt(0)')
    vstamp(19)
    setflag(0, C_2)
    ldswait(C_H, 8, T2, T3, hp=OPT['cprio'])
    vstamp(20)
    stream(OPT['st2'])
    a.I(f's_setprio {OPT["hprio"]}')
    for k in range(3): a.I(f'buffer_store_dwordx4 v[100:103], v104, {W}, s42 offen offset:{k*1024} sc1')
    a.I(f's_setprio {OPT["cprio"]}')
    vstamp(21)
    pollshare('s28', vF2, 4, C_S2)
    if STAMPS: a.I('v_writelane_b32 v0, s19, 27')
    a.stamp(5)
    if STAMPS: a.I('v_writelane_b32 v0, s15, 31')
    a.I(f's_setprio {OPT["hprio"]}')
    for u in range(4):
        a.I(f'buffer_load_dwordx4 {vr(LQ+4*u,4)}, v{LA}, {W}, s{29+(u>>1)} offen offset:{256*(u&1)} sc1')
    for kt, (so, off) in enumerate([('s33', 256), ('s31', 0), ('s31', 256), ('s32', 0), ('s32', 256)]):
        a.I(f'buffer_load_dwordx4 {vr(LK+4*kt,4)}, v{LA}, {W}, {so} offen offset:{off} sc1')
    for d in range(2):
        for kt in range(5):
            so, off = ('s27', 0) if kt == 0 else ('s26', (kt - 1) * 1024)
            a.I(f'buffer_load_dwordx2 {vr(LV+10*d+2*kt,2)}, v{LA+2+d}, {W}, {so} offen offset:{off} sc1')
    for u in range(4):
        a.I(f'buffer_load_dword v{LG+u}, v{LA+4}, {W}, s18 offen offset:{64*u} sc1')
    a.I(f's_setprio {OPT["h2prio"]}')
    a.I(f'''
    s_lshl_b32 s3, s7, 1
    s_mul_i32 s36, s3, {OAB_PT}
    s_mul_i32 s3, s8, 5120
    s_add_u32 s36, s36, s3
    s_add_u32 s36, s36, {WS_OAB + 40960}
    s_lshl_b32 s3, s10, 10
    s_add_u32 s37, s36, s3
    s_add_u32 s38, s37, {OAB_PT}
    s_lshr_b32 s3, s10, 1
    s_lshl_b32 s3, s3, 9
    s_and_b32 s4, s10, 1
    s_lshl_b32 s4, s4, 3
    s_add_u32 s3, s3, s4
    s_add_u32 s40, s36, s3
    s_add_u32 s40, s40, 4096
    s_add_u32 s41, s40, {OAB_PT}
    v_mov_b32 v{T4}, {f32hex(CSCALE)}
    v_mov_b32 v{T5}, {f32hex(-CSCALE)}
    ''')
    a.I(f'''
    s_add_u32 s3, s15, s13
    s_cmp_ge_u32 s3, 5
    s_cselect_b32 s4, 5, 0
    s_sub_u32 s3, s3, s4
    s_mul_i32 s42, s3, {128*1280}
    s_mul_i32 s43, s3, 20480
    s_add_u32 s43, s43, s12
    s_add_u32 s15, s15, {OPT['h2d']}
    s_mov_b32 s14, 5
    ''')
    nd = [0]
    def hd():
        if not OPT['h2d']: return
        j = nd[0]; nd[0] += 1
        a.I(f's_add_u32 m0, s43, {RA + j*4096}')
        a.I(f's_setprio {OPT["hprio"]}')
        a.I(f'buffer_load_dwordx4 v{VWO+j}, s[44:47], s42 offen lds')
        a.I(f's_setprio {OPT["h2prio"]}')
    a.I('s_waitcnt vmcnt(19)')
    for u in range(4):
        for k in range(4):
            a.I(f'v_and_b32 v{LQ+4*u+k}, v{LA+1 if k < 2 else 155}, v{LQ+4*u+k}')
    a.I('s_waitcnt vmcnt(14)')
    vstamp(24)
    a.I(f's_setprio {OPT["h2m"]}')
    for u in range(4):
        bp = LB + 8 if u == 0 else LB + 4
        a.I(f'{MF16} {vr(LS+8*u,4)}, {vr(LK+4*u,4)}, {vr(LQ+4*u,4)}, {vr(bp,4)}')
        a.I(f'{MF16} {vr(LS+8*u+4,4)}, {vr(LK+4*u+4,4)}, {vr(LQ+4*u,4)}, {vr(LB,4)}')
    hd()
    a.I('s_nop 3')
    for u in range(4):
        s = LS + 8 * u
        m = M + 2 * u
        a.I(f'''
        v_max3_f32 v{m}, v{s}, v{s+1}, v{s+2}
        v_max3_f32 v{m}, v{m}, v{s+3}, v{s+4}
        v_max3_f32 v{m}, v{m}, v{s+5}, v{s+6}
        v_max_f32 v{m}, v{m}, v{s+7}
        v_mov_b32 v{m+1}, v{m}
        ''')
    a.I('s_nop 1')
    for u in range(4):
        a.I(f'v_permlane16_swap_b32 v{M+2*u}, v{M+2*u+1}')
    for u in range(4):
        a.I(f'v_max_f32 v{M+2*u}, v{M+2*u}, v{M+2*u+1}')
    for u in range(4):
        a.I(f'v_mov_b32 v{M+2*u+1}, v{M+2*u}')
    a.I('s_nop 1')
    for u in range(4):
        a.I(f'v_permlane32_swap_b32 v{M+2*u}, v{M+2*u+1}')
    for u in range(4):
        a.I(f'v_max_f32 v{M+2*u}, v{M+2*u}, v{M+2*u+1}')
    for u in range(4):
        a.I(f'v_mul_f32 v{M+2*u}, v{T5}, v{M+2*u}')
    for u in range(4):
        s = LS + 8 * u
        for k in range(0, 8, 2):
            a.I(f'v_pk_fma_f32 {vr(s+k,2)}, {vr(s+k,2)}, {vr(T4,2)}, {vr(M+2*u,2)} op_sel_hi:[1,0,0]')
        for k in range(8):
            ex(s + k)
        if u % 2 == 0: hd()
    a.I('s_nop 0')
    for u in range(4):
        for k in range(4):
            cv(LP + 4 * u + k, LS + 8 * u + 2 * k)
    a.I(f's_waitcnt vmcnt({nd[0]})')
    a.I(f'v_add_u32 v{T2}, {GL}, v{LA+4}')
    a.I(f's_setprio {OPT["h2m"]}')
    for u in range(4):
        a.I(f'{MF16} {vr(LL+4*u,4)}, {vr(ONES,4)}, {vr(LP+4*u,4)}, 0')
        a.I(f'{MF16} {vr(LO+8*u,4)}, {vr(LV+2*u,4)}, {vr(LP+4*u,4)}, 0')
        a.I(f'{MF16} {vr(LO+8*u+4,4)}, {vr(LV+10+2*u,4)}, {vr(LP+4*u,4)}, 0')
        a.I(f'ds_write_b32 v{T2}, v{LG+u} offset:{64*u}')
    a.I(f's_setprio {OPT["h2prio"]}')
    a.I('s_nop 3')
    for u in range(4):
        o = LO + 8 * u
        a.I(f'''
        v_rcp_f32 v{T2}, v{LL+4*u}
        v_sub_f32 v{T3}, 1.0, v{LG+u}
        v_mul_f32 v{T2}, v{T2}, v{T3}
        ''')
        for k in range(0, 8, 2):
            a.I(f'v_pk_mul_f32 {vr(o+k,2)}, {vr(o+k,2)}, {vr(T2,2)} op_sel_hi:[1,0]')
        p = LS + 4 * (u >> 1) + 2 * (u & 1)
        cv(p, o); cv(p + 1, o + 2)
        cv(o, o + 4); cv(o + 1, o + 6)
        for r in (p, p + 1, o, o + 1): a.I(f'v_min_u32 v{r}, -2, v{r}')
        if u % 2 == 0: hd()
    a.I('s_nop 1')
    for pp in range(2):
        p = LS + 4 * pp
        a.I(f'v_permlane32_swap_b32 v{p}, v{p+2}')
        a.I(f'v_permlane32_swap_b32 v{p+1}, v{p+3}')
        a.I(f'buffer_store_dwordx4 {vr(p,4)}, v{vOB+1}, {W}, s{37+pp} offen sc1')
    a.I('s_mov_b64 exec, 0xffff')
    for u in range(4):
        a.I(f'buffer_store_dwordx2 {vr(LO+8*u,2)}, v{vOB}, {W}, s{40+(u>>1)} offen offset:{256*(u&1)} sc1')
    a.I('s_mov_b64 exec, -1')
    a.stamp(6)
    stream(5)
    dma = [(bi, j) for bi in range(3) for j in range(5 if bi < 2 else 3)]
    dma1 = list(dma)
    a.I('s_mov_b32 s44, s24\ns_mov_b32 s45, s25')
    a.I(f's_setprio {OPT["hprio"]}')
    for _ in range(OPT['pre1']):
        bi, j = dma1.pop(0)
        a.I(f's_add_u32 m0, s12, {RB + bi*20480 + j*4096}')
        a.I(f's_mov_b32 s4, {128*bi*1280}')
        a.I(f's_waitcnt vmcnt({OPT["wsub"]})')
        a.I(f'buffer_load_dwordx4 v{VWO+j}, s[44:47], s4 offen lds')
    a.I(f's_setprio {OPT["cprio"]}')
    a.I('s_waitcnt vmcnt(0)')
    arrive(C_H)
    a.stamp(7)
    HWR = 124
    NR = 6
    AW = OPT['AW']
    a.vm = []; a.lg = []
    def w3(s):
        for n, i in enumerate(wread(s, HWR + (s % NR) * 20)):
            a.LG(i, (s, n))
    def a3(s):
        a.VM(f'buffer_load_dwordx4 {vr(AF+4*s,4)}, v{vA}, {W}, s19 offen offset:{(s%2)*2048} sc1', s)
        if s % 2 == 1:
            a.I('s_add_u32 s19, s19, 4096')
    def check(s, nm):
        r = AF + 4 * s
        a.L(f'{N}_{nm}ck{s}')
        a.I(f"""
        s_setprio 3
        v_max3_u32 v{T0}, v{r}, v{r+1}, v{r+2}
        v_max3_u32 v{T1}, v{r+3}, v{r+4}, v{r+5}
        v_max3_u32 v{T0}, v{T0}, v{r+6}, v{r+7}
        v_max_u32 v{T0}, v{T0}, v{T1}
        v_cmp_eq_u32 vcc, -1, v{T0}
        s_setprio {OPT['h3prio'] if s < OPT['h3sw'] else 3}
        s_cbranch_vccnz {N}_{nm}rt{s}
        """)
        a.L(f'{N}_{nm}go{s}')
    a.I('s_add_u32 s19, s21, 40960')
    a.I('s_mov_b32 s18, 0')
    a.I(f's_setprio {OPT["hprio"]}')
    for s in range(AW): a3(s)
    a.I(f's_setprio {OPT["h3prio"]}')
    a.I('s_setprio 3')
    a.I(f'v_mov_b32 v{T4}, {SYNC}\nv_mov_b32 v{T5}, 1')
    ldswait(C_H, 12, T2, T3, hp=OPT['h3prio'])
    vstamp(11)
    if STAMPS: a.I('v_writelane_b32 v0, s15, 30')
    for s in range(NR - 1): w3(s)
    DS = OPT['dstart']
    for s in range(20):
        sn = s + NR - 1
        if s == OPT['h3sw']: OPT['h3prio'] = 3; a.I('s_setprio 3')
        if sn == 10:
            a.I('s_setprio 3')
            for k in range(5):
                a.I(f'v_add_u32 v{vR+k}, 51200, v{vR+k}')
            a.I(f's_setprio {OPT["h3prio"]}')
        if s == DS:
            a.wait(vm=lambda tg: tg < 100)
            for u in range(s + (s & 1), 20, 2): check(u, 'h')
            a.I('s_setprio 3')
            ldswait(C_M, 4, T2, T3, sleep=0, hp=OPT['h3prio'])
            a.lg = []
        if sn < 20: w3(sn)
        if s in (10, 15):
            if s == 15: a.wait(vm=lambda tg: tg <= 1000)
            a.I('s_mov_b64 exec, 1')
            a.LG(f'ds_add_u32 v{T4}, v{T5} offset:{C_M if s == 10 else C_E}', (s + 3, 99))
            a.I('s_mov_b64 exec, -1')
        a.wait(vm=lambda tg: tg <= s + 1 - (s & 1), lg=lambda tg: tg[0] <= s)
        if s % 2 == 0 and s < DS: check(s, 'h')
        for t in range(5):
            d = vr(CACC + 4 * t, 4)
            a.I(f'{MF16} {d}, {vr(HWR+(s%NR)*20+t*4,4)}, {vr(AF+4*s,4)}, {d if s else 0}')
            if t == 0 and s + AW < 20: a3(s + AW)
            if s >= OPT['d1'] and t in (1, 3) and dma1:
                bi, j = dma1.pop(0)
                a.I(f's_add_u32 m0, s12, {RB + bi*20480 + j*4096}')
                a.I(f's_mov_b32 s4, {128*bi*1280}')
                a.I(f's_setprio {OPT["hprio"]}')
                a.VM(f'buffer_load_dwordx4 v{VWO+j}, s[44:47], s4 offen lds', 1000)
                a.I(f's_setprio {OPT["h3prio"]}')
            elif s >= DS and t in (1, 3) and dma:
                bi, j = dma.pop(0)
                a.I(f's_add_u32 m0, s12, {RA + bi*20480 + j*4096}')
                a.I(f's_mov_b32 s4, {(320 + 128*bi)*1280}')
                if (bi, j) == (2, 2):
                    a.I(f's_cmp_ge_u32 s10, 2\ns_cbranch_scc1 {N}_nodma')
                a.I(f's_setprio {OPT["hprio"]}')
                a.VM(f'buffer_load_dwordx4 v{VWO+j}, s[44:47], s4 offen lds', 2000)
                a.I(f's_setprio {OPT["h3prio"]}')
                if (bi, j) == (2, 2):
                    assert s > 15
                    a.L(f'{N}_nodma')
    assert not dma and DS + AW >= 20 and DS > 10
    a.I('s_setprio 3')
    vstamp(12)
    if STAMPS: a.I('v_writelane_b32 v0, s18, 28')
    for k in range(5):
        a.I(f'v_subrev_u32 v{vR+k}, 51200, v{vR+k}')
    a.I('s_add_u32 s22, s21, 20480')
    a.I('s_waitcnt vmcnt(0)')
    arrive(C_H)
    a.stamp(8)
    a.I('s_setprio 0')
    ldswait(C_H, HDONE, T2, T3)
    vstamp(13)
    a.I(f's_call_b64 {RET}, {N}_wpre')
    vstamp(14)
    ldswait(C_T, 4, T2, T3)

    a.stamp(9)
    a.L(f'{N}_phaseC0')
    CS = [22, 23, 26, 27, 28]
    a.I(f"""
    s_add_u32 s23, s22, 4096
    s_add_u32 s26, s22, 8192
    s_add_u32 s27, s22, 12288
    s_add_u32 s28, s22, 16384
    s_mov_b32 s19, 0
    """)
    if OPT['cin']:
        for s in range(10):
            a.I(f'buffer_load_dwordx4 {vr(AF+4*s,4)}, v{vA}, {W}, s{CS[s//2]} offen offset:{(s%2)*2048} sc1')
    else: a.I(f's_call_b64 {RET}, {N}_cl0')
    a.L(f'{N}_phaseC1')
    a.stamp(10)
    a.vm = []; a.lg = []
    srd(a, 52, 34, 2048 * 1280)
    vPa = 12
    a.I(f'''
    s_and_b32 s5, s9, 3
    s_mul_i32 s3, s5, 6144
    s_add_u32 s3, s3, {EXA}
    v_lshlrev_b32 v{vPa}, 4, v{vL}
    v_add_u32 v{vPa}, s3, v{vPa}
    s_lshl_b32 s3, s5, 2
    s_add_u32 s3, s3, {SYNC + C_P}
    v_mov_b32 v{vPa+1}, s3
    v_mul_u32_u24 v{vPa+2}, 1280, v{vC}
    v_and_b32 v{vPa+4}, 1, v{vG4}
    v_lshl_add_u32 v{vPa+4}, v{vPa+4}, 5, v{vPa+2}
    v_lshl_add_u32 v{vPa+4}, v{vH}, 4, v{vPa+4}
    v_lshl_add_u32 v{vPa+2}, v{vG4}, 3, v{vPa+2}
    s_lshl_b32 s3, s7, 6
    s_lshl_b32 s4, s5, 4
    s_add_u32 s3, s3, s4
    s_mul_i32 s13, s3, 1280
    s_mul_i32 s5, s8, 160
    s_add_u32 s13, s13, s5
    v_mov_b32 v{vPa+3}, 1
    ''')
    a.I('s_waitcnt lgkmcnt(0)')
    for s in range(10):
        if s == 8: a.I('s_waitcnt lgkmcnt(10)')
        if s == 9: a.I('s_waitcnt lgkmcnt(0)')
        if s % 2 == 0:
            r = AF + 4 * s
            a.L(f'{N}_ck{s}')
            a.I(f"""
            s_waitcnt vmcnt({8-s})
            v_max3_u32 v{T0}, v{r}, v{r+1}, v{r+2}
            v_max3_u32 v{T1}, v{r+3}, v{r+4}, v{r+5}
            v_max3_u32 v{T0}, v{T0}, v{r+6}, v{r+7}
            v_max_u32 v{T0}, v{T0}, v{T1}
            v_cmp_eq_u32 vcc, -1, v{T0}
            s_cbranch_vccnz {N}_rt{s}
            """)
            a.L(f'{N}_go{s}')
        for t in range(5):
            d = vr(CACC + 4 * t, 4)
            a.I(f'{MF16} {d}, {vr(WF+(s%8)*20+t*4,4)}, {vr(AF+4*s,4)}, {d}')
        if s in (1, 2):
            for i in wread(7 + s, WF + (s - 1)*20): a.I(i)
    if STAMPS: a.I('v_writelane_b32 v0, s19, 29')
    a.stamp(11)
    a.I(f'''
    s_cmp_ge_u32 s9, 4
    s_cbranch_scc1 {N}_red
    s_nop 3
    ''')
    for t in range(5):
        a.I(f'ds_write_b128 v{vPa}, {vr(CACC+4*t,4)} offset:{t*1024}')
    a.I(f'''
    s_waitcnt lgkmcnt(0)
    ds_write_b32 v{vPa+1}, v{vPa+3}
    s_waitcnt lgkmcnt(0)
    s_branch {N}_fin
    ''')
    a.L(f'{N}_red')
    a.I('s_mov_b32 s4, 0')
    a.L(f'{N}_red1')
    a.I(f'ds_read_b32 v{T0}, v{vPa+1}')
    for t in range(5):
        a.I(f'ds_read_b128 {vr(AF+4*t,4)}, v{vPa} offset:{t*1024}')
    a.I(f'''
    s_add_u32 s4, s4, 1
    s_waitcnt lgkmcnt(5)
    v_readfirstlane_b32 s3, v{T0}
    s_cmp_lg_u32 s3, 0
    s_cbranch_scc1 {N}_red2
    s_cmp_lt_u32 s4, {SPIN*8}
    s_cbranch_scc1 {N}_red1
    ''')
    a.L(f'{N}_red2')
    for t in range(5):
        c, b = CACC + 4 * t, AF + 4 * t
        a.I(f's_waitcnt lgkmcnt({4-t})')
        a.I(f'v_pk_add_f32 {vr(c,2)}, {vr(c,2)}, {vr(b,2)}')
        a.I(f'v_pk_add_f32 {vr(c+2,2)}, {vr(c+2,2)}, {vr(b+2,2)}')
        d = CACC + 8 * (t >> 1) + 2 * (t & 1)
        cv(d, c); cv(d + 1, c + 2)
        if t == 4:
            a.I(f'buffer_store_dwordx2 {vr(d,2)}, v{vPa+2}, s[52:55], s13 offen offset:{t*32}')
        if t in (2, 4):
            d = CACC + 4 * (t - 2)
            a.I(f'v_permlane16_swap_b32 v{d}, v{d+2}')
            a.I(f'v_permlane16_swap_b32 v{d+1}, v{d+3}')
            a.I(f'buffer_store_dwordx4 {vr(d,4)}, v{vPa+4}, s[52:55], s13 offen offset:{(t-2)*32}')
    a.L(f'{N}_fin')
    if STAMPS:
        a.stamp(12)
        a.I('s_waitcnt vmcnt(0)')
        a.stamp(13)
        if OPT['dbg']:
            a.I('s_memrealtime s[94:95]')
            a.I('s_load_dwordx2 s[36:37], s[0:1], 80')
            a.I('s_waitcnt lgkmcnt(0)')
            srd(a, 56, 36, 256)
            a.I(f's_cmp_lg_u32 s2, {OPT["dbg"]-1}')
            a.I(f's_cbranch_scc1 {N}_end')
            a.I(f's_and_b32 s3, s9, 3')
            a.I(f's_cmp_lg_u32 s3, 0')
            a.I(f's_cbranch_scc1 {N}_end')
            a.I('s_mov_b64 exec, 1')
            a.I(f'v_mov_b32 v{T0}, 0')
            a.I('s_lshr_b32 s5, s9, 2')
            a.I('s_mul_i32 s5, s5, 28')
            sel = [2,4,5,8,10,13,15]
            selh = [3,4,5,7,8,10,13]
            a.I('s_sub_u32 s94, s94, s92')
            a.I('s_add_u32 s94, s94, s64')
            for k in range(7):
                a.I(f's_cmp_eq_u32 s9, 0')
                a.I(f's_cselect_b32 s3, s{64+2*sel[k]}, s{64+2*selh[k]}')
                a.I(f's_sub_u32 s3, s3, s64')
                a.I(f'v_mov_b32 v{T1}, s3')
                a.I(f'buffer_store_dword v{T1}, v{T0}, s[56:59], s5 offen offset:{8+4*k}')
            a.I(f's_branch {N}_end')
        a.dump_stamps(14, 48, WS_STAMP, 9, T0, T1)
        a.I(f'''
        v_lshlrev_b32 v{T0}, 2, v{vL}
        s_getreg_b32 s4, hwreg(HW_REG_HW_ID)
        v_writelane_b32 v0, s4, 15
        s_lshl_b32 s3, s2, 3
        s_add_u32 s3, s3, s9
        s_lshl_b32 s3, s3, 7
        s_add_u32 s3, s3, {WS_STAMP + 262144}
        s_mov_b32 exec_hi, 0
        buffer_store_dword v0, v{T0}, {W}, s3 offen
        ''')
    a.L(f'{N}_end')
    a.I('s_endpgm')
    for s in range(0, 10, 2):
        a.L(f'{N}_rt{s}')
        a.I(f"""
        s_add_u32 s19, s19, 1
        s_cmp_gt_u32 s19, {SPIN}
        s_cbranch_scc1 {N}_go{s}
        """)
        if OPT['rl']:
            for u in range(s, min(s + OPT['rl'], 10)):
                a.I(f'buffer_load_dwordx4 {vr(AF+4*u,4)}, v{vA}, {W}, s{CS[u//2]} offen offset:{(u%2)*2048} sc1')
            a.I('s_waitcnt vmcnt(0)')
        else:
            a.I(f's_call_b64 {RET}, {N}_cl{s}')
        a.I(f's_branch {N}_ck{s}')
    for s in range(0, 20, 2):
        a.L(f'{N}_hrt{s}')
        a.I(f"""
        s_add_u32 s18, s18, 1
        s_cmp_gt_u32 s18, {SPIN}
        s_cbranch_scc1 {N}_hgo{s}
        s_add_u32 s3, s21, {40960 + s*2048}
        s_add_u32 s4, s3, 4096
        """)
        for u in range(s, min(s + 4, 20)):
            a.I(f'buffer_load_dwordx4 {vr(AF+4*u,4)}, v{vA}, {W}, s{3+(u-s)//2} offen offset:{(u%2)*2048} sc1')
        a.I(f's_waitcnt vmcnt(0)')
        a.I(f's_branch {N}_hck{s}')
    for s in range(10):
        a.L(f'{N}_cl{s}')
        a.I(f'buffer_load_dwordx4 {vr(AF+4*s,4)}, v{vA}, {W}, s{CS[s//2]} offen offset:{(s%2)*2048} sc1')
    a.I(f's_setpc_b64 {RET}')
    a.L(f'{N}_last')
    return a.text()

def build(path):
    hdr = open('gated_mix__grouped_kv_mqa__sliding_local_dilated__prompt.s.ref').read().split('\n')
    head = [l for l in hdr if l.startswith(';') and '@launch' not in l]
    s = '\n'.join(head) + '\n'
    s += f'; @launch grid=(256,1,1) block=(512,1,1) lds={LDS}\n'
    s += '.amdgcn_target "amdgcn-amd-amdhsa--gfx950"\n.text\n'
    s += gen()
    s += '.section .rodata,"a"\n'
    s += kernel_desc(KNAME, 256, 0, 102)
    open(path, 'w').write(s)

if __name__ == '__main__':
    for arg in sys.argv[2:]:
        if arg == 'stamps': STAMPS = True
        elif '=' in arg:
            k, v = arg.split('='); OPT[k] = int(v)
    build(sys.argv[1])
```

```python
import math, sys
from asmlib import *

WS_QKB = 0
QKB_PT = 81920
WS_VBT = 64 * QKB_PT
VBT_NT = 131072
WS_KVF = WS_VBT + 20 * VBT_NT
KVT = 2816
KV_K2, KV_C, KV_V1, KV_V2 = 1024, 1280, 1408, 2080
WS_G = WS_KVF + 64 * KVT
WS_FLG = WS_G + 8192
WS_FG = WS_FLG + 8192
FG = 48 * 128
WS_OAB = WS_FG + 32 * FG
OAB_PT = 81920
WS_STAMP = WS_OAB + 64 * OAB_PT
WS_END = WS_STAMP + 524288
STAMPS = False
CSCALE = math.log2(math.e) / math.sqrt(20.0)
QBSCALE = 1.0
MF16 = 'v_mfma_f32_16x16x32_bf16'
MF32 = 'v_mfma_f32_32x32x16_bf16'
MF32h = 'v_mfma_f32_32x32x8_bf16'
KNAME = 'gated_mix__grouped_kv_mqa__sliding_local_dilated__prompt_kernel'

XT = 0
SLOT = [81920, 102400, 122880]
EXB = 122880
QX = 81920
SYNC = 161792
C_X, C_W, C_Q, C_H, C_N, C_2, C_3, C_F, C_R, C_S2, C_S3 = 0, 8, 16, 36, 40, 48, 52, 56, 60, 64, 68
C_T, C_M, C_P, C_B, C_E, C_S1, C_A, C_QH = 72, 76, 80, 96, 112, 116, 128, 120
GV = 162048
GL = 163328
LDS = 163840
HR = 122880
RA = 0
RB = 102400
EXA = 51200
PART = 51200
SPIN = 200000

OPT = dict(cpg=0, l01=0, b0x=1, n5=1, subs=1, cpe=1, h2l=0, cin=0, rl=4, h2m=1, fs=0, xpub=10, w2e=0, wprio=1, wsleep=1, boost=0, xprio=3, cprio=1, bj=0, kg=39, swapx=0, hpf=0, jeven=1, peel=1, kvpf=0, lk=4, eprio=3, pre1=0, p1m=1, cl=0, s3b=8, dstart=12, att2=1, gp=3, par=0, par3=0, ffin=1, ct=0, wqpf=0, tlb=0, dbg=0, st2=2, d1=4, h3prio=1, h3sw=99, h2prio=3, h2d=1, AW=12, w0early=0, cpf=1, npre=2, hstart=2, wsub=3, psleep=2, PD=1, aprio=2, hprio=0, p1start=2, wstart=5, NB=8, nosc1=0, noatt=0, map2=1, pf=8, sprio=0, pf0=3, mprio=0, p1sleep=2, kvtest=0, vprio=1)

def srd(a, d, base, size):
    a.I(f's_mov_b32 s{d}, s{base}')
    a.I(f's_mov_b32 s{d+1}, s{base+1}')
    a.I(f's_mov_b32 s{d+2}, {size}')
    a.I(f's_mov_b32 s{d+3}, 0x20000')

def gen():
    a = Asm()
    a.stamps = STAMPS
    N = 'F'
    W = 's[48:51]'
    vL, vH, vP = 1, 2, 3
    T0, T1, T2, T3, T4, T5 = 4, 5, 6, 7, 8, 9
    vC, vG4 = 10, 11
    RET = 's[98:99]'
    ex = lambda r: a.I(f'v_exp_f32 v{r}, v{r}')
    cv = lambda d, s: a.I(f'v_cvt_pk_bf16_f32 v{d}, v{s}, v{s+1}')
    def lab():
        a.nlabel += 1
        return f'{N}_l{a.nlabel}'
    def ldswait(word, target, vt, va, sleep=1, hp=None):
        l = lab()
        a.I(f'v_mov_b32 v{va}, {SYNC}')
        a.I('s_mov_b32 s4, 0')
        a.L(l)
        a.I(f'''
        ds_read_b32 v{vt}, v{va} offset:{word}
        s_add_u32 s4, s4, 1
        s_waitcnt lgkmcnt(0)
        v_readfirstlane_b32 s3, v{vt}
        s_cmp_ge_u32 s3, {target}
        s_cbranch_scc1 {l}_ok
        ''')
        if hp is not None: a.I(f's_setprio {OPT["vprio"]}')
        if sleep: a.I(f's_sleep {sleep}')
        a.I(f'''
        s_cmp_lt_u32 s4, {SPIN*8}
        s_cbranch_scc1 {l}
        ''')
        a.L(l + '_ok')
        if hp is not None: a.I(f's_setprio {hp}')
    def arrive(word, va=T0, vd=T1):
        a.I(f'''
        v_mov_b32 v{va}, {SYNC}
        v_mov_b32 v{vd}, 1
        s_mov_b64 exec, 1
        ds_add_u32 v{va}, v{vd} offset:{word}
        s_mov_b64 exec, -1
        ''')

    def zero(r0, r1):
        assert r0 % 2 == 0 and r1 % 2 == 0
        for r in range(r0, r1, 2):
            a.I(f'v_mov_b64 {vr(r,2)}, 0')
    def vstamp(lane):
        if STAMPS:
            a.I(f's_memtime s[100:101]\ns_waitcnt lgkmcnt(0)\nv_writelane_b32 v0, s100, {lane}')
    def getnonce(vt, va):
        l = lab()
        a.I(f'v_mov_b32 v{va}, {SYNC}')
        a.I('s_mov_b32 s4, 0')
        a.L(l)
        a.I(f'''
        ds_read_b64 {vr(vt,2)}, v{va} offset:{C_N}
        s_add_u32 s4, s4, 1
        s_waitcnt lgkmcnt(0)
        v_readfirstlane_b32 s62, v{vt}
        v_readfirstlane_b32 s63, v{vt+1}
        s_cmp_lg_u32 s62, 0
        s_cbranch_scc1 {l}_ok
        s_cmp_lt_u32 s4, {SPIN*8}
        s_cbranch_scc1 {l}
        ''')
        a.L(l + '_ok')
    def npoll(top, done):
        a.I('s_mov_b32 s4, 0')
        a.L(f'{N}_{top}')
        a.I(f"""
        buffer_load_dwordx2 {vr(T2,2)}, v{T1}, s[56:59], 0 offen sc1
        s_add_u32 s4, s4, 1
        s_waitcnt vmcnt(0)
        v_readfirstlane_b32 s3, v{T2}
        s_cmp_lg_u32 s3, 0
        s_cbranch_scc1 {N}_{done}
        s_sleep 4
        s_cmp_lt_u32 s4, {SPIN}
        s_cbranch_scc1 {N}_{top}
        """)
    def cpf():
        if OPT['cpg']:
            a.I(f"""
            s_getpc_b64 s[40:41]
            {N}_pc:
            s_sub_u32 s40, s40, {N}_pc-{KNAME}
            s_subb_u32 s41, s41, 0
            s_mov_b32 s42, {N}_last-{KNAME}-16
            s_lshl_b32 s3, s6, 11
            v_lshlrev_b32 v{T0}, 4, v{vL}
            v_add_u32 v144, s3, v{T0}
            v_add_u32 v148, 0x400, v144
            v_min_u32 v144, s42, v144
            v_min_u32 v148, s42, v148
            v_mov_b32 v145, s41
            v_mov_b32 v149, s41
            v_add_co_u32 v144, vcc, s40, v144
            v_addc_co_u32 v145, vcc, 0, v145, vcc
            v_add_co_u32 v148, vcc, s40, v148
            v_addc_co_u32 v149, vcc, 0, v149, vcc
            global_load_dwordx4 v[144:147], v[144:145], off
            global_load_dwordx4 v[148:151], v[148:149], off
            """)
            return
        a.I(f"""
        s_getpc_b64 s[40:41]
        {N}_pc:
        s_sub_u32 s40, s40, {N}_pc-{KNAME}
        s_subb_u32 s41, s41, 0
        s_mov_b32 s42, {N}_last-{KNAME}
        s_mov_b32 s43, 0x20000
        s_lshl_b32 s3, s6, 11
        v_lshlrev_b32 v{T0}, 4, v{vL}
        buffer_load_dwordx4 v[144:147], v{T0}, s[40:43], s3 offen
        buffer_load_dwordx4 v[148:151], v{T0}, s[40:43], s3 offen offset:1024
        """)
    a.raw(kernel_header(KNAME))
    a.I('s_cmp_ge_u32 s2, 256')
    a.I(f's_cbranch_scc1 {N}_end')
    a.stamp(0)
    a.I('s_load_dwordx16 s[16:31], s[0:1], 0')
    a.I('s_load_dwordx8 s[32:39], s[0:1], 64')
    a.I(f'''
    v_and_b32 v{vL}, 63, v0
    v_lshrrev_b32 v{T0}, 6, v0
    v_lshrrev_b32 v{vH}, 5, v{vL}
    v_readfirstlane_b32 s9, v{T0}
    v_and_b32 v{vP}, 31, v{vL}
    v_and_b32 v{vC}, 15, v{vL}
    v_lshrrev_b32 v{vG4}, 4, v{vL}
    s_and_b32 s3, s2, 7
    s_lshr_b32 s6, s2, 3
    ''')
    if OPT['cpe']:
        a.I(f's_cmp_lg_u32 s9, {2 if OPT["l01"] else 1}\ns_cbranch_scc1 {N}_nocp')
        cpf()
        a.I('s_and_b32 s3, s2, 7')
        a.L(f'{N}_nocp')
    if not OPT['map2']:
        a.I(f'''
        s_lshl_b32 s3, s3, 2
        s_lshr_b32 s5, s6, 3
        s_add_u32 s7, s3, s5
        s_and_b32 s8, s6, 7
        s_cmp_ge_u32 s8, 5
        s_cselect_b32 s3, 5, 0
        s_sub_u32 s60, s8, s3
        s_and_b32 s61, s7, 3
        s_lshl_b32 s3, s61, 1
        s_sub_u32 s96, s8, s3
        s_and_b32 s96, s96, 7
        ''')
    else:
        a.I(f'''
        s_lshr_b32 s4, s3, 1
        s_lshl_b32 s4, s4, 3
        s_lshr_b32 s5, s6, 2
        s_add_u32 s7, s4, s5
        {'s_not_b32 s3, s3' if OPT['swapx'] else ''}
        s_and_b32 s3, s3, 1
        s_lshl_b32 s3, s3, 2
        s_and_b32 s60, s6, 3
        s_add_u32 s8, s3, s60
        s_cmp_ge_u32 s5, 5
        s_cselect_b32 s3, 5, 0
        s_sub_u32 s61, s5, s3
        s_sub_u32 s96, s8, s5
        s_and_b32 s96, s96, {3 if OPT['jeven'] else 7}
        ''')
        if OPT['jeven']: a.I('s_and_b32 s3, s8, 4\ns_or_b32 s96, s96, s3')
    vSY, vOne = 22, 23
    vXa, vWa, vEa = 16, 24, 18
    a.I(f"""
    s_and_b32 s10, s9, 1
    s_cmp_ge_u32 s9, 4
    s_cbranch_scc1 {N}_hi
    s_cmp_{'ge' if OPT['l01'] else 'lt'}_u32 s9, 2
    s_cbranch_scc1 {N}_lo
    """)
    a.I(f"""
    s_lshl_b32 s3, s7, 6
    s_lshl_b32 s4, s10, 4
    s_add_u32 s3, s3, s4
    v_lshrrev_b32 v{T0}, 3, v{vL}
    v_and_b32 v{T1}, 7, v{vL}
    v_xor_b32 v{T3}, v{vG4}, v{T1}
    v_add_u32 v{T2}, s3, v{T0}
    v_mul_u32_u24 v{T2}, 1280, v{T2}
    v_lshl_add_u32 v{vXa}, v{T3}, 4, v{T2}
    v_xor_b32 v{T3}, 4, v{T3}
    v_lshl_add_u32 v{vXa+1}, v{T3}, 4, v{T2}
    v_add_u32 v{vXa+1}, {8*1280}, v{vXa+1}
    s_lshl_b32 s11, s10, 10
    v_lshlrev_b32 v{vEa}, 4, v{vL}
    s_and_b32 s3, s96, 1
    s_mul_i32 s13, s3, 40960
    s_lshl_b32 s12, s3, 12
    s_lshl_b32 s4, s10, 11
    s_add_u32 s12, s12, s4
    s_lshl_b32 s3, s10, 2
    s_add_u32 s3, s3, {SYNC + C_X}
    v_mov_b32 v{vSY}, s3
    s_waitcnt lgkmcnt(0)
    """)
    srd(a, 40, 16, 2048 * 1280)
    q = []
    def issue(kind, slot=None):
        if kind == 'X':
            a.I(f's_call_b64 {RET}, {N}_xissue'); q.append(4)
        elif kind == 'E':
            a.I(f's_call_b64 {RET}, {N}_eissue'); q.append(7)
        else:
            a.I(f's_mov_b32 s15, {SLOT[slot]}')
            a.I(f's_call_b64 {RET}, {N}_wissue'); q.append(10)
    npub = [0]
    def pub(val=None, nowait=False):
        if val is None:
            q.pop(0)
            npub[0] += 1
            val = npub[0]
        else:
            q.clear()
        a.I(f'v_mov_b32 v{vOne}, {val}')
        if not nowait: a.I(f's_waitcnt vmcnt({sum(q)})')
        a.I(f'ds_write_b32 v{vSY}, v{vOne}')
        vstamp(16 + min(val, 6))
    flip = f"""
    s_xor_b32 s13, s13, 40960
    s_xor_b32 s12, s12, 4096
    """
    def xsubs():
        a.L(f'{N}_eissue')
        a.I(f"""
        s_mul_i32 s14, s60, 5120
        s_add_u32 s4, s14, s11
        s_add_u32 m0, s4, {EXB}
        s_add_u32 s14, s14, 4096
        buffer_load_dwordx4 v{vEa}, s[52:55], s4 offen lds
        buffer_load_dwordx4 v{vEa}, s[52:55], s4 offen offset:2048 lds
        s_add_u32 m0, s14, {EXB}
        s_nop 0
        buffer_load_dwordx4 v{vEa}, s[52:55], s14 offen lds
        """)
        a.L(f'{N}_xissue')
        a.I(f"""
        s_lshl_b32 s14, s60, 8
        s_add_u32 s14, s14, s13
        s_lshl_b32 s15, s60, 14
        s_add_u32 s15, s15, s12
        """)
        for c in range(2):
            for n in range(2):
                a.I(f's_add_u32 m0, s15, {c*8192 + n*1024}')
                a.I(f's_add_u32 s4, s14, {c*128}')
                a.I(f'buffer_load_dwordx4 v{vXa+n}, s[40:43], s4 offen lds')
        a.I(f"""
        s_add_u32 s60, s60, 1
        s_cmp_eq_u32 s60, 5
        s_cselect_b32 s60, 0, s60
        s_setpc_b64 {RET}
        """)
    if OPT['subs']:
        a.I(f's_branch {N}_xmain')
        xsubs()
        a.L(f'{N}_xmain')
    if not OPT['b0x']: a.I('s_barrier')
    a.I(f"""
    s_cmp_ge_u32 s96, 4
    s_cbranch_scc1 {N}_noex
    s_cmp_lt_u32 s96, 2
    s_cselect_b32 s52, s20, s22
    s_cselect_b32 s53, s21, s23
    s_mov_b32 s54, 25600
    s_mov_b32 s55, 0x20000
    """)
    for n in range(4):
        issue('E')
        if n + 1 == OPT['b0x']: a.I('s_barrier')
    pub(); issue('E'); a.I(flip)
    for _ in range(4):
        pub(); issue('X')
    issue('X')
    a.I(f's_branch {N}_xdone')
    a.L(f'{N}_noex')
    a.I(f"""
    s_cmp_lg_u32 s96, 4
    s_cbranch_scc1 {N}_nog
    """)
    srd(a, 52, 32, 1280)
    a.I(f"""
    s_add_u32 m0, s11, {GV}
    s_cmp_eq_u32 s10, 0
    s_cselect_b32 exec_lo, -1, 0xffff
    s_cselect_b32 exec_hi, -1, 0
    buffer_load_dwordx4 v{vEa}, s[52:55], s11 offen lds
    s_mov_b64 exec, -1
    """)
    a.L(f'{N}_nog')
    for n in range(10):
        if n == 5: a.I(flip)
        issue('X')
        if n + 1 == OPT['b0x']: a.I('s_barrier')
        if n + 1 == OPT['xpub']: pub(5, nowait=True)
    a.L(f'{N}_xdone')
    pub(10)
    a.I(f's_branch {N}_work')
    a.L(f'{N}_hi')
    a.I(f"""
    s_barrier
    s_waitcnt lgkmcnt(0)
    """)
    def wqpf():
        srd(a, 52, 18, 819200)
        a.I(f"""
        s_lshl_b32 s3, s6, 1
        s_add_u32 s3, s3, s10
        s_mul_i32 s15, s3, 12800
        s_lshr_b32 s3, s8, 2
        s_mul_i32 s3, s3, 640
        s_add_u32 s15, s15, s3
        s_call_b64 {RET}, {N}_wpf
        """)
    if OPT['wqpf'] == 1:
        a.I(f's_cmp_lt_u32 s9, 6\ns_cbranch_scc1 {N}_nopf')
        wqpf()
        a.L(f'{N}_nopf')
    a.I(f"""
    {'' if OPT['w0early'] else f's_call_b64 {RET}, {N}_hsetup'}
    s_cmp_ge_u32 s9, 6
    s_cbranch_scc1 {N}_wload
    {f's_call_b64 {RET}, {N}_hsetup' if OPT['w0early'] else ''}
    """)
    if OPT['n5']:
        a.I(f's_cmp_lg_u32 s9, 5\ns_cbranch_scc1 {N}_n6')
        srd(a, 56, 36, 256)
        a.I(f'v_mov_b32 v{T1}, 0')
        npoll('n4', 'n5')
        a.L(f'{N}_n5')
        a.I(f'v_mov_b32 v{T0}, {SYNC}\nds_write_b64 v{T0}, {vr(T2,2)} offset:{C_N}')
        vstamp(22)
        a.L(f'{N}_n6')
    a.I(f"""
    s_cmp_eq_u32 s96, 4
    s_cbranch_scc1 {N}_extra
    s_cmp_gt_u32 s96, 4
    s_cbranch_scc1 {N}_hpre2
    s_cmp_eq_u32 s9, 5
    s_cbranch_scc1 {N}_hpre2
    s_branch {N}_extra
    """)
    a.L(f'{N}_wload')
    if OPT['wqpf'] == 2: wqpf()
    a.I(f's_mul_i32 s3, s8, 160')
    for n in range(5):
        a.I(f"""
        v_add_u32 v{T0}, {n*64}, v{vL}
        v_mul_u32_u24 v{T1}, 6554, v{T0}
        v_lshrrev_b32 v{T1}, 16, v{T1}
        v_mul_u32_u24 v{T2}, 160, v{T1}
        v_lshlrev_b32 v{T0}, 4, v{T0}
        v_sub_u32 v{T0}, v{T0}, v{T2}
        v_bfe_u32 v{T2}, v{T1}, 1, 2
        v_and_b32 v{T3}, 1, v{T1}
        v_lshl_add_u32 v{T2}, v{T3}, 2, v{T2}
        v_and_b32 v{T1}, 24, v{T1}
        v_add_u32 v{T1}, v{T1}, v{T2}
        v_mul_u32_u24 v{T1}, 1280, v{T1}
        v_add3_u32 v{vWa+n}, v{T1}, v{T0}, s3
        """)
    srd(a, 44, 18, 819200)
    a.I(f"""
    s_lshl_b32 s3, s10, 2
    s_add_u32 s3, s3, {SYNC + C_W}
    v_mov_b32 v{vSY}, s3
    s_mul_i32 s11, s10, {64*1280}
    s_mul_i32 s13, s10, 10240
    """)
    if OPT['w0early']:
        a.I(f's_cmp_lt_u32 s96, 4')
        a.I(f's_cbranch_scc1 {N}_w0a')
        issue('W', 0); q.clear()
        a.L(f'{N}_w0a')
        a.I(f's_call_b64 {RET}, {N}_hsetup')
    if not OPT['h2l']: a.I(f's_call_b64 {RET}, {N}_hsetup2')
    if OPT['wqpf'] == 3: wqpf()
    if OPT['wqpf'] == 4:
        a.I(f's_cmp_ge_u32 s96, 4\ns_cbranch_scc1 {N}_nopf')
        wqpf()
        a.L(f'{N}_nopf')
    vstamp(16)
    npub[0] = 0
    ldswait(C_X, OPT['wstart'], T0, T1, sleep=1)
    if OPT['w0early']:
        a.I(f's_cmp_ge_u32 s96, 4')
        a.I(f's_cbranch_scc1 {N}_w0b')
    issue('W', 0)
    a.L(f'{N}_w0b')
    issue('W', 1)
    if OPT['h2l']: a.I(f's_call_b64 {RET}, {N}_hsetup2')
    if OPT['w2e']:
        a.I(f's_cmp_lt_u32 s96, 4')
        a.I(f's_cbranch_scc1 {N}_jw')
        q0, n0 = list(q), npub[0]
        issue('W', 2); pub()
        a.I(f's_branch {N}_nof2')
        a.L(f'{N}_jw')
        q[:] = q0; npub[0] = n0
    pub()
    a.I(f's_cmp_ge_u32 s96, 4')
    a.I(f's_cbranch_scc1 {N}_nof')
    ldswait(C_F, 1, T0, T1, sleep=1)
    a.L(f'{N}_nof')
    issue('W', 2)
    a.L(f'{N}_nof2')
    pub()
    a.I(f"""
    s_cmp_eq_u32 s10, 0
    s_cselect_b32 s3, {SYNC + C_QH}, {SYNC + C_Q}
    v_mov_b32 v{T1}, s3
    """.replace(f's_cselect_b32 s3, {SYNC + C_QH}, {SYNC + C_Q}', f's_cselect_b32 s3, {C_QH - C_Q}, 0\ns_add_u32 s3, s3, {SYNC + C_Q}'))
    for st in (3, 4):
        a.I('s_mov_b32 s4, 0')
        a.L(f'{N}_wq{st}')
        a.I(f"""
        ds_read_b32 v{T0}, v{T1} offset:{4*(st-3)}
        s_add_u32 s4, s4, 1
        s_waitcnt lgkmcnt(0)
        v_readfirstlane_b32 s3, v{T0}
        s_cmp_ge_u32 s3, 4
        s_cbranch_scc1 {N}_wq{st}_ok
        s_cmp_lt_u32 s4, {SPIN*8}
        s_cbranch_scc1 {N}_wq{st}
        """)
        a.L(f'{N}_wq{st}_ok')
        issue('W', st - 3); pub()
    pub()
    a.stamp(1)
    a.I(f's_branch {N}_hpre')
    if not OPT['subs']: xsubs()
    a.L(f'{N}_wissue')
    a.I(f"""
    s_mul_i32 s14, s61, {128*1280}
    s_add_u32 s14, s14, s11
    s_add_u32 s15, s15, s13
    """)
    for g in range(2):
        for n in range(5):
            a.I(f's_add_u32 m0, s15, {g*5120 + n*1024}')
            a.I('s_nop 0' if (g, n) != (1, 0) else f's_add_u32 s14, s14, {32*1280}')
            a.I(f'buffer_load_dwordx4 v{vWa+n}, s[44:47], s14 offen lds')
    a.I(f"""
    s_add_u32 s61, s61, 1
    s_cmp_eq_u32 s61, 5
    s_cselect_b32 s61, 0, s61
    s_setpc_b64 {RET}
    """)

    a.L(f'{N}_lo')
    vXB = 12
    def xbases(vXB=12):
        a.I(f"""
        v_lshrrev_b32 v{T0}, 1, v{vP}
        v_and_b32 v{T0}, 7, v{T0}
        v_xor_b32 v{T0}, v{T0}, v{vH}
        v_lshlrev_b32 v{T1}, 7, v{vP}
        """)
        for ks in range(4):
            a.I(f'v_xor_b32 v{T2}, {2*ks}, v{T0}')
            a.I(f'v_lshl_add_u32 v{vXB+ks}, v{T2}, 4, v{T1}')
    a.I(f"""
    s_cmp_lg_u32 s9, {3 if OPT['l01'] else 0}
    s_cbranch_scc1 {N}_notpoll
    v_lshlrev_b32 v{T0}, 2, v{vL}
    v_add_u32 v{T0}, {SYNC}, v{T0}
    v_mov_b32 v{T1}, 0
    ds_write_b32 v{T0}, v{T1}
    s_waitcnt lgkmcnt(0)
    """)
    srd(a, 56, 36, 256)
    a.I(f"""
    s_cmp_lg_u32 s2, 0
    s_cbranch_scc1 {N}_n1
    s_memrealtime s[62:63]
    s_waitcnt lgkmcnt(0)
    s_or_b32 s62, s62, 1
    v_mov_b32 v{T2}, s62
    v_mov_b32 v{T3}, s63
    s_mov_b64 exec, 1
    buffer_store_dwordx2 {vr(T2,2)}, v{T1}, s[56:59], 0 offen sc1
    s_mov_b64 exec, -1
    s_barrier
    s_branch {N}_n2
    """)
    a.L(f'{N}_n1')
    a.I('s_barrier')
    if OPT['n5']: a.I(f's_branch {N}_work')
    else: npoll('n3', 'n2')
    a.L(f'{N}_n2')
    a.I(f"""
    v_mov_b32 v{T0}, {SYNC}
    ds_write_b64 v{T0}, {vr(T2,2)} offset:{C_N}
    """)
    vstamp(22)
    a.I(f's_branch {N}_work')
    a.L(f'{N}_notpoll')
    if OPT['cpf'] and not OPT['cpe']: cpf()
    if OPT['tlb']:
        a.I(f"""
        s_mul_i32 s3, s7, {2*QKB_PT}
        s_add_u32 s4, s3, {WS_OAB}
        s_mul_i32 s5, s7, 81920
        s_mul_i32 s10, s8, {VBT_NT*5//2}
        s_add_u32 s10, s10, {WS_VBT}
        s_mov_b32 s11, {WS_KVF}
        s_mov_b32 s12, 0x12c000
        s_mov_b32 s13, 0x250000
        s_waitcnt lgkmcnt(0)
        s_load_dword s97, s[18:19], 0
        s_load_dword s97, s[38:39], s11
        s_load_dword s97, s[18:19], 0xc0000
        s_load_dword s97, s[28:29], 0
        s_load_dword s97, s[28:29], s12
        s_load_dword s97, s[28:29], s13
        s_load_dword s97, s[38:39], s3
        s_load_dword s97, s[38:39], s10
        s_load_dword s97, s[38:39], s4
        s_load_dword s97, s[24:25], 0
        s_load_dword s97, s[24:25], 0xc0000
        s_load_dword s97, s[30:31], 0
        s_load_dword s97, s[30:31], 0xc0000
        s_load_dword s97, s[34:35], s5
        """)
    a.I(f"""
    s_barrier
    """)
    a.L(f'{N}_work')
    vXQ = 90
    xbases(vXQ)
    vW0, vW1 = 106, 107
    vCX = 16
    vWB_, vCW = 20, 21
    FACC = 24
    FX = 56
    FWf = 88
    CNT = 104
    def worksetup():
        a.I(f"""
        v_bfe_u32 v{T0}, v{vL}, 2, 2
        v_lshl_add_u32 v{vW0}, v{vH}, 3, v{T0}
        v_and_b32 v{T1}, 3, v{vL}
        v_bfe_u32 v{T2}, v{vL}, 4, 1
        v_lshl_add_u32 v{T1}, v{T2}, 2, v{T1}
        v_min_u32 v{T1}, 4, v{T1}
        v_lshlrev_b32 v{vW1}, 3, v{T1}
        v_mov_b32 v{vSY}, {SYNC}
        v_mov_b32 v{vOne}, 1
        """)
        zero(FACC, FACC+16)
        a.I('s_waitcnt lgkmcnt(0)')
        srd(a, 48, 38, WS_END)
        a.I(f"""
        s_mov_b32 s5, 0
        s_mov_b32 s10, 0
        """)
    worksetup()
    def cntwait(top, need, first='s_waitcnt lgkmcnt(0)', off=C_X, CNT=CNT):
        if first: a.I(first)
        a.L(top)
        a.I(f"""
        v_readfirstlane_b32 s3, v{CNT}
        v_readfirstlane_b32 s4, v{CNT+1}
        s_min_u32 s3, s3, s4
        s_cmp_ge_u32 s3, {need}
        s_cbranch_scc1 {top}_go
        {f's_sleep {OPT["fs"]}' if OPT['fs'] and CNT != 104 else ''}
        ds_read_b64 {vr(CNT,2)}, v{vSY} offset:{off}
        s_add_u32 s5, s5, 1
        s_cmp_lt_u32 s5, {SPIN*8}
        s_waitcnt lgkmcnt(0)
        s_cbranch_scc1 {top}
        """)
        a.L(top + '_go')
    vK1a, vK2a, vVa, vG = 12, 13, 14, 15
    Q1, Q2 = 16, 32
    P = 40
    S = [48, 64]
    O = 80
    NB = OPT['NB']
    KVB = 144
    def K1(b): return KVB + 14 * b
    def V1(b): return KVB + 14 * b + 4
    def V2(b): return KVB + 14 * b + 8
    def K2(b): return KVB + 14 * b + 12
    KZ = K1(NB-1); KZ2 = K2(NB-1)
    SC = '' if OPT['nosc1'] else ' sc1'
    srd(a, 44, 38, WS_END)
    QC = 88
    QW = 56
    XR = list(range(240, 256, 4)) + list(range(144, 172, 4)) + list(range(96, 144, 4)) + list(range(172, 240, 4))
    assert len(XR) == 40
    a.I(f"""
    ds_read_b64 {vr(QC,2)}, v{vSY}
    v_bfe_u32 v{T0}, v{vL}, 2, 2
    v_add_u32 v{T0}, v{T0}, v{vW0}
    v_mul_u32_u24 v{T0}, 160, v{T0}
    s_setprio 2
    s_and_b32 s10, s9, 1
    s_lshr_b32 s11, s9, 1
    s_mul_i32 s3, s11, 80
    v_add3_u32 v{vWB_}, v{T0}, v{vW1}, s3
    v_lshlrev_b32 v{vK1a}, 4, v{vL}
    v_lshlrev_b32 v{vK2a}, 3, v{vL}
    v_min_u32 v{vK2a}, 256, v{vK2a}
    v_mul_u32_u24 v{vVa}, 336, v{vH}
    v_lshl_add_u32 v{vVa}, v{vP}, 4, v{vVa}
    v_mov_b32 v{T3}, 0x7fffff00
    v_cmp_gt_u32 vcc, 21, v{vP}
    s_mul_i32 s12, s11, {32*KVT}
    s_add_u32 s12, s12, {WS_KVF}
    v_cndmask_b32 v{vVa}, v{T3}, v{vVa}, vcc
    s_add_u32 s13, s12, {32*KVT}
    s_mul_i32 s14, s6, {KVT}
    s_add_u32 s14, s14, s12
    s_mov_b32 s15, {WS_KVF}
    s_lshl_b32 s3, s9, 12
    s_add_u32 s3, s3, {QX}
    v_add_u32 v{T0}, s3, v{vK1a}
    v_xor_b32 v{T1}, 8192, v{T0}
    s_lshl_b32 s3, s9, 2
    s_add_u32 s3, s3, {SYNC + C_A}
    v_mov_b32 v{T2}, s3
    s_xor_b32 s3, s96, s10
    s_and_b32 s3, s3, 5
    s_cselect_b32 s18, 10, 5
    s_lshl_b32 s19, s10, 12
    v_add_u32 v{vCW}, {SLOT[0]}, v{vWB_}
    s_waitcnt vmcnt(0)
    """)
    assert QX % 16384 == 0 and (SYNC + C_A) % 16 == 0
    a.I(f'''
    s_lshl_b32 s3, s7, 1
    s_add_u32 s20, s3, s10
    s_xor_b32 s3, s9, 2
    s_mul_i32 s3, s3, 6144
    s_add_u32 s29, s3, {EXA}
    s_mul_i32 s3, s9, 6144
    s_add_u32 s30, s3, {EXA}
    s_lshl_b32 s3, s10, 7
    s_add_u32 s3, s3, {GL}
    v_lshlrev_b32 v{vG}, 2, v{vP}
    v_add_u32 v{vG}, s3, v{vG}
    s_lshl_b32 s3, s9, 2
    s_add_u32 s31, s3, {SYNC + C_B}
    s_mul_i32 s36, s20, {OAB_PT}
    s_mul_i32 s3, s8, 5120
    s_add_u32 s36, s36, s3
    s_add_u32 s36, s36, {WS_OAB}
    s_xor_b32 s4, s11, 1
    s_lshl_b32 s3, s4, 11
    s_add_u32 s37, s36, s3
    s_lshl_b32 s3, s4, 9
    s_add_u32 s40, s36, s3
    s_add_u32 s40, s40, 4096
    s_mov_b32 s42, {f32hex(2.0**100)}
    ''')
    zero(FACC+16, FACC+32)
    def qreads(ks, tag):
        b = ks % 4
        for j in range(2):
            for h in range(2):
                a.LG(f'ds_read_b64_tr_b16 {vr(QW+b*8+j*4+2*h,2)}, v{vCW} offset:{(ks*16+h)*160 + 40*j}', tag)
    def loadK(r1, r2, so):
        a.I(f'buffer_load_dwordx4 {vr(r1,4)}, v{vK1a}, {W}, {so} offen{SC}')
        a.I(f'buffer_load_dwordx2 {vr(r2,2)}, v{vK2a}, {W}, {so} offen offset:{KV_K2}{SC}')
    def loadV(b, so):
        a.I(f'buffer_load_dwordx4 {vr(V1(b),4)}, v{vVa}, {W}, {so} offen offset:{KV_V1}{SC}')
        a.I(f'buffer_load_dwordx4 {vr(V2(b),4)}, v{vVa}, {W}, {so} offen offset:{KV_V2}{SC}')
    adv = [f's_add_u32 s14, s14, {KVT}', 's_cmp_eq_u32 s14, s13', 's_cselect_b32 s14, s12, s14']
    def ldtile(b):
        if b == 0: loadK(KZ, KZ2, 's15')
        loadK(K1(b), K2(b), 's14'); loadV(b, 's14')
        for i in adv: a.I(i)
    cntwait(f'{N}_qwx', 's18', CNT=QC)
    vstamp(24)
    for st in range(5):
        a.I(f"""
        s_lshl_b32 s3, s61, 14
        s_add_u32 s3, s3, s19
        s_add_u32 s61, s61, 1
        s_cmp_eq_u32 s61, 5
        s_cselect_b32 s61, 0, s61
        """)
        for k in range(4):
            a.I(f'v_add_u32 v{vCX+k}, s3, v{vXQ+k}')
        for ks in range(8):
            a.I(f'ds_read_b128 {vr(XR[st*8+ks],4)}, v{vCX+(ks&3)} offset:{(ks>>2)*8192}')
    def wwait(top, need, h, first=None):
        if first: a.I(first)
        a.L(top)
        a.I(f"""
        v_readfirstlane_b32 s3, v{QC+h}
        s_cmp_ge_u32 s3, {need}
        s_cbranch_scc1 {top}_go
        {'s_sleep 1' if OPT['fs'] and first else ''}
        ds_read_b32 v{QC+h}, v{vSY} offset:{C_W + 4*h}
        s_add_u32 s5, s5, 1
        s_cmp_lt_u32 s5, {SPIN*8}
        s_waitcnt lgkmcnt(0)
        s_cbranch_scc1 {top}
        """)
        a.L(top + '_go')
    a.I(f'ds_read_b64 {vr(QC,2)}, v{vSY} offset:{C_W}')
    wwait(f'{N}_qw0', 1, 0, 's_waitcnt lgkmcnt(0)')
    vstamp(16)
    a.lg = []
    a.LG(f'ds_read_b32 v{QC+1}, v{vSY} offset:{C_W+4}', 'c')
    for ks in range(3): qreads(ks, ks)
    zl = [V1(NB-1) + 2*k for k in range(4)] + list(range(96, 144, 2))
    for g in range(40):
        st, u = divmod(g, 8)
        if u == 5 and st < 4:
            a.wait(lg=lambda t: t == 'c')
            wwait(f'{N}_qw{st+1}', st + 2, 0)
            a.I(f'v_add_u32 v{vCW}, {SLOT[(st+1)%3]}, v{vWB_}')
        if u == 1:
            a.wait(lg=lambda t: t == 'c')
            wwait(f'{N}_qv{st}', st + 1, 1)
        if u in (3, 7) and st < 4:
            a.LG(f'ds_read_b32 v{QC + u//4}, v{vSY} offset:{C_W + 4*(u//4)}', 'c')
        if g + 3 < 40: qreads((u + 3) % 8, g + 3)
        if u == 4 or (u == 0 and st < 2):
            a.I('s_mov_b64 exec, 1')
            a.LG(f'ds_add_u32 v{vSY}, v{vOne} offset:{(C_Q if u else C_QH) + 4*st}', g + 3.5)
            a.I('s_mov_b64 exec, -1')
        if g == OPT['kg'] - 1:
            a.LG(f'ds_read_b32 v{T3}, v{vSY} offset:{C_S1}', g + 1)
        if g == 38:
            a.LG(f'ds_read_b32 v{T4}, v{vSY} offset:{C_Q + 12}', 50)
        a.wait(lg=lambda t: t != 'c' and t <= g)
        b = g % 4
        for j in range(2):
            d = vr(FACC + j * 16, 16)
            a.I(f'{MF32} {d}, {vr(QW + b*8 + j*4, 4)}, {vr(XR[g], 4)}, {d}')
            if g >= 25 and zl:
                a.I(f'v_mov_b64 {vr(zl.pop(0),2)}, 0')
        if g == OPT['kg']:
            a.I(f'v_cmp_ne_u32 vcc, 0, v{T3}')
            a.I(f's_cbranch_vccz {N}_kv1')
            ldtile(0)
            a.L(f'{N}_kv1')
        if STAMPS and u == 6: a.I('s_memtime s[100:101]')
        if STAMPS and u == 1 and st: a.I(f'v_writelane_b32 v0, s100, {24+st}')
    assert not zl
    a.stamp(2)
    R0 = K1(6)
    zero(88, 96); zero(80, 88)
    a.I(f"""
    v_mov_b32 v{R0}, v{T1}
    v_xor_b32 v{R0+1}, 8, v{T2}
    s_waitcnt lgkmcnt(0)
    v_readfirstlane_b32 s18, v{T4}
    v_mov_b32 v{T4}, {f32hex(CSCALE)}
    s_nop 4
    """)
    for j in range(2):
        r = FACC + 16 * j
        for k in range(6):
            a.I(f'v_pk_mul_f32 {vr(r+2*k,2)}, {vr(r+2*k,2)}, {vr(T4,2)} op_sel_hi:[1,0]')
        for k in range(4):
            cv(Q1 + 4*j + k, r + 2 * k)
        cv(Q2 + 2*j, r + 8); cv(Q2 + 2*j + 1, r + 10)
    a.I(f"""
    s_mov_b32 exec_lo, 0
    v_mov_b64 {vr(Q2,2)}, 0
    v_mov_b64 {vr(Q2+2,2)}, 0
    s_mov_b32 exec_lo, -1
    s_cmp_ge_u32 s18, 4
    s_cbranch_scc1 {N}_q3ok
    """)
    ldswait(C_Q + 12, 4, T4, T5, sleep=0)
    a.L(f'{N}_q3ok')
    for j in range(2):
        a.I(f'ds_write_b128 v{T0}, {vr(Q1+4*j,4)} offset:{j*1024}')
    a.stamp(1)
    if STAMPS: a.I('v_writelane_b32 v0, vcc_lo, 23')
    a.I(f's_cbranch_vccnz {N}_kvok')
    ldswait(C_S1, 1, T4, T5, sleep=0)
    ldtile(0)
    a.L(f'{N}_kvok')
    NPRE = OPT['npre']
    vstamp(18)
    zero(P, P+8)
    a.I(f's_waitcnt vmcnt(4)')
    vstamp(19)
    def zmax(t, s):
        a.I(f'v_max3_f32 v{T5}, v{s}, v{s+1}, v{s+2}')
        for k in range(3, 15, 2):
            a.I(f'v_max3_f32 v{T5}, v{T5}, v{s+k}, v{s+k+1}')
        a.I(f'v_max_f32 v{T5}, v{T5}, v{s+15}')
        a.I('s_mov_b32 exec_lo, 0')
        a.I(f'v_cvt_pk_bf16_f32 v{Q2+2*t}, -v{T5}, 0')
        a.I('s_mov_b32 exec_lo, -1')
    def zqk(t, s):
        a.I(f'{MF32} {vr(s,16)}, {vr(KZ,4)}, {vr(Q1+4*t,4)}, 0')
        a.I(f'{MF32h} {vr(s,16)}, {vr(KZ2,2)}, {vr(Q2+2*t,2)}, {vr(s,16)}')
    zqk(0, S[0]); zqk(1, S[1])
    for b in range(1, NPRE): ldtile(b)
    a.I('s_nop 2')
    zmax(0, S[0])
    a.I(f's_waitcnt vmcnt({4*(NPRE-1)})')
    a.I(f'{MF32} {vr(S[0],16)}, {vr(K1(0),4)}, {vr(Q1,4)}, 0')
    a.I(f'{MF32h} {vr(S[0],16)}, {vr(K2(0),2)}, {vr(Q2,2)}, {vr(S[0],16)}')
    zmax(1, S[1])
    a.I(f"""
    ds_write_b128 v{T0}, {vr(Q2,4)} offset:2048
    ds_write_b32 v{T2}, v{T2}
    """)
    rcv = f"""ds_read_b32 v{R0+2}, v{R0+1}
    ds_read_b128 {vr(Q1+8,4)}, v{R0}
    ds_read_b128 {vr(Q1+12,4)}, v{R0} offset:1024
    ds_read_b128 {vr(Q2+4,4)}, v{R0} offset:2048"""
    def recv():
        a.I('s_mov_b32 s4, 0')
        a.L(f'{N}_qx1')
        a.I(f"""
        s_waitcnt lgkmcnt(0)
        v_readfirstlane_b32 s3, v{R0+2}
        s_add_u32 s4, s4, 1
        s_cmp_lg_u32 s3, 0
        s_cbranch_scc1 {N}_qx2
        {rcv}
        s_cmp_lt_u32 s4, {SPIN*8}
        s_cbranch_scc1 {N}_qx1
        """)
        a.L(f'{N}_qx2')
        arrive(C_H, R0, R0+1)
    assert OPT['peel'] and OPT['att2'] and NPRE <= 4
    PEEL = NB - 1 - NPRE if OPT['peel'] else 0
    for b in range(NPRE, NB - 1 - PEEL):
        loadK(K1(b), K2(b), 's14'); loadV(b, 's14')
        for i in adv: a.I(i)
    a.I('s_nop 3')
    a.I(f's_setprio {OPT["aprio"]}')
    a.I('s_mov_b32 s19, 0')
    a.stamp(4)
    if STAMPS:
        a.I('s_mov_b32 m0, 0')
    vq = [b for b in range(1, NPRE) for _ in range(4)]
    Ra, Rb, Rc, Rd, Re, Rf = range(K1(0), K1(0) + 6)
    for b in list(range(-PEEL, 0)) + list(range(NB + 1)):
        peeled = b < 0
        lastt = b == NB
        if lastt:
            a.I(f's_branch {N}_aloop')
            b = NB - 1
        if b == 0:
            if PEEL: a.I(f's_branch {N}_ab{PEEL}')
            a.raw('.p2align 6')
            a.L(f'{N}_aloop')
        if peeled: b += PEEL
        else: a.L(f'{N}_alast' if lastt else f'{N}_ab{b}')
        nb = (b + 1) % NB
        pb = (b - 1) % NB
        W2 = 's[44:47]'
        fill = {(0, 0): f'buffer_load_dwordx4 {vr(K1(pb),4)}, v{vK1a}, {W2}, s14 offen{SC}',
                (0, 2): f'buffer_load_dwordx2 {vr(K2(pb),2)}, v{vK2a}, {W2}, s14 offen offset:{KV_K2}{SC}',
                (1, 0): f'buffer_load_dwordx4 {vr(V1(pb),4)}, v{vVa}, {W2}, s14 offen offset:{KV_V1}{SC}',
                (1, 1): f'buffer_load_dwordx4 {vr(V2(pb),4)}, v{vVa}, {W2}, s14 offen offset:{KV_V2}{SC}',
                (1, 2): adv[0], (2, 0): adv[1], (2, 1): adv[2],
                (2, 2): f's_waitcnt vmcnt({4*(NB-2)})'}
        if OPT['kvtest'] == 1:
            del fill[(0,2)], fill[(1,0)], fill[(1,1)]
            fill[(2,2)] = f's_waitcnt vmcnt({NB-2})'
        if OPT['kvtest'] == 2:
            del fill[(0,0)], fill[(0,2)], fill[(1,0)], fill[(1,1)]
        if b == NB - 1:
            fill[(3, 0)] = 's_add_u32 s19, s19, 1'
        if b == NB - 2:
            fill[(3, 1)] = 's_cmp_eq_u32 s46, 0'
        if b == 0:
            fill[(3, 0)] = f's_cmp_eq_u32 s19, {32//NB - 1}'
            fill[(3, 1)] = 's_cselect_b32 s46, 0, s46'
        sk = (0, 1)
        if peeled:
            fill = {}
            sk = (3, 2)
            slots = [(t, i) for t in range(4) for i in range(3) if (t, i) != (2, 2)]
            for x in ((NPRE + 2*b) % NB, (NPRE + 2*b + 1) % NB):
                assert x != b and (x != pb or len(slots) <= 6)
                its = [f'buffer_load_dwordx4 {vr(K1(x),4)}, v{vK1a}, {W2}, s14 offen{SC}',
                       f'buffer_load_dwordx2 {vr(K2(x),2)}, v{vK2a}, {W2}, s14 offen offset:{KV_K2}{SC}',
                       f'buffer_load_dwordx4 {vr(V1(x),4)}, v{vVa}, {W2}, s14 offen offset:{KV_V1}{SC}',
                       f'buffer_load_dwordx4 {vr(V2(x),4)}, v{vVa}, {W2}, s14 offen offset:{KV_V2}{SC}\n' + adv[0],
                       adv[1] + '\n' + adv[2]]
                for n, it in enumerate(its):
                    sl = slots.pop(0)
                    if sl == (3, 0):
                        last = max(i for i, y in enumerate(vq) if y == nb)
                        fill[(2, 2)] = f's_waitcnt vmcnt({len(vq) - 1 - last})'
                        vq = vq[last + 1:]
                    fill[sl] = it
                    if n < 4: vq.append(x)
        if lastt:
            snd = lambda t: '\n'.join(f'ds_write_b128 v{Ra}, {vr(O+16*t+4*i,4)} offset:{t*3072+i*1024}' for i in range(3))
            fill = {(1, 0): 's_waitcnt vmcnt(0)',
                    (1, 1): f'v_add_u32 v{Ra}, s29, v{vK1a}\nv_add_u32 v{Rb}, s30, v{vK1a}\nv_mov_b32 v{Re}, {SYNC}',
                    (1, 2): f'v_mov_b32 v{Rc}, s31\nv_xor_b32 v{Rd}, 8, v{Rc}',
                    (2, 1): f'ds_read_b32 v{Rf}, v{Re} offset:{C_M}',
                    (3, 0): snd(0), (3, 1): f'ds_read_b32 v{vG}, v{vG}', (3, 2): snd(1) + f'\nds_write_b32 v{Rd}, v{Rd}'}
        if STAMPS and b % 4 == 0:
            fill[sk] = 's_memtime s[96:97]'
        if STAMPS and b % 4 == 1:
            fill[sk] = 's_waitcnt lgkmcnt(0)\nv_writelane_b32 v0, s96, m0\ns_add_u32 m0, m0, 1'
        for t in range(4):
            Sc, Sn = S[t & 1], S[1 - (t & 1)]
            tn, tp = (t + 1) & 3, (t - 1) & 3
            kb = b if t < 3 else nb
            vpb = b if t > 0 else pb
            def F(i):
                if (t, i) in fill: a.I(fill[(t, i)])
            if OPT['att2']:
                Pc, Pp = (4, P) if t % 2 == 0 else (P, 4)
                M = [f'{MF32} {vr(Sn,16)}, {vr(K1(kb),4)}, {vr(Q1+4*tn,4)}, 0',
                     f'{MF32} {vr(O+16*tp,16)}, {vr(V1(vpb),4)}, {vr(Pp,4)}, {vr(O+16*tp,16)}',
                     f'{MF32h} {vr(Sn,16)}, {vr(K2(kb),2)}, {vr(Q2+2*tn,2)}, {vr(Sn,16)}',
                     f'{MF32} {vr(O+16*tp,16)}, {vr(V2(vpb),4)}, {vr(Pp+4,4)}, {vr(O+16*tp,16)}']
                pat = {0: 'MeeeMeeeMeeeMe0ce1ce2cececeeccc',
                       1: 'M0eeeM1eeeMeeeM2eeeeeeecccccccc',
                       2: 'M0eeeeM1eeeeMeeeeM2eeeecccccccc',
                       3: 'M0eeeeM1eeeeMcccceeeeM2eeeecccc',
                       4: 'M0eeeM1eeeM2eeeMecececececeeccc',
                       5: 'M0eeeM1eeeMeeeM2cccceeeeeeecccc',
                       6: 'M0eeeM1eeeMccceeM2eeeeeeeeccccc'}[OPT['gp']]
                ne = nc = nm = 0
                if lastt and t == 3:
                    M[0] = M[2] = ''
                    a.I(f'''
                    s_waitcnt lgkmcnt(0)
                    v_readfirstlane_b32 s3, v{Rf}
                    s_cmp_ge_u32 s3, 4
                    s_cbranch_scc1 {N}_ceok
                    ''')
                    ldswait(C_M, 4, Rf, Re)
                    a.L(f'{N}_ceok')
                for ch in pat:
                    if ch == 'M':
                        a.I(M[nm]); nm += 1
                        if peeled and b == 0 and t == 0 and nm == 4: a.I(rcv)
                    elif ch == 'e': ex(Sc + ne); ne += 1
                    elif ch == 'c':
                        assert 2 * nc + 1 < ne
                        cv(Pc + nc, Sc + 2 * nc); nc += 1
                    else: F(int(ch))
                assert (ne, nc, nm) == (16, 8, 4), (ne, nc, nm)
                if peeled and b == 0 and t == 0: recv()
                if not peeled and b == NB - 2 and t == 3: a.I(f's_cbranch_scc1 {N}_alast')
                continue
            a.I(f'{MF32} {vr(Sn,16)}, {vr(K1(kb),4)}, {vr(Q1+4*tn,4)}, 0'); F(0)
            for k in range(4): ex(Sc + k)
            a.I(f'{MF32} {vr(O+16*tp,16)}, {vr(V2(vpb),4)}, {vr(P+4,4)}, {vr(O+16*tp,16)}'); F(1)
            for k in range(4, 8): ex(Sc + k)
            a.I(f'{MF32h} {vr(Sn,16)}, {vr(K2(kb),2)}, {vr(Q2+2*tn,2)}, {vr(Sn,16)}')
            for k in range(4): cv(P + k, Sc + 2 * k)
            for k in range(8, 12): ex(Sc + k)
            a.I(f'{MF32} {vr(O+16*t,16)}, {vr(V1(b),4)}, {vr(P,4)}, {vr(O+16*t,16)}'); F(2)
            for k in range(12, 16): ex(Sc + k)
            for k in range(4, 8): cv(P + k, Sc + 2 * k)
    a.I(f'''
    v_and_b32 v{vC}, 15, v{vL}
    v_lshrrev_b32 v{vG4}, 4, v{vL}
    {f'{MF32} {vr(O+48,16)}, {vr(V1(NB-1),4)}, {vr(P,4)}, {vr(O+48,16)}' if OPT['att2'] else ''}
    {MF32} {vr(O+48,16)}, {vr(V2(NB-1),4)}, {vr(P+4,4)}, {vr(O+48,16)}
    s_setprio 3
    ''')
    a.stamp(5)
    HDONE = 16
    a.stamp(6)
    a.I('s_mov_b32 s4, 0')
    a.L(f'{N}_bb1')
    a.I(f'ds_read_b32 v{T0}, v{Rc}')
    for k in range(6):
        a.I(f'ds_read_b128 {vr(O+4*k,4)}, v{Rb} offset:{k*1024}')
    a.I(f'''
    s_add_u32 s4, s4, 1
    s_waitcnt lgkmcnt(6)
    v_readfirstlane_b32 s3, v{T0}
    s_cmp_lg_u32 s3, 0
    s_cbranch_scc1 {N}_bb2
    s_sleep 1
    s_cmp_lt_u32 s4, {SPIN*8}
    s_cbranch_scc1 {N}_bb1
    ''')
    a.L(f'{N}_bb2')
    PKO = OK_ = O + 32
    assert OPT['ffin']
    a.I(f'v_mov_b64 {vr(T2,2)}, 0')
    for t in range(2):
        a.I(f's_waitcnt lgkmcnt({3-3*t})')
        for r in (8, 0, 2, 4, 6, 10):
            a.I(f'v_pk_add_f32 {vr(OK_+16*t+r,2)}, {vr(OK_+16*t+r,2)}, {vr(O+12*t+r,2)}')
        if OPT['ffin']:
            a.I(f'v_mov_b32 v{T0+4*t}, v{OK_+16*t+8}')
            a.I(f'v_mov_b32 v{T1+4*t}, v{OK_+16*t+8}')
            for r in range(0, 12, 2):
                a.I(f'v_pk_fma_f32 {vr(T2,2)}, {vr(OK_+16*t+r,2)}, 0, {vr(T2,2)}')
                if r == 2: a.I(f'v_permlane32_swap_b32 v{T0+4*t}, v{T1+4*t}')
                if r == 6: a.I(f'v_rcp_f32 v{T0+4*t}, v{T1+4*t}')
    a.I('s_mov_b32 s41, 0')
    if OPT['ffin']:
        a.I(f'''
        v_add_f32 v{T2}, v{T2}, v{T3}
        v_mul_f32 v{T0}, v{T0}, v{vG}
        v_add_f32 v{T1}, v{T2}, v{T1}
        v_add_f32 v{T5}, v{T2}, v{T5}
        v_mul_f32 v{T4}, v{T4}, v{vG}
        v_cmp_nlt_f32 vcc, {f32hex(2.0**-60)}, v{T1}
        v_cmp_ngt_f32 s[4:5], s42, v{T1}
        s_or_b64 s[4:5], s[4:5], vcc
        v_cmp_nlt_f32 vcc, {f32hex(2.0**-60)}, v{T5}
        v_cmp_ngt_f32 s[18:19], s42, v{T5}
        s_or_b64 s[4:5], s[4:5], vcc
        s_or_b64 s[4:5], s[4:5], s[18:19]
        s_cbranch_scc1 {N}_finm
        ''')
        for t in range(2):
            for r in range(0, 12, 2):
                a.I(f'v_pk_mul_f32 {vr(OK_+16*t+r,2)}, {vr(OK_+16*t+r,2)}, {vr(T0+4*t,2)} op_sel_hi:[1,0]')
            for k in range(4):
                cv(PKO + 4*t + k, OK_ + 16*t + 2 * k)
            for k in range(4):
                a.I(f'v_min_u32 v{PKO+4*t+k}, -2, v{PKO+4*t+k}')
            a.I(f'buffer_store_dwordx4 {vr(PKO+4*t,4)}, v{vK1a}, {W}, s37 offen offset:{1024*t} sc1')
            cv(PKO + 8 + 2*t, OK_ + 16*t + 8); cv(PKO + 9 + 2*t, OK_ + 16*t + 10)
        for k in range(8, 12):
            a.I(f'v_min_u32 v{PKO+k}, -2, v{PKO+k}')
        a.I(f's_branch {N}_fin2')
    a.L(f'{N}_finm')
    for r in range(0, 12, 2):
        a.I(f'v_mov_b64 {vr(O+r,2)}, {vr(O+32+r,2)}')
        a.I(f'v_mov_b64 {vr(O+16+r,2)}, {vr(O+48+r,2)}')
    for r in range(0, 8, 2):
        a.I(f'v_mov_b64 {vr(Q1+r,2)}, {vr(Q1+8+r,2)}')
    for r in range(0, 4, 2):
        a.I(f'v_mov_b64 {vr(Q2+r,2)}, {vr(Q2+4+r,2)}')
    a.L(f'{N}_fin0')
    a.I('s_mov_b32 s43, 0')
    a.L(f'{N}_final')
    a.I(f'''
    v_mov_b32 v{T0}, v{O+8}
    v_mov_b32 v{T1}, v{O+8}
    v_mov_b32 v{T2}, 0
    v_mov_b32 v{T3}, 0
    v_permlane32_swap_b32 v{T0}, v{T1}
    ''')
    for r in range(12):
        a.I(f'v_fma_f32 v{T2}, v{O+r}, v{T3}, v{T2}')
    a.I(f'''
    v_add_f32 v{T2}, v{T2}, v{T1}
    v_cmp_nlt_f32 vcc, {f32hex(2.0**-60)}, v{T2}
    v_cmp_ngt_f32 s[4:5], s42, v{T2}
    s_or_b64 s[4:5], s[4:5], vcc
    s_cmp_eq_u64 s[4:5], 0
    s_cbranch_scc1 {N}_norm
    s_cmp_lg_u32 s43, 0
    s_cbranch_scc0 {N}_slow
    ''')
    a.L(f'{N}_norm')
    a.I(f'''
    v_rcp_f32 v{T1}, v{T1}
    s_nop 0
    v_mul_f32 v{T1}, v{T1}, v{vG}
    ''')
    for r in range(12):
        a.I(f'v_mul_f32 v{O+r}, v{T1}, v{O+r}')
    a.I(f's_cmp_lg_u32 s41, 0')
    a.I(f's_cbranch_scc1 {N}_fin1')
    for k in range(4):
        cv(PKO + k, O + 2 * k)
    cv(PKO + 8, O + 8); cv(PKO + 9, O + 10)
    for k in (0, 1, 2, 3, 8, 9): a.I(f'v_min_u32 v{PKO+k}, -2, v{PKO+k}')
    a.I(f'buffer_store_dwordx4 {vr(PKO,4)}, v{vK1a}, {W}, s37 offen sc1')
    for r in range(12):
        a.I(f'v_mov_b32 v{O+r}, v{O+16+r}')
    for r in range(4):
        a.I(f'v_mov_b32 v{Q1+r}, v{Q1+4+r}')
    for r in range(2):
        a.I(f'v_mov_b32 v{Q2+r}, v{Q2+2+r}')
    a.I('s_mov_b32 s41, 1')
    a.I(f's_branch {N}_fin0')
    a.L(f'{N}_fin1')
    for k in range(4):
        cv(PKO + 4 + k, O + 2 * k)
    cv(PKO + 10, O + 8); cv(PKO + 11, O + 10)
    for k in (4, 5, 6, 7, 10, 11): a.I(f'v_min_u32 v{PKO+k}, -2, v{PKO+k}')
    a.I(f'buffer_store_dwordx4 {vr(PKO+4,4)}, v{vK1a}, {W}, s37 offen offset:1024 sc1')
    a.L(f'{N}_fin2')
    a.I(f'''
    s_mov_b32 exec_hi, 0
    buffer_store_dwordx4 {vr(PKO+8,4)}, v{vK1a}, {W}, s40 offen sc1
    s_mov_b32 exec_hi, -1
    ''')
    a.stamp(7)
    vR = 249
    vA = 254
    CACC = 24
    AF = 44
    WF = 84
    if OPT['ct'] == 1: arrive(C_T, T4, T5)
    a.I(f'''
    s_mov_b32 s100, {RB}
    s_call_b64 {RET}, {N}_gsetup
    s_and_b32 s3, s8, {OPT['par']}
    s_mul_i32 s3, s3, 20480
    s_add_u32 s22, s21, s3
    ''')
    zero(CACC, CACC+20)
    ldswait(C_E, 4, T4, T5)
    if OPT['ct'] == 2: arrive(C_T, T4, T5)
    a.stamp(8)
    if OPT['cl']: a.I(f"""
    s_add_u32 s23, s22, 4096
    s_add_u32 s26, s22, 8192
    s_add_u32 s27, s22, 12288
    s_add_u32 s28, s22, 16384
    s_mov_b32 s19, 0
    s_call_b64 {RET}, {N}_cl0
    """)
    a.I(f's_call_b64 {RET}, {N}_wpre')
    if OPT['ct'] == 0: arrive(C_T, T4, T5)
    a.stamp(9)
    a.I(f's_branch {N}_phaseC{OPT["cl"]}')

    a.L(f'{N}_slow')
    a.I(f'''
    s_mov_b32 s43, 1
    s_mov_b32 exec_lo, 0
    v_mov_b32 v{Q2}, 0
    v_mov_b32 v{Q2+1}, 0
    s_mov_b32 exec_lo, -1
    v_mov_b32 v{T4}, 0xff800000
    s_mov_b32 s14, {WS_KVF}
    ''')
    a.L(f'{N}_sl1')
    loadK(K1(0), K2(0), 's14')
    a.I(f'''
    s_waitcnt vmcnt(0)
    {MF32} {vr(S[0],16)}, {vr(K1(0),4)}, {vr(Q1,4)}, 0
    {MF32h} {vr(S[0],16)}, {vr(K2(0),2)}, {vr(Q2,2)}, {vr(S[0],16)}
    s_nop 7
    s_nop 7
    ''')
    for k in range(0, 16, 2):
        a.I(f'v_max3_f32 v{T4}, v{T4}, v{S[0]+k}, v{S[0]+k+1}')
    a.I(f'''
    s_add_u32 s14, s14, {KVT}
    s_cmp_lt_u32 s14, {WS_KVF+64*KVT}
    s_cbranch_scc1 {N}_sl1
    v_mov_b32 v{T5}, v{T4}
    s_nop 1
    v_permlane32_swap_b32 v{T4}, v{T5}
    s_nop 1
    v_max_f32 v{T4}, v{T4}, v{T5}
    v_sub_f32 v{T4}, 0, v{T4}
    v_and_b32 v{T0}, 0xffff0000, v{T4}
    v_sub_f32 v{T4}, v{T4}, v{T0}
    v_and_b32 v{T1}, 0xffff0000, v{T4}
    v_sub_f32 v{T4}, v{T4}, v{T1}
    s_mov_b32 exec_lo, 0
    v_lshrrev_b32 v{T0}, 16, v{T0}
    v_or_b32 v{Q2}, v{T0}, v{T1}
    v_lshrrev_b32 v{Q2+1}, 16, v{T4}
    s_mov_b32 exec_lo, -1
    s_mov_b32 s14, {WS_KVF}
    ''')
    for r in range(16):
        a.I(f'v_mov_b32 v{O+r}, 0')
    a.L(f'{N}_sl2')
    loadK(K1(0), K2(0), 's14'); loadV(0, 's14')
    a.I(f'''
    s_waitcnt vmcnt(0)
    {MF32} {vr(S[0],16)}, {vr(K1(0),4)}, {vr(Q1,4)}, 0
    {MF32h} {vr(S[0],16)}, {vr(K2(0),2)}, {vr(Q2,2)}, {vr(S[0],16)}
    s_nop 7
    s_nop 7
    ''')
    for k in range(16): ex(S[0] + k)
    a.I('s_nop 0')
    for k in range(8): cv(P + k, S[0] + 2 * k)
    a.I(f'''
    s_nop 1
    {MF32} {vr(O,16)}, {vr(V1(0),4)}, {vr(P,4)}, {vr(O,16)}
    {MF32} {vr(O,16)}, {vr(V2(0),4)}, {vr(P+4,4)}, {vr(O,16)}
    s_add_u32 s14, s14, {KVT}
    s_cmp_lt_u32 s14, {WS_KVF+64*KVT}
    s_cbranch_scc1 {N}_sl2
    s_nop 7
    s_nop 7
    s_branch {N}_final
    ''')

    HACC = 172
    vHW = 236
    vHR = 240
    vF2, vF3 = 242, 243
    VWO = 244
    LA, LB, ONES, vOB = 148, 156, 168, 153
    a.L(f'{N}_hsetup')
    xbases()
    a.I(f"""
    s_sub_u32 s5, s9, 4
    s_lshl_b32 s3, s8, 9
    s_lshl_b32 s4, s5, 7
    s_add_u32 s3, s3, s4
    v_lshrrev_b32 v{T0}, 3, v{vL}
    v_and_b32 v{T1}, 7, v{vL}
    v_lshlrev_b32 v{vF3}, 7, v{T1}
    v_lshlrev_b32 v{T2}, 1, v{T0}
    v_and_b32 v{T2}, 4, v{T2}
    v_xor_b32 v{T1}, v{T1}, v{T2}
    v_mul_u32_u24 v{T0}, 3840, v{T0}
    v_lshl_add_u32 v{T0}, v{T1}, 4, v{T0}
    v_add_u32 v{vHW}, s3, v{T0}
    v_add_u32 v{vHW+1}, {8*3840}, v{vHW}
    v_add_u32 v{vHW+2}, {16*3840}, v{vHW}
    v_add_u32 v{vHW+3}, {24*3840}, v{vHW}
    s_lshl_b32 s3, s5, 13
    s_add_u32 s3, s3, {HR}
    v_bfe_u32 v{T0}, v{vL}, 2, 2
    v_lshl_add_u32 v{T1}, v{vH}, 3, v{T0}
    v_lshlrev_b32 v{T1}, 7, v{T1}
    v_and_b32 v{T2}, 3, v{vL}
    v_lshl_add_u32 v{T1}, v{T2}, 3, v{T1}
    v_bfe_u32 v{T2}, v{vL}, 4, 1
    v_lshl_add_u32 v{T1}, v{T2}, 5, v{T1}
    v_add_u32 v{T1}, s3, v{T1}
    v_lshrrev_b32 v{T0}, 1, v{T0}
    v_lshlrev_b32 v{T0}, 6, v{T0}
    v_add_u32 v{vHR}, v{T1}, v{T0}
    v_xor_b32 v{T0}, 64, v{T0}
    v_add_u32 v{vHR+1}, v{T1}, v{T0}
    v_lshlrev_b32 v{vOB}, 4, v{vC}
    v_lshl_add_u32 v{vOB+1}, v{T2}, 9, v{vOB}
    v_lshl_add_u32 v{vOB+1}, v{vH}, 8, v{vOB+1}
    s_cmp_eq_u32 s7, 0
    s_cselect_b32 s3, 0, {FG}
    v_mul_u32_u24 v{T1}, s3, v{vH}
    v_add_u32 v{vF2}, v{vF3}, v{T1}
    """)
    zero(HACC, HACC+64)
    a.I(f's_setpc_b64 {RET}')
    a.L(f'{N}_hsetup2')
    a.I(f"""
    s_sub_u32 s5, s9, 4
    s_mul_i32 s3, s8, 160
    s_lshl_b32 s4, s5, 6
    """)
    for j in range(5):
        a.I(f"""
        v_add_u32 v{T0}, s4, v{vL}
        v_add_u32 v{T0}, {j*256}, v{T0}
        v_mul_u32_u24 v{T1}, 6554, v{T0}
        v_lshrrev_b32 v{T1}, 16, v{T1}
        v_mul_u32_u24 v{T1}, {1280-160}, v{T1}
        v_lshl_add_u32 v{T1}, v{T0}, 4, v{T1}
        v_add_u32 v{VWO+j}, s3, v{T1}
        """)
    a.I(f"""
    s_lshl_b32 s100, s8, 2
    s_add_u32 s100, s100, s5
    s_mul_i32 s3, s100, 5
    s_lshr_b32 s4, s3, 2
    s_lshl_b32 s4, s4, 10
    s_and_b32 s3, s3, 3
    v_lshl_add_u32 v{T1}, v{vG4}, 9, s4
    v_lshl_add_u32 v{LA}, v{vC}, 4, v{T1}
    v_and_b32 v{T0}, 1, v{vG4}
    v_lshl_add_u32 v{T0}, v{vH}, 2, v{T0}
    v_subrev_u32 v{T0}, s3, v{T0}
    v_cmp_gt_u32 vcc, 5, v{T0}
    v_add_u32 v{T0}, 2, v{T0}
    v_cmp_gt_u32 s[4:5], 5, v{T0}
    v_cndmask_b32 v{LA+1}, 0, -1, vcc
    s_nop 0
    v_cndmask_b32 v155, 0, -1, s[4:5]
    s_mul_i32 s3, s100, 20
    v_and_b32 v{T4}, 1, v{vG4}
    v_lshlrev_b32 v{T4}, 9, v{T4}
    v_lshl_add_u32 v{T4}, v{vH}, 3, v{T4}
    """)
    for d in range(2):
        a.I(f"""
        v_add_u32 v{T1}, s3, v{vC}
        v_add_u32 v{T1}, {16*d}, v{T1}
        v_min_u32 v{T1}, 639, v{T1}
        v_lshrrev_b32 v{T2}, 5, v{T1}
        v_lshlrev_b32 v{T2}, 17, v{T2}
        v_and_b32 v{T1}, 31, v{T1}
        v_lshl_add_u32 v{T2}, v{T1}, 4, v{T2}
        v_add_u32 v{LA+2+d}, v{T2}, v{T4}
        """)
    a.I(f"""
    v_cmp_gt_u32 vcc, 4, v{vC}
    v_mov_b32 v{T1}, 0x7fffff00
    s_nop 0
    v_cndmask_b32 v{LA+3}, v{T1}, v{LA+3}, vcc
    """)
    a.I(f"""
    v_lshlrev_b32 v{LA+4}, 2, v{vC}
    v_lshlrev_b32 v{T1}, 2, v{vG4}
    v_sub_u32 v{T1}, v{vC}, v{T1}
    v_mov_b32 v{T3}, 0xff800000
    s_cmp_eq_u32 s7, 0
    s_cselect_b64 s[4:5], 0, -1
    """)
    for k in range(8):
        r, pv = k % 4, k // 4
        a.I(f"""
        v_add_u32 v{T2}, {16*pv - r}, v{T1}
        v_and_b32 v{T2}, 0xfffffff1, v{T2}
        v_cmp_eq_u32 vcc, 0, v{T2}
        v_mov_b32 v{ONES+r}, 0x3f803f80
        s_nop 0
        v_cndmask_b32 v{LB+k}, v{T3}, 0, vcc
        """)
        if pv:
            a.I(f'v_cndmask_b32 v{LB+4+k}, v{T3}, v{LB+k}, s[4:5]')
    a.I(f's_mov_b32 s100, {RA}')
    a.L(f'{N}_gsetup')
    a.I(f"""
    v_and_b32 v{T0}, 1, v{vG4}
    v_lshrrev_b32 v{T2}, 2, v{vC}
    v_mul_u32_u24 v{T2}, 160, v{T2}
    v_and_b32 v{T3}, 3, v{vC}
    v_lshl_add_u32 v{T2}, v{T3}, 3, v{T2}
    v_add_u32 v{T2}, s100, v{T2}
    v_mul_u32_u24 v{T3}, {4*160}, v{T0}
    v_add_u32 v{T3}, v{T3}, v{T2}
    v_mul_u32_u24 v{T0}, {40*160}, v{T0}
    v_add_u32 v{T0}, v{T0}, v{T2}
    v_mul_u32_u24 v{T1}, {20*160}, v{vH}
    v_add_u32 v{vR}, v{T1}, v{T3}
    v_cmp_eq_u32 vcc, 1, v{vH}
    """)
    for h in range(2):
        a.I(f"""
        v_add_u32 v{T1}, {(16+20*h)*160}, v{T0}
        v_add_u32 v{T2}, {(80+8*h)*160}, v{T3}
        v_cndmask_b32 v{vR+1+h}, v{T1}, v{T2}, vcc
        v_add_u32 v{T1}, {(140+8*h)*160}, v{T3}
        v_add_u32 v{T2}, {(96+20*h)*160}, v{T0}
        v_cndmask_b32 v{vR+3+h}, v{T1}, v{T2}, vcc
        """)
    a.I(f"""
    s_and_b32 s3, s9, 1
    s_lshl_b32 s3, s3, 8
    v_lshlrev_b32 v{vA}, 4, v{vC}
    v_lshl_add_u32 v{vA}, v{vG4}, 9, v{vA}
    v_add_u32 v{vA}, s3, v{vA}
    s_bfe_u32 s3, s9, 0x10001
    s_lshl_b32 s4, s7, 1
    s_add_u32 s3, s3, s4
    s_mul_i32 s21, s3, {OAB_PT}
    s_add_u32 s21, s21, {WS_OAB}
    s_setpc_b64 {RET}
    """)
    def waddr(k5, h):
        if k5 == 2: return vR + 1 + h, 0
        if k5 == 4: return vR + 3 + h, 0
        return vR, ({0: 0, 1: 40, 3: 100}[k5] + 8 * h) * 160
    def wread(s, base):
        st, k5 = divmod(s, 5)
        for t in range(5):
            for h in range(2):
                r, o = waddr(k5, h)
                yield f'ds_read_b64_tr_b16 {vr(base+t*4+2*h,2)}, v{r} offset:{(st&1)*25600 + o + t*32}'
    a.L(f'{N}_wpre')
    for s in range(8):
        for i in wread(s, WF + s*20): a.I(i)
    a.I(f's_setpc_b64 {RET}')


    a.L(f'{N}_wpf')
    a.I(f"""
    v_lshlrev_b32 v92, 4, v{vL}
    s_mov_b32 exec_hi, 0xff
    """)
    for r in range(10):
        a.I(f'buffer_load_dwordx4 v[96:99], v92, s[52:55], s15 offen offset:{(r%3)*1280}')
        if r % 3 == 2: a.I('s_add_u32 s15, s15, 3840')
    a.I(f"""
    s_mov_b32 exec_hi, -1
    s_setpc_b64 {RET}
    """)
    a.L(f'{N}_wob')
    a.I(f"""
    s_cmp_ge_u32 s15, s14
    s_cbranch_scc1 {N}_wob9
    s_setprio {OPT['hprio']}
    s_cmp_ge_u32 s15, 5
    s_cbranch_scc1 {N}_wobA
    s_add_u32 s3, s15, s13
    s_cmp_ge_u32 s3, 5
    s_cselect_b32 s4, 5, 0
    s_sub_u32 s3, s3, s4
    s_mul_i32 s4, s3, {128*1280}
    s_mul_i32 s5, s3, 20480
    s_add_u32 s5, s5, {RA}
    s_mov_b32 s3, 0
    s_branch {N}_wob1
    """)
    a.L(f'{N}_wobA')
    a.I(f"""
    s_mov_b32 s44, s24
    s_mov_b32 s45, s25
    s_add_u32 s3, s15, s13
    s_mul_i32 s4, s3, 86
    s_lshr_b32 s4, s4, 8
    s_mul_i32 s4, s4, 3
    s_sub_u32 s3, s3, s4
    s_mul_i32 s4, s3, {128*1280}
    s_mul_i32 s5, s3, 20480
    s_cmp_ge_u32 s15, 8
    s_cselect_b32 s20, 1, 0
    {'s_xor_b32 s20, s20, s8' if OPT['par'] else ''}
    s_and_b32 s20, s20, 1
    s_mul_i32 s20, s20, {320*1280}
    s_add_u32 s4, s4, s20
    s_cmp_ge_u32 s15, 8
    s_cselect_b32 s20, 0, {RB-RA}
    s_add_u32 s5, s5, s20
    s_lshr_b32 s3, s3, 1
    s_lshr_b32 s20, s10, 1
    s_mul_i32 s20, s20, s3
    s_add_u32 s3, s3, s20
    """)
    a.L(f'{N}_wob1')
    a.I('s_add_u32 s5, s5, s12')
    a.I('s_add_u32 s15, s15, 1')
    for j in range(5):
        if j == 2:
            a.I('s_cmp_eq_u32 s3, 2')
            a.I(f's_cbranch_scc1 {N}_wob8')
        if j == 3:
            a.I('s_cmp_eq_u32 s3, 1')
            a.I(f's_cbranch_scc1 {N}_wob8')
        a.I(f's_add_u32 m0, s5, {j*4096}')
        a.I('s_nop 0' if OPT['wsub'] < 0 else f's_waitcnt vmcnt({OPT["wsub"]})')
        a.I(f'buffer_load_dwordx4 v{VWO+j}, s[44:47], s4 offen lds')
    a.L(f'{N}_wob8')
    a.I(f's_setprio {OPT["cprio"]}')
    a.L(f'{N}_wob9')
    a.I(f's_setpc_b64 {RET}')

    a.L(f'{N}_extra')
    worksetup()
    EXX, EXW = 40, 72
    a.I(f'''
    ds_read_b64 {vr(CNT,2)}, v{vSY}
    v_mul_u32_u24 v{T0}, 40, v{vW0}
    v_add_u32 v{vWB_}, v{T0}, v{vW1}
    v_add_u32 v{vWB_}, {EXB}, v{vWB_}
    s_mov_b32 s12, 5120
    s_setprio 3
    s_sub_u32 s11, s9, 4
    s_and_b32 s3, s96, 1
    s_add_u32 s11, s11, s3
    s_lshl_b32 s15, s11, 12
    s_lshl_b32 s3, s7, 1
    s_add_u32 s3, s3, s11
    s_mul_i32 s3, s3, {KVT}
    s_add_u32 s13, s3, {WS_KVF}
    s_cmp_eq_u32 s96, 4
    s_cbranch_scc1 {N}_exG
    s_cmp_ge_u32 s96, 2
    s_cbranch_scc1 {N}_exV
    ''')
    def exloop(orient, gate=False):
        l = lab()
        def addr():
            a.I(f"""
            s_lshl_b32 s3, s60, 14
            s_add_u32 s3, s3, s15
            s_mul_i32 s4, s60, s12
            s_add_u32 s60, s60, 1
            s_cmp_eq_u32 s60, 5
            s_cselect_b32 s60, 0, s60
            s_add_u32 s10, s10, 1
            s_cmp_eq_u32 s10, 6
            s_cselect_b32 s10, 0, s10
            """)
            for k in range(4):
                a.I(f'v_add_u32 v{vCX+k}, s3, v{vXB+k}')
            a.I(f'v_add_u32 v{vCW}, s4, v{vWB_}')
        def reads(ks, tag):
            a.LG(f'ds_read_b128 {vr(EXX+ks*4,4)}, v{vCX+(ks&3)} offset:{(ks>>2)*8192}', tag)
            if gate:
                a.LG(f'ds_read_b128 {vr(EXW+ks*4,4)}, v{vCW} offset:{ks*32}', tag)
            else:
                for h in range(2):
                    a.LG(f'ds_read_b64_tr_b16 {vr(EXW+ks*4+2*h,2)}, v{vCW} offset:{(ks*16+4*h)*40}', tag)
        addr()
        vstamp(16)
        cntwait(l + 'w0', 10 if gate else 's10')
        vstamp(17)
        a.lg = []
        for ks in range(4): reads(ks, ks)
        q0 = list(a.lg)
        a.L(l)
        for u in range(8):
            if u == 4:
                addr()
                a.wait(lg=lambda t: t == 'c')
                cntwait(l + 'w', 's10', first=None)
            reads((u + 4) % 8, u + 4)
            if STAMPS and u == 5: a.I('s_memtime s[100:101]')
            if STAMPS and u == 3: a.I('s_add_u32 m0, s10, 24\nv_writelane_b32 v0, s100, m0')
            if u == 1:
                a.LG(f'ds_read_b64 {vr(CNT,2)}, v{vSY}', 'c')
            a.wait(lg=lambda t: t != 'c' and t <= u)
            d = vr(FACC, 16)
            x, w = vr(EXX + u * 4, 4), vr(EXW + u * 4, 4)
            if orient == 'T':
                a.I(f'{MF32} {d}, {w}, {x}, {d}')
            else:
                a.I(f'{MF32} {d}, {x}, {w}, {d}')
        assert a.lg == [t + 8 for t in q0], a.lg
        a.I(f"""
        s_cmp_lg_u32 s10, 0
        s_cbranch_scc1 {l}
        s_waitcnt lgkmcnt(0)
        s_mov_b64 exec, 1
        ds_add_u32 v{vSY}, v{vOne} offset:{C_F}
        s_mov_b64 exec, -1
        s_nop 7
        s_nop 3
        """)
        vstamp(18)
    exloop('T')
    r = FACC
    a.I(f'''
    v_lshlrev_b32 v{T0}, 4, v{vL}
    v_lshlrev_b32 v{T1}, 3, v{vL}
    ''')
    for k in range(6):
        cv(r + k, r + 2 * k)
    a.I(f'''
    s_mov_b32 exec_lo, 0
    v_mov_b32 v{r+4}, 0x3f803f80
    v_mov_b32 v{r+5}, 0x3f80
    s_mov_b32 exec_lo, -1
    buffer_store_dwordx4 {vr(r,4)}, v{T0}, {W}, s13 offen sc1
    s_mov_b32 exec_hi, 1
    buffer_store_dwordx2 {vr(r+4,2)}, v{T1}, {W}, s13 offen offset:{KV_K2} sc1
    s_mov_b32 exec_hi, -1
    ''')
    a.L(f'{N}_exflag')
    a.stamp(1)
    getnonce(T2, T4)
    a.I(f'''
    s_lshl_b32 s3, s7, 1
    s_lshr_b32 s4, s96, 1
    s_add_u32 s3, s3, s4
    s_lshl_b32 s3, s3, 7
    s_lshl_b32 s4, s11, 3
    s_add_u32 s3, s3, s4
    s_add_u32 s3, s3, {WS_FLG}
    v_mov_b32 v{T0}, 0
    s_waitcnt vmcnt(0)
    s_mov_b64 exec, 1
    buffer_store_dwordx2 {vr(T2,2)}, v{T0}, {W}, s3 offen sc1
    s_mov_b64 exec, -1
    ''')
    a.stamp(2)
    a.I(f's_branch {N}_hpre2')
    a.L(f'{N}_exV')
    exloop('N')
    a.I(f'''
    v_mul_u32_u24 v{T0}, 336, v{vH}
    v_lshl_add_u32 v{T0}, v{vP}, 4, v{T0}
    v_mov_b32 v{T1}, 0x3f803f80
    v_cmp_eq_u32 vcc, 20, v{vP}
    s_mov_b32 s4, 0x1fffff
    s_mov_b32 s5, 0x1fffff
    ''')
    for k in range(8):
        cv(r + k, r + 2 * k)
    for k in range(8):
        a.I(f'v_cndmask_b32 v{r+k}, v{r+k}, v{T1}, vcc')
    a.I(f'''
    s_mov_b64 exec, s[4:5]
    buffer_store_dwordx4 {vr(r,4)}, v{T0}, {W}, s13 offen offset:{KV_V1} sc1
    buffer_store_dwordx4 {vr(r+4,4)}, v{T0}, {W}, s13 offen offset:{KV_V2} sc1
    s_mov_b64 exec, -1
    ''')
    a.I(f's_branch {N}_exflag')
    a.L(f'{N}_exG')
    a.I(f'''
    v_lshlrev_b32 v{vWB_}, 4, v{vH}
    v_add_u32 v{vWB_}, {GV}, v{vWB_}
    s_setprio 0
    s_mov_b32 s12, 256
    ''')
    exloop('T', True)
    a.I(f'''
    s_lshl_b32 s3, s7, 8
    s_lshl_b32 s4, s11, 7
    s_add_u32 s3, s3, s4
    s_add_u32 s3, s3, {WS_G}
    v_mul_f32 v{T0}, {f32hex(-math.log2(math.e))}, v{FACC}
    v_exp_f32 v{T0}, v{T0}
    v_lshlrev_b32 v{T1}, 2, v{vP}
    v_add_f32 v{T0}, 1.0, v{T0}
    v_rcp_f32 v{T0}, v{T0}
    s_mov_b32 exec_hi, 0
    buffer_store_dword v{T0}, v{T1}, {W}, s3 offen sc1
    s_mov_b32 exec_hi, -1
    ''')
    a.L(f'{N}_hpre2')
    a.I('s_setprio 0')
    a.I(f's_call_b64 {RET}, {N}_hsetup2')
    a.L(f'{N}_hpre')
    PD = OPT['PD']
    HX = 28
    HWf = 60
    srd(a, 48, 38, WS_END)
    srd(a, 44, 28, 2457600)
    a.I(f'''
    s_sub_u32 s10, s9, 4
    s_lshl_b32 s3, s8, 9
    s_lshl_b32 s4, s10, 7
    s_add_u32 s11, s3, s4
    s_lshl_b32 s12, s10, 13
    s_add_u32 s12, s12, {HR}
    ''')
    if not OPT['map2']:
        a.I('s_and_b32 s3, s7, 3\ns_mul_i32 s3, s3, 5\ns_lshr_b32 s13, s3, 1')
    else:
        a.I('s_and_b32 s3, s7, 7\ns_mul_i32 s3, s3, 5\ns_lshr_b32 s13, s3, 2')
    a.I(f'''
    s_mul_i32 s14, s13, {64*3840}
    s_lshl_b32 s13, s13, 13
    s_mov_b32 s19, 0
    s_cmp_ge_u32 s11, 3840
    s_cselect_b32 s46, 0, s46
    ''')
    for k in range(4):
        a.I(f'v_add_u32 v{vCX+k}, s13, v{vXB+k}')
    getnonce(T2, T1)
    def p1check(first):
        a.I(f'''
        s_add_u32 s4, s4, 1
        s_waitcnt vmcnt({first})
        v_cmp_eq_u64 vcc, s[62:63], v[92:93]
        v_cmp_eq_u64 s[56:57], s[62:63], v[94:95]
        s_and_b64 vcc, vcc, s[56:57]
        s_cmp_eq_u64 vcc, -1
        s_cbranch_scc1 {N}_p1g
        ''')
    p1ld = f'buffer_load_dwordx4 v[92:95], v{T4}, {W}, s3 offen sc1'
    def p1rest():
        a.L(f'{N}_p1')
        a.I(p1ld)
        p1check(0)
        a.I(f'''
        s_cmp_lt_u32 s4, {SPIN}
        s_cbranch_scc1 {N}_p1
        ''')
        a.L(f'{N}_p1g')
        a.I(f'''
        v_mov_b32 v{T0}, {SYNC}
        v_mov_b32 v{T1}, 64
        ds_write_b32 v{T0}, v{T1} offset:{C_S1}
        ''')
        if OPT['kvpf']:
            a.I(f'''
            v_lshlrev_b32 v{T4}, 4, v{vL}
            s_mul_i32 s3, s6, {2*KVT}
            s_add_u32 s3, s3, {WS_KVF}
            s_add_u32 s5, s3, 4096
            ''')
            for k in range(4): a.I(f'buffer_load_dwordx4 v[92:95], v{T4}, {W}, s3 offen offset:{k*1024} sc1')
            a.I(f'buffer_load_dwordx4 v[92:95], v{T4}, {W}, s5 offen sc1')
            a.I(f'buffer_load_dwordx4 v[92:95], v{T4}, {W}, s5 offen offset:512 sc1')
        if STAMPS: a.I(f'v_writelane_b32 v0, s4, 25')
        vstamp(23)
        a.L(f'{N}_p1ok')
    if not OPT['p1m']:
        a.I(f'''
        s_cmp_lg_u32 s9, 5
        s_cbranch_scc1 {N}_p1ok
        ''')
        ldswait(C_Q + 4*OPT['p1start'], 4, T0, T1, sleep=1)
    a.I(f'v_lshlrev_b32 v{T4}, 7, v{vL}')
    if not OPT['p1m']:
        a.I(f's_mov_b32 s3, {WS_FLG}\ns_mov_b32 s4, 0')
        vstamp(22)
        p1rest()
    if OPT['hstart'] <= 4: ldswait(C_Q + 4*OPT['hstart'], 4, T0, T1, sleep=1)
    else: ldswait(C_H, 4, T0, T1, sleep=1)
    a.stamp(3)
    if OPT['p1m']:
        a.I(f'''
        s_mov_b32 s3, {WS_FLG}
        s_mov_b32 s4, 0
        s_cmp_lg_u32 s9, 5
        s_cbranch_scc1 {N}_p1a
        {p1ld}
        ''')
        a.L(f'{N}_p1a')
    a.I(f's_setprio {OPT["hprio"]}')
    hadv = [f's_add_u32 s14, s14, {32*3840}', f's_cmp_eq_u32 s14, {640*3840}', 's_cselect_b32 s14, 0, s14',
            's_add_u32 s19, s19, 1', 's_cmp_ge_u32 s19, 20', 's_cselect_b32 s46, 0, s46']
    def hm0(q, e): return f's_add_u32 m0, s12, {q*2048 + e*1024}'
    def hld(q, e): return f'buffer_load_dwordx4 v{vHW+(q&1)*2+e}, s[44:47], s14 offen lds'
    def hxr(q): return [f'ds_read_b128 {vr(HX+(q&1)*8+pt*4,4)}, v{vCX+q} offset:{pt*4096}' for pt in range(2)]
    def hwr(q): return [f'ds_read_b64_tr_b16 {vr(HWf+(q&1)*8+j*4+2*h,2)}, v{vHR+j} offset:{q*2048 + h*512}' for j in range(2) for h in range(2)]
    if OPT['hpf']:
        a.I(f'''
        s_bfe_u32 s5, s7, 0x10002
        s_mul_i32 s5, s5, {320*3840}
        s_and_b32 s20, s7, 3
        s_mul_i32 s20, s20, {16*3840}
        s_add_u32 s5, s5, s20
        s_add_u32 s5, s5, {256*3840}
        buffer_load_dwordx4 v[96:99], v{vHW}, s[44:47], s5 offen
        buffer_load_dwordx4 v[96:99], v{vHW+1}, s[44:47], s5 offen
        ''')
    for q_ in range(4):
        for e in range(2):
            a.I(hm0(q_, e)); a.I('s_nop 0'); a.I(hld(q_, e))
        if q_ & 1:
            for i in hadv: a.I(i)
    if OPT['p1m']:
        a.I(f's_cmp_lg_u32 s9, 5\ns_cbranch_scc1 {N}_p1ok')
        p1check(8 + 2*OPT['hpf'])
        p1rest()
    a.I('s_waitcnt vmcnt(6)')
    for i in hxr(0) + hwr(0): a.I(i)
    a.I(f"""
    s_cmp_ge_u32 s6, 16
    s_cselect_b32 s52, s24, s30
    s_cselect_b32 s53, s25, s31
    s_mov_b32 s54, 819200
    s_mov_b32 s55, 0x20000
    s_and_b32 s3, s6, 15
    s_lshl_b32 s3, s3, 2
    s_add_u32 s3, s3, s10
    s_mul_i32 s15, s3, 12800
    s_lshr_b32 s3, s8, 2
    s_mul_i32 s3, s3, 640
    s_add_u32 s15, s15, s3
    s_mov_b32 s20, 0
    v_mov_b32 v95, {SYNC}
    s_cmp_lt_u32 s96, 4
    s_cselect_b32 s5, {OPT['bj'] % 10}, {OPT['bj'] // 10}
    v_lshlrev_b32 v92, 4, v{vL}
    v_mov_b32 v93, 0x7fffff00
    v_cmp_gt_u32 vcc, 40, v{vL}
    s_sub_u32 s15, s15, {2560*OPT['pf0'] if OPT['pf'] == 20 else 0}
    v_cndmask_b32 v92, v93, v92, vcc
    s_cmp_ge_u32 s8, 5
    s_cbranch_scc1 {N}_h1N
    """)
    def h1loop(orient):
        l = lab()
        a.L(l)
        if STAMPS:
            a.I('s_memtime s[96:97]\ns_mov_b32 m0, s20\ns_waitcnt lgkmcnt(0)\nv_writelane_b32 v0, s96, m0')
        if OPT['pf'] and OPT['pf'] <= 10:
            a.I(f's_cmp_lg_u32 s20, {OPT["pf"]-1}')
            a.I(f's_cbranch_scc1 {l}npf')
            a.I(f's_call_b64 {RET}, {N}_wpf')
            a.L(l + 'npf')
        for q in range(4):
            qn = (q + 1) & 3
            a.I(f's_waitcnt vmcnt({6 if OPT["pf"] == 20 and q else 4}) lgkmcnt(0)')
            fl = [hwr(qn), [hm0(q, 0)] + hxr(qn), [hld(q, 0), hm0(q, 1)], [hld(q, 1)]]
            if q & 1: fl[3] += hadv
            if OPT['boost'] and q % 2 == 0:
                fl[1] += [f'ds_read_b32 v94, v95 offset:{C_H}']
            if OPT['boost'] and q % 2 == 1:
                fl[0] += ['v_readfirstlane_b32 s3, v94', 's_cmp_lt_u32 s3, 5', f's_cbranch_scc1 {l}b{q}', 's_setprio 3', f'{l}b{q}:']
            if OPT['bj'] and q == 0:
                fl[0] += ['s_add_u32 s3, s20, s5', f's_cmp_lt_u32 s3, 10', f's_cbranch_scc1 {l}c', 's_setprio 3', f'{l}c:']
            if q == 0 and OPT['pf'] == 20:
                fl[2] += [f's_sub_u32 s3, s20, {OPT["pf0"]}', 's_cmp_lt_u32 s3, 5', 's_cselect_b32 s54, 819200, 0']
                fl[3] += ['buffer_load_dwordx4 v[96:99], v92, s[52:55], s15 offen',
                          'buffer_load_dwordx4 v[96:99], v92, s[52:55], s15 offen offset:1280', 's_add_u32 s15, s15, 2560']
            if q == 0:
                fl[3] += ['s_add_u32 s13, s13, 8192', 's_cmp_eq_u32 s13, 81920', 's_cselect_b32 s13, 0, s13', 's_add_u32 s20, s20, 1']
            if q == 2:
                fl[3] += [f's_setprio {OPT["xprio"]}'] + [f'v_add_u32 v{vCX+k}, s13, v{vXB+k}' for k in range(4)] + [f's_setprio {OPT["hprio"]}']
            if q == 3:
                fl[3] += ['s_cmp_lt_u32 s20, 10']
            m = 0
            for pt in range(2):
                for j in range(2):
                    d = vr(HACC + (pt * 2 + j) * 16, 16)
                    x, w = vr(HX + (q&1)*8 + pt*4, 4), vr(HWf + (q&1)*8 + j*4, 4)
                    if OPT['mprio'] != OPT['hprio']: a.I(f's_setprio {OPT["mprio"]}')
                    if orient == 'T':
                        a.I(f'{MF32} {d}, {w}, {x}, {d}')
                    else:
                        a.I(f'{MF32} {d}, {x}, {w}, {d}')
                    if m == 3 and q == 2:
                        for i in fl[m][1:]: a.I(i)
                        fl[m] = fl[m][:1]
                    if OPT['mprio'] != OPT['hprio']: a.I(f's_setprio {OPT["hprio"]}')
                    for i in fl[m]: a.I(i)
                    m += 1
        a.I(f"""
        s_cbranch_scc1 {l}
        s_waitcnt vmcnt(0) lgkmcnt(0)
        s_setprio {OPT['eprio']}
        """)
        arrive(C_H)
        if OPT['pf'] == 11:
            a.I(f's_setprio {OPT["hprio"]}')
            a.I(f's_call_b64 {RET}, {N}_wpf')
            a.I(f's_setprio {OPT["vprio"]}')
        a.I(f"""
        v_lshlrev_b32 v104, 4, v{vL}
        s_mul_i32 s3, s7, {2*OAB_PT}
        s_mul_i32 s4, s8, 5120
        s_add_u32 s3, s3, s4
        v_mov_b64 v[100:101], -1
        v_mov_b64 v[102:103], -1
        s_and_b32 s4, s10, 1
        s_mul_i32 s4, s4, {OAB_PT}
        s_add_u32 s3, s3, s4
        s_lshr_b32 s4, s10, 1
        s_lshl_b32 s4, s4, 11
        s_add_u32 s3, s3, {WS_OAB}
        s_add_u32 s42, s4, s3
        s_add_u32 s43, s42, 40960
        """)
        for r in range(HACC, HACC + 64, 16):
            for k in range(8):
                cv(r + k, r + 2 * k)
        a.I(f's_setprio {OPT["sprio"]}')
        if STAMPS:
            a.I('s_memtime s[96:97]\ns_mov_b32 m0, s20\ns_waitcnt lgkmcnt(0)\nv_writelane_b32 v0, s96, m0')
    h1loop('T')
    a.I(f'''
    s_lshl_b32 s3, s7, 1
    s_mul_i32 s3, s3, {QKB_PT}
    s_lshl_b32 s4, s11, 5
    s_add_u32 s3, s3, s4
    s_add_u32 s4, s3, {QKB_PT}
    ''')
    for pt in range(2):
        for j in range(2):
            r = HACC + (pt * 2 + j) * 16
            for b in range(2):
                a.I(f'buffer_store_dwordx4 {vr(r+4*b,4)}, v104, {W}, s{3+pt} offen offset:{(2*j+b)*1024} sc1')
    a.I(f's_branch {N}_h1done')
    a.L(f'{N}_h1N')
    h1loop('N')
    a.I(f'''
    s_cmp_ge_u32 s11, 3840
    s_cbranch_scc1 {N}_h1done
    s_sub_u32 s3, s11, 2560
    s_lshl_b32 s3, s3, 11
    s_lshl_b32 s4, s7, 12
    s_add_u32 s3, s3, s4
    s_add_u32 s3, s3, {WS_VBT}
    s_add_u32 s4, s3, {VBT_NT}
    ''')
    for pt in range(2):
        for j in range(2):
            r = HACC + (pt * 2 + j) * 16
            for b in range(2):
                a.I(f'buffer_store_dwordx4 {vr(r+4*b,4)}, v104, {W}, s{3+j} offen offset:{(2*pt+b)*1024} sc1')
    a.L(f'{N}_h1done')
    for k in range(3): a.I(f'buffer_store_dwordx4 v[100:103], v104, {W}, s43 offen offset:{k*1024} sc1')
    a.I(f's_setprio {OPT["cprio"]}')
    a.stamp(4)
    def setflag(word, cw):
        l = lab()
        a.I(f'''
        v_mov_b32 v{T0}, {SYNC}
        v_mov_b32 v{T1}, 1
        s_mov_b64 exec, 1
        ds_add_rtn_u32 v{T1}, v{T0}, v{T1} offset:{cw}
        v_mov_b32 v{T0}, 0
        v_mov_b32 v{T2}, s62
        v_mov_b32 v{T3}, s63
        s_waitcnt lgkmcnt(0)
        v_cmp_eq_u32 vcc, 3, v{T1}
        s_cbranch_vccz {l}
        buffer_store_dwordx2 {vr(T2,2)}, v{T0}, {W}, s23 offen offset:{word*1024} sc1
        ''')
        a.L(l)
        a.I('s_mov_b64 exec, -1')
    def pollflag(soff, va, minb=None, sleep=OPT['psleep']):
        l = lab()
        a.I('s_mov_b32 s19, 0')
        a.L(l)
        if minb is not None:
            a.I(f's_call_b64 {RET}, {N}_wob')
        a.I(f'''
        buffer_load_dwordx2 {vr(T2,2)}, v{va}, {W}, {soff} offen sc1
        s_add_u32 s19, s19, 1
        s_waitcnt vmcnt(0)
        v_cmp_ne_u64 vcc, s[62:63], {vr(T2,2)}
        ''')
        if minb:
            a.I(f's_cmp_lt_u32 s15, {minb}')
            a.I(f's_cbranch_scc1 {l}')
        a.I(f's_cbranch_vccz {l}_ok')
        if sleep: a.I(f's_sleep {sleep}')
        a.I(f'''
        s_cmp_lt_u32 s19, {SPIN}
        s_cbranch_scc1 {l}
        ''')
        a.L(l + '_ok')
    def stream(lim):
        l = lab()
        a.L(l)
        a.I(f'''
        s_call_b64 {RET}, {N}_wob
        s_cmp_lt_u32 s15, {lim}
        s_cbranch_scc1 {l}
        ''')
    def pollshare(soff, va, pw, cw):
        l = lab()
        a.I(f's_cmp_lg_u32 s9, {pw}')
        a.I(f's_cbranch_scc1 {l}')
        pollflag(soff, va)
        arrive(cw)
        a.I(f's_branch {l}_ok')
        a.L(l)
        a.I(f'v_mov_b32 v{T3}, {SYNC}')
        a.I('s_mov_b32 s19, 0')
        a.I('s_waitcnt vmcnt(0)')
        a.L(l + '_w')
        a.I(f'''
        ds_read_b32 v{T2}, v{T3} offset:{cw}
        s_add_u32 s19, s19, 1
        s_waitcnt lgkmcnt(0)
        v_readfirstlane_b32 s3, v{T2}
        s_cmp_lg_u32 s3, 0
        s_cbranch_scc1 {l}_ok
        s_setprio {OPT['wprio']}
        s_sleep {OPT['wsleep']}
        s_cmp_lt_u32 s19, {SPIN*8}
        s_cbranch_scc1 {l}_w
        ''')
        a.L(l + '_ok')
    srd(a, 44, 30, 819200)
    LQ, LK, LV, LG = 28, 44, 64, 84
    LS, LP, M, LO, LL = 88, 120, 136, 172, 204
    a.I(f'''
    s_lshl_b32 s12, s10, 10
    s_mul_i32 s22, s7, {FG}
    s_add_u32 s22, s22, {WS_FG}
    s_lshl_b32 s3, s8, 7
    s_add_u32 s23, s22, s3
    s_and_b32 s13, s7, {7 if OPT['map2'] else 3}
    s_cmp_ge_u32 s13, 5
    s_cselect_b32 s3, 5, 0
    s_sub_u32 s13, s13, s3
    s_mov_b32 s14, {OPT['st2']}
    s_mov_b32 s15, 0
    s_lshl_b32 s3, s7, 1
    s_mul_i32 s29, s3, {QKB_PT}
    s_add_u32 s30, s29, {QKB_PT}
    s_add_u32 s31, s29, 40960
    s_add_u32 s32, s30, 40960
    s_sub_u32 s33, s31, {QKB_PT}
    s_lshl_b32 s26, s7, 12
    s_add_u32 s26, s26, {WS_VBT}
    s_sub_u32 s27, s26, 1024
    s_sub_u32 s28, s22, {FG}
    s_cmp_eq_u32 s7, 0
    s_cselect_b32 s33, s31, s33
    s_cselect_b32 s27, s26, s27
    s_cselect_b32 s28, s22, s28
    s_lshl_b32 s18, s7, 8
    s_add_u32 s18, s18, {WS_G}
    ''')
    a.I('s_waitcnt vmcnt(0)')
    vstamp(19)
    setflag(0, C_2)
    ldswait(C_H, 8, T2, T3, hp=OPT['cprio'])
    vstamp(20)
    stream(OPT['st2'])
    a.I(f's_setprio {OPT["hprio"]}')
    for k in range(3): a.I(f'buffer_store_dwordx4 v[100:103], v104, {W}, s42 offen offset:{k*1024} sc1')
    a.I(f's_setprio {OPT["cprio"]}')
    vstamp(21)
    pollshare('s28', vF2, 4, C_S2)
    if STAMPS: a.I('v_writelane_b32 v0, s19, 27')
    a.stamp(5)
    if STAMPS: a.I('v_writelane_b32 v0, s15, 31')
    a.I(f's_setprio {OPT["hprio"]}')
    for u in range(4):
        a.I(f'buffer_load_dwordx4 {vr(LQ+4*u,4)}, v{LA}, {W}, s{29+(u>>1)} offen offset:{256*(u&1)} sc1')
    for kt, (so, off) in enumerate([('s33', 256), ('s31', 0), ('s31', 256), ('s32', 0), ('s32', 256)]):
        a.I(f'buffer_load_dwordx4 {vr(LK+4*kt,4)}, v{LA}, {W}, {so} offen offset:{off} sc1')
    for d in range(2):
        for kt in range(5):
            so, off = ('s27', 0) if kt == 0 else ('s26', (kt - 1) * 1024)
            a.I(f'buffer_load_dwordx2 {vr(LV+10*d+2*kt,2)}, v{LA+2+d}, {W}, {so} offen offset:{off} sc1')
    for u in range(4):
        a.I(f'buffer_load_dword v{LG+u}, v{LA+4}, {W}, s18 offen offset:{64*u} sc1')
    a.I(f's_setprio {OPT["h2prio"]}')
    a.I(f'''
    s_lshl_b32 s3, s7, 1
    s_mul_i32 s36, s3, {OAB_PT}
    s_mul_i32 s3, s8, 5120
    s_add_u32 s36, s36, s3
    s_add_u32 s36, s36, {WS_OAB + 40960}
    s_lshl_b32 s3, s10, 10
    s_add_u32 s37, s36, s3
    s_add_u32 s38, s37, {OAB_PT}
    s_lshr_b32 s3, s10, 1
    s_lshl_b32 s3, s3, 9
    s_and_b32 s4, s10, 1
    s_lshl_b32 s4, s4, 3
    s_add_u32 s3, s3, s4
    s_add_u32 s40, s36, s3
    s_add_u32 s40, s40, 4096
    s_add_u32 s41, s40, {OAB_PT}
    v_mov_b32 v{T4}, {f32hex(CSCALE)}
    v_mov_b32 v{T5}, {f32hex(-CSCALE)}
    ''')
    a.I(f'''
    s_add_u32 s3, s15, s13
    s_cmp_ge_u32 s3, 5
    s_cselect_b32 s4, 5, 0
    s_sub_u32 s3, s3, s4
    s_mul_i32 s42, s3, {128*1280}
    s_mul_i32 s43, s3, 20480
    s_add_u32 s43, s43, s12
    s_add_u32 s15, s15, {OPT['h2d']}
    s_mov_b32 s14, 5
    ''')
    nd = [0]
    def hd():
        if not OPT['h2d']: return
        j = nd[0]; nd[0] += 1
        a.I(f's_add_u32 m0, s43, {RA + j*4096}')
        a.I(f's_setprio {OPT["hprio"]}')
        a.I(f'buffer_load_dwordx4 v{VWO+j}, s[44:47], s42 offen lds')
        a.I(f's_setprio {OPT["h2prio"]}')
    a.I('s_waitcnt vmcnt(19)')
    for u in range(4):
        for k in range(4):
            a.I(f'v_and_b32 v{LQ+4*u+k}, v{LA+1 if k < 2 else 155}, v{LQ+4*u+k}')
    a.I('s_waitcnt vmcnt(14)')
    vstamp(24)
    a.I(f's_setprio {OPT["h2m"]}')
    for u in range(4):
        bp = LB + 8 if u == 0 else LB + 4
        a.I(f'{MF16} {vr(LS+8*u,4)}, {vr(LK+4*u,4)}, {vr(LQ+4*u,4)}, {vr(bp,4)}')
        a.I(f'{MF16} {vr(LS+8*u+4,4)}, {vr(LK+4*u+4,4)}, {vr(LQ+4*u,4)}, {vr(LB,4)}')
    hd()
    a.I('s_nop 3')
    for u in range(4):
        s = LS + 8 * u
        m = M + 2 * u
        a.I(f'''
        v_max3_f32 v{m}, v{s}, v{s+1}, v{s+2}
        v_max3_f32 v{m}, v{m}, v{s+3}, v{s+4}
        v_max3_f32 v{m}, v{m}, v{s+5}, v{s+6}
        v_max_f32 v{m}, v{m}, v{s+7}
        v_mov_b32 v{m+1}, v{m}
        ''')
    a.I('s_nop 1')
    for u in range(4):
        a.I(f'v_permlane16_swap_b32 v{M+2*u}, v{M+2*u+1}')
    for u in range(4):
        a.I(f'v_max_f32 v{M+2*u}, v{M+2*u}, v{M+2*u+1}')
    for u in range(4):
        a.I(f'v_mov_b32 v{M+2*u+1}, v{M+2*u}')
    a.I('s_nop 1')
    for u in range(4):
        a.I(f'v_permlane32_swap_b32 v{M+2*u}, v{M+2*u+1}')
    for u in range(4):
        a.I(f'v_max_f32 v{M+2*u}, v{M+2*u}, v{M+2*u+1}')
    for u in range(4):
        a.I(f'v_mul_f32 v{M+2*u}, v{T5}, v{M+2*u}')
    for u in range(4):
        s = LS + 8 * u
        for k in range(0, 8, 2):
            a.I(f'v_pk_fma_f32 {vr(s+k,2)}, {vr(s+k,2)}, {vr(T4,2)}, {vr(M+2*u,2)} op_sel_hi:[1,0,0]')
        for k in range(8):
            ex(s + k)
        if u % 2 == 0: hd()
    a.I('s_nop 0')
    for u in range(4):
        for k in range(4):
            cv(LP + 4 * u + k, LS + 8 * u + 2 * k)
    a.I(f's_waitcnt vmcnt({nd[0]})')
    a.I(f'v_add_u32 v{T2}, {GL}, v{LA+4}')
    a.I(f's_setprio {OPT["h2m"]}')
    for u in range(4):
        a.I(f'{MF16} {vr(LL+4*u,4)}, {vr(ONES,4)}, {vr(LP+4*u,4)}, 0')
        a.I(f'{MF16} {vr(LO+8*u,4)}, {vr(LV+2*u,4)}, {vr(LP+4*u,4)}, 0')
        a.I(f'{MF16} {vr(LO+8*u+4,4)}, {vr(LV+10+2*u,4)}, {vr(LP+4*u,4)}, 0')
        a.I(f'ds_write_b32 v{T2}, v{LG+u} offset:{64*u}')
    a.I(f's_setprio {OPT["h2prio"]}')
    a.I('s_nop 3')
    for u in range(4):
        o = LO + 8 * u
        a.I(f'''
        v_rcp_f32 v{T2}, v{LL+4*u}
        v_sub_f32 v{T3}, 1.0, v{LG+u}
        v_mul_f32 v{T2}, v{T2}, v{T3}
        ''')
        for k in range(0, 8, 2):
            a.I(f'v_pk_mul_f32 {vr(o+k,2)}, {vr(o+k,2)}, {vr(T2,2)} op_sel_hi:[1,0]')
        p = LS + 4 * (u >> 1) + 2 * (u & 1)
        cv(p, o); cv(p + 1, o + 2)
        cv(o, o + 4); cv(o + 1, o + 6)
        for r in (p, p + 1, o, o + 1): a.I(f'v_min_u32 v{r}, -2, v{r}')
        if u % 2 == 0: hd()
    a.I('s_nop 1')
    for pp in range(2):
        p = LS + 4 * pp
        a.I(f'v_permlane32_swap_b32 v{p}, v{p+2}')
        a.I(f'v_permlane32_swap_b32 v{p+1}, v{p+3}')
        a.I(f'buffer_store_dwordx4 {vr(p,4)}, v{vOB+1}, {W}, s{37+pp} offen sc1')
    a.I('s_mov_b64 exec, 0xffff')
    for u in range(4):
        a.I(f'buffer_store_dwordx2 {vr(LO+8*u,2)}, v{vOB}, {W}, s{40+(u>>1)} offen offset:{256*(u&1)} sc1')
    a.I('s_mov_b64 exec, -1')
    a.stamp(6)
    stream(5)
    dma = [(bi, j) for bi in range(3) for j in range(5 if bi < 2 else 3)]
    dma1 = list(dma)
    a.I('s_mov_b32 s44, s24\ns_mov_b32 s45, s25')
    a.I(f's_setprio {OPT["hprio"]}')
    for _ in range(OPT['pre1']):
        bi, j = dma1.pop(0)
        a.I(f's_add_u32 m0, s12, {RB + bi*20480 + j*4096}')
        a.I(f's_mov_b32 s4, {128*bi*1280}')
        a.I(f's_waitcnt vmcnt({OPT["wsub"]})')
        a.I(f'buffer_load_dwordx4 v{VWO+j}, s[44:47], s4 offen lds')
    a.I(f's_setprio {OPT["cprio"]}')
    a.I('s_waitcnt vmcnt(0)')
    arrive(C_H)
    a.stamp(7)
    HWR = 124
    NR = 6
    AW = OPT['AW']
    a.vm = []; a.lg = []
    def w3(s):
        for n, i in enumerate(wread(s, HWR + (s % NR) * 20)):
            a.LG(i, (s, n))
    def a3(s):
        a.VM(f'buffer_load_dwordx4 {vr(AF+4*s,4)}, v{vA}, {W}, s19 offen offset:{(s%2)*2048} sc1', s)
        if s % 2 == 1:
            a.I('s_add_u32 s19, s19, 4096')
    def check(s, nm):
        r = AF + 4 * s
        a.L(f'{N}_{nm}ck{s}')
        a.I(f"""
        s_setprio 3
        v_max3_u32 v{T0}, v{r}, v{r+1}, v{r+2}
        v_max3_u32 v{T1}, v{r+3}, v{r+4}, v{r+5}
        v_max3_u32 v{T0}, v{T0}, v{r+6}, v{r+7}
        v_max_u32 v{T0}, v{T0}, v{T1}
        v_cmp_eq_u32 vcc, -1, v{T0}
        s_setprio {OPT['h3prio'] if s < OPT['h3sw'] else 3}
        s_cbranch_vccnz {N}_{nm}rt{s}
        """)
        a.L(f'{N}_{nm}go{s}')
    a.I('s_add_u32 s19, s21, 40960')
    a.I('s_mov_b32 s18, 0')
    a.I(f's_setprio {OPT["hprio"]}')
    for s in range(AW): a3(s)
    a.I(f's_setprio {OPT["h3prio"]}')
    a.I('s_setprio 3')
    a.I(f'v_mov_b32 v{T4}, {SYNC}\nv_mov_b32 v{T5}, 1')
    ldswait(C_H, 12, T2, T3, hp=OPT['h3prio'])
    vstamp(11)
    if STAMPS: a.I('v_writelane_b32 v0, s15, 30')
    for s in range(NR - 1): w3(s)
    DS = OPT['dstart']
    for s in range(20):
        sn = s + NR - 1
        if s == OPT['h3sw']: OPT['h3prio'] = 3; a.I('s_setprio 3')
        if sn == 10:
            a.I('s_setprio 3')
            for k in range(5):
                a.I(f'v_add_u32 v{vR+k}, 51200, v{vR+k}')
            a.I(f's_setprio {OPT["h3prio"]}')
        if s == DS:
            a.wait(vm=lambda tg: tg < 100)
            for u in range(s + (s & 1), 20, 2): check(u, 'h')
            a.I('s_setprio 3')
            ldswait(C_M, 4, T2, T3, sleep=0, hp=OPT['h3prio'])
            a.lg = []
        if sn < 20: w3(sn)
        if s in (10, 15):
            if s == 15: a.wait(vm=lambda tg: tg <= 1000)
            a.I('s_mov_b64 exec, 1')
            a.LG(f'ds_add_u32 v{T4}, v{T5} offset:{C_M if s == 10 else C_E}', (s + 3, 99))
            a.I('s_mov_b64 exec, -1')
        a.wait(vm=lambda tg: tg <= s + 1 - (s & 1), lg=lambda tg: tg[0] <= s)
        if s % 2 == 0 and s < DS: check(s, 'h')
        for t in range(5):
            d = vr(CACC + 4 * t, 4)
            a.I(f'{MF16} {d}, {vr(HWR+(s%NR)*20+t*4,4)}, {vr(AF+4*s,4)}, {d if s else 0}')
            if t == 0 and s + AW < 20: a3(s + AW)
            if s >= OPT['d1'] and t in (1, 3) and dma1:
                bi, j = dma1.pop(0)
                a.I(f's_add_u32 m0, s12, {RB + bi*20480 + j*4096}')
                a.I(f's_mov_b32 s4, {128*bi*1280}')
                a.I(f's_setprio {OPT["hprio"]}')
                a.VM(f'buffer_load_dwordx4 v{VWO+j}, s[44:47], s4 offen lds', 1000)
                a.I(f's_setprio {OPT["h3prio"]}')
            elif s >= DS and t in (1, 3) and dma:
                bi, j = dma.pop(0)
                a.I(f's_add_u32 m0, s12, {RA + bi*20480 + j*4096}')
                a.I(f's_mov_b32 s4, {(320 + 128*bi)*1280}')
                if (bi, j) == (2, 2):
                    a.I(f's_cmp_ge_u32 s10, 2\ns_cbranch_scc1 {N}_nodma')
                a.I(f's_setprio {OPT["hprio"]}')
                a.VM(f'buffer_load_dwordx4 v{VWO+j}, s[44:47], s4 offen lds', 2000)
                a.I(f's_setprio {OPT["h3prio"]}')
                if (bi, j) == (2, 2):
                    assert s > 15
                    a.L(f'{N}_nodma')
    assert not dma and DS + AW >= 20 and DS > 10
    a.I('s_setprio 3')
    vstamp(12)
    if STAMPS: a.I('v_writelane_b32 v0, s18, 28')
    for k in range(5):
        a.I(f'v_subrev_u32 v{vR+k}, 51200, v{vR+k}')
    a.I('s_add_u32 s22, s21, 20480')
    a.I('s_waitcnt vmcnt(0)')
    arrive(C_H)
    a.stamp(8)
    a.I('s_setprio 0')
    ldswait(C_H, HDONE, T2, T3)
    vstamp(13)
    a.I(f's_call_b64 {RET}, {N}_wpre')
    vstamp(14)
    ldswait(C_T, 4, T2, T3)

    a.stamp(9)
    a.L(f'{N}_phaseC0')
    CS = [22, 23, 26, 27, 28]
    a.I(f"""
    s_add_u32 s23, s22, 4096
    s_add_u32 s26, s22, 8192
    s_add_u32 s27, s22, 12288
    s_add_u32 s28, s22, 16384
    s_mov_b32 s19, 0
    """)
    if OPT['cin']:
        for s in range(10):
            a.I(f'buffer_load_dwordx4 {vr(AF+4*s,4)}, v{vA}, {W}, s{CS[s//2]} offen offset:{(s%2)*2048} sc1')
    else: a.I(f's_call_b64 {RET}, {N}_cl0')
    a.L(f'{N}_phaseC1')
    a.stamp(10)
    a.vm = []; a.lg = []
    srd(a, 52, 34, 2048 * 1280)
    vPa = 12
    a.I(f'''
    s_and_b32 s5, s9, 3
    s_mul_i32 s3, s5, 6144
    s_add_u32 s3, s3, {EXA}
    v_lshlrev_b32 v{vPa}, 4, v{vL}
    v_add_u32 v{vPa}, s3, v{vPa}
    s_lshl_b32 s3, s5, 2
    s_add_u32 s3, s3, {SYNC + C_P}
    v_mov_b32 v{vPa+1}, s3
    v_mul_u32_u24 v{vPa+2}, 1280, v{vC}
    v_and_b32 v{vPa+4}, 1, v{vG4}
    v_lshl_add_u32 v{vPa+4}, v{vPa+4}, 5, v{vPa+2}
    v_lshl_add_u32 v{vPa+4}, v{vH}, 4, v{vPa+4}
    v_lshl_add_u32 v{vPa+2}, v{vG4}, 3, v{vPa+2}
    s_lshl_b32 s3, s7, 6
    s_lshl_b32 s4, s5, 4
    s_add_u32 s3, s3, s4
    s_mul_i32 s13, s3, 1280
    s_mul_i32 s5, s8, 160
    s_add_u32 s13, s13, s5
    v_mov_b32 v{vPa+3}, 1
    ''')
    a.I('s_waitcnt lgkmcnt(0)')
    for s in range(10):
        if s == 8: a.I('s_waitcnt lgkmcnt(10)')
        if s == 9: a.I('s_waitcnt lgkmcnt(0)')
        if s % 2 == 0:
            r = AF + 4 * s
            a.L(f'{N}_ck{s}')
            a.I(f"""
            s_waitcnt vmcnt({8-s})
            v_max3_u32 v{T0}, v{r}, v{r+1}, v{r+2}
            v_max3_u32 v{T1}, v{r+3}, v{r+4}, v{r+5}
            v_max3_u32 v{T0}, v{T0}, v{r+6}, v{r+7}
            v_max_u32 v{T0}, v{T0}, v{T1}
            v_cmp_eq_u32 vcc, -1, v{T0}
            s_cbranch_vccnz {N}_rt{s}
            """)
            a.L(f'{N}_go{s}')
        for t in range(5):
            d = vr(CACC + 4 * t, 4)
            a.I(f'{MF16} {d}, {vr(WF+(s%8)*20+t*4,4)}, {vr(AF+4*s,4)}, {d}')
        if s in (1, 2):
            for i in wread(7 + s, WF + (s - 1)*20): a.I(i)
    if STAMPS: a.I('v_writelane_b32 v0, s19, 29')
    a.stamp(11)
    a.I(f'''
    s_cmp_ge_u32 s9, 4
    s_cbranch_scc1 {N}_red
    s_nop 3
    ''')
    for t in range(5):
        a.I(f'ds_write_b128 v{vPa}, {vr(CACC+4*t,4)} offset:{t*1024}')
    a.I(f'''
    s_waitcnt lgkmcnt(0)
    ds_write_b32 v{vPa+1}, v{vPa+3}
    s_waitcnt lgkmcnt(0)
    s_branch {N}_fin
    ''')
    a.L(f'{N}_red')
    a.I('s_mov_b32 s4, 0')
    a.L(f'{N}_red1')
    a.I(f'ds_read_b32 v{T0}, v{vPa+1}')
    for t in range(5):
        a.I(f'ds_read_b128 {vr(AF+4*t,4)}, v{vPa} offset:{t*1024}')
    a.I(f'''
    s_add_u32 s4, s4, 1
    s_waitcnt lgkmcnt(5)
    v_readfirstlane_b32 s3, v{T0}
    s_cmp_lg_u32 s3, 0
    s_cbranch_scc1 {N}_red2
    s_cmp_lt_u32 s4, {SPIN*8}
    s_cbranch_scc1 {N}_red1
    ''')
    a.L(f'{N}_red2')
    for t in range(5):
        c, b = CACC + 4 * t, AF + 4 * t
        a.I(f's_waitcnt lgkmcnt({4-t})')
        a.I(f'v_pk_add_f32 {vr(c,2)}, {vr(c,2)}, {vr(b,2)}')
        a.I(f'v_pk_add_f32 {vr(c+2,2)}, {vr(c+2,2)}, {vr(b+2,2)}')
        d = CACC + 8 * (t >> 1) + 2 * (t & 1)
        cv(d, c); cv(d + 1, c + 2)
        if t == 4:
            a.I(f'buffer_store_dwordx2 {vr(d,2)}, v{vPa+2}, s[52:55], s13 offen offset:{t*32}')
        if t in (2, 4):
            d = CACC + 4 * (t - 2)
            a.I(f'v_permlane16_swap_b32 v{d}, v{d+2}')
            a.I(f'v_permlane16_swap_b32 v{d+1}, v{d+3}')
            a.I(f'buffer_store_dwordx4 {vr(d,4)}, v{vPa+4}, s[52:55], s13 offen offset:{(t-2)*32}')
    a.L(f'{N}_fin')
    if STAMPS:
        a.stamp(12)
        a.I('s_waitcnt vmcnt(0)')
        a.stamp(13)
        if OPT['dbg']:
            a.I('s_memrealtime s[94:95]')
            a.I('s_load_dwordx2 s[36:37], s[0:1], 80')
            a.I('s_waitcnt lgkmcnt(0)')
            srd(a, 56, 36, 256)
            a.I(f's_cmp_lg_u32 s2, {OPT["dbg"]-1}')
            a.I(f's_cbranch_scc1 {N}_end')
            a.I(f's_and_b32 s3, s9, 3')
            a.I(f's_cmp_lg_u32 s3, 0')
            a.I(f's_cbranch_scc1 {N}_end')
            a.I('s_mov_b64 exec, 1')
            a.I(f'v_mov_b32 v{T0}, 0')
            a.I('s_lshr_b32 s5, s9, 2')
            a.I('s_mul_i32 s5, s5, 28')
            sel = [2,4,5,8,10,13,15]
            selh = [3,4,5,7,8,10,13]
            a.I('s_sub_u32 s94, s94, s92')
            a.I('s_add_u32 s94, s94, s64')
            for k in range(7):
                a.I(f's_cmp_eq_u32 s9, 0')
                a.I(f's_cselect_b32 s3, s{64+2*sel[k]}, s{64+2*selh[k]}')
                a.I(f's_sub_u32 s3, s3, s64')
                a.I(f'v_mov_b32 v{T1}, s3')
                a.I(f'buffer_store_dword v{T1}, v{T0}, s[56:59], s5 offen offset:{8+4*k}')
            a.I(f's_branch {N}_end')
        a.dump_stamps(14, 48, WS_STAMP, 9, T0, T1)
        a.I(f'''
        v_lshlrev_b32 v{T0}, 2, v{vL}
        s_getreg_b32 s4, hwreg(HW_REG_HW_ID)
        v_writelane_b32 v0, s4, 15
        s_lshl_b32 s3, s2, 3
        s_add_u32 s3, s3, s9
        s_lshl_b32 s3, s3, 7
        s_add_u32 s3, s3, {WS_STAMP + 262144}
        s_mov_b32 exec_hi, 0
        buffer_store_dword v0, v{T0}, {W}, s3 offen
        ''')
    a.L(f'{N}_end')
    a.I('s_endpgm')
    for s in range(0, 10, 2):
        a.L(f'{N}_rt{s}')
        a.I(f"""
        s_add_u32 s19, s19, 1
        s_cmp_gt_u32 s19, {SPIN}
        s_cbranch_scc1 {N}_go{s}
        """)
        if OPT['rl']:
            for u in range(s, min(s + OPT['rl'], 10)):
                a.I(f'buffer_load_dwordx4 {vr(AF+4*u,4)}, v{vA}, {W}, s{CS[u//2]} offen offset:{(u%2)*2048} sc1')
            a.I('s_waitcnt vmcnt(0)')
        else:
            a.I(f's_call_b64 {RET}, {N}_cl{s}')
        a.I(f's_branch {N}_ck{s}')
    for s in range(0, 20, 2):
        a.L(f'{N}_hrt{s}')
        a.I(f"""
        s_add_u32 s18, s18, 1
        s_cmp_gt_u32 s18, {SPIN}
        s_cbranch_scc1 {N}_hgo{s}
        s_add_u32 s3, s21, {40960 + s*2048}
        s_add_u32 s4, s3, 4096
        """)
        for u in range(s, min(s + 4, 20)):
            a.I(f'buffer_load_dwordx4 {vr(AF+4*u,4)}, v{vA}, {W}, s{3+(u-s)//2} offen offset:{(u%2)*2048} sc1')
        a.I(f's_waitcnt vmcnt(0)')
        a.I(f's_branch {N}_hck{s}')
    for s in range(10):
        a.L(f'{N}_cl{s}')
        a.I(f'buffer_load_dwordx4 {vr(AF+4*s,4)}, v{vA}, {W}, s{CS[s//2]} offen offset:{(s%2)*2048} sc1')
    a.I(f's_setpc_b64 {RET}')
    a.L(f'{N}_last')
    return a.text()

def build(path):
    hdr = open('gated_mix__grouped_kv_mqa__sliding_local_dilated__prompt.s.ref').read().split('\n')
    head = [l for l in hdr if l.startswith(';') and '@launch' not in l]
    s = '\n'.join(head) + '\n'
    s += f'; @launch grid=(256,1,1) block=(512,1,1) lds={LDS}\n'
    s += '.amdgcn_target "amdgcn-amd-amdhsa--gfx950"\n.text\n'
    s += gen()
    s += '.section .rodata,"a"\n'
    s += kernel_desc(KNAME, 256, 0, 102)
    open(path, 'w').write(s)

if __name__ == '__main__':
    for arg in sys.argv[2:]:
        if arg == 'stamps': STAMPS = True
        elif '=' in arg:
            k, v = arg.split('='); OPT[k] = int(v)
    build(sys.argv[1])
```
